```python
import torch

def _softmax(x, axis=-1):
    return torch.softmax(x, dim=axis)
def _gelu(x):
    return torch.nn.functional.gelu(x, approximate="tanh")
def _silu(x):
    return torch.nn.functional.silu(x)
def _sigmoid(x):
    return torch.sigmoid(x)
def _layernorm(x, axis=-1, eps=1e-5):
    m = x.mean(dim=axis, keepdim=True)
    v = x.var(dim=axis, keepdim=True, unbiased=False)
    return (x - m) / torch.sqrt(v + eps)
def _scatter_add(tgt, idx, src, axis=0):
    return tgt.clone().index_add_(axis, idx, src)
def _segment_sum(src, seg, n):
    out = torch.zeros((n,) + src.shape[1:], dtype=src.dtype)
    return out.index_add_(0, seg, src)
def _pad(x, pw):
    flat = tuple(v for pair in reversed(pw) for v in pair)
    return torch.nn.functional.pad(x, flat)

kernel_name = 'concat_heads__mha_block__softmax_full_mha__prompt'

def setup_inputs():

    _w = (lambda a: (lambda t: t.to(torch.bfloat16) if t.is_floating_point() else t)(torch.as_tensor(a)))
    def _A_setup():
        B, S, D, H = 1, 2048, 640, 32
        return {
            "x": _w((lambda *s: torch.randn(*s, dtype=torch.bfloat16) * 0.2)(B, S, D)),
            "wqkv": _w((lambda *s: torch.randn(*s, dtype=torch.bfloat16) * 0.2)(D, 3 * D)),
            "wo": _w((lambda *s: torch.randn(*s, dtype=torch.bfloat16) * 0.05)(D, D)),
        }
    _A_in = _A_setup()

    def _B_setup():
        B, S, D = 1, 2048, 640
        return {
            "x": _w((lambda *s: torch.randn(*s, dtype=torch.bfloat16) * 0.2)(B, S, D)),
            "wqkv": _w((lambda *s: torch.randn(*s, dtype=torch.bfloat16) * 0.2)(D, 3 * D)),
            "wo": _w((lambda *s: torch.randn(*s, dtype=torch.bfloat16) * 0.05)(D, D)),
        }
    _B_in = _B_setup()

    return {
        "A_x": _A_in["x"],
        "A_wqkv": _A_in["wqkv"],
        "A_wo": _A_in["wo"],
        "B_x": _B_in["x"],
        "B_wqkv": _B_in["wqkv"],
        "B_wo": _B_in["wo"],
    }

def reference(A_x, A_wqkv, A_wo, B_x, B_wqkv, B_wo):
    def _A_ref(x, wqkv, wo):
        B, S, D = x.shape
        H = 32
        Dh = D // H
        qkv = (lambda x, *d: x.permute(*d))((x @ wqkv).reshape(B, S, 3, H, Dh), 2, 0, 3, 1, 4)
        q, k, v = qkv[0], qkv[1], qkv[2]
        scores = torch.einsum("bhqd,bhkd->bhqk", q, k) * (Dh ** -0.5)
        p = _softmax(scores, axis=-1)
        o = torch.einsum("bhqk,bhkd->bhqd", p, v)
        return (lambda x, *d: x.permute(*d))(o, 0, 2, 1, 3).reshape(B, S, D) @ wo

    def _B_ref(x, wqkv, wo):
        B, S, D = x.shape
        H = 32; Dh = D // H
        qkv = (lambda x, *d: x.permute(*d))((x @ wqkv).reshape(B, S, 3, H, Dh), 2, 0, 3, 1, 4)
        q, k, v = qkv[0], qkv[1], qkv[2]
        scale = Dh ** -0.5
        scores = torch.einsum("bhqd,bhkd->bhqk", q, k) * scale
        p = _softmax(scores, axis=-1)
        o = torch.einsum("bhqk,bhkd->bhqd", p, v)
        return (lambda x, *d: x.permute(*d))(o, 0, 2, 1, 3).reshape(B, S, D) @ wo

    a = _A_ref(A_x, A_wqkv, A_wo)
    b = _B_ref(B_x, B_wqkv, B_wo)
    return torch.concatenate([a, b], axis=-1)
```

```python
class Asm:
    def __init__(self):
        self.lines = []
        self._lab = 0
    def __call__(self, s):
        for ln in s.split("\n"):
            ln = ln.strip()
            if not ln:
                continue
            if ln.endswith(":") or ln.startswith("."):
                self.lines.append(ln)
            else:
                self.lines.append("    " + ln)
    def c(self, s):
        self.lines.append("    ; " + s)
    def label(self, base):
        self._lab += 1
        return "L_%s_%d" % (base, self._lab)
    def text(self):
        return "\n".join(self.lines) + "\n"

class Regs:
    def __init__(self, prefix, start, limit):
        self.p = prefix; self.n = start; self.limit = limit
    def alloc(self, cnt=1, align=1):
        self.n = (self.n + align - 1) // align * align
        r = self.n
        self.n += cnt
        assert self.n <= self.limit, "out of %s regs" % self.p
        return r

def v(r, n=1):
    return "v%d" % r if n == 1 else "v[%d:%d]" % (r, r + n - 1)
def s(r, n=1):
    return "s%d" % r if n == 1 else "s[%d:%d]" % (r, r + n - 1)

def kernel_header(a, name):
    a(".globl %s" % name)
    a(".p2align 8")
    a(".type %s,@function" % name)
    a("%s:" % name)

def kernel_desc(name, nvgpr, nsgpr):
    acc = (nvgpr + 3) // 4 * 4
    return """.amdhsa_kernel %s
  .amdhsa_next_free_vgpr %d
  .amdhsa_next_free_sgpr %d
  .amdhsa_accum_offset %d
  .amdhsa_group_segment_fixed_size 0
  .amdhsa_kernarg_size 72
  .amdhsa_user_sgpr_count 2
  .amdhsa_user_sgpr_kernarg_segment_ptr 1
  .amdhsa_system_sgpr_workgroup_id_x 1
.end_amdhsa_kernel
""" % (name, nvgpr, nsgpr, acc)
```

```python
import sys
sys.path.insert(0, "gen")
from asmlib import *

NAME = "concat_heads__mha_block__softmax_full_mha__prompt"
QBASE = 0
KVBASE = 0x500000
OBASE = 0xF00000
HSQ, TSQ = 81920, 1280
HSKV, TSKV = 163840, 2560
QSCALE = 0x3ea52b5c

HEADER = """; Kernarg layout for this problem (72 bytes, ptrs only, base s[0:1]):
"""

def load_kernargs(a):
    a("s_load_dwordx16 s[16:31], s[0:1], 0")
    a("s_load_dwordx2 s[32:33], s[0:1], 64")

def make_srd(a, d, base, off_sreg, nbytes):
    if off_sreg is None:
        a(f"s_mov_b32 s{d}, s{base}")
        a(f"s_mov_b32 s{d+1}, s{base+1}")
    else:
        a(f"s_add_u32 s{d}, s{base}, {off_sreg}")
        a(f"s_addc_u32 s{d+1}, s{base+1}, 0")
    a(f"s_mov_b32 s{d+2}, {nbytes}")
    a(f"s_mov_b32 s{d+3}, 0x00020000")

class Gemm:
    def __init__(self, a, vr, NW, WM, WN, tm, tn, NBUF, ldw, perm, srd_x, srd_w, s_wave, s_tmp):
        self.a = a; self.NW = NW; self.WM = WM; self.WN = WN; self.tm = tm; self.tn = tn
        self.NBUF = NBUF; self.ldw = ldw; self.perm = perm
        self.ROWS = WM * tm * 32; self.COLS = WN * tn * 32
        self.XB = self.ROWS * 128
        self.WRB = self.COLS * 2
        self.WB = 64 * self.WRB
        self.SB = self.XB + self.WB
        self.CPR = self.COLS // 8
        self.swz = (self.WRB % 256 == 0)
        self.xp = self.ROWS // 8; self.wp = self.COLS // 8
        self.nx = -(-self.xp // NW); self.nw = -(-self.wp // NW)
        assert self.nx <= 4 and self.nw <= 4
        self.nd = self.nx + self.nw
        self.srd_x = srd_x; self.srd_w = srd_w
        self.s_wave = s_wave
        t = s_tmp
        self.s_wm, self.s_wn, self.s_st, self.s_xoff, self.s_woff, self.s_m0x, self.s_m0w, self.s_rd, self.s_t0, self.s_t1, self.s_ld = range(t, t + 11)
        self.acc = vr.alloc(16 * tm * tn, 4)
        self.X = [[vr.alloc(4, 4) for i in range(tm)] for b in range(2)]
        self.W = [[vr.alloc(4, 4) for n in range(tn)] for b in range(2)]
        self.xa = [vr.alloc() for j in range(4)]
        self.wa = [vr.alloc() for n in range(tn)]
        self.gx = [vr.alloc() for i in range(self.nx)]
        self.gw = [vr.alloc() for i in range(self.nw)]
        self.lane = vr.alloc()
        self.t = [vr.alloc() for i in range(6)]
        self.nrd = tm + 2 * tn

    def accr(self, i, n):
        return self.acc + 16 * (i * self.tn + n)

    def setup_dma(self):
        a = self.a; t = self.t; lane = self.lane
        NW = self.NW
        a(f"v_and_b32 v{lane}, 63, v0")
        a(f"s_mul_i32 s{self.s_t0}, s{self.s_wave}, {self.nx}")
        if self.nx * NW > self.xp:
            assert self.nx == 1 and (self.xp & (self.xp - 1)) == 0
            a(f"s_and_b32 s{self.s_t0}, s{self.s_t0}, {self.xp-1}")
        a(f"s_lshl_b32 s{self.s_m0x}, s{self.s_t0}, 10")
        a(f"s_lshl_b32 s{self.s_t1}, s{self.s_t0}, 3")
        a(f"s_movk_i32 s{self.s_ld}, 1280")
        for i in range(self.nx):
            a(f"v_lshrrev_b32 v{t[0]}, 3, v{lane}")
            a(f"v_add_u32 v{t[0]}, s{self.s_t1}, v{t[0]}")
            if i: a(f"v_add_u32 v{t[0]}, {8*i}, v{t[0]}")
            a(f"v_lshrrev_b32 v{t[1]}, 1, v{t[0]}")
            a(f"v_xor_b32 v{t[1]}, v{t[1]}, v{lane}")
            a(f"v_and_b32 v{t[1]}, 7, v{t[1]}")
            a(f"v_lshlrev_b32 v{t[1]}, 4, v{t[1]}")
            a(f"v_mad_u32_u24 v{self.gx[i]}, v{t[0]}, s{self.s_ld}, v{t[1]}")
            if i: a(f"v_subrev_u32 v{self.gx[i]}, {1024*i}, v{self.gx[i]}")
        assert self.nw * NW == self.wp
        a(f"s_mul_i32 s{self.s_t0}, s{self.s_wave}, {self.nw}")
        a(f"s_lshl_b32 s{self.s_m0w}, s{self.s_t0}, 10")
        a(f"s_add_u32 s{self.s_m0w}, s{self.s_m0w}, {self.XB}")
        a(f"s_lshl_b32 s{self.s_t1}, s{self.s_t0}, 6")
        a(f"s_movk_i32 s{self.s_ld}, {self.ldw}")
        for i in range(self.nw):
            a(f"v_add_u32 v{t[0]}, s{self.s_t1}, v{lane}")
            if i: a(f"v_add_u32 v{t[0]}, {64*i}, v{t[0]}")
            if self.CPR == 16:
                a(f"v_lshrrev_b32 v{t[1]}, 4, v{t[0]}")
                a(f"v_and_b32 v{t[2]}, 15, v{t[0]}")
            else:
                assert self.CPR == 20
                a(f"v_mul_u32_u24 v{t[1]}, 3277, v{t[0]}")
                a(f"v_lshrrev_b32 v{t[1]}, 16, v{t[1]}")
                a(f"v_mul_u32_u24 v{t[2]}, 20, v{t[1]}")
                a(f"v_sub_u32 v{t[2]}, v{t[0]}, v{t[2]}")
            if self.swz:
                a(f"v_and_b32 v{t[3]}, 3, v{t[1]}")
                a(f"v_lshlrev_b32 v{t[3]}, 2, v{t[3]}")
                a(f"v_xor_b32 v{t[2]}, v{t[2]}, v{t[3]}")
            a(f"v_lshlrev_b32 v{t[2]}, 4, v{t[2]}")
            a(f"v_mad_u32_u24 v{self.gw[i]}, v{t[1]}, s{self.s_ld}, v{t[2]}")
            if i: a(f"v_subrev_u32 v{self.gw[i]}, {1024*i}, v{self.gw[i]}")
        a(f"s_mov_b32 s{self.s_xoff}, 0")
        a(f"s_mov_b32 s{self.s_woff}, 0")

    def issue_dma(self):
        a = self.a
        a(f"s_mov_b32 m0, s{self.s_m0x}")
        a(f"s_add_u32 s{self.s_m0x}, s{self.s_m0x}, {self.SB}")
        for i in range(self.nx):
            a(f"buffer_load_dwordx4 v{self.gx[i]}, s[{self.srd_x}:{self.srd_x+3}], s{self.s_xoff} offen offset:{1024*i} lds")
        a(f"s_mov_b32 m0, s{self.s_m0w}")
        a(f"s_add_u32 s{self.s_m0w}, s{self.s_m0w}, {self.SB}")
        for i in range(self.nw):
            a(f"buffer_load_dwordx4 v{self.gw[i]}, s[{self.srd_w}:{self.srd_w+3}], s{self.s_woff} offen offset:{1024*i} lds")
        a(f"s_add_u32 s{self.s_xoff}, s{self.s_xoff}, 128")
        a(f"s_add_u32 s{self.s_woff}, s{self.s_woff}, {64*self.ldw}")
        tot = self.SB * self.NBUF
        a(f"s_cmp_ge_u32 s{self.s_m0x}, {tot}")
        a(f"s_cselect_b32 s{self.s_t0}, {tot}, 0")
        a(f"s_sub_u32 s{self.s_m0x}, s{self.s_m0x}, s{self.s_t0}")
        a(f"s_sub_u32 s{self.s_m0w}, s{self.s_m0w}, s{self.s_t0}")

    def setup_reads(self):
        a = self.a; t = self.t; lane = self.lane
        if self.WN == 2:
            a(f"s_lshr_b32 s{self.s_wm}, s{self.s_wave}, 1")
            a(f"s_and_b32 s{self.s_wn}, s{self.s_wave}, 1")
        else:
            assert self.WN == 5
            a(f"s_mul_i32 s{self.s_wm}, s{self.s_wave}, 52")
            a(f"s_lshr_b32 s{self.s_wm}, s{self.s_wm}, 8")
            a(f"s_mul_i32 s{self.s_t0}, s{self.s_wm}, 5")
            a(f"s_sub_u32 s{self.s_wn}, s{self.s_wave}, s{self.s_t0}")
        a(f"v_and_b32 v{t[0]}, 31, v{lane}")
        a(f"v_lshrrev_b32 v{t[1]}, 5, v{lane}")
        a(f"v_lshrrev_b32 v{t[2]}, 1, v{t[0]}")
        a(f"v_and_b32 v{t[2]}, 7, v{t[2]}")
        a(f"s_mul_i32 s{self.s_t0}, s{self.s_wm}, {self.tm*32*128}")
        a(f"v_lshlrev_b32 v{t[0]}, 7, v{t[0]}")
        a(f"v_add_u32 v{t[0]}, s{self.s_t0}, v{t[0]}")
        for j in range(4):
            a(f"v_or_b32 v{t[3]}, {2*j}, v{t[1]}")
            a(f"v_xor_b32 v{t[3]}, v{t[3]}, v{t[2]}")
            a(f"v_lshl_add_u32 v{self.xa[j]}, v{t[3]}, 4, v{t[0]}")
        a(f"v_bfe_u32 v{t[0]}, v{lane}, 2, 2")
        a(f"v_lshl_add_u32 v{t[2]}, v{t[1]}, 3, v{t[0]}")
        a(f"s_movk_i32 s{self.s_ld}, {self.WRB}")
        a(f"v_mul_u32_u24 v{t[2]}, s{self.s_ld}, v{t[2]}")
        a(f"v_add_u32 v{t[2]}, {self.XB}, v{t[2]}")
        a(f"v_bfe_u32 v{t[3]}, v{lane}, 4, 1")
        a(f"v_and_b32 v{t[4]}, 3, v{lane}")
        if not self.perm:
            a(f"v_lshl_add_u32 v{t[3]}, v{t[3]}, 2, v{t[4]}")
        else:
            a(f"v_lshlrev_b32 v{t[3]}, 1, v{t[3]}")
            a(f"v_lshrrev_b32 v{t[5]}, 1, v{t[4]}")
            a(f"v_add_u32 v{t[3]}, v{t[3]}, v{t[5]}")
            a(f"v_and_b32 v{t[4]}, 1, v{t[4]}")
            a(f"v_lshl_add_u32 v{t[3]}, v{t[4]}, 2, v{t[3]}")
        a(f"v_lshl_add_u32 v{t[2]}, v{t[3]}, 3, v{t[2]}")
        for n in range(self.tn):
            a(f"s_mul_i32 s{self.s_t0}, s{self.s_wn}, {self.tn}")
            if n: a(f"s_add_u32 s{self.s_t0}, s{self.s_t0}, {n}")
            if self.swz:
                a(f"v_xor_b32 v{t[3]}, s{self.s_t0}, v{t[0]}")
            else:
                a(f"v_mov_b32 v{t[3]}, s{self.s_t0}")
            a(f"v_lshl_add_u32 v{self.wa[n]}, v{t[3]}, 6, v{t[2]}")
        for r in range(16 * self.tm * self.tn):
            a(f"v_mov_b32 v{self.acc+r}, 0")
        a(f"s_mov_b32 s{self.s_rd}, 0")

    def reads(self, j, b):
        a = self.a
        for i in range(self.tm):
            a(f"ds_read_b128 {v(self.X[b][i],4)}, v{self.xa[j]} offset:{4096*i}")
        for n in range(self.tn):
            for tt in range(2):
                a(f"ds_read_b64_tr_b16 {v(self.W[b][n]+2*tt,2)}, v{self.wa[n]} offset:{(16*j+4*tt)*self.WRB}")

    def mfmas(self, b, feat_rows):
        a = self.a
        for i in range(self.tm):
            for n in range(self.tn):
                d = v(self.accr(i, n), 16)
                A, B = (self.W[b][n], self.X[b][i]) if feat_rows else (self.X[b][i], self.W[b][n])
                a(f"v_mfma_f32_32x32x16_bf16 {d}, {v(A,4)}, {v(B,4)}, {d}")

    def prologue_issue(self):
        for i in range(self.NBUF):
            self.issue_dma()

    def mainloop(self, feat_rows):
        a = self.a; nd = self.nd; NB = self.NBUF
        L = a.label("gl"); Lw0 = a.label("gw0"); Lw = a.label("gw"); Lnd = a.label("gnd"); Llast = a.label("glast")
        a(f"s_waitcnt vmcnt({nd*(NB-1)})")
        a("s_barrier")
        self.reads(0, 0)
        a(f"s_mov_b32 s{self.s_st}, 0")
        a(f"{L}:")
        for j in range(3):
            self.reads(j + 1, (j + 1) & 1)
            a(f"s_waitcnt lgkmcnt({self.nrd})")
            self.mfmas(j & 1, feat_rows)
        a(f"s_cmp_eq_u32 s{self.s_st}, 9")
        a(f"s_cbranch_scc1 {Llast}")
        tot = self.SB * NB
        a(f"s_add_u32 s{self.s_rd}, s{self.s_rd}, {self.SB}")
        a(f"s_cmp_ge_u32 s{self.s_rd}, {tot}")
        a(f"s_cselect_b32 s{self.s_t1}, {tot}, 0")
        a(f"s_sub_u32 s{self.s_rd}, s{self.s_rd}, s{self.s_t1}")
        a(f"s_sub_u32 s{self.s_t1}, {self.SB}, s{self.s_t1}")
        for r in self.xa + self.wa:
            a(f"v_add_u32 v{r}, s{self.s_t1}, v{r}")
        a(f"s_cmp_gt_u32 s{self.s_st}, {9-(NB-1)}")
        a(f"s_cbranch_scc1 {Lw0}")
        a(f"s_waitcnt vmcnt({nd*(NB-2)}) lgkmcnt(0)")
        a(f"s_branch {Lw}")
        a(f"{Lw0}:")
        a(f"s_waitcnt vmcnt(0) lgkmcnt(0)")
        a(f"{Lw}:")
        a("s_barrier")
        self.reads(0, 0)
        a(f"s_cmp_ge_u32 s{self.s_st}, {10-NB}")
        a(f"s_cbranch_scc1 {Lnd}")
        self.issue_dma()
        a(f"{Lnd}:")
        self.mfmas(1, feat_rows)
        a(f"s_add_u32 s{self.s_st}, s{self.s_st}, 1")
        a(f"s_branch {L}")
        a(f"{Llast}:")
        a("s_waitcnt lgkmcnt(0)")
        self.mfmas(1, feat_rows)
        a("s_nop 15")

def gen_qkv(a):
    name = "qkv_kernel"
    kernel_header(a, name)
    vr = Regs("v", 1, 256)
    Lend = a.label("end"); Lv = a.label("vpath"); Lk = a.label("kset")
    a("s_cmp_ge_u32 s2, 240")
    a(f"s_cbranch_scc1 {Lend}")
    load_kernargs(a)
    SX, SW, SO = 4, 8, 12
    s_blk, s_mt, s_nt, s_wave, s_a, s_b, s_hs, s_ts, s_sc = range(36, 45)
    g = Gemm(a, vr, NW=8, WM=4, WN=2, tm=2, tn=2, NBUF=3, ldw=3840, perm=False, srd_x=SX, srd_w=SW, s_wave=s_wave, s_tmp=48)
    t = g.t
    a(f"v_lshrrev_b32 v{t[0]}, 6, v0")
    a(f"s_and_b32 s{s_a}, s2, 7")
    a(f"v_readfirstlane_b32 s{s_wave}, v{t[0]}")
    a(f"s_lshr_b32 s{s_b}, s2, 3")
    a(f"s_lshr_b32 s{s_blk}, s{s_a}, 2")
    a(f"s_bfe_u32 s{s_nt}, s{s_a}, 0x10001")
    a(f"s_mul_i32 s{s_nt}, s{s_nt}, 30")
    a(f"s_add_u32 s{s_b}, s{s_b}, s{s_nt}")
    a(f"s_lshr_b32 s{s_nt}, s{s_b}, 2")
    a(f"s_and_b32 s{s_mt}, s{s_a}, 1")
    a(f"s_lshl_b32 s{s_mt}, s{s_mt}, 2")
    a(f"s_and_b32 s{s_b}, s{s_b}, 3")
    a(f"s_add_u32 s{s_mt}, s{s_mt}, s{s_b}")
    g.setup_dma()
    a("s_waitcnt lgkmcnt(0)")
    a(f"s_cmp_eq_u32 s{s_blk}, 0")
    a("s_cselect_b64 s[16:17], s[16:17], s[22:23]")
    a("s_cselect_b64 s[18:19], s[18:19], s[24:25]")
    a(f"s_mul_i32 s{s_a}, s{s_mt}, {256*1280}")
    make_srd(a, SX, 16, f"s{s_a}", 256 * 1280)
    a(f"s_lshl_b32 s{s_a}, s{s_nt}, 8")
    make_srd(a, SW, 18, f"s{s_a}", 640 * 3840)
    a(f"s_sub_u32 s{SW+2}, s{SW+2}, s{s_a}")
    g.prologue_issue()
    g.setup_reads()
    a(f"s_cmp_ge_u32 s{s_nt}, 10")
    a(f"s_cbranch_scc1 {Lv}")
    g.mainloop(True)
    a(f"s_mov_b32 s{s_hs}, {HSQ}")
    a(f"s_mov_b32 s{s_ts}, {TSQ}")
    a(f"s_mov_b32 s{s_sc}, {QSCALE:#x}")
    a(f"s_mov_b32 s{s_b}, {QBASE}")
    a(f"s_cmp_lt_u32 s{s_nt}, 5")
    a(f"s_cbranch_scc1 {Lk}")
    a(f"s_mov_b32 s{s_hs}, {HSKV}")
    a(f"s_mov_b32 s{s_ts}, {TSKV}")
    a(f"s_mov_b32 s{s_sc}, 1.0")
    a(f"s_mov_b32 s{s_b}, {KVBASE}")
    a(f"s_sub_u32 s{s_nt}, s{s_nt}, 5")
    a(f"{Lk}:")
    a(f"s_lshl_b32 s{s_a}, s{s_blk}, 5")
    a(f"s_mul_i32 s{s_a}, s{s_a}, s{s_hs}")
    a(f"s_add_u32 s{s_b}, s{s_b}, s{s_a}")
    a(f"s_lshl_b32 s{s_a}, s{s_mt}, 2")
    a(f"s_add_u32 s{s_a}, s{s_a}, s{g.s_wm}")
    a(f"s_lshl_b32 s{s_a}, s{s_a}, 1")
    a(f"s_mul_i32 s{s_a}, s{s_a}, s{s_ts}")
    a(f"s_add_u32 s{s_b}, s{s_b}, s{s_a}")
    make_srd(a, SO, 32, f"s{s_b}", 32 * HSKV)
    a(f"s_lshl_b32 s{s_a}, s{s_nt}, 1")
    a(f"s_add_u32 s{s_a}, s{s_a}, s{g.s_wn}")
    a(f"s_lshl_b32 s{s_a}, s{s_a}, 4")
    a(f"s_sub_u32 s{s_hs}, s{s_hs}, 1280")
    a(f"v_lshrrev_b32 v{t[0]}, 5, v{g.lane}")
    a(f"v_add_u32 v{t[0]}, s{s_a}, v{t[0]}")
    a(f"v_and_b32 v{t[1]}, 31, v{g.lane}")
    a(f"v_lshlrev_b32 v{t[1]}, 3, v{t[1]}")
    for n in range(2):
        for q in range(4):
            a(f"v_add_u32 v{t[2]}, {8*n+2*q}, v{t[0]}")
            a(f"v_mul_u32_u24 v{t[3]}, 205, v{t[2]}")
            a(f"v_lshrrev_b32 v{t[3]}, 10, v{t[3]}")
            a(f"v_lshl_add_u32 v{t[2]}, v{t[2]}, 8, v{t[1]}")
            a(f"v_mad_u32_u24 v{t[2]}, v{t[3]}, s{s_hs}, v{t[2]}")
            for i in range(2):
                r = g.accr(i, n) + 4 * q
                for e in range(4):
                    a(f"v_mul_f32 v{r+e}, s{s_sc}, v{r+e}")
                a(f"v_cvt_pk_bf16_f32 v{r}, v{r}, v{r+1}")
                a(f"v_cvt_pk_bf16_f32 v{r+1}, v{r+2}, v{r+3}")
                so = "0" if i == 0 else f"s{s_ts}"
                a(f"buffer_store_dwordx2 {v(r,2)}, v{t[2]}, s[{SO}:{SO+3}], {so} offen")
    a("s_endpgm")
    a(f"{Lv}:")
    g.mainloop(False)
    a(f"s_mul_i32 s{s_b}, s{s_blk}, {32*HSKV}")
    a(f"s_add_u32 s{s_b}, s{s_b}, {KVBASE+1280}")
    a(f"s_lshl_b32 s{s_a}, s{s_mt}, 2")
    a(f"s_add_u32 s{s_a}, s{s_a}, s{g.s_wm}")
    a(f"s_mul_i32 s{s_a}, s{s_a}, {2*TSKV}")
    a(f"s_add_u32 s{s_b}, s{s_b}, s{s_a}")
    make_srd(a, SO, 32, f"s{s_b}", 32 * HSKV)
    a(f"s_sub_u32 s{s_a}, s{s_nt}, 10")
    a(f"s_lshl_b32 s{s_a}, s{s_a}, 1")
    a(f"s_add_u32 s{s_a}, s{s_a}, s{g.s_wn}")
    a(f"s_lshl_b32 s{s_a}, s{s_a}, 6")
    a(f"s_mov_b32 s{s_hs}, {HSKV-320}")
    a(f"v_and_b32 v{t[0]}, 31, v{g.lane}")
    a(f"v_add_u32 v{t[0]}, s{s_a}, v{t[0]}")
    a(f"v_lshrrev_b32 v{t[1]}, 5, v{g.lane}")
    a(f"v_mul_u32_u24 v{t[1]}, 320, v{t[1]}")
    for n in range(2):
        a(f"v_add_u32 v{t[2]}, {32*n}, v{t[0]}")
        a(f"v_mul_u32_u24 v{t[3]}, 3277, v{t[2]}")
        a(f"v_lshrrev_b32 v{t[3]}, 16, v{t[3]}")
        a(f"v_lshl_add_u32 v{t[2]}, v{t[2]}, 4, v{t[1]}")
        a(f"v_mad_u32_u24 v{t[4+n]}, v{t[3]}, s{s_hs}, v{t[2]}")
        for i in range(2):
            for fr in range(2):
                r = g.accr(i, n) + 8 * fr
                for e in range(4):
                    a(f"v_cvt_pk_bf16_f32 v{r+e}, v{r+2*e}, v{r+2*e+1}")
                a(f"buffer_store_dwordx4 {v(r,4)}, v{t[4+n]}, s[{SO}:{SO+3}], 0 offen offset:{i*TSKV+fr*640}")
    a(f"{Lend}:")
    a("s_endpgm")
    return name, vr.n, 64, g.SB * g.NBUF

def gen_out(a):
    name = "out_kernel"
    kernel_header(a, name)
    vr = Regs("v", 1, 128)
    Lend = a.label("end")
    a("s_cmp_ge_u32 s2, 256")
    a(f"s_cbranch_scc1 {Lend}")
    load_kernargs(a)
    SX, SW, SO = 4, 8, 12
    s_blk, s_mt, s_nt, s_wave, s_a, s_b = range(36, 42)
    g = Gemm(a, vr, NW=10, WM=2, WN=5, tm=1, tn=1, NBUF=5, ldw=1280, perm=True, srd_x=SX, srd_w=SW, s_wave=s_wave, s_tmp=48)
    t = g.t
    a(f"v_lshrrev_b32 v{t[0]}, 6, v0")
    a(f"s_and_b32 s{s_a}, s2, 7")
    a(f"v_readfirstlane_b32 s{s_wave}, v{t[0]}")
    a(f"s_lshr_b32 s{s_b}, s2, 3")
    a(f"s_lshr_b32 s{s_blk}, s{s_a}, 2")
    a(f"s_and_b32 s{s_mt}, s{s_a}, 3")
    a(f"s_lshl_b32 s{s_mt}, s{s_mt}, 3")
    a(f"s_lshr_b32 s{s_nt}, s{s_b}, 2")
    a(f"s_add_u32 s{s_mt}, s{s_mt}, s{s_nt}")
    a(f"s_and_b32 s{s_nt}, s{s_b}, 3")
    g.setup_dma()
    a("s_waitcnt lgkmcnt(0)")
    a(f"s_cmp_eq_u32 s{s_blk}, 0")
    a("s_cselect_b64 s[20:21], s[20:21], s[26:27]")
    a(f"s_lshl_b32 s{s_a}, s{s_blk}, 5")
    a(f"s_add_u32 s{s_a}, s{s_a}, s{s_mt}")
    a(f"s_mul_i32 s{s_a}, s{s_a}, {64*1280}")
    a(f"s_add_u32 s{s_a}, s{s_a}, {OBASE}")
    make_srd(a, SX, 32, f"s{s_a}", 64 * 1280)
    a(f"s_mul_i32 s{s_a}, s{s_nt}, 320")
    make_srd(a, SW, 20, f"s{s_a}", 640 * 1280)
    a(f"s_sub_u32 s{SW+2}, s{SW+2}, s{s_a}")
    g.prologue_issue()
    g.setup_reads()
    g.mainloop(True)
    make_srd(a, SO, 28, None, 2048 * 2560)
    a(f"s_lshl_b32 s{s_a}, s{s_mt}, 1")
    a(f"s_add_u32 s{s_a}, s{s_a}, s{g.s_wm}")
    a(f"s_mul_i32 s{s_a}, s{s_a}, {32*2560}")
    a(f"s_mul_i32 s{s_b}, s{s_blk}, 1280")
    a(f"s_add_u32 s{s_a}, s{s_a}, s{s_b}")
    a(f"s_mul_i32 s{s_b}, s{s_nt}, 320")
    a(f"s_add_u32 s{s_a}, s{s_a}, s{s_b}")
    a(f"s_lshl_b32 s{s_b}, s{g.s_wn}, 6")
    a(f"s_add_u32 s{s_a}, s{s_a}, s{s_b}")
    a(f"v_and_b32 v{t[0]}, 31, v{g.lane}")
    a(f"v_mul_u32_u24 v{t[0]}, 2560, v{t[0]}")
    a(f"v_lshrrev_b32 v{t[1]}, 5, v{g.lane}")
    a(f"v_lshl_add_u32 v{t[0]}, v{t[1]}, 5, v{t[0]}")
    r = g.acc
    for e in range(8):
        a(f"v_cvt_pk_bf16_f32 v{r+e}, v{r+2*e}, v{r+2*e+1}")
    a(f"buffer_store_dwordx4 {v(r,4)}, v{t[0]}, s[{SO}:{SO+3}], s{s_a} offen")
    a(f"buffer_store_dwordx4 {v(r+4,4)}, v{t[0]}, s[{SO}:{SO+3}], s{s_a} offen offset:16")
    a(f"{Lend}:")
    a("s_endpgm")
    return name, vr.n, 64, g.SB * g.NBUF

def gen_attn(a, TPI=4, prio=True):
    name = "attn_kernel"
    kernel_header(a, name)
    vr = Regs("v", 1, 256)
    Lend = a.label("end")
    a("s_cmp_ge_u32 s2, 256")
    a(f"s_cbranch_scc1 {Lend}")
    a("s_load_dwordx2 s[32:33], s[0:1], 64")
    SKV, SQ, SO = 4, 8, 12
    s_hh, s_qt, s_wave, s_a, s_b, s_it, s_slow = range(36, 43)
    s_vm = 44
    O = [vr.alloc(16, 4), vr.alloc(16, 4)]
    S = [vr.alloc(16, 4), vr.alloc(16, 4)]
    P = [vr.alloc(8, 4), vr.alloc(8, 4)]
    K = [vr.alloc(8, 4), vr.alloc(8, 4)]
    V = [vr.alloc(8, 4), vr.alloc(8, 4)]
    Q = [vr.alloc(8, 4), vr.alloc(8, 4)]
    ka, va, lane, vm = vr.alloc(), vr.alloc(), vr.alloc(), vr.alloc()
    t = [vr.alloc() for i in range(6)]
    a(f"v_lshrrev_b32 v{t[0]}, 6, v0")
    a(f"s_and_b32 s{s_a}, s2, 7")
    a(f"v_readfirstlane_b32 s{s_wave}, v{t[0]}")
    a(f"s_lshr_b32 s{s_b}, s2, 3")
    a(f"s_lshl_b32 s{s_hh}, s{s_a}, 3")
    a(f"s_lshr_b32 s{s_a}, s{s_b}, 2")
    a(f"s_add_u32 s{s_hh}, s{s_hh}, s{s_a}")
    a(f"s_and_b32 s{s_b}, s{s_b}, 3")
    a(f"s_lshl_b32 s{s_qt}, s{s_b}, 3")
    a(f"s_add_u32 s{s_qt}, s{s_qt}, s{s_wave}")
    a(f"s_lshl_b32 s{s_qt}, s{s_qt}, 1")
    a(f"v_and_b32 v{lane}, 63, v0")
    a(f"v_and_b32 v{t[0]}, 31, v{lane}")
    a(f"v_lshrrev_b32 v{t[1]}, 5, v{lane}")
    a(f"v_lshlrev_b32 v{ka}, 3, v{t[0]}")
    a(f"v_lshl_add_u32 v{ka}, v{t[1]}, 9, v{ka}")
    a(f"v_lshlrev_b32 v{t[3]}, 3, v{t[0]}")
    a(f"v_lshl_add_u32 v{t[3]}, v{t[1]}, 20, v{t[3]}")
    a(f"v_mul_u32_u24 v{va}, 320, v{t[1]}")
    a(f"v_lshl_add_u32 v{va}, v{t[0]}, 4, v{va}")
    a(f"v_lshlrev_b32 v{t[2]}, 4, v0")
    a("s_waitcnt lgkmcnt(0)")
    a(f"s_mul_i32 s{s_a}, s{s_hh}, {HSQ}")
    a(f"s_mul_i32 s{s_b}, s{s_qt}, {TSQ}")
    a(f"s_add_u32 s{s_a}, s{s_a}, s{s_b}")
    if QBASE: a(f"s_add_u32 s{s_a}, s{s_a}, {QBASE}")
    make_srd(a, SQ, 32, f"s{s_a}", 2 * TSQ)
    a(f"s_mul_i32 s{s_a}, s{s_hh}, {HSKV}")
    a(f"s_add_u32 s{s_a}, s{s_a}, {KVBASE}")
    make_srd(a, SKV, 32, f"s{s_a}", HSKV)
    for i in range(2):
        a(f"buffer_load_dwordx2 {v(Q[i],2)}, v{ka}, s[{SQ}:{SQ+3}], 0 offen offset:{i*TSQ}")
        a(f"buffer_load_dwordx2 {v(Q[i]+2,2)}, v{ka}, s[{SQ}:{SQ+3}], 0 offen offset:{i*TSQ+256}")
        a(f"buffer_load_dwordx2 {v(Q[i]+4,2)}, v{t[3]}, s[{SQ}:{SQ+3}], 0 offen offset:{i*TSQ+1024}")
    a(f"s_lshl_b32 s{s_a}, s{s_wave}, 10")
    a(f"s_mov_b32 s{s_b}, 0")
    for i in range(20):
        a(f"s_mov_b32 m0, s{s_a}")
        a(f"s_add_u32 s{s_a}, s{s_a}, 8192")
        a(f"buffer_load_dwordx4 v{t[2]}, s[{SKV}:{SKV+3}], s{s_b} offen lds")
        a(f"s_add_u32 s{s_b}, s{s_b}, 8192")
    for r in range(16):
        a(f"v_mov_b32 v{O[0]+r}, 0")
        a(f"v_mov_b32 v{O[1]+r}, 0")
    for r in range(8):
        a(f"v_mov_b32 v{P[1]+r}, 0")
        a(f"v_mov_b32 v{V[0]+r}, 0x3f803f80")
        a(f"v_mov_b32 v{V[1]+r}, 0x3f803f80")
    a(f"s_mov_b32 s{s_vm}, 0x000fffff")
    a(f"s_mov_b32 s{s_vm+1}, 0x000fffff")
    a(f"s_mov_b32 s{s_it}, 0")
    a(f"s_mov_b32 s{s_slow}, 0")

    def kreads(b, off):
        return [f"ds_read_b64 {v(K[b],2)}, v{ka} offset:{off}",
                f"ds_read_b64 {v(K[b]+2,2)}, v{ka} offset:{off+256}",
                f"ds_read_b64 {v(K[b]+4,2)}, v{ka} offset:{off+1024}"]
    def vreads(b, off):
        return [f"s_mov_b64 exec, s[{s_vm}:{s_vm+1}]\n"
                f"ds_read_b128 {v(V[b],4)}, v{va} offset:{off+1280}\n"
                f"ds_read_b128 {v(V[b]+4,4)}, v{va} offset:{off+1280+640}\n"
                f"s_mov_b64 exec, -1"]
    def qk1(q, kb): return f"v_mfma_f32_32x32x16_bf16 {v(S[q],16)}, {v(K[kb],4)}, {v(Q[q],4)}, 0"
    def qk2(q, kb): return f"v_mfma_f32_32x32x8_bf16 {v(S[q],16)}, {v(K[kb]+4,2)}, {v(Q[q]+4,2)}, {v(S[q],16)}"
    def pv(q, vb, h): return f"v_mfma_f32_32x32x16_bf16 {v(O[q],16)}, {v(V[vb]+4*h,4)}, {v(P[q]+4*h,4)}, {v(O[q],16)}"
    def ex(q, r): return f"v_exp_f32 v{S[q]+r}, v{S[q]+r}"
    def cv(q, r): return f"v_cvt_pk_bf16_f32 v{P[q]+r//2}, v{S[q]+r}, v{S[q]+r+1}"

    a("s_waitcnt vmcnt(17)")
    a("s_barrier")
    for x in kreads(0, 0): a(x)
    a("s_waitcnt lgkmcnt(0)")
    a(qk1(0, 0)); a(qk2(0, 0))
    a("s_nop 7")
    a("s_nop 7")
    L = a.label("al"); Lnb = a.label("anb")
    a(".p2align 6")
    a(f"{L}:")
    step = 0
    for tt in range(TPI):
        for q in range(2):
            o = 1 - q
            kb = (tt + q) & 1
            vb = (tt + 1 - q) & 1 if q == 0 else tt & 1
            extra = []
            if q == 0:
                vb = (tt - 1) & 1
                extra = kreads((tt + 1) & 1, (tt + 1) * TSKV) + vreads(tt & 1, tt * TSKV)
            if q == 1: a("s_waitcnt lgkmcnt(0)")
            ms = [qk1(o, kb), qk2(o, kb), pv(o, vb, 0), pv(o, vb, 1)]
            for j in range(4):
                a(ms[j])
                if j: a(cv(q, 4 * j - 2))
                for e in range(3):
                    a(ex(q, 4 * j + e))
                    if extra: a(extra.pop(0))
                a(cv(q, 4 * j))
                a(ex(q, 4 * j + 3))
            a(f"s_setprio {3 - (step + 1) % 4}" if prio else "s_nop 0")
            a(cv(q, 14))
            step += 1
    a(f"v_add_u32 v{ka}, {TPI*TSKV}, v{ka}")
    a(f"v_add_u32 v{va}, {TPI*TSKV}, v{va}")
    a(f"s_add_u32 s{s_it}, s{s_it}, 1")
    a(f"s_cmp_lg_u32 s{s_it}, {8//TPI}")
    a(f"s_cbranch_scc1 {Lnb}")
    a("s_waitcnt vmcnt(0)")
    a("s_barrier")
    a(f"{Lnb}:")
    a(f"s_cmp_lt_u32 s{s_it}, {64//TPI}")
    a(f"s_cbranch_scc1 {L}")
    a(pv(1, 1, 0)); a(pv(1, 1, 1))
    a("s_setprio 0")
    a("s_nop 15")
    Lst = a.label("store"); Lslow = a.label("slow")
    a(f"s_mov_b32 s{s_a}, 0x2b800000")
    a(f"s_mov_b32 s{s_b}, 0x5d800000")
    a(f"v_mov_b32 v{t[0]}, 0")
    for q in range(2):
        for r in range(12):
            a(f"v_fma_f32 v{t[0]}, v{O[q]+r}, 0, v{t[0]}")
    a(f"v_cmp_o_f32 vcc, v{t[0]}, v{t[0]}")
    for q in range(2):
        a(f"v_cmp_le_f32 s[46:47], s{s_a}, v{O[q]+12}")
        a(f"s_and_b64 vcc, vcc, s[46:47]")
        a(f"v_cmp_ge_f32 s[46:47], s{s_b}, v{O[q]+12}")
        a(f"s_and_b64 vcc, vcc, s[46:47]")
    a("s_cmp_eq_u64 vcc, -1")
    a(f"s_cbranch_scc0 {Lslow}")
    a(f"{Lst}:")
    a(f"s_lshr_b32 s{s_a}, s{s_hh}, 5")
    a(f"s_lshl_b32 s{s_a}, s{s_a}, 6")
    a(f"s_add_u32 s{s_a}, s{s_a}, s{s_qt}")
    a(f"s_mul_i32 s{s_a}, s{s_a}, {32*1280}")
    a(f"s_and_b32 s{s_b}, s{s_hh}, 31")
    a(f"s_mul_i32 s{s_b}, s{s_b}, 40")
    a(f"s_add_u32 s{s_a}, s{s_a}, s{s_b}")
    a(f"s_add_u32 s{s_a}, s{s_a}, {OBASE}")
    make_srd(a, SO, 32, f"s{s_a}", 64 * 1280)
    a(f"v_and_b32 v{t[0]}, 31, v{lane}")
    a(f"v_mul_u32_u24 v{t[0]}, 1280, v{t[0]}")
    a(f"v_lshrrev_b32 v{t[1]}, 5, v{lane}")
    a(f"v_lshl_add_u32 v{t[2]}, v{t[1]}, 20, v{t[0]}")
    a(f"v_lshl_add_u32 v{t[0]}, v{t[1]}, 3, v{t[0]}")
    a(f"s_mov_b32 s{s_b}, {32*1280}")
    for q in range(2):
        a(f"v_rcp_f32 v{t[4]}, v{O[q]+12}")
        a("s_nop 0")
        for r in range(12):
            a(f"v_mul_f32 v{O[q]+r}, v{t[4]}, v{O[q]+r}")
        so = "0" if q == 0 else f"s{s_b}"
        for g in range(3):
            r = O[q] + 4 * g
            a(f"v_cvt_pk_bf16_f32 v{r}, v{r}, v{r+1}")
            a(f"v_cvt_pk_bf16_f32 v{r+1}, v{r+2}, v{r+3}")
            a(f"buffer_store_dwordx2 {v(r,2)}, v{t[0] if g < 2 else t[2]}, s[{SO}:{SO+3}], {so} offen offset:{16*g}")
    a(f"{Lend}:")
    a("s_endpgm")
    a(f"{Lslow}:")
    for q in range(2):
        L1 = a.label("s1"); L2 = a.label("s2")
        a(f"v_subrev_u32 v{ka}, {64*TSKV}, v{ka}")
        a(f"v_subrev_u32 v{va}, {64*TSKV}, v{va}")
        a(f"v_mov_b32 v{vm}, 0xff800000")
        a(f"s_mov_b32 s{s_it}, 0")
        a(f"{L1}:")
        for x in kreads(0, 0): a(x)
        a("s_waitcnt lgkmcnt(0)")
        a(qk1(q, 0)); a(qk2(q, 0))
        a("s_nop 15")
        for r in range(0, 16, 2):
            a(f"v_max3_f32 v{vm}, v{S[q]+r}, v{S[q]+r+1}, v{vm}")
        a(f"v_add_u32 v{ka}, {TSKV}, v{ka}")
        a(f"s_add_u32 s{s_it}, s{s_it}, 1")
        a(f"s_cmp_lt_u32 s{s_it}, 64")
        a(f"s_cbranch_scc1 {L1}")
        a(f"v_mov_b32 v{t[0]}, v{vm}")
        a("s_nop 1")
        a(f"v_permlane32_swap_b32 v{t[0]}, v{vm}")
        a(f"v_subrev_u32 v{ka}, {64*TSKV}, v{ka}")
        a(f"v_max_f32 v{vm}, v{vm}, v{t[0]}")
        for r in range(16):
            a(f"v_mov_b32 v{O[q]+r}, 0")
        a(f"s_mov_b32 s{s_it}, 0")
        a(f"{L2}:")
        for x in kreads(0, 0) + vreads(0, 0): a(x)
        a("s_waitcnt lgkmcnt(0)")
        a(qk1(q, 0)); a(qk2(q, 0))
        a("s_nop 15")
        for r in range(16):
            a(f"v_sub_f32 v{S[q]+r}, v{S[q]+r}, v{vm}")
        for r in range(16):
            a(ex(q, r))
        a("s_nop 0")
        for r in range(0, 16, 2):
            a(cv(q, r))
        a("s_nop 1")
        a(pv(q, 0, 0)); a(pv(q, 0, 1))
        a(f"v_add_u32 v{ka}, {TSKV}, v{ka}")
        a(f"v_add_u32 v{va}, {TSKV}, v{va}")
        a(f"s_add_u32 s{s_it}, s{s_it}, 1")
        a(f"s_cmp_lt_u32 s{s_it}, 64")
        a(f"s_cbranch_scc1 {L2}")
    a("s_nop 15")
    a(f"s_branch {Lst}")
    return name, vr.n, 64, HSKV

def build(**kw):
    a = Asm()
    k1 = gen_qkv(a)
    k2 = gen_attn(a, **kw)
    k3 = gen_out(a)
    out = HEADER
    out += f"; @launch kernel={k1[0]} grid=(240,1,1) block=(512,1,1) lds={k1[3]}\n"
    out += f"; @launch kernel={k2[0]} grid=(256,1,1) block=(512,1,1) lds={k2[3]}\n"
    out += f"; @launch kernel={k3[0]} grid=(256,1,1) block=(640,1,1) lds={k3[3]}\n"
    out += '.amdgcn_target "amdgcn-amd-amdhsa--gfx950"\n.text\n'
    out += a.text()
    out += '.section .rodata,"a"\n'
    for k in (k1, k2, k3):
        out += ".p2align 6\n" + kernel_desc(k[0], k[1], k[2])
    return out

if __name__ == "__main__":
    path = sys.argv[1] if len(sys.argv) > 1 else f"cdna_kernels/{NAME}.s"
    open(path, "w").write(build())
    print("wrote", path)
```

```python
import sys
sys.path.insert(0, "gen")
from asmlib import *

NAME = "concat_heads__mha_block__softmax_full_mha__prompt"
KVBASE = 0
HS = 163840
PS = 5120
OBASE = 0xA00000
FBASE = 0x1000000
DBGBASE = 0x2000000
QSCALE = 0x3ea52b5c
SLOT = 36864
SPARE = 4 * SLOT
QAREA = SLOT
WOBASE = 61440
SPIN = 400000
F2OFF = 0x80000
EOFF = 0x180000

HEADER = """; Kernarg layout for this problem (72 bytes, ptrs only, base s[0:1]):
"""

SX, SW, SKV, SF, SO = 4, 8, 12, 36, 40
(s_blk, s_m, s_n, s_wave, s_tag, s_k, s_a, s_b, s_c, s_it, s_xo, s_wo, s_m0x, s_m0w, s_kh, s_ko, s_vo, s_g) = range(44, 62)
s_vm = 62
lane = 255
T = [249, 250, 251, 252, 253, 254]

class G:
    diag = False
    lens = [9, 4, 2, 1]
    rot = True
    st = 'sc1'
    wb = False
    pro = 2
    pf = 'sc1'
    sleep = 4
    fsh = 7
    fl = 32
    ff = 'sc1'

def stamp(a, i):
    if not G.diag: return
    a("s_memtime s[96:97]")
    a("s_memrealtime s[98:99]")
    a("s_waitcnt lgkmcnt(0)")
    a(f"s_mov_b32 s{64+2*i}, s96")
    a(f"s_mov_b32 s{65+2*i}, s98")

def dump_stamps(a, n):
    if not G.diag: return
    a("s_waitcnt vmcnt(0)")
    stamp(a, n)
    a(f"s_lshl_b32 s{s_a}, s2, 3")
    a(f"s_add_u32 s{s_a}, s{s_a}, s{s_wave}")
    a(f"s_lshl_b32 s{s_a}, s{s_a}, 7")
    a(f"s_add_u32 s{s_a}, s{s_a}, {DBGBASE}")
    make_srd(a, SX, 32, f"s{s_a}", 128)
    a(f"v_mov_b32 v{T[0]}, 0")
    for i in range(32):
        a(f"v_mov_b32 v{T[1]}, s{64+i}")
        a(f"buffer_store_dword v{T[1]}, v{T[0]}, s[{SX}:{SX+3}], 0 offen offset:{4*i}")

def make_srd(a, d, base, off, nbytes):
    if off is None:
        a(f"s_mov_b32 s{d}, s{base}")
        a(f"s_mov_b32 s{d+1}, s{base+1}")
    else:
        a(f"s_add_u32 s{d}, s{base}, {off}")
        a(f"s_addc_u32 s{d+1}, s{base+1}, 0")
    a(f"s_mov_b32 s{d+2}, {nbytes}")
    a(f"s_mov_b32 s{d+3}, 0x00020000")

def srd(d): return f"s[{d}:{d+3}]"

def img_pos(a, pos, row, c):
    a(f"v_mul_u32_u24 v{row}, 3277, v{pos}")
    a(f"v_lshrrev_b32 v{row}, 16, v{row}")
    a(f"v_mul_u32_u24 v{c}, 20, v{row}")
    a(f"v_sub_u32 v{c}, v{pos}, v{c}")
    a(f"v_lshrrev_b32 v{T[5]}, 3, v{row}")
    a(f"v_lshlrev_b32 v{T[5]}, 1, v{T[5]}")
    a(f"v_sub_u32 v{c}, v{c}, v{T[5]}")
    a(f"v_add_u32 v{T[5]}, 20, v{c}")
    a(f"v_min_u32 v{c}, v{c}, v{T[5]}")

def grp_src(a, dst, row, c, ld_sreg):
    a(f"v_cmp_lt_u32 vcc, 9, v{c}")
    a(f"v_add_u32 v{T[5]}, 16, v{row}")
    a(f"v_subrev_u32 v{T[4]}, 10, v{c}")
    a(f"v_cndmask_b32 v{row}, v{row}, v{T[5]}, vcc")
    a(f"v_cndmask_b32 v{c}, v{c}, v{T[4]}, vcc")
    a(f"v_lshlrev_b32 v{c}, 4, v{c}")
    a(f"v_mad_u32_u24 v{dst}, v{row}, s{ld_sreg}, v{c}")

def tr_addrs(a, wa, perm, grp, colhalf_sreg, base):
    a(f"v_bfe_u32 v{T[0]}, v{lane}, 2, 2")
    a(f"v_lshrrev_b32 v{T[1]}, 4, v{lane}")
    a(f"v_and_b32 v{T[2]}, 1, v{T[1]}")
    if grp:
        a(f"v_lshl_add_u32 v{T[0]}, v{T[2]}, 3, v{T[0]}")
    else:
        a(f"v_lshl_add_u32 v{T[0]}, v{T[1]}, 3, v{T[0]}")
    a(f"v_mul_u32_u24 v{T[0]}, 320, v{T[0]}")
    if base: a(f"v_add_u32 v{T[0]}, {base}, v{T[0]}")
    a(f"v_lshlrev_b32 v{T[2]}, 5, v{T[2]}")
    if grp:
        a(f"v_lshrrev_b32 v{T[1]}, 1, v{T[1]}")
        a(f"v_mul_u32_u24 v{T[1]}, 160, v{T[1]}")
        a(f"v_add_u32 v{T[2]}, v{T[2]}, v{T[1]}")
    else:
        a(f"s_mul_i32 s{s_a}, s{colhalf_sreg}, 160")
        a(f"v_add_u32 v{T[2]}, s{s_a}, v{T[2]}")
    a(f"v_and_b32 v{T[1]}, 3, v{lane}")
    a(f"v_mul_u32_u24 v{T[1]}, {40 if perm else 8}, v{T[1]}")
    a(f"v_add_u32 v{T[2]}, v{T[2]}, v{T[1]}")
    for j in range(5):
        a(f"v_add_u32 v{T[1]}, {8*j if perm else 32*j}, v{T[2]}")
        a(f"v_subrev_u32 v{T[3]}, 320, v{T[1]}")
        a(f"v_min_u32 v{T[1]}, v{T[1]}, v{T[3]}")
        a(f"v_add_u32 v{wa[j]}, v{T[1]}, v{T[0]}")

def x_addrs(a, xa, rowbase_sreg):
    a(f"v_and_b32 v{T[0]}, 15, v{lane}")
    a(f"v_lshrrev_b32 v{T[1]}, 1, v{T[0]}")
    a(f"v_lshrrev_b32 v{T[2]}, 4, v{lane}")
    a(f"v_lshlrev_b32 v{T[0]}, 7, v{T[0]}")
    a(f"v_add_u32 v{T[0]}, s{rowbase_sreg}, v{T[0]}")
    for ks in range(2):
        a(f"v_or_b32 v{T[3]}, {4*ks}, v{T[2]}")
        a(f"v_xor_b32 v{T[3]}, v{T[3]}, v{T[1]}")
        a(f"v_lshl_add_u32 v{xa[ks]}, v{T[3]}, 4, v{T[0]}")

def interleave(a, main, extra, start=0):
    extra = list(extra)
    for i, x in enumerate(main):
        a(x)
        if i >= start and extra: a(extra.pop(0))
    for x in extra: a(x)

def poll(a, voff, imm_soff, nlanes_mask=None):
    L = a.label("poll"); Ld = a.label("polld")
    a(f"s_mov_b32 s{s_it}, {SPIN}")
    a(f"{L}:")
    a(f"buffer_load_dword v{T[5]}, v{voff}, {srd(SF)}, {imm_soff} offen {G.pf}")
    a("s_waitcnt vmcnt(0)")
    a(f"v_cmp_ne_u32 vcc, s{s_tag}, v{T[5]}")
    a(f"s_cbranch_vccz {Ld}")
    a(f"s_sub_u32 s{s_it}, s{s_it}, 1")
    a(f"s_cbranch_scc1 {Ld}")
    a(f"s_sleep {G.sleep}")
    a(f"s_branch {L}")
    a(f"{Ld}:")

def set_flag(a, off_sreg):
    a(f"v_lshlrev_b32 v{T[4]}, 2, v{lane}")
    a(f"v_mov_b32 v{T[5]}, s{s_tag}")
    a(f"s_mov_b32 exec_lo, {(1 << G.fl) - 1:#x}")
    a("s_mov_b32 exec_hi, 0")
    a(f"buffer_store_dword v{T[5]}, v{T[4]}, {srd(SF)}, s{off_sreg} offen {G.ff}")
    a("s_mov_b64 exec, -1")

def small_gemm(a, BF, ACC, W, wa, gbase, pre=None):
    cur = [0]
    def reads(g):
        out = []
        want = (gbase[g] // 57344) * 57344 if not (cur[0] <= gbase[g] and gbase[g] + 1280 - cur[0] <= 65535) else cur[0]
        if want != cur[0]:
            d = want - cur[0]
            for j in range(5):
                out.append(f"v_add_u32 v{wa[j]}, {d}, v{wa[j]}" if d > 0 else f"v_subrev_u32 v{wa[j]}, {-d}, v{wa[j]}")
            cur[0] = want
        for j in range(5):
            for t in range(2):
                out.append(f"ds_read_b64_tr_b16 {v(W[g&1]+4*j+2*t,2)}, v{wa[j]} offset:{gbase[g]-cur[0]+1280*t}")
        return out
    if pre and ("r", 0) in pre:
        for x in pre[("r", 0)]: a(x)
    for x in reads(0): a(x)
    for g in range(20):
        nxt = []
        if g < 19:
            if pre and ("r", g + 1) in pre:
                nxt += pre[("r", g + 1)]
            nxt += reads(g + 1)
        a("s_waitcnt lgkmcnt(0)" if not (pre and ("m", g) in pre) else pre[("m", g)])
        ms = []
        for j in range(5):
            for ii in range(2):
                d = v(ACC + 4 * (5 * ii + j), 4)
                c = d if g else "0"
                ms.append(f"v_mfma_f32_16x16x32_bf16 {d}, {v(W[g&1]+4*j,4)}, {v(BF+8*g+4*ii,4)}, {c}")
        interleave(a, ms, nxt)
    a("s_nop 7")

def gen(a):
    name = NAME + "_kernel"
    kernel_header(a, name)
    Lend = a.label("end"); Lload = a.label("loader"); Lv = a.label("vtype"); Lpub = a.label("pub"); Latt = a.label("att")
    a("s_cmp_ge_u32 s2, 256")
    a(f"s_cbranch_scc1 {Lend}")
    stamp(a, 0)
    a("s_load_dwordx16 s[16:31], s[0:1], 0")
    a("s_load_dwordx2 s[32:33], s[0:1], 64")
    a(f"v_lshrrev_b32 v{T[0]}, 6, v0")
    a(f"v_and_b32 v{lane}, 63, v0")
    a(f"v_readfirstlane_b32 s{s_wave}, v{T[0]}")
    a(f"s_and_b32 s{s_a}, s2, 7")
    a(f"s_lshr_b32 s{s_b}, s2, 3")
    a(f"s_lshr_b32 s{s_blk}, s{s_a}, 2")
    a(f"s_and_b32 s{s_a}, s{s_a}, 3")
    a(f"s_lshr_b32 s{s_c}, s{s_b}, 3")
    a(f"s_lshl_b32 s{s_m}, s{s_a}, 2")
    a(f"s_add_u32 s{s_m}, s{s_m}, s{s_c}")
    a(f"s_and_b32 s{s_n}, s{s_b}, 7")
    if G.rot:
        a(f"s_mul_i32 s{s_k}, s{s_c}, 3")
        a(f"s_add_u32 s{s_k}, s{s_k}, s{s_n}")
        a(f"s_add_u32 s{s_k}, s{s_k}, s{s_a}")
        a(f"s_cmp_ge_u32 s{s_k}, 10")
        a(f"s_cselect_b32 s{s_a}, 10, 0")
        a(f"s_sub_u32 s{s_k}, s{s_k}, s{s_a}")
    else:
        a(f"s_mov_b32 s{s_k}, 0")
    a(f"s_and_b32 s{s_g}, s{s_wave}, 3")
    a(f"s_lshr_b32 s{s_kh}, s{s_wave}, 2")
    a(f"s_mov_b32 s{s_vm}, 0x000fffff")
    a(f"s_mov_b32 s{s_vm+1}, 0x000fffff")
    a(f"s_cmp_ge_u32 s{s_wave}, 4")
    a(f"s_cbranch_scc1 {Lload}")

    def common_ptrs():
        a("s_waitcnt lgkmcnt(0)")
        a(f"s_cmp_eq_u32 s{s_blk}, 0")
        a("s_cselect_b64 s[16:17], s[16:17], s[22:23]")
        a("s_cselect_b64 s[18:19], s[18:19], s[24:25]")
        a("s_cselect_b64 s[20:21], s[20:21], s[26:27]")
    def epoch_load():
        a(f"s_lshl_b32 s{s_a}, s{s_blk}, 7")
        a(f"s_add_u32 s{s_a}, s{s_a}, {FBASE+EOFF}")
        a(f"s_load_dword s{s_tag}, s[32:33], s{s_a}")
        make_srd(a, SF, 32, FBASE, EOFF + 0x1000)
    def epoch_fin():
        a("s_waitcnt lgkmcnt(0)")
        a(f"s_mul_i32 s{s_tag}, s{s_tag}, 0x9E3779B1")
        a(f"s_add_u32 s{s_tag}, s{s_tag}, 0x7F4A7C15")

    O = [0, 16, 32, 48]; S = [64, 80]; P = [96, 104]
    K1 = [112, 116, 120, 124]; K3 = [128, 130]; V = [132, 140, 148, 156]
    Q1 = [164, 168, 172, 176]; Q3 = [[180, 182, 184, 186], [188, 190, 192, 194]]
    ka, k3a, va, gwo, vmx = 240, 241, 242, 243, 244

    def kv_setup():
        a(f"s_lshl_b32 s{s_a}, s{s_blk}, 3")
        a(f"s_add_u32 s{s_a}, s{s_a}, s{s_n}")
        a(f"s_lshl_b32 s{s_a}, s{s_a}, 2")
        a(f"s_add_u32 s{s_a}, s{s_a}, s{s_g}")
        a(f"s_mul_i32 s{s_a}, s{s_a}, {HS}")
        if KVBASE: a(f"s_add_u32 s{s_a}, s{s_a}, {KVBASE}")
        make_srd(a, SKV, 32, f"s{s_a}", HS)
        a(f"v_lshlrev_b32 v{ka}, 4, v{lane}")
        a(f"v_lshlrev_b32 v{k3a}, 3, v{lane}")
        a(f"v_and_b32 v{T[0]}, 31, v{lane}")
        a(f"v_lshrrev_b32 v{T[1]}, 1, v{T[0]}")
        a(f"v_xor_b32 v{T[1]}, v{T[1]}, v{T[0]}")
        a(f"v_and_b32 v{T[1]}, 4, v{T[1]}")
        a(f"v_mul_u32_u24 v{T[1]}, 3, v{T[1]}")
        a(f"v_xor_b32 v{T[1]}, v{T[1]}, v{T[0]}")
        a(f"s_and_b32 s{s_a}, s{s_g}, 1")
        a(f"s_lshl_b32 s{s_a}, s{s_a}, 2")
        a(f"v_add_u32 v{T[1]}, s{s_a}, v{T[1]}")
        a(f"v_subrev_u32 v{T[2]}, 20, v{T[1]}")
        a(f"v_min_u32 v{T[1]}, v{T[1]}, v{T[2]}")
        a(f"v_lshrrev_b32 v{T[2]}, 5, v{lane}")
        a(f"v_mul_u32_u24 v{T[2]}, 320, v{T[2]}")
        a(f"v_lshl_add_u32 v{va}, v{T[1]}, 4, v{T[2]}")
        a(f"v_add_u32 v{va}, 2560, v{va}")
        a(f"v_mov_b32 v{T[2]}, 0x3f803f80")
        a(f"v_cmp_eq_u32 vcc, 20, v{T[0]}")
        a(f"s_lshl_b32 s{s_ko}, s{s_m}, 1")
        a(f"s_add_u32 s{s_ko}, s{s_ko}, s{s_kh}")
        a(f"v_cndmask_b32 v{T[2]}, 0, v{T[2]}, vcc")
        a(f"s_mul_i32 s{s_ko}, s{s_ko}, {PS}")
        for b in range(4):
            for r in range(8):
                a(f"v_mov_b32 v{V[b]+r}, v{T[2]}")
    def ld_k1(b, so): return f"buffer_load_dwordx4 {v(K1[b],4)}, v{ka}, {srd(SKV)}, s{so} offen offset:{1024*(b&1)} sc1"
    def ld_k3(p, so): return f"buffer_load_dwordx2 {v(K3[p],2)}, v{k3a}, {srd(SKV)}, s{so} offen offset:2048 sc1"
    def ld_v(b, so):
        return (f"s_mov_b64 exec, s[{s_vm}:{s_vm+1}]\n"
                f"buffer_load_dwordx4 {v(V[b],4)}, v{va}, {srd(SKV)}, s{so} offen offset:{1280*(b&1)} sc1\n"
                f"buffer_load_dwordx4 {v(V[b]+4,4)}, v{va}, {srd(SKV)}, s{so} offen offset:{1280*(b&1)+640} sc1\n"
                f"s_mov_b64 exec, -1")
    def adv_pair():
        return [f"s_add_u32 s{s_ko}, s{s_ko}, {2*PS}", f"s_cmp_ge_u32 s{s_ko}, {HS}",
                f"s_cselect_b32 s{s_c}, {HS}, 0", f"s_sub_u32 s{s_ko}, s{s_ko}, s{s_c}"]
    seq = []
    def kv_first():
        a(ld_k1(0, s_ko)); a(ld_k3(0, s_ko)); a(ld_v(0, s_ko)); a(ld_k1(1, s_ko)); a(ld_v(1, s_ko))
        for x in adv_pair(): a(x)
        a(ld_k1(2, s_ko)); a(ld_v(2, s_ko)); a(ld_k1(3, s_ko)); a(ld_k3(1, s_ko))

    ACC = 0
    X = [[80 + 16 * b + 4 * i for i in range(4)] for b in range(2)]
    W = [[112 + 20 * b + 4 * j for j in range(5)] for b in range(2)]
    xa = [240, 241]; wa = [242, 243, 244, 245, 246]
    s_wm, s_wn = s_xo, s_wo
    a(f"s_and_b32 s{s_wm}, s{s_wave}, 1")
    a(f"s_lshr_b32 s{s_wn}, s{s_wave}, 1")
    a(f"s_lshl_b32 s{s_b}, s{s_wm}, 13")
    x_addrs(a, xa, s_b)
    for r in range(80): a(f"v_mov_b32 v{ACC+r}, 0")
    common_ptrs()
    epoch_load()
    a(f"s_cmp_ge_u32 s{s_n}, 4")
    a(f"s_cbranch_scc1 {Lv}")

    def p1_reads(ks, b):
        out = []
        for i in range(4):
            out.append(f"ds_read_b128 {v(X[b][i],4)}, v{xa[ks]} offset:{2048*i}")
        for j in range(5):
            for t in range(2):
                out.append(f"ds_read_b64_tr_b16 {v(W[b][j]+2*t,2)}, v{wa[j]} offset:{ks*10240+1280*t}")
        return out
    def p1_loop(ktype):
        tr_addrs(a, wa, ktype, False, s_wn, 16384)
        epoch_fin()
        def mf(b):
            out = []
            for j in range(5):
                for i in range(4):
                    d = v(ACC + 4 * (5 * i + j), 4)
                    A, B = (W[b][j], X[b][i]) if ktype else (X[b][i], W[b][j])
                    out.append(f"v_mfma_f32_16x16x32_bf16 {d}, {v(A,4)}, {v(B,4)}, {d}")
            return out
        L = a.label("p1"); Ll = a.label("p1l")
        a(f"s_mov_b32 s{s_it}, 0")
        a(f"s_mov_b32 s{s_m0x}, {(-3*SLOT) & 0xffffffff}")
        a("s_barrier")
        stamp(a, 1)
        for x in p1_reads(0, 0): a(x)
        a(f"{L}:")
        a("s_waitcnt lgkmcnt(0)")
        interleave(a, mf(0), p1_reads(1, 1) + [f"s_add_u32 s{s_it}, s{s_it}, 1", f"s_and_b32 s{s_a}, s{s_it}, 3",
                                               f"s_cselect_b32 s{s_a}, {SLOT}, s{s_m0x}", f"s_cmp_eq_u32 s{s_it}, 10"])
        a("s_waitcnt lgkmcnt(0)")
        a("s_barrier")
        a(f"s_cbranch_scc1 {Ll}")
        m1 = mf(1)
        a(m1[0])
        for r in xa + wa: a(f"v_add_u32 v{r}, s{s_a}, v{r}")
        interleave(a, m1[1:], p1_reads(0, 0))
        a(f"s_branch {L}")
        a(f"{Ll}:")
        for x in mf(1): a(x)
        a(f"s_and_b32 s{s_a}, s{s_n}, 3")
        a(f"s_lshl_b32 s{s_b}, s{s_blk}, 2")
        a(f"s_add_u32 s{s_a}, s{s_a}, s{s_b}")
        a(f"s_lshl_b32 s{s_a}, s{s_a}, 1")
        a(f"s_add_u32 s{s_a}, s{s_a}, s{s_wn}")
        a(f"s_mul_i32 s{s_a}, s{s_a}, {4*HS}")
        a(f"s_lshl_b32 s{s_b}, s{s_m}, 1")
        a(f"s_add_u32 s{s_b}, s{s_b}, s{s_wm}")
        a(f"s_mul_i32 s{s_b}, s{s_b}, {PS}")
        a(f"s_add_u32 s{s_a}, s{s_a}, s{s_b}")
        if KVBASE: a(f"s_add_u32 s{s_a}, s{s_a}, {KVBASE}")
        make_srd(a, SKV, 32, f"s{s_a}", 3 * HS + PS)
        stamp(a, 2)

    p1_loop(True)
    a(f"v_lshrrev_b32 v{T[0]}, 4, v{lane}")
    a(f"s_mov_b32 s{s_a}, {HS}")
    a(f"v_mul_lo_u32 v{T[0]}, v{T[0]}, s{s_a}")
    a(f"v_and_b32 v{T[1]}, 7, v{lane}")
    a(f"v_and_b32 v{T[2]}, 8, v{lane}")
    a(f"v_lshl_add_u32 v{T[1]}, v{T[2]}, 1, v{T[1]}")
    a(f"v_lshl_add_u32 v{T[2]}, v{T[1]}, 4, v{T[0]}")
    a(f"v_lshl_add_u32 v{T[3]}, v{T[1]}, 3, v{T[0]}")
    for i in range(4):
        r = ACC + 20 * i
        for e in range(10):
            a(f"v_cvt_pk_bf16_f32 v{r+e}, v{r+2*e}, v{r+2*e+1}")
        o = (i >> 1) * 1024 + (i & 1) * 128
        a(f"buffer_store_dwordx4 {v(r,4)}, v{T[2]}, {srd(SKV)}, 0 offen offset:{o} {G.st}")
        a(f"buffer_store_dwordx4 {v(r+4,4)}, v{T[2]}, {srd(SKV)}, 0 offen offset:{o+512} {G.st}")
        a(f"buffer_store_dwordx2 {v(r+8,2)}, v{T[3]}, {srd(SKV)}, 0 offen offset:{2048+(i>>1)*256+(i&1)*64} {G.st}")
    a(f"s_branch {Lpub}")
    a(f"{Lv}:")
    p1_loop(False)
    a(f"v_lshrrev_b32 v{T[0]}, 4, v{lane}")
    a(f"v_mul_u32_u24 v{T[0]}, 320, v{T[0]}")
    a(f"v_and_b32 v{T[1]}, 15, v{lane}")
    a(f"s_mov_b32 s{s_a}, {HS-320}")
    for j in range(5):
        a(f"v_add_u32 v{T[2]}, {16*j}, v{T[1]}")
        a(f"v_mul_u32_u24 v{T[3]}, 3277, v{T[2]}")
        a(f"v_lshrrev_b32 v{T[3]}, 16, v{T[3]}")
        a(f"v_lshl_add_u32 v{T[2]}, v{T[2]}, 4, v{T[0]}")
        a(f"v_mad_u32_u24 v{wa[j]}, v{T[3]}, s{s_a}, v{T[2]}")
        for i2 in range(2):
            r0 = ACC + 4 * (5 * (2 * i2) + j); r1 = ACC + 4 * (5 * (2 * i2 + 1) + j)
            a(f"v_cvt_pk_bf16_f32 v{r0}, v{r0}, v{r0+1}")
            a(f"v_cvt_pk_bf16_f32 v{r0+1}, v{r0+2}, v{r0+3}")
            a(f"v_cvt_pk_bf16_f32 v{r0+2}, v{r1}, v{r1+1}")
            a(f"v_cvt_pk_bf16_f32 v{r0+3}, v{r1+2}, v{r1+3}")
            a(f"buffer_store_dwordx4 {v(r0,4)}, v{wa[j]}, {srd(SKV)}, 0 offen offset:{2560+1280*i2} {G.st}")
    a(f"{Lpub}:")
    a(f"s_lshl_b32 s{s_a}, s{s_blk}, 3")
    a(f"s_add_u32 s{s_a}, s{s_a}, s{s_n}")
    a(f"s_lshl_b32 s{s_a}, s{s_a}, 1")
    a(f"s_add_u32 s{s_a}, s{s_a}, s{s_wn}")
    a(f"s_lshl_b32 s{s_a}, s{s_a}, 4")
    a(f"s_add_u32 s{s_a}, s{s_a}, s{s_m}")
    a(f"s_lshl_b32 s{s_a}, s{s_a}, 1")
    a(f"s_add_u32 s{s_a}, s{s_a}, s{s_wm}")
    a(f"s_lshl_b32 s{s_b}, s{s_a}, {G.fsh}")
    a("s_waitcnt vmcnt(0)")
    if G.wb:
        a("buffer_wbl2 sc1")
        a("s_waitcnt vmcnt(0)")
    set_flag(a, s_b)
    stamp(a, 3)
    kv_setup()
    a(f"s_lshl_b32 s{s_b}, s{s_blk}, 4")
    a(f"s_add_u32 s{s_b}, s{s_b}, s{s_n}")
    a(f"s_lshl_b32 s{s_b}, s{s_b}, {5+G.fsh}")
    a(f"v_and_b32 v{T[0]}, 31, v{lane}")
    a(f"v_lshrrev_b32 v{T[1]}, 5, v{lane}")
    a(f"v_lshlrev_b32 v{T[0]}, {G.fsh}, v{T[0]}")
    a(f"v_lshl_add_u32 v{T[0]}, v{T[1]}, {8+G.fsh}, v{T[0]}")
    poll(a, T[0], f"s{s_b}")
    stamp(a, 4)
    kv_first()
    a("s_barrier")
    a("s_barrier")
    a(f"s_branch {Latt}")

    a(f"{Lload}:")
    XF = 0; ACC2 = 160; W2 = [200, 220]
    gx = [160, 161, 162, 163]; gw = [164, 165, 166, 167, 168]; gq = [169, 170, 171, 172, 173]
    a(f"s_lshl_b32 s{s_b}, s{s_g}, 5")
    a(f"s_movk_i32 s{s_c}, 1280")
    for i in range(4):
        a(f"v_lshrrev_b32 v{T[0]}, 3, v{lane}")
        a(f"v_add_u32 v{T[0]}, s{s_b}, v{T[0]}")
        if i: a(f"v_add_u32 v{T[0]}, {8*i}, v{T[0]}")
        a(f"v_lshrrev_b32 v{T[1]}, 1, v{T[0]}")
        a(f"v_xor_b32 v{T[1]}, v{T[1]}, v{lane}")
        a(f"v_and_b32 v{T[1]}, 7, v{T[1]}")
        a(f"v_lshlrev_b32 v{T[1]}, 4, v{T[1]}")
        a(f"v_mad_u32_u24 v{gx[i]}, v{T[0]}, s{s_c}, v{T[1]}")
        if i: a(f"v_subrev_u32 v{gx[i]}, {1024*i}, v{gx[i]}")
    a(f"s_movk_i32 s{s_c}, 3840")
    a(f"s_lshl_b32 s{s_b}, s{s_g}, 4")
    for i in range(5):
        a(f"v_add_u32 v{T[0]}, {64*i}, v{lane}")
        img_pos(a, T[0], T[1], T[2])
        a(f"v_add_u32 v{T[0]}, s{s_b}, v{T[1]}")
        a(f"v_lshlrev_b32 v{T[3]}, 4, v{T[2]}")
        a(f"v_mad_u32_u24 v{gw[i]}, v{T[0]}, s{s_c}, v{T[3]}")
        grp_src(a, gq[i], T[1], T[2], s_c)
        if i & 3:
            a(f"v_subrev_u32 v{gw[i]}, {1024*i}, v{gw[i]}")
            a(f"v_subrev_u32 v{gq[i]}, {1024*i}, v{gq[i]}")
    a(f"s_lshl_b32 s{s_m0x}, s{s_g}, 12")
    a(f"s_mul_i32 s{s_m0w}, s{s_g}, 5120")
    a(f"s_add_u32 s{s_m0w}, s{s_m0w}, 16384")
    common_ptrs()
    a(f"s_mul_i32 s{s_a}, s{s_m}, {128*1280}")
    make_srd(a, SX, 16, f"s{s_a}", 128 * 1280)
    make_srd(a, SW, 18, None, 640 * 3840)
    a(f"s_mov_b32 s{s_vo}, s{s_k}")
    lseq = []
    def issue_stage(i):
        sl = (i & 3) * SLOT
        a(f"s_lshl_b32 s{s_xo}, s{s_k}, 7")
        a(f"s_add_u32 m0, s{s_m0x}, {sl}")
        a(f"s_mul_i32 s{s_wo}, s{s_k}, {64*3840}")
        for ii in range(4):
            a(f"buffer_load_dwordx4 v{gx[ii]}, {srd(SX)}, s{s_xo} offen offset:{1024*ii} lds")
        a(f"s_mul_i32 s{s_a}, s{s_n}, 320")
        a(f"s_add_u32 s{s_wo}, s{s_wo}, s{s_a}")
        a(f"s_add_u32 m0, s{s_m0w}, {sl}")
        a(f"s_add_u32 s{s_wo}, s{s_wo}, 1280")
        for ii in range(4):
            a(f"buffer_load_dwordx4 v{gw[ii]}, {srd(SW)}, s{s_wo} offen offset:{1024*ii} lds")
        a(f"s_add_u32 m0, s{s_m0w}, {sl+4096}")
        a(f"s_add_u32 s{s_k}, s{s_k}, 1")
        a(f"buffer_load_dwordx4 v{gw[4]}, {srd(SW)}, s{s_wo} offen lds")
        a(f"s_cmp_eq_u32 s{s_k}, 10")
        a(f"s_cselect_b32 s{s_k}, 0, s{s_k}")
        lseq.extend([("st", i)] * 9)
    gbase = [2 * SLOT + g * 5120 for g in range(7)] + [SPARE] + [3 * SLOT + g * 5120 for g in range(7)] + [SPARE + 5120] + [g * 5120 for g in range(4)]
    def issue_round(R):
        a(f"s_lshr_b32 s{s_a}, s{s_g}, 1")
        a(f"s_add_u32 s{s_a}, s{s_a}, s{s_vo}")
        a(f"s_add_u32 s{s_a}, s{s_a}, {2*R}")
        a(f"s_cmp_ge_u32 s{s_a}, 10")
        a(f"s_cselect_b32 s{s_b}, 10, 0")
        a(f"s_sub_u32 s{s_a}, s{s_a}, s{s_b}")
        a(f"s_lshl_b32 s{s_a}, s{s_a}, 1")
        a(f"s_and_b32 s{s_b}, s{s_g}, 1")
        a(f"s_add_u32 s{s_a}, s{s_a}, s{s_b}")
        a(f"s_mul_i32 s{s_wo}, s{s_a}, {32*3840}")
        a(f"s_mul_i32 s{s_a}, s{s_n}, 160")
        a(f"s_add_u32 s{s_wo}, s{s_wo}, s{s_a}")
        gb = gbase[4 * R:4 * R + 4]
        a(f"s_mul_i32 s{s_a}, s{s_g}, 5120")
        a(f"s_add_u32 s{s_a}, s{s_a}, {gb[0]}")
        assert gb[1] == gb[0] + 5120 and gb[2] == gb[0] + 10240
        if gb[3] != gb[0] + 15360:
            a(f"s_cmp_eq_u32 s{s_g}, 3")
            a(f"s_cselect_b32 s{s_a}, {gb[3]}, s{s_a}")
        a(f"s_mov_b32 m0, s{s_a}")
        a(f"s_add_u32 s{s_a}, s{s_a}, 4096")
        for ii in range(4):
            a(f"buffer_load_dwordx4 v{gq[ii]}, {srd(SW)}, s{s_wo} offen offset:{1024*ii} lds")
        a(f"s_mov_b32 m0, s{s_a}")
        a("s_nop 0")
        a(f"buffer_load_dwordx4 v{gq[4]}, {srd(SW)}, s{s_wo} offen lds")
        lseq.extend([("R", R)] * 5)
    def lwait(key):
        last = max(i for i, x in enumerate(lseq) if x == key)
        return len(lseq) - 1 - last
    stamp(a, 11)
    for i in range(G.pro):
        issue_stage(i)
        if i == 0: stamp(a, 12)
    stamp(a, 13)
    epoch_load()
    a(f"s_lshl_b32 s{s_b}, s{s_g}, 12")
    x_addrs(a, xa, s_b)
    tr_addrs(a, wa, True, True, None, 0)
    epoch_fin()
    a(f"s_waitcnt vmcnt({lwait(('st',0))})")
    a("s_barrier")
    stamp(a, 1)
    for i in range(G.pro, 4): issue_stage(i)
    xoff = 0
    for st in range(10):
        sl = (st & 3) * SLOT
        want = 0 if sl < 2 * SLOT else 2 * SLOT
        if want != xoff:
            for r in xa:
                a(f"v_add_u32 v{r}, {want-xoff}, v{r}" if want > xoff else f"v_subrev_u32 v{r}, {xoff-want}, v{r}")
            xoff = want
        for ks in range(2):
            for ii in range(2):
                a(f"ds_read_b128 {v(XF+16*st+8*ks+4*ii,4)}, v{xa[ks]} offset:{sl-xoff+2048*ii}")
        key = ("st", st + 1) if st < 9 else ("R", 3)
        a(f"s_waitcnt vmcnt({lwait(key)}) lgkmcnt(0)")
        a("s_barrier")
        if st + 4 <= 9: issue_stage(st + 4)
        if st == 6: issue_round(0); issue_round(1)
        if st == 7: issue_round(2); issue_round(3)
        if st == 8: issue_round(4)
    stamp(a, 2)
    small_gemm(a, XF, ACC2, W2, wa, gbase, pre={("r", 16): ["s_waitcnt vmcnt(0)", "s_barrier"]})
    stamp(a, 3)
    a(f"s_mov_b32 s{s_a}, {QSCALE:#x}")
    a(f"s_mul_i32 s{s_b}, s{s_g}, 1280")
    a(f"s_add_u32 s{s_b}, s{s_b}, {QAREA}")
    a(f"v_lshrrev_b32 v{T[0]}, 4, v{lane}")
    a(f"v_mul_u32_u24 v{T[0]}, 5120, v{T[0]}")
    a(f"v_add_u32 v{T[0]}, s{s_b}, v{T[0]}")
    a(f"v_and_b32 v{T[1]}, 15, v{lane}")
    a(f"v_lshl_add_u32 v{T[2]}, v{T[1]}, 4, v{T[0]}")
    a(f"v_lshl_add_u32 v{T[3]}, v{T[1]}, 3, v{T[0]}")
    for ii in range(2):
        r = ACC2 + 20 * ii
        for e in range(20):
            a(f"v_mul_f32 v{r+e}, s{s_a}, v{r+e}")
        for e in range(10):
            a(f"v_cvt_pk_bf16_f32 v{r+e}, v{r+2*e}, v{r+2*e+1}")
        a(f"ds_write_b128 v{T[2]}, {v(r,4)} offset:{256*ii}")
        a(f"ds_write_b128 v{T[2]}, {v(r+4,4)} offset:{256*ii+512}")
        a(f"ds_write_b64 v{T[3]}, {v(r+8,2)} offset:{128*ii+1024}")
    kv_setup()
    a("s_waitcnt lgkmcnt(0)")
    a("s_barrier")
    stamp(a, 4)
    kv_first()

    a(f"{Latt}:")
    a(f"s_mul_i32 s{s_b}, s{s_g}, 5120")
    a(f"s_add_u32 s{s_b}, s{s_b}, {QAREA}")
    a(f"v_add_u32 v{T[0]}, s{s_b}, v{ka}")
    a(f"v_and_b32 v{T[1]}, 31, v{lane}")
    a(f"v_lshl_add_u32 v{T[1]}, v{T[1]}, 3, s{s_b}")
    for q in range(4):
        a(f"ds_read_b128 {v(Q1[q],4)}, v{T[0]} offset:{1280*q}")
        a(f"ds_read_b64 {v(Q3[0][q],2)}, v{T[1]} offset:{1280*q+1024}")
    for r in range(64): a(f"v_mov_b32 v{O[0]+r}, 0")
    for r in range(8): a(f"v_mov_b32 v{P[1]+r}, 0")
    a(f"s_min_u32 s{s_a}, s{s_wave}, 4")
    a(f"s_lshl_b32 s{s_b}, s{s_a}, 6")
    a(f"v_add_u32 v{T[0]}, s{s_b}, v{lane}")
    img_pos(a, T[0], T[1], T[2])
    a(f"s_movk_i32 s{s_c}, 1280")
    grp_src(a, gwo, T[1], T[2], s_c)
    make_srd(a, SW, 20, None, 640 * 1280)
    a(f"s_cmp_gt_u32 s{s_wave}, 4")
    a(f"s_cselect_b32 s{s_c}, {20*5120}, 0")
    a(f"s_cselect_b32 s{s_m0x}, 0, 5120")
    a(f"s_lshl_b32 s{s_m0w}, s{s_a}, 10")
    a(f"s_add_u32 s{s_m0w}, s{s_m0w}, {WOBASE}")
    a(f"s_add_u32 s{s_m0w}, s{s_m0w}, s{s_c}")
    a(f"s_mul_i32 s{s_wo}, s{s_n}, 160")
    a(f"s_lshl_b32 s{s_c}, s{s_c}, 3")
    a(f"s_add_u32 s{s_wo}, s{s_wo}, s{s_c}")
    a(f"v_cmp_gt_u32 vcc, 32, v{lane}")
    a("s_waitcnt lgkmcnt(0)")
    a("s_nop 0")
    for q in range(4):
        for e in range(2):
            a(f"v_cndmask_b32 v{Q3[1][q]+e}, v{Q3[0][q]+e}, v{O[0]}, vcc")
            a(f"v_cndmask_b32 v{Q3[0][q]+e}, v{O[0]}, v{Q3[0][q]+e}, vcc")
    a(f"s_mov_b32 s{s_it}, 0")

    def qk1(sb, q, t): return f"v_mfma_f32_32x32x16_bf16 {v(S[sb],16)}, {v(K1[t],4)}, {v(Q1[q],4)}, 0"
    def qk2(sb, q, t): return f"v_mfma_f32_32x32x8_bf16 {v(S[sb],16)}, {v(K3[t>>1],2)}, {v(Q3[t&1][q],2)}, {v(S[sb],16)}"
    def pv(pb, q, t, h): return f"v_mfma_f32_32x32x16_bf16 {v(O[q],16)}, {v(V[t]+4*h,4)}, {v(P[pb]+4*h,4)}, {v(O[q],16)}"
    def ex(q, r): return f"v_exp_f32 v{S[q]+r}, v{S[q]+r}"
    def cv(q, r): return f"v_cvt_pk_bf16_f32 v{P[q]+r//2}, v{S[q]+r}, v{S[q]+r+1}"
    wo_dma = [f"s_mov_b32 m0, s{s_m0w}", f"s_add_u32 s{s_m0w}, s{s_m0w}, s{s_m0x}",
              f"buffer_load_dwordx4 v{gwo}, {srd(SW)}, s{s_wo} offen lds", f"s_add_u32 s{s_wo}, s{s_wo}, {32*1280}"]
    plan = {}
    for tt in range(4):
        pb = (tt - 1) % 4
        plan[(tt, 1)] = ([ld_v(pb, s_ko)], [("V", pb)] * 2)
        if tt & 1:
            plan[(tt, 3)] = ([ld_k1(tt, s_ko), ld_k3(tt >> 1, s_ko)], [("K1", tt), ("K3", tt >> 1)])
        else:
            plan[(tt, 3)] = ([ld_k1(tt, s_ko)], [("K1", tt)])
            plan[(tt, 2)] = (adv_pair(), [])
        if tt < 3:
            plan[(tt, 0)] = (wo_dma, [("WO",)])
    order = [(tt, q) for tt in range(4) for q in range(4)]
    names = []; pos = {}
    for rep in range(2):
        for key in order:
            if rep == 1: pos[key] = len(names)
            names += plan.get(key, ([], []))[1]
    def steady_wait(tt):
        p = pos[(tt, 3)]
        nt = (tt + 1) % 4
        need = [("K1", nt), ("V", nt), ("K3", nt >> 1)]
        last = max(max(i for i in range(p) if names[i] == k) for k in need)
        return p - 1 - last
    first = [("K1", 0), ("K3", 0), ("V", 0), ("V", 0), ("K1", 1), ("V", 1), ("V", 1), ("K1", 2), ("V", 2), ("V", 2), ("K1", 3), ("K3", 1)]
    n0 = list(first)
    waits = {}
    for key in order:
        if key[1] == 3:
            nt = (key[0] + 1) % 4
            need = [("K1", nt), ("V", nt), ("K3", nt >> 1)]
            last = max(max(i for i in range(len(n0)) if n0[i] == k) for k in need)
            waits[key[0]] = min(steady_wait(key[0]), len(n0) - 1 - last)
        n0 += plan.get(key, ([], []))[1]
    a(f"s_waitcnt vmcnt({len(first)-4})")
    stamp(a, 5)
    a(qk1(0, 0, 0)); a(qk2(0, 0, 0))
    a("s_setprio 3")
    a("s_nop 7")
    a("s_nop 3")
    L = a.label("al")
    a(".p2align 6")
    a(f"{L}:")
    cum = [sum(G.lens[:i]) for i in range(4)]
    step = 0
    for tt in range(4):
        for q in range(4):
            c = q & 1; o = 1 - c
            nq, nt = (q + 1, tt) if q < 3 else (0, (tt + 1) % 4)
            pq, pt = (q - 1, tt) if q > 0 else (3, (tt - 1) % 4)
            extra = list(plan.get((tt, q), ([], []))[0])
            if q == 3: a(f"s_waitcnt vmcnt({waits[tt]})")
            if (tt, q) == (3, 2): extra += [f"s_add_u32 s{s_it}, s{s_it}, 1", f"s_cmp_lt_u32 s{s_it}, 8"]
            ms = [qk1(o, nq, nt), qk2(o, nq, nt), pv(o, pq, pt, 0), pv(o, pq, pt, 1)]
            for j in range(4):
                a(ms[j])
                if j: a(cv(c, 4 * j - 2))
                for e in range(3):
                    a(ex(c, 4 * j + e))
                    if extra: a(extra.pop(0))
                if j < 3:
                    a(cv(c, 4 * j)); a(ex(c, 4 * j + 3))
                else:
                    a(ex(c, 15)); a(cv(c, 12))
            n = (step + 1) % sum(G.lens)
            if n in cum: a(f"s_setprio {3 - cum.index(n)}")
            a(cv(c, 14))
            step += 1
    a(f"s_cbranch_scc1 {L}")
    a("s_nop 0")
    a(pv(1, 3, 3, 0)); a(pv(1, 3, 3, 1))
    a("s_setprio 0")
    Lk1 = a.label("k1"); Lj = a.label("kj"); Lslow = a.label("slow"); Lst = a.label("store")
    a(f"s_mul_i32 s{s_a}, s{s_wave}, 6144")
    a(f"v_add_u32 v{T[1]}, s{s_a}, v{ka}")
    a(f"s_xor_b32 s{s_a}, s{s_wave}, 4")
    a(f"s_mul_i32 s{s_a}, s{s_a}, 6144")
    a(f"v_add_u32 v{T[0]}, s{s_a}, v{ka}")
    a("s_nop 7")
    stamp(a, 6)
    a(f"s_cmp_eq_u32 s{s_kh}, 0")
    a(f"s_cbranch_scc0 {Lk1}")
    for i in range(2):
        for gq_ in range(3):
            a(f"ds_write_b128 v{T[1]}, {v(O[2+i]+4*gq_,4)} offset:{(i*3+gq_)*1024}")
    a(f"s_branch {Lj}")
    a(f"{Lk1}:")
    for i in range(2):
        for gq_ in range(3):
            a(f"ds_write_b128 v{T[1]}, {v(O[i]+4*gq_,4)} offset:{(i*3+gq_)*1024}")
    a("s_nop 1")
    for i in range(2):
        for r in range(12):
            a(f"v_mov_b32 v{O[i]+r}, v{O[2+i]+r}")
        for r in range(4):
            a(f"v_mov_b32 v{Q1[i]+r}, v{Q1[2+i]+r}")
        for r in range(2):
            a(f"v_mov_b32 v{Q3[0][i]+r}, v{Q3[0][2+i]+r}")
            a(f"v_mov_b32 v{Q3[1][i]+r}, v{Q3[1][2+i]+r}")
    a(f"{Lj}:")
    a("s_waitcnt vmcnt(0) lgkmcnt(0)")
    a("s_barrier")
    for i in range(2):
        for gq_ in range(3):
            a(f"ds_read_b128 {v(O[2+i]+4*gq_,4)}, v{T[0]} offset:{(i*3+gq_)*1024}")
    a(f"s_lshl_b32 s{s_a}, s{s_blk}, 4")
    a(f"s_add_u32 s{s_a}, s{s_a}, s{s_m}")
    a(f"s_lshl_b32 s{s_a}, s{s_a}, 1")
    a(f"s_add_u32 s{s_a}, s{s_a}, s{s_kh}")
    a(f"s_mul_i32 s{s_a}, s{s_a}, {4*20480}")
    a(f"s_add_u32 s{s_a}, s{s_a}, {OBASE}")
    make_srd(a, SO, 32, f"s{s_a}", 4 * 20480)
    a(f"s_lshl_b32 s{s_a}, s{s_n}, 2")
    a(f"s_add_u32 s{s_a}, s{s_a}, s{s_g}")
    a(f"s_mul_i32 s{s_a}, s{s_a}, 5")
    a(f"s_add_u32 s{s_b}, s{s_a}, 1")
    a(f"s_lshr_b32 s{s_b}, s{s_b}, 1")
    a(f"s_lshl_b32 s{s_b}, s{s_b}, 8")
    a(f"s_movk_i32 s{s_a}, 512")
    a(f"s_and_b32 s{s_c}, s{s_g}, 1")
    a(f"s_cselect_b32 s{s_c}, {(-256+8) & 0xffffffff}, s{s_a}")
    a(f"s_add_u32 s{s_c}, s{s_c}, s{s_b}")
    a(f"v_bfe_u32 v{T[2]}, v{lane}, 4, 1")
    a(f"v_mul_u32_u24 v{T[2]}, 20480, v{T[2]}")
    a(f"v_and_b32 v{T[3]}, 15, v{lane}")
    a(f"v_lshl_add_u32 v{T[2]}, v{T[3]}, 4, v{T[2]}")
    a(f"v_lshrrev_b32 v{T[4]}, 5, v{lane}")
    a(f"v_lshl_add_u32 v{T[3]}, v{T[4]}, 20, v{T[2]}")
    a(f"v_lshl_add_u32 v{T[2]}, v{T[4]}, 8, v{T[2]}")
    a(f"v_add_u32 v{T[2]}, s{s_b}, v{T[2]}")
    a(f"v_add_u32 v{T[3]}, s{s_c}, v{T[3]}")
    a("s_waitcnt lgkmcnt(0)")
    for i in range(2):
        for r in range(12):
            a(f"v_add_f32 v{O[i]+r}, v{O[i]+r}, v{O[2+i]+r}")
    def bcast_l():
        for i in range(2):
            a(f"v_mov_b32 v{O[i]+12}, v{O[i]+8}")
            a(f"v_mov_b32 v{O[i]+13}, v{O[i]+8}")
        a("s_nop 1")
        for i in range(2):
            a(f"v_permlane32_swap_b32 v{O[i]+13}, v{O[i]+12}")
    bcast_l()
    a(f"s_mov_b32 s{s_a}, 0x2b800000")
    a(f"s_mov_b32 s{s_b}, 0x5d800000")
    a(f"v_mov_b32 v{T[0]}, 0")
    for q in range(2):
        for r in range(12):
            a(f"v_fma_f32 v{T[0]}, v{O[q]+r}, 0, v{T[0]}")
    a(f"v_cmp_o_f32 vcc, v{T[0]}, v{T[0]}")
    for q in range(2):
        a(f"v_cmp_le_f32 s[34:35], s{s_a}, v{O[q]+12}")
        a(f"s_and_b64 vcc, vcc, s[34:35]")
        a(f"v_cmp_ge_f32 s[34:35], s{s_b}, v{O[q]+12}")
        a(f"s_and_b64 vcc, vcc, s[34:35]")
    a("s_cmp_eq_u64 vcc, -1")
    a(f"s_cbranch_scc0 {Lslow}")
    a(f"{Lst}:")
    a(f"s_mov_b32 s{s_b}, {2*20480}")
    for q in range(2):
        a(f"v_rcp_f32 v{T[4]}, v{O[q]+12}")
        a("s_nop 0")
        for r in range(12):
            a(f"v_mul_f32 v{O[q]+r}, v{T[4]}, v{O[q]+r}")
        for e in range(6):
            a(f"v_cvt_pk_bf16_f32 v{O[q]+e}, v{O[q]+2*e}, v{O[q]+2*e+1}")
        so = "0" if q == 0 else f"s{s_b}"
        a(f"buffer_store_dwordx4 {v(O[q],4)}, v{T[2]}, {srd(SO)}, {so} offen {G.st}")
        a(f"buffer_store_dwordx2 {v(O[q]+4,2)}, v{T[3]}, {srd(SO)}, {so} offen {G.st}")
    a(f"s_lshl_b32 s{s_a}, s{s_blk}, 4")
    a(f"s_add_u32 s{s_a}, s{s_a}, s{s_m}")
    a(f"s_lshl_b32 s{s_xo}, s{s_a}, {6+G.fsh}")
    a(f"s_add_u32 s{s_xo}, s{s_xo}, {F2OFF}")
    a(f"s_lshl_b32 s{s_a}, s{s_kh}, 3")
    a(f"s_add_u32 s{s_a}, s{s_a}, s{s_n}")
    a(f"s_lshl_b32 s{s_a}, s{s_a}, 2")
    a(f"s_add_u32 s{s_a}, s{s_a}, s{s_g}")
    a(f"s_lshl_b32 s{s_a}, s{s_a}, {G.fsh}")
    a(f"s_add_u32 s{s_b}, s{s_a}, s{s_xo}")
    a("s_waitcnt vmcnt(0)")
    if G.wb:
        a("buffer_wbl2 sc1")
        a("s_waitcnt vmcnt(0)")
    set_flag(a, s_b)
    stamp(a, 7)
    stamp(a, 8)
    stamp(a, 9)
    Lfin = a.label("fin")
    a(f"s_cmp_ge_u32 s{s_wave}, 4")
    a(f"s_cbranch_scc1 {Lfin}")

    tr_addrs(a, wa, True, True, None, 0)
    a(f"s_lshl_b32 s{s_a}, s{s_blk}, 4")
    a(f"s_add_u32 s{s_a}, s{s_a}, s{s_m}")
    a(f"s_lshl_b32 s{s_a}, s{s_a}, 2")
    a(f"s_add_u32 s{s_a}, s{s_a}, s{s_g}")
    a(f"s_mul_i32 s{s_a}, s{s_a}, {2*20480}")
    a(f"s_add_u32 s{s_a}, s{s_a}, {OBASE}")
    make_srd(a, SO, 32, f"s{s_a}", 2 * 20480)
    a(f"s_lshr_b32 s{s_a}, s{s_g}, 1")
    a(f"s_lshl_b32 s{s_a}, s{s_a}, {5+G.fsh}")
    a(f"s_add_u32 s{s_b}, s{s_a}, s{s_xo}")
    a(f"v_and_b32 v{T[0]}, 31, v{lane}")
    a(f"v_lshlrev_b32 v{T[0]}, {G.fsh}, v{T[0]}")
    a(f"v_lshlrev_b32 v{T[1]}, 4, v{lane}")
    a(f"v_add_u32 v{T[2]}, 20480, v{T[1]}")
    poll(a, T[0], f"s{s_b}")
    stamp(a, 8)
    for g in range(20):
        if g % 4 == 0: a(f"s_movk_i32 s{s_a}, {1024*g}")
        for ii in range(2):
            a(f"buffer_load_dwordx4 {v(XF+8*g+4*ii,4)}, v{T[1+ii]}, {srd(SO)}, s{s_a} offen offset:{1024*(g%4)} sc1")
    small_gemm(a, XF, ACC2, W2, wa, [WOBASE + 5120 * g for g in range(20)],
               pre={("m", g): f"s_waitcnt vmcnt({38-2*g}) lgkmcnt(0)" for g in range(20)})
    stamp(a, 9)
    make_srd(a, SO, 28, None, 2048 * 2560)
    a(f"s_lshl_b32 s{s_a}, s{s_m}, 2")
    a(f"s_add_u32 s{s_a}, s{s_a}, s{s_g}")
    a(f"s_mul_i32 s{s_a}, s{s_a}, {32*2560}")
    a(f"s_mul_i32 s{s_b}, s{s_blk}, 1280")
    a(f"s_add_u32 s{s_a}, s{s_a}, s{s_b}")
    a(f"s_mul_i32 s{s_b}, s{s_n}, 160")
    a(f"s_add_u32 s{s_a}, s{s_a}, s{s_b}")
    a(f"s_add_u32 s{s_b}, s{s_a}, {16*2560}")
    a(f"v_and_b32 v{T[0]}, 15, v{lane}")
    a(f"v_mul_u32_u24 v{T[0]}, 2560, v{T[0]}")
    a(f"v_lshrrev_b32 v{T[1]}, 4, v{lane}")
    a(f"v_mul_u32_u24 v{T[1]}, 40, v{T[1]}")
    a(f"v_add_u32 v{T[0]}, v{T[0]}, v{T[1]}")
    for ii in range(2):
        r = ACC2 + 20 * ii
        for e in range(10):
            a(f"v_cvt_pk_bf16_f32 v{r+e}, v{r+2*e}, v{r+2*e+1}")
        so = s_a if ii == 0 else s_b
        a(f"buffer_store_dwordx4 {v(r,4)}, v{T[0]}, {srd(SO)}, s{so} offen")
        a(f"buffer_store_dwordx4 {v(r+4,4)}, v{T[0]}, {srd(SO)}, s{so} offen offset:16")
        a(f"buffer_store_dwordx2 {v(r+8,2)}, v{T[0]}, {srd(SO)}, s{so} offen offset:32")
    a(f"s_or_b32 s{s_a}, s{s_m}, s{s_n}")
    a(f"s_or_b32 s{s_a}, s{s_a}, s{s_wave}")
    a(f"s_cbranch_scc1 {Lfin}")
    a(f"s_lshl_b32 s{s_b}, s{s_blk}, 7")
    a(f"s_add_u32 s{s_b}, s{s_b}, {EOFF}")
    set_flag(a, s_b)
    a(f"{Lfin}:")
    dump_stamps(a, 10)
    a(f"{Lend}:")
    a("s_endpgm")

    a(f"{Lslow}:")
    for q in range(2):
        L1 = a.label("s1"); L2 = a.label("s2")
        a(f"v_mov_b32 v{vmx}, 0xff800000")
        a(f"s_mov_b32 s{s_ko}, 0")
        a(f"{L1}:")
        a(ld_k1(0, s_ko)); a(ld_k1(1, s_ko)); a(ld_k3(0, s_ko))
        a("s_waitcnt vmcnt(0)")
        for t in range(2):
            a(qk1(0, q, t)); a(qk2(0, q, t))
            a("s_nop 15")
            for r in range(0, 16, 2):
                a(f"v_max3_f32 v{vmx}, v{S[0]+r}, v{S[0]+r+1}, v{vmx}")
        a(f"s_add_u32 s{s_ko}, s{s_ko}, {PS}")
        a(f"s_cmp_lt_u32 s{s_ko}, {HS}")
        a(f"s_cbranch_scc1 {L1}")
        a(f"v_mov_b32 v{T[0]}, v{vmx}")
        a("s_nop 1")
        a(f"v_permlane32_swap_b32 v{T[0]}, v{vmx}")
        a("s_nop 1")
        a(f"v_max_f32 v{vmx}, v{vmx}, v{T[0]}")
        for r in range(16):
            a(f"v_mov_b32 v{O[q]+r}, 0")
        a(f"s_mov_b32 s{s_ko}, 0")
        a(f"{L2}:")
        a(ld_k1(0, s_ko)); a(ld_k1(1, s_ko)); a(ld_k3(0, s_ko)); a(ld_v(0, s_ko)); a(ld_v(1, s_ko))
        a("s_waitcnt vmcnt(0)")
        for t in range(2):
            a(qk1(0, q, t)); a(qk2(0, q, t))
            a("s_nop 15")
            for r in range(16):
                a(f"v_sub_f32 v{S[0]+r}, v{S[0]+r}, v{vmx}")
            for r in range(16):
                a(ex(0, r))
            a("s_nop 0")
            for r in range(0, 16, 2):
                a(cv(0, r))
            a("s_nop 1")
            a(pv(0, q, t, 0)); a(pv(0, q, t, 1))
        a(f"s_add_u32 s{s_ko}, s{s_ko}, {PS}")
        a(f"s_cmp_lt_u32 s{s_ko}, {HS}")
        a(f"s_cbranch_scc1 {L2}")
    a("s_nop 15")
    bcast_l()
    a("s_nop 1")
    a(f"s_branch {Lst}")
    return name

def build():
    a = Asm()
    name = gen(a)
    out = HEADER + "; @launch grid=(256,1,1) block=(512,1,1) lds=163840\n"
    out += '.amdgcn_target "amdgcn-amd-amdhsa--gfx950"\n.text\n' + a.text()
    out += '.section .rodata,"a"\n.p2align 6\n' + kernel_desc(name, 256, 100 if G.diag else 64)
    return out

if __name__ == "__main__":
    path = sys.argv[1] if len(sys.argv) > 1 else f"cdna_kernels/{NAME}.s"
    G.diag = "diag" in sys.argv
    for x in sys.argv[2:]:
        if "=" in x:
            k, val = x.split("=", 1)
            setattr(G, k, eval(val))
    open(path, "w").write(build())
    print("wrote", path)
```

```python
import sys
sys.path.insert(0, "gen")
from asmlib import *

NAME = "concat_heads__mha_block__softmax_full_mha__prompt"
KVBASE = 0
HS = 163840
PS = 5120
OBASE = 0xA00000
FBASE = 0x1000000
DBGBASE = 0x2000000
QSCALE = 0x3ea52b5c
SLOT = 36864
SPARE = 4 * SLOT
QAREA = SLOT
WOBASE = 61440
SPIN = 400000
F2OFF = 0x80000
EOFF = 0x180000

HEADER = """; Kernarg layout for this problem (72 bytes, ptrs only, base s[0:1]):
"""

SX, SW, SKV, SF, SO = 4, 8, 12, 36, 40
(s_blk, s_m, s_n, s_wave, s_tag, s_k, s_a, s_b, s_c, s_it, s_xo, s_wo, s_m0x, s_m0w, s_kh, s_ko, s_vo, s_g) = range(44, 62)
s_vm = 62
lane = 255
T = [249, 250, 251, 252, 253, 254]

class G:
    diag = False
    lens = [9, 4, 2, 1]
    rot = True
    iters = 8
    dbg = None
    st = 'sc1'
    wb = False
    pro = 2
    pf = 'sc1'
    sleep = 4
    fsh = 7
    fl = 32
    ff = 'sc1'

def stamp(a, i):
    if not G.diag: return
    a("s_memtime s[96:97]")
    a("s_memrealtime s[98:99]")
    a("s_waitcnt lgkmcnt(0)")
    a(f"s_mov_b32 s{64+2*i}, s96")
    a(f"s_mov_b32 s{65+2*i}, s98")

def dump_stamps(a, n):
    if not G.diag: return
    a("s_waitcnt vmcnt(0)")
    stamp(a, n)
    a(f"s_lshl_b32 s{s_a}, s2, 3")
    a(f"s_add_u32 s{s_a}, s{s_a}, s{s_wave}")
    a(f"s_lshl_b32 s{s_a}, s{s_a}, 7")
    a(f"s_add_u32 s{s_a}, s{s_a}, {DBGBASE}")
    make_srd(a, SX, 32, f"s{s_a}", 128)
    a(f"v_mov_b32 v{T[0]}, 0")
    for i in range(32):
        a(f"v_mov_b32 v{T[1]}, s{64+i}")
        a(f"buffer_store_dword v{T[1]}, v{T[0]}, s[{SX}:{SX+3}], 0 offen offset:{4*i}")
    if G.dbg is not None:
        Ls = a.label("nodbg")
        a(f"s_lshl_b32 s{s_a}, s2, 3")
        a(f"s_add_u32 s{s_a}, s{s_a}, s{s_wave}")
        a(f"s_cmp_lg_u32 s{s_a}, {G.dbg}")
        a(f"s_cbranch_scc1 {Ls}")
        make_srd(a, SX, 30, None, 256)
        for i in range(1, 14):
            a(f"s_sub_u32 s{s_a}, s{65+2*i}, s65")
            a(f"v_mov_b32 v{T[1]}, s{s_a}")
            a(f"buffer_store_dword v{T[1]}, v{T[0]}, s[{SX}:{SX+3}], 0 offen offset:{4*i}")
        a(f"s_sub_u32 s{s_a}, s{64+2*6}, s{64+2*5}")
        a(f"v_mov_b32 v{T[1]}, s{s_a}")
        a(f"buffer_store_dword v{T[1]}, v{T[0]}, s[{SX}:{SX+3}], 0 offen offset:{4*15}")
        a(f"{Ls}:")

def make_srd(a, d, base, off, nbytes):
    if off is None:
        a(f"s_mov_b32 s{d}, s{base}")
        a(f"s_mov_b32 s{d+1}, s{base+1}")
    else:
        a(f"s_add_u32 s{d}, s{base}, {off}")
        a(f"s_addc_u32 s{d+1}, s{base+1}, 0")
    a(f"s_mov_b32 s{d+2}, {nbytes}")
    a(f"s_mov_b32 s{d+3}, 0x00020000")

def srd(d): return f"s[{d}:{d+3}]"

def img_pos(a, pos, row, c):
    a(f"v_mul_u32_u24 v{row}, 3277, v{pos}")
    a(f"v_lshrrev_b32 v{row}, 16, v{row}")
    a(f"v_mul_u32_u24 v{c}, 20, v{row}")
    a(f"v_sub_u32 v{c}, v{pos}, v{c}")
    a(f"v_lshrrev_b32 v{T[5]}, 3, v{row}")
    a(f"v_lshlrev_b32 v{T[5]}, 1, v{T[5]}")
    a(f"v_sub_u32 v{c}, v{c}, v{T[5]}")
    a(f"v_add_u32 v{T[5]}, 20, v{c}")
    a(f"v_min_u32 v{c}, v{c}, v{T[5]}")

def grp_src(a, dst, row, c, ld_sreg):
    a(f"v_cmp_lt_u32 vcc, 9, v{c}")
    a(f"v_add_u32 v{T[5]}, 16, v{row}")
    a(f"v_subrev_u32 v{T[4]}, 10, v{c}")
    a(f"v_cndmask_b32 v{row}, v{row}, v{T[5]}, vcc")
    a(f"v_cndmask_b32 v{c}, v{c}, v{T[4]}, vcc")
    a(f"v_lshlrev_b32 v{c}, 4, v{c}")
    a(f"v_mad_u32_u24 v{dst}, v{row}, s{ld_sreg}, v{c}")

def tr_addrs(a, wa, perm, grp, colhalf_sreg, base):
    a(f"v_bfe_u32 v{T[0]}, v{lane}, 2, 2")
    a(f"v_lshrrev_b32 v{T[1]}, 4, v{lane}")
    a(f"v_and_b32 v{T[2]}, 1, v{T[1]}")
    if grp:
        a(f"v_lshl_add_u32 v{T[0]}, v{T[2]}, 3, v{T[0]}")
    else:
        a(f"v_lshl_add_u32 v{T[0]}, v{T[1]}, 3, v{T[0]}")
    a(f"v_mul_u32_u24 v{T[0]}, 320, v{T[0]}")
    if base: a(f"v_add_u32 v{T[0]}, {base}, v{T[0]}")
    a(f"v_lshlrev_b32 v{T[2]}, 5, v{T[2]}")
    if grp:
        a(f"v_lshrrev_b32 v{T[1]}, 1, v{T[1]}")
        a(f"v_mul_u32_u24 v{T[1]}, 160, v{T[1]}")
        a(f"v_add_u32 v{T[2]}, v{T[2]}, v{T[1]}")
    else:
        a(f"s_mul_i32 s{s_a}, s{colhalf_sreg}, 160")
        a(f"v_add_u32 v{T[2]}, s{s_a}, v{T[2]}")
    a(f"v_and_b32 v{T[1]}, 3, v{lane}")
    a(f"v_mul_u32_u24 v{T[1]}, {40 if perm else 8}, v{T[1]}")
    a(f"v_add_u32 v{T[2]}, v{T[2]}, v{T[1]}")
    for j in range(5):
        a(f"v_add_u32 v{T[1]}, {8*j if perm else 32*j}, v{T[2]}")
        a(f"v_subrev_u32 v{T[3]}, 320, v{T[1]}")
        a(f"v_min_u32 v{T[1]}, v{T[1]}, v{T[3]}")
        a(f"v_add_u32 v{wa[j]}, v{T[1]}, v{T[0]}")

def x_addrs(a, xa, rowbase_sreg):
    a(f"v_and_b32 v{T[0]}, 15, v{lane}")
    a(f"v_lshrrev_b32 v{T[1]}, 1, v{T[0]}")
    a(f"v_lshrrev_b32 v{T[2]}, 4, v{lane}")
    a(f"v_lshlrev_b32 v{T[0]}, 7, v{T[0]}")
    a(f"v_add_u32 v{T[0]}, s{rowbase_sreg}, v{T[0]}")
    for ks in range(2):
        a(f"v_or_b32 v{T[3]}, {4*ks}, v{T[2]}")
        a(f"v_xor_b32 v{T[3]}, v{T[3]}, v{T[1]}")
        a(f"v_lshl_add_u32 v{xa[ks]}, v{T[3]}, 4, v{T[0]}")

def interleave(a, main, extra, start=0):
    extra = list(extra)
    for i, x in enumerate(main):
        a(x)
        if i >= start and extra: a(extra.pop(0))
    for x in extra: a(x)

def poll(a, voff, imm_soff, nlanes_mask=None):
    L = a.label("poll"); Ld = a.label("polld")
    a(f"s_mov_b32 s{s_it}, {SPIN}")
    a(f"{L}:")
    a(f"buffer_load_dword v{T[5]}, v{voff}, {srd(SF)}, {imm_soff} offen {G.pf}")
    a("s_waitcnt vmcnt(0)")
    a(f"v_cmp_ne_u32 vcc, s{s_tag}, v{T[5]}")
    a(f"s_cbranch_vccz {Ld}")
    a(f"s_sub_u32 s{s_it}, s{s_it}, 1")
    a(f"s_cbranch_scc1 {Ld}")
    a(f"s_sleep {G.sleep}")
    a(f"s_branch {L}")
    a(f"{Ld}:")

def set_flag(a, off_sreg):
    a(f"v_lshlrev_b32 v{T[4]}, 2, v{lane}")
    a(f"v_mov_b32 v{T[5]}, s{s_tag}")
    a(f"s_mov_b32 exec_lo, {(1 << G.fl) - 1:#x}")
    a("s_mov_b32 exec_hi, 0")
    a(f"buffer_store_dword v{T[5]}, v{T[4]}, {srd(SF)}, s{off_sreg} offen {G.ff}")
    a("s_mov_b64 exec, -1")

def small_gemm(a, BF, ACC, W, wa, gbase, pre=None):
    cur = [0]
    def reads(g):
        out = []
        want = (gbase[g] // 57344) * 57344 if not (cur[0] <= gbase[g] and gbase[g] + 1280 - cur[0] <= 65535) else cur[0]
        if want != cur[0]:
            d = want - cur[0]
            for j in range(5):
                out.append(f"v_add_u32 v{wa[j]}, {d}, v{wa[j]}" if d > 0 else f"v_subrev_u32 v{wa[j]}, {-d}, v{wa[j]}")
            cur[0] = want
        for j in range(5):
            for t in range(2):
                out.append(f"ds_read_b64_tr_b16 {v(W[g&1]+4*j+2*t,2)}, v{wa[j]} offset:{gbase[g]-cur[0]+1280*t}")
        return out
    if pre and ("r", 0) in pre:
        for x in pre[("r", 0)]: a(x)
    for x in reads(0): a(x)
    for g in range(20):
        nxt = []
        if g < 19:
            if pre and ("r", g + 1) in pre:
                nxt += pre[("r", g + 1)]
            nxt += reads(g + 1)
        a("s_waitcnt lgkmcnt(0)" if not (pre and ("m", g) in pre) else pre[("m", g)])
        ms = []
        for j in range(5):
            for ii in range(2):
                d = v(ACC + 4 * (5 * ii + j), 4)
                c = d if g else "0"
                ms.append(f"v_mfma_f32_16x16x32_bf16 {d}, {v(W[g&1]+4*j,4)}, {v(BF+8*g+4*ii,4)}, {c}")
        interleave(a, ms, nxt)
    a("s_nop 7")

def gen(a):
    name = NAME + "_kernel"
    kernel_header(a, name)
    Lend = a.label("end"); Lload = a.label("loader"); Lv = a.label("vtype"); Lpub = a.label("pub"); Latt = a.label("att")
    a("s_cmp_ge_u32 s2, 256")
    a(f"s_cbranch_scc1 {Lend}")
    stamp(a, 0)
    a("s_load_dwordx16 s[16:31], s[0:1], 0")
    a("s_load_dwordx2 s[32:33], s[0:1], 64")
    a(f"v_lshrrev_b32 v{T[0]}, 6, v0")
    a(f"v_and_b32 v{lane}, 63, v0")
    a(f"v_readfirstlane_b32 s{s_wave}, v{T[0]}")
    a(f"s_and_b32 s{s_a}, s2, 7")
    a(f"s_lshr_b32 s{s_b}, s2, 3")
    a(f"s_lshr_b32 s{s_blk}, s{s_a}, 2")
    a(f"s_and_b32 s{s_a}, s{s_a}, 3")
    a(f"s_lshr_b32 s{s_c}, s{s_b}, 3")
    a(f"s_lshl_b32 s{s_m}, s{s_a}, 2")
    a(f"s_add_u32 s{s_m}, s{s_m}, s{s_c}")
    a(f"s_and_b32 s{s_n}, s{s_b}, 7")
    if G.rot:
        a(f"s_mul_i32 s{s_k}, s{s_c}, 3")
        a(f"s_add_u32 s{s_k}, s{s_k}, s{s_n}")
        a(f"s_add_u32 s{s_k}, s{s_k}, s{s_a}")
        a(f"s_cmp_ge_u32 s{s_k}, 10")
        a(f"s_cselect_b32 s{s_a}, 10, 0")
        a(f"s_sub_u32 s{s_k}, s{s_k}, s{s_a}")
    else:
        a(f"s_mov_b32 s{s_k}, 0")
    a(f"s_and_b32 s{s_g}, s{s_wave}, 3")
    a(f"s_lshr_b32 s{s_kh}, s{s_wave}, 2")
    a(f"s_mov_b32 s{s_vm}, 0x000fffff")
    a(f"s_mov_b32 s{s_vm+1}, 0x000fffff")
    a(f"s_cmp_ge_u32 s{s_wave}, 4")
    a(f"s_cbranch_scc1 {Lload}")

    def common_ptrs():
        a("s_waitcnt lgkmcnt(0)")
        a(f"s_cmp_eq_u32 s{s_blk}, 0")
        a("s_cselect_b64 s[16:17], s[16:17], s[22:23]")
        a("s_cselect_b64 s[18:19], s[18:19], s[24:25]")
        a("s_cselect_b64 s[20:21], s[20:21], s[26:27]")
    def epoch_load():
        a(f"s_lshl_b32 s{s_a}, s{s_blk}, 7")
        a(f"s_add_u32 s{s_a}, s{s_a}, {FBASE+EOFF}")
        a(f"s_load_dword s{s_tag}, s[32:33], s{s_a}")
        make_srd(a, SF, 32, FBASE, EOFF + 0x1000)
    def epoch_fin():
        a("s_waitcnt lgkmcnt(0)")
        a(f"s_mul_i32 s{s_tag}, s{s_tag}, 0x9E3779B1")
        a(f"s_add_u32 s{s_tag}, s{s_tag}, 0x7F4A7C15")

    O = [0, 16, 32, 48]; S = [64, 80]; P = [96, 104]
    K1 = [112, 116, 120, 124]; K3 = [128, 130]; V = [132, 140, 148, 156]
    Q1 = [164, 168, 172, 176]; Q3 = [[180, 182, 184, 186], [188, 190, 192, 194]]
    ka, k3a, va, gwo, vmx = 240, 241, 242, 243, 244

    def kv_setup():
        a(f"s_lshl_b32 s{s_a}, s{s_blk}, 3")
        a(f"s_add_u32 s{s_a}, s{s_a}, s{s_n}")
        a(f"s_lshl_b32 s{s_a}, s{s_a}, 2")
        a(f"s_add_u32 s{s_a}, s{s_a}, s{s_g}")
        a(f"s_mul_i32 s{s_a}, s{s_a}, {HS}")
        if KVBASE: a(f"s_add_u32 s{s_a}, s{s_a}, {KVBASE}")
        make_srd(a, SKV, 32, f"s{s_a}", HS)
        a(f"v_lshlrev_b32 v{ka}, 4, v{lane}")
        a(f"v_lshlrev_b32 v{k3a}, 3, v{lane}")
        a(f"v_and_b32 v{T[0]}, 31, v{lane}")
        a(f"v_lshrrev_b32 v{T[1]}, 1, v{T[0]}")
        a(f"v_xor_b32 v{T[1]}, v{T[1]}, v{T[0]}")
        a(f"v_and_b32 v{T[1]}, 4, v{T[1]}")
        a(f"v_mul_u32_u24 v{T[1]}, 3, v{T[1]}")
        a(f"v_xor_b32 v{T[1]}, v{T[1]}, v{T[0]}")
        a(f"s_and_b32 s{s_a}, s{s_g}, 1")
        a(f"s_lshl_b32 s{s_a}, s{s_a}, 2")
        a(f"v_add_u32 v{T[1]}, s{s_a}, v{T[1]}")
        a(f"v_subrev_u32 v{T[2]}, 20, v{T[1]}")
        a(f"v_min_u32 v{T[1]}, v{T[1]}, v{T[2]}")
        a(f"v_lshrrev_b32 v{T[2]}, 5, v{lane}")
        a(f"v_mul_u32_u24 v{T[2]}, 320, v{T[2]}")
        a(f"v_lshl_add_u32 v{va}, v{T[1]}, 4, v{T[2]}")
        a(f"v_add_u32 v{va}, 2560, v{va}")
        a(f"v_mov_b32 v{T[2]}, 0x3f803f80")
        a(f"v_cmp_eq_u32 vcc, 20, v{T[0]}")
        a(f"s_lshl_b32 s{s_ko}, s{s_m}, 1")
        a(f"s_add_u32 s{s_ko}, s{s_ko}, s{s_kh}")
        a(f"v_cndmask_b32 v{T[2]}, 0, v{T[2]}, vcc")
        a(f"s_mul_i32 s{s_ko}, s{s_ko}, {PS}")
        for b in range(4):
            for r in range(8):
                a(f"v_mov_b32 v{V[b]+r}, v{T[2]}")
    def ld_k1(b, so): return f"buffer_load_dwordx4 {v(K1[b],4)}, v{ka}, {srd(SKV)}, s{so} offen offset:{1024*(b&1)} sc1"
    def ld_k3(p, so): return f"buffer_load_dwordx2 {v(K3[p],2)}, v{k3a}, {srd(SKV)}, s{so} offen offset:2048 sc1"
    def ld_v(b, so):
        return (f"s_mov_b64 exec, s[{s_vm}:{s_vm+1}]\n"
                f"buffer_load_dwordx4 {v(V[b],4)}, v{va}, {srd(SKV)}, s{so} offen offset:{1280*(b&1)} sc1\n"
                f"buffer_load_dwordx4 {v(V[b]+4,4)}, v{va}, {srd(SKV)}, s{so} offen offset:{1280*(b&1)+640} sc1\n"
                f"s_mov_b64 exec, -1")
    def adv_pair():
        return [f"s_add_u32 s{s_ko}, s{s_ko}, {2*PS}", f"s_cmp_ge_u32 s{s_ko}, {HS}",
                f"s_cselect_b32 s{s_c}, {HS}, 0", f"s_sub_u32 s{s_ko}, s{s_ko}, s{s_c}"]
    seq = []
    def kv_first():
        a(ld_k1(0, s_ko)); a(ld_k3(0, s_ko)); a(ld_v(0, s_ko)); a(ld_k1(1, s_ko)); a(ld_v(1, s_ko))
        for x in adv_pair(): a(x)
        a(ld_k1(2, s_ko)); a(ld_v(2, s_ko)); a(ld_k1(3, s_ko)); a(ld_k3(1, s_ko))

    ACC = 0
    X = [[80 + 16 * b + 4 * i for i in range(4)] for b in range(2)]
    W = [[112 + 20 * b + 4 * j for j in range(5)] for b in range(2)]
    xa = [240, 241]; wa = [242, 243, 244, 245, 246]
    s_wm, s_wn = s_xo, s_wo
    a(f"s_and_b32 s{s_wm}, s{s_wave}, 1")
    a(f"s_lshr_b32 s{s_wn}, s{s_wave}, 1")
    a(f"s_lshl_b32 s{s_b}, s{s_wm}, 13")
    x_addrs(a, xa, s_b)
    for r in range(80): a(f"v_mov_b32 v{ACC+r}, 0")
    common_ptrs()
    epoch_load()
    a(f"s_cmp_ge_u32 s{s_n}, 4")
    a(f"s_cbranch_scc1 {Lv}")

    def p1_reads(ks, b):
        out = []
        for i in range(4):
            out.append(f"ds_read_b128 {v(X[b][i],4)}, v{xa[ks]} offset:{2048*i}")
        for j in range(5):
            for t in range(2):
                out.append(f"ds_read_b64_tr_b16 {v(W[b][j]+2*t,2)}, v{wa[j]} offset:{ks*10240+1280*t}")
        return out
    def p1_loop(ktype):
        tr_addrs(a, wa, ktype, False, s_wn, 16384)
        epoch_fin()
        def mf(b):
            out = []
            for j in range(5):
                for i in range(4):
                    d = v(ACC + 4 * (5 * i + j), 4)
                    A, B = (W[b][j], X[b][i]) if ktype else (X[b][i], W[b][j])
                    out.append(f"v_mfma_f32_16x16x32_bf16 {d}, {v(A,4)}, {v(B,4)}, {d}")
            return out
        L = a.label("p1"); Ll = a.label("p1l")
        a(f"s_mov_b32 s{s_it}, 0")
        a(f"s_mov_b32 s{s_m0x}, {(-3*SLOT) & 0xffffffff}")
        a("s_barrier")
        stamp(a, 1)
        for x in p1_reads(0, 0): a(x)
        a(f"{L}:")
        a("s_waitcnt lgkmcnt(0)")
        interleave(a, mf(0), p1_reads(1, 1) + [f"s_add_u32 s{s_it}, s{s_it}, 1", f"s_and_b32 s{s_a}, s{s_it}, 3",
                                               f"s_cselect_b32 s{s_a}, {SLOT}, s{s_m0x}", f"s_cmp_eq_u32 s{s_it}, 10"])
        a("s_waitcnt lgkmcnt(0)")
        a("s_barrier")
        a(f"s_cbranch_scc1 {Ll}")
        m1 = mf(1)
        a(m1[0])
        for r in xa + wa: a(f"v_add_u32 v{r}, s{s_a}, v{r}")
        interleave(a, m1[1:], p1_reads(0, 0))
        a(f"s_branch {L}")
        a(f"{Ll}:")
        for x in mf(1): a(x)
        a(f"s_and_b32 s{s_a}, s{s_n}, 3")
        a(f"s_lshl_b32 s{s_b}, s{s_blk}, 2")
        a(f"s_add_u32 s{s_a}, s{s_a}, s{s_b}")
        a(f"s_lshl_b32 s{s_a}, s{s_a}, 1")
        a(f"s_add_u32 s{s_a}, s{s_a}, s{s_wn}")
        a(f"s_mul_i32 s{s_a}, s{s_a}, {4*HS}")
        a(f"s_lshl_b32 s{s_b}, s{s_m}, 1")
        a(f"s_add_u32 s{s_b}, s{s_b}, s{s_wm}")
        a(f"s_mul_i32 s{s_b}, s{s_b}, {PS}")
        a(f"s_add_u32 s{s_a}, s{s_a}, s{s_b}")
        if KVBASE: a(f"s_add_u32 s{s_a}, s{s_a}, {KVBASE}")
        make_srd(a, SKV, 32, f"s{s_a}", 3 * HS + PS)
        stamp(a, 2)

    p1_loop(True)
    a(f"v_lshrrev_b32 v{T[0]}, 4, v{lane}")
    a(f"s_mov_b32 s{s_a}, {HS}")
    a(f"v_mul_lo_u32 v{T[0]}, v{T[0]}, s{s_a}")
    a(f"v_and_b32 v{T[1]}, 7, v{lane}")
    a(f"v_and_b32 v{T[2]}, 8, v{lane}")
    a(f"v_lshl_add_u32 v{T[1]}, v{T[2]}, 1, v{T[1]}")
    a(f"v_lshl_add_u32 v{T[2]}, v{T[1]}, 4, v{T[0]}")
    a(f"v_lshl_add_u32 v{T[3]}, v{T[1]}, 3, v{T[0]}")
    for i in range(4):
        r = ACC + 20 * i
        for e in range(10):
            a(f"v_cvt_pk_bf16_f32 v{r+e}, v{r+2*e}, v{r+2*e+1}")
        o = (i >> 1) * 1024 + (i & 1) * 128
        a(f"buffer_store_dwordx4 {v(r,4)}, v{T[2]}, {srd(SKV)}, 0 offen offset:{o} {G.st}")
        a(f"buffer_store_dwordx4 {v(r+4,4)}, v{T[2]}, {srd(SKV)}, 0 offen offset:{o+512} {G.st}")
        a(f"buffer_store_dwordx2 {v(r+8,2)}, v{T[3]}, {srd(SKV)}, 0 offen offset:{2048+(i>>1)*256+(i&1)*64} {G.st}")
    a(f"s_branch {Lpub}")
    a(f"{Lv}:")
    p1_loop(False)
    a(f"v_lshrrev_b32 v{T[0]}, 4, v{lane}")
    a(f"v_mul_u32_u24 v{T[0]}, 320, v{T[0]}")
    a(f"v_and_b32 v{T[1]}, 15, v{lane}")
    a(f"s_mov_b32 s{s_a}, {HS-320}")
    for j in range(5):
        a(f"v_add_u32 v{T[2]}, {16*j}, v{T[1]}")
        a(f"v_mul_u32_u24 v{T[3]}, 3277, v{T[2]}")
        a(f"v_lshrrev_b32 v{T[3]}, 16, v{T[3]}")
        a(f"v_lshl_add_u32 v{T[2]}, v{T[2]}, 4, v{T[0]}")
        a(f"v_mad_u32_u24 v{wa[j]}, v{T[3]}, s{s_a}, v{T[2]}")
        for i2 in range(2):
            r0 = ACC + 4 * (5 * (2 * i2) + j); r1 = ACC + 4 * (5 * (2 * i2 + 1) + j)
            a(f"v_cvt_pk_bf16_f32 v{r0}, v{r0}, v{r0+1}")
            a(f"v_cvt_pk_bf16_f32 v{r0+1}, v{r0+2}, v{r0+3}")
            a(f"v_cvt_pk_bf16_f32 v{r0+2}, v{r1}, v{r1+1}")
            a(f"v_cvt_pk_bf16_f32 v{r0+3}, v{r1+2}, v{r1+3}")
            a(f"buffer_store_dwordx4 {v(r0,4)}, v{wa[j]}, {srd(SKV)}, 0 offen offset:{2560+1280*i2} {G.st}")
    a(f"{Lpub}:")
    a(f"s_lshl_b32 s{s_a}, s{s_blk}, 3")
    a(f"s_add_u32 s{s_a}, s{s_a}, s{s_n}")
    a(f"s_lshl_b32 s{s_a}, s{s_a}, 1")
    a(f"s_add_u32 s{s_a}, s{s_a}, s{s_wn}")
    a(f"s_lshl_b32 s{s_a}, s{s_a}, 4")
    a(f"s_add_u32 s{s_a}, s{s_a}, s{s_m}")
    a(f"s_lshl_b32 s{s_a}, s{s_a}, 1")
    a(f"s_add_u32 s{s_a}, s{s_a}, s{s_wm}")
    a(f"s_lshl_b32 s{s_b}, s{s_a}, {G.fsh}")
    a("s_waitcnt vmcnt(0)")
    if G.wb:
        a("buffer_wbl2 sc1")
        a("s_waitcnt vmcnt(0)")
    set_flag(a, s_b)
    stamp(a, 3)
    kv_setup()
    a(f"s_lshl_b32 s{s_b}, s{s_blk}, 4")
    a(f"s_add_u32 s{s_b}, s{s_b}, s{s_n}")
    a(f"s_lshl_b32 s{s_b}, s{s_b}, {5+G.fsh}")
    a(f"v_and_b32 v{T[0]}, 31, v{lane}")
    a(f"v_lshrrev_b32 v{T[1]}, 5, v{lane}")
    a(f"v_lshlrev_b32 v{T[0]}, {G.fsh}, v{T[0]}")
    a(f"v_lshl_add_u32 v{T[0]}, v{T[1]}, {8+G.fsh}, v{T[0]}")
    poll(a, T[0], f"s{s_b}")
    stamp(a, 4)
    kv_first()
    a("s_barrier")
    a("s_barrier")
    a(f"s_branch {Latt}")

    a(f"{Lload}:")
    XF = 0; ACC2 = 160; W2 = [200, 220]
    gx = [160, 161, 162, 163]; gw = [164, 165, 166, 167, 168]; gq = [169, 170, 171, 172, 173]
    a(f"s_lshl_b32 s{s_b}, s{s_g}, 5")
    a(f"s_movk_i32 s{s_c}, 1280")
    for i in range(4):
        a(f"v_lshrrev_b32 v{T[0]}, 3, v{lane}")
        a(f"v_add_u32 v{T[0]}, s{s_b}, v{T[0]}")
        if i: a(f"v_add_u32 v{T[0]}, {8*i}, v{T[0]}")
        a(f"v_lshrrev_b32 v{T[1]}, 1, v{T[0]}")
        a(f"v_xor_b32 v{T[1]}, v{T[1]}, v{lane}")
        a(f"v_and_b32 v{T[1]}, 7, v{T[1]}")
        a(f"v_lshlrev_b32 v{T[1]}, 4, v{T[1]}")
        a(f"v_mad_u32_u24 v{gx[i]}, v{T[0]}, s{s_c}, v{T[1]}")
        if i: a(f"v_subrev_u32 v{gx[i]}, {1024*i}, v{gx[i]}")
    a(f"s_movk_i32 s{s_c}, 3840")
    a(f"s_lshl_b32 s{s_b}, s{s_g}, 4")
    for i in range(5):
        a(f"v_add_u32 v{T[0]}, {64*i}, v{lane}")
        img_pos(a, T[0], T[1], T[2])
        a(f"v_add_u32 v{T[0]}, s{s_b}, v{T[1]}")
        a(f"v_lshlrev_b32 v{T[3]}, 4, v{T[2]}")
        a(f"v_mad_u32_u24 v{gw[i]}, v{T[0]}, s{s_c}, v{T[3]}")
        grp_src(a, gq[i], T[1], T[2], s_c)
        if i & 3:
            a(f"v_subrev_u32 v{gw[i]}, {1024*i}, v{gw[i]}")
            a(f"v_subrev_u32 v{gq[i]}, {1024*i}, v{gq[i]}")
    a(f"s_lshl_b32 s{s_m0x}, s{s_g}, 12")
    a(f"s_mul_i32 s{s_m0w}, s{s_g}, 5120")
    a(f"s_add_u32 s{s_m0w}, s{s_m0w}, 16384")
    common_ptrs()
    a(f"s_mul_i32 s{s_a}, s{s_m}, {128*1280}")
    make_srd(a, SX, 16, f"s{s_a}", 128 * 1280)
    make_srd(a, SW, 18, None, 640 * 3840)
    a(f"s_mov_b32 s{s_vo}, s{s_k}")
    lseq = []
    def issue_stage(i):
        sl = (i & 3) * SLOT
        a(f"s_lshl_b32 s{s_xo}, s{s_k}, 7")
        a(f"s_add_u32 m0, s{s_m0x}, {sl}")
        a(f"s_mul_i32 s{s_wo}, s{s_k}, {64*3840}")
        for ii in range(4):
            a(f"buffer_load_dwordx4 v{gx[ii]}, {srd(SX)}, s{s_xo} offen offset:{1024*ii} lds")
        a(f"s_mul_i32 s{s_a}, s{s_n}, 320")
        a(f"s_add_u32 s{s_wo}, s{s_wo}, s{s_a}")
        a(f"s_add_u32 m0, s{s_m0w}, {sl}")
        a(f"s_add_u32 s{s_wo}, s{s_wo}, 1280")
        for ii in range(4):
            a(f"buffer_load_dwordx4 v{gw[ii]}, {srd(SW)}, s{s_wo} offen offset:{1024*ii} lds")
        a(f"s_add_u32 m0, s{s_m0w}, {sl+4096}")
        a(f"s_add_u32 s{s_k}, s{s_k}, 1")
        a(f"buffer_load_dwordx4 v{gw[4]}, {srd(SW)}, s{s_wo} offen lds")
        a(f"s_cmp_eq_u32 s{s_k}, 10")
        a(f"s_cselect_b32 s{s_k}, 0, s{s_k}")
        lseq.extend([("st", i)] * 9)
    gbase = [2 * SLOT + g * 5120 for g in range(7)] + [SPARE] + [3 * SLOT + g * 5120 for g in range(7)] + [SPARE + 5120] + [g * 5120 for g in range(4)]
    def issue_round(R):
        a(f"s_lshr_b32 s{s_a}, s{s_g}, 1")
        a(f"s_add_u32 s{s_a}, s{s_a}, s{s_vo}")
        a(f"s_add_u32 s{s_a}, s{s_a}, {2*R}")
        a(f"s_cmp_ge_u32 s{s_a}, 10")
        a(f"s_cselect_b32 s{s_b}, 10, 0")
        a(f"s_sub_u32 s{s_a}, s{s_a}, s{s_b}")
        a(f"s_lshl_b32 s{s_a}, s{s_a}, 1")
        a(f"s_and_b32 s{s_b}, s{s_g}, 1")
        a(f"s_add_u32 s{s_a}, s{s_a}, s{s_b}")
        a(f"s_mul_i32 s{s_wo}, s{s_a}, {32*3840}")
        a(f"s_mul_i32 s{s_a}, s{s_n}, 160")
        a(f"s_add_u32 s{s_wo}, s{s_wo}, s{s_a}")
        gb = gbase[4 * R:4 * R + 4]
        a(f"s_mul_i32 s{s_a}, s{s_g}, 5120")
        a(f"s_add_u32 s{s_a}, s{s_a}, {gb[0]}")
        assert gb[1] == gb[0] + 5120 and gb[2] == gb[0] + 10240
        if gb[3] != gb[0] + 15360:
            a(f"s_cmp_eq_u32 s{s_g}, 3")
            a(f"s_cselect_b32 s{s_a}, {gb[3]}, s{s_a}")
        a(f"s_mov_b32 m0, s{s_a}")
        a(f"s_add_u32 s{s_a}, s{s_a}, 4096")
        for ii in range(4):
            a(f"buffer_load_dwordx4 v{gq[ii]}, {srd(SW)}, s{s_wo} offen offset:{1024*ii} lds")
        a(f"s_mov_b32 m0, s{s_a}")
        a("s_nop 0")
        a(f"buffer_load_dwordx4 v{gq[4]}, {srd(SW)}, s{s_wo} offen lds")
        lseq.extend([("R", R)] * 5)
    def lwait(key):
        last = max(i for i, x in enumerate(lseq) if x == key)
        return len(lseq) - 1 - last
    stamp(a, 11)
    for i in range(G.pro):
        issue_stage(i)
        if i == 0: stamp(a, 12)
    stamp(a, 13)
    epoch_load()
    a(f"s_lshl_b32 s{s_b}, s{s_g}, 12")
    x_addrs(a, xa, s_b)
    tr_addrs(a, wa, True, True, None, 0)
    epoch_fin()
    a(f"s_waitcnt vmcnt({lwait(('st',0))})")
    a("s_barrier")
    stamp(a, 1)
    for i in range(G.pro, 4): issue_stage(i)
    xoff = 0
    for st in range(10):
        sl = (st & 3) * SLOT
        want = 0 if sl < 2 * SLOT else 2 * SLOT
        if want != xoff:
            for r in xa:
                a(f"v_add_u32 v{r}, {want-xoff}, v{r}" if want > xoff else f"v_subrev_u32 v{r}, {xoff-want}, v{r}")
            xoff = want
        for ks in range(2):
            for ii in range(2):
                a(f"ds_read_b128 {v(XF+16*st+8*ks+4*ii,4)}, v{xa[ks]} offset:{sl-xoff+2048*ii}")
        key = ("st", st + 1) if st < 9 else ("R", 3)
        a(f"s_waitcnt vmcnt({lwait(key)}) lgkmcnt(0)")
        a("s_barrier")
        if st + 4 <= 9: issue_stage(st + 4)
        if st == 6: issue_round(0); issue_round(1)
        if st == 7: issue_round(2); issue_round(3)
        if st == 8: issue_round(4)
    stamp(a, 2)
    small_gemm(a, XF, ACC2, W2, wa, gbase, pre={("r", 16): ["s_waitcnt vmcnt(0)", "s_barrier"]})
    stamp(a, 3)
    a(f"s_mov_b32 s{s_a}, {QSCALE:#x}")
    a(f"s_mul_i32 s{s_b}, s{s_g}, 1280")
    a(f"s_add_u32 s{s_b}, s{s_b}, {QAREA}")
    a(f"v_lshrrev_b32 v{T[0]}, 4, v{lane}")
    a(f"v_mul_u32_u24 v{T[0]}, 5120, v{T[0]}")
    a(f"v_add_u32 v{T[0]}, s{s_b}, v{T[0]}")
    a(f"v_and_b32 v{T[1]}, 15, v{lane}")
    a(f"v_lshl_add_u32 v{T[2]}, v{T[1]}, 4, v{T[0]}")
    a(f"v_lshl_add_u32 v{T[3]}, v{T[1]}, 3, v{T[0]}")
    for ii in range(2):
        r = ACC2 + 20 * ii
        for e in range(20):
            a(f"v_mul_f32 v{r+e}, s{s_a}, v{r+e}")
        for e in range(10):
            a(f"v_cvt_pk_bf16_f32 v{r+e}, v{r+2*e}, v{r+2*e+1}")
        a(f"ds_write_b128 v{T[2]}, {v(r,4)} offset:{256*ii}")
        a(f"ds_write_b128 v{T[2]}, {v(r+4,4)} offset:{256*ii+512}")
        a(f"ds_write_b64 v{T[3]}, {v(r+8,2)} offset:{128*ii+1024}")
    kv_setup()
    a("s_waitcnt lgkmcnt(0)")
    a("s_barrier")
    stamp(a, 4)
    kv_first()

    a(f"{Latt}:")
    a(f"s_mul_i32 s{s_b}, s{s_g}, 5120")
    a(f"s_add_u32 s{s_b}, s{s_b}, {QAREA}")
    a(f"v_add_u32 v{T[0]}, s{s_b}, v{ka}")
    a(f"v_and_b32 v{T[1]}, 31, v{lane}")
    a(f"v_lshl_add_u32 v{T[1]}, v{T[1]}, 3, s{s_b}")
    for q in range(4):
        a(f"ds_read_b128 {v(Q1[q],4)}, v{T[0]} offset:{1280*q}")
        a(f"ds_read_b64 {v(Q3[0][q],2)}, v{T[1]} offset:{1280*q+1024}")
    for r in range(64): a(f"v_mov_b32 v{O[0]+r}, 0")
    for r in range(8): a(f"v_mov_b32 v{P[1]+r}, 0")
    a(f"s_min_u32 s{s_a}, s{s_wave}, 4")
    a(f"s_lshl_b32 s{s_b}, s{s_a}, 6")
    a(f"v_add_u32 v{T[0]}, s{s_b}, v{lane}")
    img_pos(a, T[0], T[1], T[2])
    a(f"s_movk_i32 s{s_c}, 1280")
    grp_src(a, gwo, T[1], T[2], s_c)
    make_srd(a, SW, 20, None, 640 * 1280)
    a(f"s_cmp_gt_u32 s{s_wave}, 4")
    a(f"s_cselect_b32 s{s_c}, {20*5120}, 0")
    a(f"s_cselect_b32 s{s_m0x}, 0, 5120")
    a(f"s_lshl_b32 s{s_m0w}, s{s_a}, 10")
    a(f"s_add_u32 s{s_m0w}, s{s_m0w}, {WOBASE}")
    a(f"s_add_u32 s{s_m0w}, s{s_m0w}, s{s_c}")
    a(f"s_mul_i32 s{s_wo}, s{s_n}, 160")
    a(f"s_lshl_b32 s{s_c}, s{s_c}, 3")
    a(f"s_add_u32 s{s_wo}, s{s_wo}, s{s_c}")
    a(f"v_cmp_gt_u32 vcc, 32, v{lane}")
    a("s_waitcnt lgkmcnt(0)")
    a("s_nop 0")
    for q in range(4):
        for e in range(2):
            a(f"v_cndmask_b32 v{Q3[1][q]+e}, v{Q3[0][q]+e}, v{O[0]}, vcc")
            a(f"v_cndmask_b32 v{Q3[0][q]+e}, v{O[0]}, v{Q3[0][q]+e}, vcc")
    a(f"s_mov_b32 s{s_it}, 0")

    def qk1(sb, q, t): return f"v_mfma_f32_32x32x16_bf16 {v(S[sb],16)}, {v(K1[t],4)}, {v(Q1[q],4)}, 0"
    def qk2(sb, q, t): return f"v_mfma_f32_32x32x8_bf16 {v(S[sb],16)}, {v(K3[t>>1],2)}, {v(Q3[t&1][q],2)}, {v(S[sb],16)}"
    def pv(pb, q, t, h): return f"v_mfma_f32_32x32x16_bf16 {v(O[q],16)}, {v(V[t]+4*h,4)}, {v(P[pb]+4*h,4)}, {v(O[q],16)}"
    def ex(q, r): return f"v_exp_f32 v{S[q]+r}, v{S[q]+r}"
    def cv(q, r): return f"v_cvt_pk_bf16_f32 v{P[q]+r//2}, v{S[q]+r}, v{S[q]+r+1}"
    wo_dma = [f"s_min_u32 m0, s{s_m0w}, 0x30000", f"s_add_u32 s{s_m0w}, s{s_m0w}, s{s_m0x}",
              f"buffer_load_dwordx4 v{gwo}, {srd(SW)}, s{s_wo} offen lds", f"s_add_u32 s{s_wo}, s{s_wo}, {32*1280}"]
    plan = {}
    for tt in range(4):
        pb = (tt - 1) % 4
        plan[(tt, 1)] = ([ld_v(pb, s_ko)], [("V", pb)] * 2)
        if tt & 1:
            plan[(tt, 3)] = ([ld_k1(tt, s_ko), ld_k3(tt >> 1, s_ko)], [("K1", tt), ("K3", tt >> 1)])
        else:
            plan[(tt, 3)] = ([ld_k1(tt, s_ko)], [("K1", tt)])
            plan[(tt, 2)] = (adv_pair(), [])
        if tt < 3:
            plan[(tt, 0)] = (wo_dma, [("WO",)])
    order = [(tt, q) for tt in range(4) for q in range(4)]
    names = []; pos = {}
    for rep in range(2):
        for key in order:
            if rep == 1: pos[key] = len(names)
            names += plan.get(key, ([], []))[1]
    def steady_wait(tt):
        p = pos[(tt, 3)]
        nt = (tt + 1) % 4
        need = [("K1", nt), ("V", nt), ("K3", nt >> 1)]
        last = max(max(i for i in range(p) if names[i] == k) for k in need)
        return p - 1 - last
    first = [("K1", 0), ("K3", 0), ("V", 0), ("V", 0), ("K1", 1), ("V", 1), ("V", 1), ("K1", 2), ("V", 2), ("V", 2), ("K1", 3), ("K3", 1)]
    n0 = list(first)
    waits = {}
    for key in order:
        if key[1] == 3:
            nt = (key[0] + 1) % 4
            need = [("K1", nt), ("V", nt), ("K3", nt >> 1)]
            last = max(max(i for i in range(len(n0)) if n0[i] == k) for k in need)
            waits[key[0]] = min(steady_wait(key[0]), len(n0) - 1 - last)
        n0 += plan.get(key, ([], []))[1]
    a(f"s_waitcnt vmcnt({len(first)-4})")
    stamp(a, 5)
    a(qk1(0, 0, 0)); a(qk2(0, 0, 0))
    a("s_setprio 3")
    a("s_nop 7")
    a("s_nop 3")
    L = a.label("al")
    a(".p2align 6")
    a(f"{L}:")
    cum = [sum(G.lens[:i]) for i in range(4)]
    step = 0
    for tt in range(4):
        for q in range(4):
            c = q & 1; o = 1 - c
            nq, nt = (q + 1, tt) if q < 3 else (0, (tt + 1) % 4)
            pq, pt = (q - 1, tt) if q > 0 else (3, (tt - 1) % 4)
            extra = list(plan.get((tt, q), ([], []))[0])
            if q == 3: a(f"s_waitcnt vmcnt({waits[tt]})")
            if (tt, q) == (3, 2): extra += [f"s_add_u32 s{s_it}, s{s_it}, 1", f"s_cmp_lt_u32 s{s_it}, {G.iters}"]
            ms = [qk1(o, nq, nt), qk2(o, nq, nt), pv(o, pq, pt, 0), pv(o, pq, pt, 1)]
            for j in range(4):
                a(ms[j])
                if j: a(cv(c, 4 * j - 2))
                for e in range(3):
                    a(ex(c, 4 * j + e))
                    if extra: a(extra.pop(0))
                if j < 3:
                    a(cv(c, 4 * j)); a(ex(c, 4 * j + 3))
                else:
                    a(ex(c, 15)); a(cv(c, 12))
            n = (step + 1) % sum(G.lens)
            if n in cum: a(f"s_setprio {3 - cum.index(n)}")
            a(cv(c, 14))
            step += 1
    a(f"s_cbranch_scc1 {L}")
    a("s_nop 0")
    a(pv(1, 3, 3, 0)); a(pv(1, 3, 3, 1))
    a("s_setprio 0")
    Lk1 = a.label("k1"); Lj = a.label("kj"); Lslow = a.label("slow"); Lst = a.label("store")
    a(f"s_mul_i32 s{s_a}, s{s_wave}, 6144")
    a(f"v_add_u32 v{T[1]}, s{s_a}, v{ka}")
    a(f"s_xor_b32 s{s_a}, s{s_wave}, 4")
    a(f"s_mul_i32 s{s_a}, s{s_a}, 6144")
    a(f"v_add_u32 v{T[0]}, s{s_a}, v{ka}")
    a("s_nop 7")
    stamp(a, 6)
    a(f"s_cmp_eq_u32 s{s_kh}, 0")
    a(f"s_cbranch_scc0 {Lk1}")
    for i in range(2):
        for gq_ in range(3):
            a(f"ds_write_b128 v{T[1]}, {v(O[2+i]+4*gq_,4)} offset:{(i*3+gq_)*1024}")
    a(f"s_branch {Lj}")
    a(f"{Lk1}:")
    for i in range(2):
        for gq_ in range(3):
            a(f"ds_write_b128 v{T[1]}, {v(O[i]+4*gq_,4)} offset:{(i*3+gq_)*1024}")
    a("s_nop 1")
    for i in range(2):
        for r in range(12):
            a(f"v_mov_b32 v{O[i]+r}, v{O[2+i]+r}")
        for r in range(4):
            a(f"v_mov_b32 v{Q1[i]+r}, v{Q1[2+i]+r}")
        for r in range(2):
            a(f"v_mov_b32 v{Q3[0][i]+r}, v{Q3[0][2+i]+r}")
            a(f"v_mov_b32 v{Q3[1][i]+r}, v{Q3[1][2+i]+r}")
    a(f"{Lj}:")
    a("s_waitcnt vmcnt(0) lgkmcnt(0)")
    a("s_barrier")
    for i in range(2):
        for gq_ in range(3):
            a(f"ds_read_b128 {v(O[2+i]+4*gq_,4)}, v{T[0]} offset:{(i*3+gq_)*1024}")
    a(f"s_lshl_b32 s{s_a}, s{s_blk}, 4")
    a(f"s_add_u32 s{s_a}, s{s_a}, s{s_m}")
    a(f"s_lshl_b32 s{s_a}, s{s_a}, 1")
    a(f"s_add_u32 s{s_a}, s{s_a}, s{s_kh}")
    a(f"s_mul_i32 s{s_a}, s{s_a}, {4*20480}")
    a(f"s_add_u32 s{s_a}, s{s_a}, {OBASE}")
    make_srd(a, SO, 32, f"s{s_a}", 4 * 20480)
    a(f"s_lshl_b32 s{s_a}, s{s_n}, 2")
    a(f"s_add_u32 s{s_a}, s{s_a}, s{s_g}")
    a(f"s_mul_i32 s{s_a}, s{s_a}, 5")
    a(f"s_add_u32 s{s_b}, s{s_a}, 1")
    a(f"s_lshr_b32 s{s_b}, s{s_b}, 1")
    a(f"s_lshl_b32 s{s_b}, s{s_b}, 8")
    a(f"s_movk_i32 s{s_a}, 512")
    a(f"s_and_b32 s{s_c}, s{s_g}, 1")
    a(f"s_cselect_b32 s{s_c}, {(-256+8) & 0xffffffff}, s{s_a}")
    a(f"s_add_u32 s{s_c}, s{s_c}, s{s_b}")
    a(f"v_bfe_u32 v{T[2]}, v{lane}, 4, 1")
    a(f"v_mul_u32_u24 v{T[2]}, 20480, v{T[2]}")
    a(f"v_and_b32 v{T[3]}, 15, v{lane}")
    a(f"v_lshl_add_u32 v{T[2]}, v{T[3]}, 4, v{T[2]}")
    a(f"v_lshrrev_b32 v{T[4]}, 5, v{lane}")
    a(f"v_lshl_add_u32 v{T[3]}, v{T[4]}, 20, v{T[2]}")
    a(f"v_lshl_add_u32 v{T[2]}, v{T[4]}, 8, v{T[2]}")
    a(f"v_add_u32 v{T[2]}, s{s_b}, v{T[2]}")
    a(f"v_add_u32 v{T[3]}, s{s_c}, v{T[3]}")
    a("s_waitcnt lgkmcnt(0)")
    for i in range(2):
        for r in range(12):
            a(f"v_add_f32 v{O[i]+r}, v{O[i]+r}, v{O[2+i]+r}")
    def bcast_l():
        for i in range(2):
            a(f"v_mov_b32 v{O[i]+12}, v{O[i]+8}")
            a(f"v_mov_b32 v{O[i]+13}, v{O[i]+8}")
        a("s_nop 1")
        for i in range(2):
            a(f"v_permlane32_swap_b32 v{O[i]+13}, v{O[i]+12}")
    bcast_l()
    a(f"s_mov_b32 s{s_a}, 0x2b800000")
    a(f"s_mov_b32 s{s_b}, 0x5d800000")
    a(f"v_mov_b32 v{T[0]}, 0")
    for q in range(2):
        for r in range(12):
            a(f"v_fma_f32 v{T[0]}, v{O[q]+r}, 0, v{T[0]}")
    a(f"v_cmp_o_f32 vcc, v{T[0]}, v{T[0]}")
    for q in range(2):
        a(f"v_cmp_le_f32 s[34:35], s{s_a}, v{O[q]+12}")
        a(f"s_and_b64 vcc, vcc, s[34:35]")
        a(f"v_cmp_ge_f32 s[34:35], s{s_b}, v{O[q]+12}")
        a(f"s_and_b64 vcc, vcc, s[34:35]")
    a("s_cmp_eq_u64 vcc, -1")
    a(f"s_cbranch_scc0 {Lslow}")
    a(f"{Lst}:")
    a(f"s_mov_b32 s{s_b}, {2*20480}")
    for q in range(2):
        a(f"v_rcp_f32 v{T[4]}, v{O[q]+12}")
        a("s_nop 0")
        for r in range(12):
            a(f"v_mul_f32 v{O[q]+r}, v{T[4]}, v{O[q]+r}")
        for e in range(6):
            a(f"v_cvt_pk_bf16_f32 v{O[q]+e}, v{O[q]+2*e}, v{O[q]+2*e+1}")
        so = "0" if q == 0 else f"s{s_b}"
        a(f"buffer_store_dwordx4 {v(O[q],4)}, v{T[2]}, {srd(SO)}, {so} offen {G.st}")
        a(f"buffer_store_dwordx2 {v(O[q]+4,2)}, v{T[3]}, {srd(SO)}, {so} offen {G.st}")
    a(f"s_lshl_b32 s{s_a}, s{s_blk}, 4")
    a(f"s_add_u32 s{s_a}, s{s_a}, s{s_m}")
    a(f"s_lshl_b32 s{s_xo}, s{s_a}, {6+G.fsh}")
    a(f"s_add_u32 s{s_xo}, s{s_xo}, {F2OFF}")
    a(f"s_lshl_b32 s{s_a}, s{s_kh}, 3")
    a(f"s_add_u32 s{s_a}, s{s_a}, s{s_n}")
    a(f"s_lshl_b32 s{s_a}, s{s_a}, 2")
    a(f"s_add_u32 s{s_a}, s{s_a}, s{s_g}")
    a(f"s_lshl_b32 s{s_a}, s{s_a}, {G.fsh}")
    a(f"s_add_u32 s{s_b}, s{s_a}, s{s_xo}")
    a("s_waitcnt vmcnt(0)")
    if G.wb:
        a("buffer_wbl2 sc1")
        a("s_waitcnt vmcnt(0)")
    set_flag(a, s_b)
    stamp(a, 7)
    stamp(a, 8)
    stamp(a, 9)
    Lfin = a.label("fin")
    a(f"s_cmp_ge_u32 s{s_wave}, 4")
    a(f"s_cbranch_scc1 {Lfin}")

    tr_addrs(a, wa, True, True, None, 0)
    a(f"s_lshl_b32 s{s_a}, s{s_blk}, 4")
    a(f"s_add_u32 s{s_a}, s{s_a}, s{s_m}")
    a(f"s_lshl_b32 s{s_a}, s{s_a}, 2")
    a(f"s_add_u32 s{s_a}, s{s_a}, s{s_g}")
    a(f"s_mul_i32 s{s_a}, s{s_a}, {2*20480}")
    a(f"s_add_u32 s{s_a}, s{s_a}, {OBASE}")
    make_srd(a, SO, 32, f"s{s_a}", 2 * 20480)
    a(f"s_lshr_b32 s{s_a}, s{s_g}, 1")
    a(f"s_lshl_b32 s{s_a}, s{s_a}, {5+G.fsh}")
    a(f"s_add_u32 s{s_b}, s{s_a}, s{s_xo}")
    a(f"v_and_b32 v{T[0]}, 31, v{lane}")
    a(f"v_lshlrev_b32 v{T[0]}, {G.fsh}, v{T[0]}")
    a(f"v_lshlrev_b32 v{T[1]}, 4, v{lane}")
    a(f"v_add_u32 v{T[2]}, 20480, v{T[1]}")
    poll(a, T[0], f"s{s_b}")
    stamp(a, 8)
    for g in range(20):
        if g % 4 == 0: a(f"s_movk_i32 s{s_a}, {1024*g}")
        for ii in range(2):
            a(f"buffer_load_dwordx4 {v(XF+8*g+4*ii,4)}, v{T[1+ii]}, {srd(SO)}, s{s_a} offen offset:{1024*(g%4)} sc1")
    small_gemm(a, XF, ACC2, W2, wa, [WOBASE + 5120 * g for g in range(20)],
               pre={("m", g): f"s_waitcnt vmcnt({38-2*g}) lgkmcnt(0)" for g in range(20)})
    stamp(a, 9)
    make_srd(a, SO, 28, None, 2048 * 2560)
    a(f"s_lshl_b32 s{s_a}, s{s_m}, 2")
    a(f"s_add_u32 s{s_a}, s{s_a}, s{s_g}")
    a(f"s_mul_i32 s{s_a}, s{s_a}, {32*2560}")
    a(f"s_mul_i32 s{s_b}, s{s_blk}, 1280")
    a(f"s_add_u32 s{s_a}, s{s_a}, s{s_b}")
    a(f"s_mul_i32 s{s_b}, s{s_n}, 160")
    a(f"s_add_u32 s{s_a}, s{s_a}, s{s_b}")
    a(f"s_add_u32 s{s_b}, s{s_a}, {16*2560}")
    a(f"v_and_b32 v{T[0]}, 15, v{lane}")
    a(f"v_mul_u32_u24 v{T[0]}, 2560, v{T[0]}")
    a(f"v_lshrrev_b32 v{T[1]}, 4, v{lane}")
    a(f"v_mul_u32_u24 v{T[1]}, 40, v{T[1]}")
    a(f"v_add_u32 v{T[0]}, v{T[0]}, v{T[1]}")
    for ii in range(2):
        r = ACC2 + 20 * ii
        for e in range(10):
            a(f"v_cvt_pk_bf16_f32 v{r+e}, v{r+2*e}, v{r+2*e+1}")
        so = s_a if ii == 0 else s_b
        a(f"buffer_store_dwordx4 {v(r,4)}, v{T[0]}, {srd(SO)}, s{so} offen")
        a(f"buffer_store_dwordx4 {v(r+4,4)}, v{T[0]}, {srd(SO)}, s{so} offen offset:16")
        a(f"buffer_store_dwordx2 {v(r+8,2)}, v{T[0]}, {srd(SO)}, s{so} offen offset:32")
    a(f"s_or_b32 s{s_a}, s{s_m}, s{s_n}")
    a(f"s_or_b32 s{s_a}, s{s_a}, s{s_wave}")
    a(f"s_cbranch_scc1 {Lfin}")
    a(f"s_lshl_b32 s{s_b}, s{s_blk}, 7")
    a(f"s_add_u32 s{s_b}, s{s_b}, {EOFF}")
    set_flag(a, s_b)
    a(f"{Lfin}:")
    dump_stamps(a, 10)
    a(f"{Lend}:")
    a("s_endpgm")

    a(f"{Lslow}:")
    for q in range(2):
        L1 = a.label("s1"); L2 = a.label("s2")
        a(f"v_mov_b32 v{vmx}, 0xff800000")
        a(f"s_mov_b32 s{s_ko}, 0")
        a(f"{L1}:")
        a(ld_k1(0, s_ko)); a(ld_k1(1, s_ko)); a(ld_k3(0, s_ko))
        a("s_waitcnt vmcnt(0)")
        for t in range(2):
            a(qk1(0, q, t)); a(qk2(0, q, t))
            a("s_nop 15")
            for r in range(0, 16, 2):
                a(f"v_max3_f32 v{vmx}, v{S[0]+r}, v{S[0]+r+1}, v{vmx}")
        a(f"s_add_u32 s{s_ko}, s{s_ko}, {PS}")
        a(f"s_cmp_lt_u32 s{s_ko}, {HS}")
        a(f"s_cbranch_scc1 {L1}")
        a(f"v_mov_b32 v{T[0]}, v{vmx}")
        a("s_nop 1")
        a(f"v_permlane32_swap_b32 v{T[0]}, v{vmx}")
        a("s_nop 1")
        a(f"v_max_f32 v{vmx}, v{vmx}, v{T[0]}")
        for r in range(16):
            a(f"v_mov_b32 v{O[q]+r}, 0")
        a(f"s_mov_b32 s{s_ko}, 0")
        a(f"{L2}:")
        a(ld_k1(0, s_ko)); a(ld_k1(1, s_ko)); a(ld_k3(0, s_ko)); a(ld_v(0, s_ko)); a(ld_v(1, s_ko))
        a("s_waitcnt vmcnt(0)")
        for t in range(2):
            a(qk1(0, q, t)); a(qk2(0, q, t))
            a("s_nop 15")
            for r in range(16):
                a(f"v_sub_f32 v{S[0]+r}, v{S[0]+r}, v{vmx}")
            for r in range(16):
                a(ex(0, r))
            a("s_nop 0")
            for r in range(0, 16, 2):
                a(cv(0, r))
            a("s_nop 1")
            a(pv(0, q, t, 0)); a(pv(0, q, t, 1))
        a(f"s_add_u32 s{s_ko}, s{s_ko}, {PS}")
        a(f"s_cmp_lt_u32 s{s_ko}, {HS}")
        a(f"s_cbranch_scc1 {L2}")
    a("s_nop 15")
    bcast_l()
    a("s_nop 1")
    a(f"s_branch {Lst}")
    return name

def build():
    a = Asm()
    name = gen(a)
    out = HEADER + "; @launch grid=(256,1,1) block=(512,1,1) lds=163840\n"
    out += '.amdgcn_target "amdgcn-amd-amdhsa--gfx950"\n.text\n' + a.text()
    out += '.section .rodata,"a"\n.p2align 6\n' + kernel_desc(name, 256, 100 if G.diag else 64)
    return out

if __name__ == "__main__":
    path = sys.argv[1] if len(sys.argv) > 1 else f"cdna_kernels/{NAME}.s"
    G.diag = "diag" in sys.argv
    for x in sys.argv[2:]:
        if "=" in x:
            k, val = x.split("=", 1)
            setattr(G, k, eval(val))
    open(path, "w").write(build())
    print("wrote", path)
```

```python
import sys
sys.path.insert(0, "gen")
from asmlib import *

NAME = "concat_heads__mha_block__softmax_full_mha__prompt"
KVBASE = 0
HS = 163840
PS = 5120
OBASE = 0xA00000
FBASE = 0x1000000
DBGBASE = 0x2000000
QSCALE = 0x3ea52b5c
SLOT = 36864
SPARE = 4 * SLOT
QAREA = SLOT
WOBASE = 61440
SPIN = 400000
F2OFF = 0x80000
EOFF = 0x180000

HEADER = """; Kernarg layout for this problem (72 bytes, ptrs only, base s[0:1]):
"""

SX, SW, SKV, SF, SO = 4, 8, 12, 36, 40
(s_blk, s_m, s_n, s_wave, s_tag, s_k, s_a, s_b, s_c, s_it, s_xo, s_wo, s_m0x, s_m0w, s_kh, s_ko, s_vo, s_g) = range(44, 62)
s_vm = 62
lane = 255
T = [249, 250, 251, 252, 253, 254]

class G:
    diag = False
    lens = [9, 4, 2, 1]
    rot = True
    amp = None
    iters = 8
    dbg = None
    st = 'sc1'
    wb = False
    pro = 2
    pf = 'sc1'
    sleep = 4
    fsh = 7
    fl = 32
    ff = 'sc1'

def stamp(a, i):
    if not G.diag: return
    a("s_memtime s[96:97]")
    a("s_memrealtime s[98:99]")
    a("s_waitcnt lgkmcnt(0)")
    a(f"s_mov_b32 s{64+2*i}, s96")
    a(f"s_mov_b32 s{65+2*i}, s98")

def dump_stamps(a, n):
    if not G.diag: return
    a("s_waitcnt vmcnt(0)")
    stamp(a, n)
    a(f"s_lshl_b32 s{s_a}, s2, 3")
    a(f"s_add_u32 s{s_a}, s{s_a}, s{s_wave}")
    a(f"s_lshl_b32 s{s_a}, s{s_a}, 7")
    a(f"s_add_u32 s{s_a}, s{s_a}, {DBGBASE}")
    make_srd(a, SX, 32, f"s{s_a}", 128)
    a(f"v_mov_b32 v{T[0]}, 0")
    for i in range(32):
        a(f"v_mov_b32 v{T[1]}, s{64+i}")
        a(f"buffer_store_dword v{T[1]}, v{T[0]}, s[{SX}:{SX+3}], 0 offen offset:{4*i}")
    if G.dbg is not None:
        Ls = a.label("nodbg")
        a(f"s_lshl_b32 s{s_a}, s2, 3")
        a(f"s_add_u32 s{s_a}, s{s_a}, s{s_wave}")
        a(f"s_cmp_lg_u32 s{s_a}, {G.dbg}")
        a(f"s_cbranch_scc1 {Ls}")
        make_srd(a, SX, 30, None, 256)
        for i in range(1, 14):
            a(f"s_sub_u32 s{s_a}, s{65+2*i}, s65")
            a(f"v_mov_b32 v{T[1]}, s{s_a}")
            a(f"buffer_store_dword v{T[1]}, v{T[0]}, s[{SX}:{SX+3}], 0 offen offset:{4*i}")
        a(f"s_sub_u32 s{s_a}, s{64+2*6}, s{64+2*5}")
        a(f"v_mov_b32 v{T[1]}, s{s_a}")
        a(f"buffer_store_dword v{T[1]}, v{T[0]}, s[{SX}:{SX+3}], 0 offen offset:{4*15}")
        if G.amp is not None:
            Lw = a.label("amp")
            a(f"s_sub_u32 s{s_a}, s{65+2*G.amp}, s65")
            a(f"s_mul_i32 s{s_a}, s{s_a}, 4")
            a(f"{Lw}:")
            a("s_memrealtime s[98:99]")
            a("s_waitcnt lgkmcnt(0)")
            a(f"s_sub_u32 s{s_b}, s98, s{65+2*n}")
            a(f"s_cmp_lt_u32 s{s_b}, s{s_a}")
            a(f"s_cbranch_scc1 {Lw}")
        a(f"{Ls}:")

def make_srd(a, d, base, off, nbytes):
    if off is None:
        a(f"s_mov_b32 s{d}, s{base}")
        a(f"s_mov_b32 s{d+1}, s{base+1}")
    else:
        a(f"s_add_u32 s{d}, s{base}, {off}")
        a(f"s_addc_u32 s{d+1}, s{base+1}, 0")
    a(f"s_mov_b32 s{d+2}, {nbytes}")
    a(f"s_mov_b32 s{d+3}, 0x00020000")

def srd(d): return f"s[{d}:{d+3}]"

def img_pos(a, pos, row, c):
    a(f"v_mul_u32_u24 v{row}, 3277, v{pos}")
    a(f"v_lshrrev_b32 v{row}, 16, v{row}")
    a(f"v_mul_u32_u24 v{c}, 20, v{row}")
    a(f"v_sub_u32 v{c}, v{pos}, v{c}")
    a(f"v_lshrrev_b32 v{T[5]}, 3, v{row}")
    a(f"v_lshlrev_b32 v{T[5]}, 1, v{T[5]}")
    a(f"v_sub_u32 v{c}, v{c}, v{T[5]}")
    a(f"v_add_u32 v{T[5]}, 20, v{c}")
    a(f"v_min_u32 v{c}, v{c}, v{T[5]}")

def grp_src(a, dst, row, c, ld_sreg):
    a(f"v_cmp_lt_u32 vcc, 9, v{c}")
    a(f"v_add_u32 v{T[5]}, 16, v{row}")
    a(f"v_subrev_u32 v{T[4]}, 10, v{c}")
    a(f"v_cndmask_b32 v{row}, v{row}, v{T[5]}, vcc")
    a(f"v_cndmask_b32 v{c}, v{c}, v{T[4]}, vcc")
    a(f"v_lshlrev_b32 v{c}, 4, v{c}")
    a(f"v_mad_u32_u24 v{dst}, v{row}, s{ld_sreg}, v{c}")

def tr_addrs(a, wa, perm, grp, colhalf_sreg, base):
    a(f"v_bfe_u32 v{T[0]}, v{lane}, 2, 2")
    a(f"v_lshrrev_b32 v{T[1]}, 4, v{lane}")
    a(f"v_and_b32 v{T[2]}, 1, v{T[1]}")
    if grp:
        a(f"v_lshl_add_u32 v{T[0]}, v{T[2]}, 3, v{T[0]}")
    else:
        a(f"v_lshl_add_u32 v{T[0]}, v{T[1]}, 3, v{T[0]}")
    a(f"v_mul_u32_u24 v{T[0]}, 320, v{T[0]}")
    if base: a(f"v_add_u32 v{T[0]}, {base}, v{T[0]}")
    a(f"v_lshlrev_b32 v{T[2]}, 5, v{T[2]}")
    if grp:
        a(f"v_lshrrev_b32 v{T[1]}, 1, v{T[1]}")
        a(f"v_mul_u32_u24 v{T[1]}, 160, v{T[1]}")
        a(f"v_add_u32 v{T[2]}, v{T[2]}, v{T[1]}")
    else:
        a(f"s_mul_i32 s{s_a}, s{colhalf_sreg}, 160")
        a(f"v_add_u32 v{T[2]}, s{s_a}, v{T[2]}")
    a(f"v_and_b32 v{T[1]}, 3, v{lane}")
    a(f"v_mul_u32_u24 v{T[1]}, {40 if perm else 8}, v{T[1]}")
    a(f"v_add_u32 v{T[2]}, v{T[2]}, v{T[1]}")
    for j in range(5):
        a(f"v_add_u32 v{T[1]}, {8*j if perm else 32*j}, v{T[2]}")
        a(f"v_subrev_u32 v{T[3]}, 320, v{T[1]}")
        a(f"v_min_u32 v{T[1]}, v{T[1]}, v{T[3]}")
        a(f"v_add_u32 v{wa[j]}, v{T[1]}, v{T[0]}")

def x_addrs(a, xa, rowbase_sreg):
    a(f"v_and_b32 v{T[0]}, 15, v{lane}")
    a(f"v_lshrrev_b32 v{T[1]}, 1, v{T[0]}")
    a(f"v_lshrrev_b32 v{T[2]}, 4, v{lane}")
    a(f"v_lshlrev_b32 v{T[0]}, 7, v{T[0]}")
    a(f"v_add_u32 v{T[0]}, s{rowbase_sreg}, v{T[0]}")
    for ks in range(2):
        a(f"v_or_b32 v{T[3]}, {4*ks}, v{T[2]}")
        a(f"v_xor_b32 v{T[3]}, v{T[3]}, v{T[1]}")
        a(f"v_lshl_add_u32 v{xa[ks]}, v{T[3]}, 4, v{T[0]}")

def interleave(a, main, extra, start=0):
    extra = list(extra)
    for i, x in enumerate(main):
        a(x)
        if i >= start and extra: a(extra.pop(0))
    for x in extra: a(x)

def poll(a, voff, imm_soff, nlanes_mask=None):
    L = a.label("poll"); Ld = a.label("polld")
    a(f"s_mov_b32 s{s_it}, {SPIN}")
    a(f"{L}:")
    a(f"buffer_load_dword v{T[5]}, v{voff}, {srd(SF)}, {imm_soff} offen {G.pf}")
    a("s_waitcnt vmcnt(0)")
    a(f"v_cmp_ne_u32 vcc, s{s_tag}, v{T[5]}")
    a(f"s_cbranch_vccz {Ld}")
    a(f"s_sub_u32 s{s_it}, s{s_it}, 1")
    a(f"s_cbranch_scc1 {Ld}")
    a(f"s_sleep {G.sleep}")
    a(f"s_branch {L}")
    a(f"{Ld}:")

def set_flag(a, off_sreg):
    a(f"v_lshlrev_b32 v{T[4]}, 2, v{lane}")
    a(f"v_mov_b32 v{T[5]}, s{s_tag}")
    a(f"s_mov_b32 exec_lo, {(1 << G.fl) - 1:#x}")
    a("s_mov_b32 exec_hi, 0")
    a(f"buffer_store_dword v{T[5]}, v{T[4]}, {srd(SF)}, s{off_sreg} offen {G.ff}")
    a("s_mov_b64 exec, -1")

def small_gemm(a, BF, ACC, W, wa, gbase, pre=None):
    cur = [0]
    def reads(g):
        out = []
        want = (gbase[g] // 57344) * 57344 if not (cur[0] <= gbase[g] and gbase[g] + 1280 - cur[0] <= 65535) else cur[0]
        if want != cur[0]:
            d = want - cur[0]
            for j in range(5):
                out.append(f"v_add_u32 v{wa[j]}, {d}, v{wa[j]}" if d > 0 else f"v_subrev_u32 v{wa[j]}, {-d}, v{wa[j]}")
            cur[0] = want
        for j in range(5):
            for t in range(2):
                out.append(f"ds_read_b64_tr_b16 {v(W[g&1]+4*j+2*t,2)}, v{wa[j]} offset:{gbase[g]-cur[0]+1280*t}")
        return out
    if pre and ("r", 0) in pre:
        for x in pre[("r", 0)]: a(x)
    for x in reads(0): a(x)
    for g in range(20):
        nxt = []
        if g < 19:
            if pre and ("r", g + 1) in pre:
                nxt += pre[("r", g + 1)]
            nxt += reads(g + 1)
        a("s_waitcnt lgkmcnt(0)" if not (pre and ("m", g) in pre) else pre[("m", g)])
        ms = []
        for j in range(5):
            for ii in range(2):
                d = v(ACC + 4 * (5 * ii + j), 4)
                c = d if g else "0"
                ms.append(f"v_mfma_f32_16x16x32_bf16 {d}, {v(W[g&1]+4*j,4)}, {v(BF+8*g+4*ii,4)}, {c}")
        interleave(a, ms, nxt)
    a("s_nop 7")

def gen(a):
    name = NAME + "_kernel"
    kernel_header(a, name)
    Lend = a.label("end"); Lload = a.label("loader"); Lv = a.label("vtype"); Lpub = a.label("pub"); Latt = a.label("att")
    a("s_cmp_ge_u32 s2, 256")
    a(f"s_cbranch_scc1 {Lend}")
    stamp(a, 0)
    a("s_load_dwordx16 s[16:31], s[0:1], 0")
    a("s_load_dwordx2 s[32:33], s[0:1], 64")
    a(f"v_lshrrev_b32 v{T[0]}, 6, v0")
    a(f"v_and_b32 v{lane}, 63, v0")
    a(f"v_readfirstlane_b32 s{s_wave}, v{T[0]}")
    a(f"s_and_b32 s{s_a}, s2, 7")
    a(f"s_lshr_b32 s{s_b}, s2, 3")
    a(f"s_lshr_b32 s{s_blk}, s{s_a}, 2")
    a(f"s_and_b32 s{s_a}, s{s_a}, 3")
    a(f"s_lshr_b32 s{s_c}, s{s_b}, 3")
    a(f"s_lshl_b32 s{s_m}, s{s_a}, 2")
    a(f"s_add_u32 s{s_m}, s{s_m}, s{s_c}")
    a(f"s_and_b32 s{s_n}, s{s_b}, 7")
    if G.rot:
        a(f"s_mul_i32 s{s_k}, s{s_c}, 3")
        a(f"s_add_u32 s{s_k}, s{s_k}, s{s_n}")
        a(f"s_add_u32 s{s_k}, s{s_k}, s{s_a}")
        a(f"s_cmp_ge_u32 s{s_k}, 10")
        a(f"s_cselect_b32 s{s_a}, 10, 0")
        a(f"s_sub_u32 s{s_k}, s{s_k}, s{s_a}")
    else:
        a(f"s_mov_b32 s{s_k}, 0")
    a(f"s_and_b32 s{s_g}, s{s_wave}, 3")
    a(f"s_lshr_b32 s{s_kh}, s{s_wave}, 2")
    a(f"s_mov_b32 s{s_vm}, 0x000fffff")
    a(f"s_mov_b32 s{s_vm+1}, 0x000fffff")
    a(f"s_cmp_ge_u32 s{s_wave}, 4")
    a(f"s_cbranch_scc1 {Lload}")

    def common_ptrs():
        a("s_waitcnt lgkmcnt(0)")
        a(f"s_cmp_eq_u32 s{s_blk}, 0")
        a("s_cselect_b64 s[16:17], s[16:17], s[22:23]")
        a("s_cselect_b64 s[18:19], s[18:19], s[24:25]")
        a("s_cselect_b64 s[20:21], s[20:21], s[26:27]")
    def epoch_load():
        a(f"s_lshl_b32 s{s_a}, s{s_blk}, 7")
        a(f"s_add_u32 s{s_a}, s{s_a}, {FBASE+EOFF}")
        a(f"s_load_dword s{s_tag}, s[32:33], s{s_a}")
        make_srd(a, SF, 32, FBASE, EOFF + 0x1000)
    def epoch_fin():
        a("s_waitcnt lgkmcnt(0)")
        a(f"s_mul_i32 s{s_tag}, s{s_tag}, 0x9E3779B1")
        a(f"s_add_u32 s{s_tag}, s{s_tag}, 0x7F4A7C15")

    O = [0, 16, 32, 48]; S = [64, 80]; P = [96, 104]
    K1 = [112, 116, 120, 124]; K3 = [128, 130]; V = [132, 140, 148, 156]
    Q1 = [164, 168, 172, 176]; Q3 = [[180, 182, 184, 186], [188, 190, 192, 194]]
    ka, k3a, va, gwo, vmx = 240, 241, 242, 243, 244

    def kv_setup():
        a(f"s_lshl_b32 s{s_a}, s{s_blk}, 3")
        a(f"s_add_u32 s{s_a}, s{s_a}, s{s_n}")
        a(f"s_lshl_b32 s{s_a}, s{s_a}, 2")
        a(f"s_add_u32 s{s_a}, s{s_a}, s{s_g}")
        a(f"s_mul_i32 s{s_a}, s{s_a}, {HS}")
        if KVBASE: a(f"s_add_u32 s{s_a}, s{s_a}, {KVBASE}")
        make_srd(a, SKV, 32, f"s{s_a}", HS)
        a(f"v_lshlrev_b32 v{ka}, 4, v{lane}")
        a(f"v_lshlrev_b32 v{k3a}, 3, v{lane}")
        a(f"v_and_b32 v{T[0]}, 31, v{lane}")
        a(f"v_lshrrev_b32 v{T[1]}, 1, v{T[0]}")
        a(f"v_xor_b32 v{T[1]}, v{T[1]}, v{T[0]}")
        a(f"v_and_b32 v{T[1]}, 4, v{T[1]}")
        a(f"v_mul_u32_u24 v{T[1]}, 3, v{T[1]}")
        a(f"v_xor_b32 v{T[1]}, v{T[1]}, v{T[0]}")
        a(f"s_and_b32 s{s_a}, s{s_g}, 1")
        a(f"s_lshl_b32 s{s_a}, s{s_a}, 2")
        a(f"v_add_u32 v{T[1]}, s{s_a}, v{T[1]}")
        a(f"v_subrev_u32 v{T[2]}, 20, v{T[1]}")
        a(f"v_min_u32 v{T[1]}, v{T[1]}, v{T[2]}")
        a(f"v_lshrrev_b32 v{T[2]}, 5, v{lane}")
        a(f"v_mul_u32_u24 v{T[2]}, 320, v{T[2]}")
        a(f"v_lshl_add_u32 v{va}, v{T[1]}, 4, v{T[2]}")
        a(f"v_add_u32 v{va}, 2560, v{va}")
        a(f"v_mov_b32 v{T[2]}, 0x3f803f80")
        a(f"v_cmp_eq_u32 vcc, 20, v{T[0]}")
        a(f"s_lshl_b32 s{s_ko}, s{s_m}, 1")
        a(f"s_add_u32 s{s_ko}, s{s_ko}, s{s_kh}")
        a(f"v_cndmask_b32 v{T[2]}, 0, v{T[2]}, vcc")
        a(f"s_mul_i32 s{s_ko}, s{s_ko}, {PS}")
        for b in range(4):
            for r in range(8):
                a(f"v_mov_b32 v{V[b]+r}, v{T[2]}")
    def ld_k1(b, so): return f"buffer_load_dwordx4 {v(K1[b],4)}, v{ka}, {srd(SKV)}, s{so} offen offset:{1024*(b&1)} sc1"
    def ld_k3(p, so): return f"buffer_load_dwordx2 {v(K3[p],2)}, v{k3a}, {srd(SKV)}, s{so} offen offset:2048 sc1"
    def ld_v(b, so):
        return (f"s_mov_b64 exec, s[{s_vm}:{s_vm+1}]\n"
                f"buffer_load_dwordx4 {v(V[b],4)}, v{va}, {srd(SKV)}, s{so} offen offset:{1280*(b&1)} sc1\n"
                f"buffer_load_dwordx4 {v(V[b]+4,4)}, v{va}, {srd(SKV)}, s{so} offen offset:{1280*(b&1)+640} sc1\n"
                f"s_mov_b64 exec, -1")
    def adv_pair():
        return [f"s_add_u32 s{s_ko}, s{s_ko}, {2*PS}", f"s_cmp_ge_u32 s{s_ko}, {HS}",
                f"s_cselect_b32 s{s_c}, {HS}, 0", f"s_sub_u32 s{s_ko}, s{s_ko}, s{s_c}"]
    seq = []
    def kv_first():
        a(ld_k1(0, s_ko)); a(ld_k3(0, s_ko)); a(ld_v(0, s_ko)); a(ld_k1(1, s_ko)); a(ld_v(1, s_ko))
        for x in adv_pair(): a(x)
        a(ld_k1(2, s_ko)); a(ld_v(2, s_ko)); a(ld_k1(3, s_ko)); a(ld_k3(1, s_ko))

    ACC = 0
    X = [[80 + 16 * b + 4 * i for i in range(4)] for b in range(2)]
    W = [[112 + 20 * b + 4 * j for j in range(5)] for b in range(2)]
    xa = [240, 241]; wa = [242, 243, 244, 245, 246]
    s_wm, s_wn = s_xo, s_wo
    a(f"s_and_b32 s{s_wm}, s{s_wave}, 1")
    a(f"s_lshr_b32 s{s_wn}, s{s_wave}, 1")
    a(f"s_lshl_b32 s{s_b}, s{s_wm}, 13")
    x_addrs(a, xa, s_b)
    for r in range(80): a(f"v_mov_b32 v{ACC+r}, 0")
    common_ptrs()
    epoch_load()
    a(f"s_cmp_ge_u32 s{s_n}, 4")
    a(f"s_cbranch_scc1 {Lv}")

    def p1_reads(ks, b):
        out = []
        for i in range(4):
            out.append(f"ds_read_b128 {v(X[b][i],4)}, v{xa[ks]} offset:{2048*i}")
        for j in range(5):
            for t in range(2):
                out.append(f"ds_read_b64_tr_b16 {v(W[b][j]+2*t,2)}, v{wa[j]} offset:{ks*10240+1280*t}")
        return out
    def p1_loop(ktype):
        tr_addrs(a, wa, ktype, False, s_wn, 16384)
        epoch_fin()
        def mf(b):
            out = []
            for j in range(5):
                for i in range(4):
                    d = v(ACC + 4 * (5 * i + j), 4)
                    A, B = (W[b][j], X[b][i]) if ktype else (X[b][i], W[b][j])
                    out.append(f"v_mfma_f32_16x16x32_bf16 {d}, {v(A,4)}, {v(B,4)}, {d}")
            return out
        L = a.label("p1"); Ll = a.label("p1l")
        a(f"s_mov_b32 s{s_it}, 0")
        a(f"s_mov_b32 s{s_m0x}, {(-3*SLOT) & 0xffffffff}")
        a("s_barrier")
        stamp(a, 1)
        for x in p1_reads(0, 0): a(x)
        a(f"{L}:")
        a("s_waitcnt lgkmcnt(0)")
        interleave(a, mf(0), p1_reads(1, 1) + [f"s_add_u32 s{s_it}, s{s_it}, 1", f"s_and_b32 s{s_a}, s{s_it}, 3",
                                               f"s_cselect_b32 s{s_a}, {SLOT}, s{s_m0x}", f"s_cmp_eq_u32 s{s_it}, 10"])
        a("s_waitcnt lgkmcnt(0)")
        a("s_barrier")
        a(f"s_cbranch_scc1 {Ll}")
        m1 = mf(1)
        a(m1[0])
        for r in xa + wa: a(f"v_add_u32 v{r}, s{s_a}, v{r}")
        interleave(a, m1[1:], p1_reads(0, 0))
        a(f"s_branch {L}")
        a(f"{Ll}:")
        for x in mf(1): a(x)
        a(f"s_and_b32 s{s_a}, s{s_n}, 3")
        a(f"s_lshl_b32 s{s_b}, s{s_blk}, 2")
        a(f"s_add_u32 s{s_a}, s{s_a}, s{s_b}")
        a(f"s_lshl_b32 s{s_a}, s{s_a}, 1")
        a(f"s_add_u32 s{s_a}, s{s_a}, s{s_wn}")
        a(f"s_mul_i32 s{s_a}, s{s_a}, {4*HS}")
        a(f"s_lshl_b32 s{s_b}, s{s_m}, 1")
        a(f"s_add_u32 s{s_b}, s{s_b}, s{s_wm}")
        a(f"s_mul_i32 s{s_b}, s{s_b}, {PS}")
        a(f"s_add_u32 s{s_a}, s{s_a}, s{s_b}")
        if KVBASE: a(f"s_add_u32 s{s_a}, s{s_a}, {KVBASE}")
        make_srd(a, SKV, 32, f"s{s_a}", 3 * HS + PS)
        stamp(a, 2)

    p1_loop(True)
    a(f"v_lshrrev_b32 v{T[0]}, 4, v{lane}")
    a(f"s_mov_b32 s{s_a}, {HS}")
    a(f"v_mul_lo_u32 v{T[0]}, v{T[0]}, s{s_a}")
    a(f"v_and_b32 v{T[1]}, 7, v{lane}")
    a(f"v_and_b32 v{T[2]}, 8, v{lane}")
    a(f"v_lshl_add_u32 v{T[1]}, v{T[2]}, 1, v{T[1]}")
    a(f"v_lshl_add_u32 v{T[2]}, v{T[1]}, 4, v{T[0]}")
    a(f"v_lshl_add_u32 v{T[3]}, v{T[1]}, 3, v{T[0]}")
    for i in range(4):
        r = ACC + 20 * i
        for e in range(10):
            a(f"v_cvt_pk_bf16_f32 v{r+e}, v{r+2*e}, v{r+2*e+1}")
        o = (i >> 1) * 1024 + (i & 1) * 128
        a(f"buffer_store_dwordx4 {v(r,4)}, v{T[2]}, {srd(SKV)}, 0 offen offset:{o} {G.st}")
        a(f"buffer_store_dwordx4 {v(r+4,4)}, v{T[2]}, {srd(SKV)}, 0 offen offset:{o+512} {G.st}")
        a(f"buffer_store_dwordx2 {v(r+8,2)}, v{T[3]}, {srd(SKV)}, 0 offen offset:{2048+(i>>1)*256+(i&1)*64} {G.st}")
    a(f"s_branch {Lpub}")
    a(f"{Lv}:")
    p1_loop(False)
    a(f"v_lshrrev_b32 v{T[0]}, 4, v{lane}")
    a(f"v_mul_u32_u24 v{T[0]}, 320, v{T[0]}")
    a(f"v_and_b32 v{T[1]}, 15, v{lane}")
    a(f"s_mov_b32 s{s_a}, {HS-320}")
    for j in range(5):
        a(f"v_add_u32 v{T[2]}, {16*j}, v{T[1]}")
        a(f"v_mul_u32_u24 v{T[3]}, 3277, v{T[2]}")
        a(f"v_lshrrev_b32 v{T[3]}, 16, v{T[3]}")
        a(f"v_lshl_add_u32 v{T[2]}, v{T[2]}, 4, v{T[0]}")
        a(f"v_mad_u32_u24 v{wa[j]}, v{T[3]}, s{s_a}, v{T[2]}")
        for i2 in range(2):
            r0 = ACC + 4 * (5 * (2 * i2) + j); r1 = ACC + 4 * (5 * (2 * i2 + 1) + j)
            a(f"v_cvt_pk_bf16_f32 v{r0}, v{r0}, v{r0+1}")
            a(f"v_cvt_pk_bf16_f32 v{r0+1}, v{r0+2}, v{r0+3}")
            a(f"v_cvt_pk_bf16_f32 v{r0+2}, v{r1}, v{r1+1}")
            a(f"v_cvt_pk_bf16_f32 v{r0+3}, v{r1+2}, v{r1+3}")
            a(f"buffer_store_dwordx4 {v(r0,4)}, v{wa[j]}, {srd(SKV)}, 0 offen offset:{2560+1280*i2} {G.st}")
    a(f"{Lpub}:")
    a(f"s_lshl_b32 s{s_a}, s{s_blk}, 3")
    a(f"s_add_u32 s{s_a}, s{s_a}, s{s_n}")
    a(f"s_lshl_b32 s{s_a}, s{s_a}, 1")
    a(f"s_add_u32 s{s_a}, s{s_a}, s{s_wn}")
    a(f"s_lshl_b32 s{s_a}, s{s_a}, 4")
    a(f"s_add_u32 s{s_a}, s{s_a}, s{s_m}")
    a(f"s_lshl_b32 s{s_a}, s{s_a}, 1")
    a(f"s_add_u32 s{s_a}, s{s_a}, s{s_wm}")
    a(f"s_lshl_b32 s{s_b}, s{s_a}, {G.fsh}")
    a("s_waitcnt vmcnt(0)")
    if G.wb:
        a("buffer_wbl2 sc1")
        a("s_waitcnt vmcnt(0)")
    set_flag(a, s_b)
    stamp(a, 3)
    kv_setup()
    a(f"s_lshl_b32 s{s_b}, s{s_blk}, 4")
    a(f"s_add_u32 s{s_b}, s{s_b}, s{s_n}")
    a(f"s_lshl_b32 s{s_b}, s{s_b}, {5+G.fsh}")
    a(f"v_and_b32 v{T[0]}, 31, v{lane}")
    a(f"v_lshrrev_b32 v{T[1]}, 5, v{lane}")
    a(f"v_lshlrev_b32 v{T[0]}, {G.fsh}, v{T[0]}")
    a(f"v_lshl_add_u32 v{T[0]}, v{T[1]}, {8+G.fsh}, v{T[0]}")
    poll(a, T[0], f"s{s_b}")
    stamp(a, 4)
    kv_first()
    a("s_barrier")
    a("s_barrier")
    a(f"s_branch {Latt}")

    a(f"{Lload}:")
    XF = 0; ACC2 = 160; W2 = [200, 220]
    gx = [160, 161, 162, 163]; gw = [164, 165, 166, 167, 168]; gq = [169, 170, 171, 172, 173]
    a(f"s_lshl_b32 s{s_b}, s{s_g}, 5")
    a(f"s_movk_i32 s{s_c}, 1280")
    for i in range(4):
        a(f"v_lshrrev_b32 v{T[0]}, 3, v{lane}")
        a(f"v_add_u32 v{T[0]}, s{s_b}, v{T[0]}")
        if i: a(f"v_add_u32 v{T[0]}, {8*i}, v{T[0]}")
        a(f"v_lshrrev_b32 v{T[1]}, 1, v{T[0]}")
        a(f"v_xor_b32 v{T[1]}, v{T[1]}, v{lane}")
        a(f"v_and_b32 v{T[1]}, 7, v{T[1]}")
        a(f"v_lshlrev_b32 v{T[1]}, 4, v{T[1]}")
        a(f"v_mad_u32_u24 v{gx[i]}, v{T[0]}, s{s_c}, v{T[1]}")
        if i: a(f"v_subrev_u32 v{gx[i]}, {1024*i}, v{gx[i]}")
    a(f"s_movk_i32 s{s_c}, 3840")
    a(f"s_lshl_b32 s{s_b}, s{s_g}, 4")
    for i in range(5):
        a(f"v_add_u32 v{T[0]}, {64*i}, v{lane}")
        img_pos(a, T[0], T[1], T[2])
        a(f"v_add_u32 v{T[0]}, s{s_b}, v{T[1]}")
        a(f"v_lshlrev_b32 v{T[3]}, 4, v{T[2]}")
        a(f"v_mad_u32_u24 v{gw[i]}, v{T[0]}, s{s_c}, v{T[3]}")
        grp_src(a, gq[i], T[1], T[2], s_c)
        if i & 3:
            a(f"v_subrev_u32 v{gw[i]}, {1024*i}, v{gw[i]}")
            a(f"v_subrev_u32 v{gq[i]}, {1024*i}, v{gq[i]}")
    a(f"s_lshl_b32 s{s_m0x}, s{s_g}, 12")
    a(f"s_mul_i32 s{s_m0w}, s{s_g}, 5120")
    a(f"s_add_u32 s{s_m0w}, s{s_m0w}, 16384")
    common_ptrs()
    a(f"s_mul_i32 s{s_a}, s{s_m}, {128*1280}")
    make_srd(a, SX, 16, f"s{s_a}", 128 * 1280)
    make_srd(a, SW, 18, None, 640 * 3840)
    a(f"s_mov_b32 s{s_vo}, s{s_k}")
    lseq = []
    def issue_stage(i):
        sl = (i & 3) * SLOT
        a(f"s_lshl_b32 s{s_xo}, s{s_k}, 7")
        a(f"s_add_u32 m0, s{s_m0x}, {sl}")
        a(f"s_mul_i32 s{s_wo}, s{s_k}, {64*3840}")
        for ii in range(4):
            a(f"buffer_load_dwordx4 v{gx[ii]}, {srd(SX)}, s{s_xo} offen offset:{1024*ii} lds")
        a(f"s_mul_i32 s{s_a}, s{s_n}, 320")
        a(f"s_add_u32 s{s_wo}, s{s_wo}, s{s_a}")
        a(f"s_add_u32 m0, s{s_m0w}, {sl}")
        a(f"s_add_u32 s{s_wo}, s{s_wo}, 1280")
        for ii in range(4):
            a(f"buffer_load_dwordx4 v{gw[ii]}, {srd(SW)}, s{s_wo} offen offset:{1024*ii} lds")
        a(f"s_add_u32 m0, s{s_m0w}, {sl+4096}")
        a(f"s_add_u32 s{s_k}, s{s_k}, 1")
        a(f"buffer_load_dwordx4 v{gw[4]}, {srd(SW)}, s{s_wo} offen lds")
        a(f"s_cmp_eq_u32 s{s_k}, 10")
        a(f"s_cselect_b32 s{s_k}, 0, s{s_k}")
        lseq.extend([("st", i)] * 9)
    gbase = [2 * SLOT + g * 5120 for g in range(7)] + [SPARE] + [3 * SLOT + g * 5120 for g in range(7)] + [SPARE + 5120] + [g * 5120 for g in range(4)]
    def issue_round(R):
        a(f"s_lshr_b32 s{s_a}, s{s_g}, 1")
        a(f"s_add_u32 s{s_a}, s{s_a}, s{s_vo}")
        a(f"s_add_u32 s{s_a}, s{s_a}, {2*R}")
        a(f"s_cmp_ge_u32 s{s_a}, 10")
        a(f"s_cselect_b32 s{s_b}, 10, 0")
        a(f"s_sub_u32 s{s_a}, s{s_a}, s{s_b}")
        a(f"s_lshl_b32 s{s_a}, s{s_a}, 1")
        a(f"s_and_b32 s{s_b}, s{s_g}, 1")
        a(f"s_add_u32 s{s_a}, s{s_a}, s{s_b}")
        a(f"s_mul_i32 s{s_wo}, s{s_a}, {32*3840}")
        a(f"s_mul_i32 s{s_a}, s{s_n}, 160")
        a(f"s_add_u32 s{s_wo}, s{s_wo}, s{s_a}")
        gb = gbase[4 * R:4 * R + 4]
        a(f"s_mul_i32 s{s_a}, s{s_g}, 5120")
        a(f"s_add_u32 s{s_a}, s{s_a}, {gb[0]}")
        assert gb[1] == gb[0] + 5120 and gb[2] == gb[0] + 10240
        if gb[3] != gb[0] + 15360:
            a(f"s_cmp_eq_u32 s{s_g}, 3")
            a(f"s_cselect_b32 s{s_a}, {gb[3]}, s{s_a}")
        a(f"s_mov_b32 m0, s{s_a}")
        a(f"s_add_u32 s{s_a}, s{s_a}, 4096")
        for ii in range(4):
            a(f"buffer_load_dwordx4 v{gq[ii]}, {srd(SW)}, s{s_wo} offen offset:{1024*ii} lds")
        a(f"s_mov_b32 m0, s{s_a}")
        a("s_nop 0")
        a(f"buffer_load_dwordx4 v{gq[4]}, {srd(SW)}, s{s_wo} offen lds")
        lseq.extend([("R", R)] * 5)
    def lwait(key):
        last = max(i for i, x in enumerate(lseq) if x == key)
        return len(lseq) - 1 - last
    stamp(a, 11)
    for i in range(G.pro):
        issue_stage(i)
        if i == 0: stamp(a, 12)
    stamp(a, 13)
    epoch_load()
    a(f"s_lshl_b32 s{s_b}, s{s_g}, 12")
    x_addrs(a, xa, s_b)
    tr_addrs(a, wa, True, True, None, 0)
    epoch_fin()
    a(f"s_waitcnt vmcnt({lwait(('st',0))})")
    a("s_barrier")
    stamp(a, 1)
    for i in range(G.pro, 4): issue_stage(i)
    xoff = 0
    for st in range(10):
        sl = (st & 3) * SLOT
        want = 0 if sl < 2 * SLOT else 2 * SLOT
        if want != xoff:
            for r in xa:
                a(f"v_add_u32 v{r}, {want-xoff}, v{r}" if want > xoff else f"v_subrev_u32 v{r}, {xoff-want}, v{r}")
            xoff = want
        for ks in range(2):
            for ii in range(2):
                a(f"ds_read_b128 {v(XF+16*st+8*ks+4*ii,4)}, v{xa[ks]} offset:{sl-xoff+2048*ii}")
        key = ("st", st + 1) if st < 9 else ("R", 3)
        a(f"s_waitcnt vmcnt({lwait(key)}) lgkmcnt(0)")
        a("s_barrier")
        if st + 4 <= 9: issue_stage(st + 4)
        if st == 6: issue_round(0); issue_round(1)
        if st == 7: issue_round(2); issue_round(3)
        if st == 8: issue_round(4)
    stamp(a, 2)
    small_gemm(a, XF, ACC2, W2, wa, gbase, pre={("r", 16): ["s_waitcnt vmcnt(0)", "s_barrier"]})
    stamp(a, 3)
    a(f"s_mov_b32 s{s_a}, {QSCALE:#x}")
    a(f"s_mul_i32 s{s_b}, s{s_g}, 1280")
    a(f"s_add_u32 s{s_b}, s{s_b}, {QAREA}")
    a(f"v_lshrrev_b32 v{T[0]}, 4, v{lane}")
    a(f"v_mul_u32_u24 v{T[0]}, 5120, v{T[0]}")
    a(f"v_add_u32 v{T[0]}, s{s_b}, v{T[0]}")
    a(f"v_and_b32 v{T[1]}, 15, v{lane}")
    a(f"v_lshl_add_u32 v{T[2]}, v{T[1]}, 4, v{T[0]}")
    a(f"v_lshl_add_u32 v{T[3]}, v{T[1]}, 3, v{T[0]}")
    for ii in range(2):
        r = ACC2 + 20 * ii
        for e in range(20):
            a(f"v_mul_f32 v{r+e}, s{s_a}, v{r+e}")
        for e in range(10):
            a(f"v_cvt_pk_bf16_f32 v{r+e}, v{r+2*e}, v{r+2*e+1}")
        a(f"ds_write_b128 v{T[2]}, {v(r,4)} offset:{256*ii}")
        a(f"ds_write_b128 v{T[2]}, {v(r+4,4)} offset:{256*ii+512}")
        a(f"ds_write_b64 v{T[3]}, {v(r+8,2)} offset:{128*ii+1024}")
    kv_setup()
    a("s_waitcnt lgkmcnt(0)")
    a("s_barrier")
    stamp(a, 4)
    kv_first()

    a(f"{Latt}:")
    a(f"s_mul_i32 s{s_b}, s{s_g}, 5120")
    a(f"s_add_u32 s{s_b}, s{s_b}, {QAREA}")
    a(f"v_add_u32 v{T[0]}, s{s_b}, v{ka}")
    a(f"v_and_b32 v{T[1]}, 31, v{lane}")
    a(f"v_lshl_add_u32 v{T[1]}, v{T[1]}, 3, s{s_b}")
    for q in range(4):
        a(f"ds_read_b128 {v(Q1[q],4)}, v{T[0]} offset:{1280*q}")
        a(f"ds_read_b64 {v(Q3[0][q],2)}, v{T[1]} offset:{1280*q+1024}")
    for r in range(64): a(f"v_mov_b32 v{O[0]+r}, 0")
    for r in range(8): a(f"v_mov_b32 v{P[1]+r}, 0")
    a(f"s_min_u32 s{s_a}, s{s_wave}, 4")
    a(f"s_lshl_b32 s{s_b}, s{s_a}, 6")
    a(f"v_add_u32 v{T[0]}, s{s_b}, v{lane}")
    img_pos(a, T[0], T[1], T[2])
    a(f"s_movk_i32 s{s_c}, 1280")
    grp_src(a, gwo, T[1], T[2], s_c)
    make_srd(a, SW, 20, None, 640 * 1280)
    a(f"s_cmp_gt_u32 s{s_wave}, 4")
    a(f"s_cselect_b32 s{s_c}, {20*5120}, 0")
    a(f"s_cselect_b32 s{s_m0x}, 0, 5120")
    a(f"s_lshl_b32 s{s_m0w}, s{s_a}, 10")
    a(f"s_add_u32 s{s_m0w}, s{s_m0w}, {WOBASE}")
    a(f"s_add_u32 s{s_m0w}, s{s_m0w}, s{s_c}")
    a(f"s_mul_i32 s{s_wo}, s{s_n}, 160")
    a(f"s_lshl_b32 s{s_c}, s{s_c}, 3")
    a(f"s_add_u32 s{s_wo}, s{s_wo}, s{s_c}")
    a(f"v_cmp_gt_u32 vcc, 32, v{lane}")
    a("s_waitcnt lgkmcnt(0)")
    a("s_nop 0")
    for q in range(4):
        for e in range(2):
            a(f"v_cndmask_b32 v{Q3[1][q]+e}, v{Q3[0][q]+e}, v{O[0]}, vcc")
            a(f"v_cndmask_b32 v{Q3[0][q]+e}, v{O[0]}, v{Q3[0][q]+e}, vcc")
    a(f"s_mov_b32 s{s_it}, 0")

    def qk1(sb, q, t): return f"v_mfma_f32_32x32x16_bf16 {v(S[sb],16)}, {v(K1[t],4)}, {v(Q1[q],4)}, 0"
    def qk2(sb, q, t): return f"v_mfma_f32_32x32x8_bf16 {v(S[sb],16)}, {v(K3[t>>1],2)}, {v(Q3[t&1][q],2)}, {v(S[sb],16)}"
    def pv(pb, q, t, h): return f"v_mfma_f32_32x32x16_bf16 {v(O[q],16)}, {v(V[t]+4*h,4)}, {v(P[pb]+4*h,4)}, {v(O[q],16)}"
    def ex(q, r): return f"v_exp_f32 v{S[q]+r}, v{S[q]+r}"
    def cv(q, r): return f"v_cvt_pk_bf16_f32 v{P[q]+r//2}, v{S[q]+r}, v{S[q]+r+1}"
    wo_dma = [f"s_min_u32 m0, s{s_m0w}, 0x30000", f"s_add_u32 s{s_m0w}, s{s_m0w}, s{s_m0x}",
              f"buffer_load_dwordx4 v{gwo}, {srd(SW)}, s{s_wo} offen lds", f"s_add_u32 s{s_wo}, s{s_wo}, {32*1280}"]
    plan = {}
    for tt in range(4):
        pb = (tt - 1) % 4
        plan[(tt, 1)] = ([ld_v(pb, s_ko)], [("V", pb)] * 2)
        if tt & 1:
            plan[(tt, 3)] = ([ld_k1(tt, s_ko), ld_k3(tt >> 1, s_ko)], [("K1", tt), ("K3", tt >> 1)])
        else:
            plan[(tt, 3)] = ([ld_k1(tt, s_ko)], [("K1", tt)])
            plan[(tt, 2)] = (adv_pair(), [])
        if tt < 3:
            plan[(tt, 0)] = (wo_dma, [("WO",)])
    order = [(tt, q) for tt in range(4) for q in range(4)]
    names = []; pos = {}
    for rep in range(2):
        for key in order:
            if rep == 1: pos[key] = len(names)
            names += plan.get(key, ([], []))[1]
    def steady_wait(tt):
        p = pos[(tt, 3)]
        nt = (tt + 1) % 4
        need = [("K1", nt), ("V", nt), ("K3", nt >> 1)]
        last = max(max(i for i in range(p) if names[i] == k) for k in need)
        return p - 1 - last
    first = [("K1", 0), ("K3", 0), ("V", 0), ("V", 0), ("K1", 1), ("V", 1), ("V", 1), ("K1", 2), ("V", 2), ("V", 2), ("K1", 3), ("K3", 1)]
    n0 = list(first)
    waits = {}
    for key in order:
        if key[1] == 3:
            nt = (key[0] + 1) % 4
            need = [("K1", nt), ("V", nt), ("K3", nt >> 1)]
            last = max(max(i for i in range(len(n0)) if n0[i] == k) for k in need)
            waits[key[0]] = min(steady_wait(key[0]), len(n0) - 1 - last)
        n0 += plan.get(key, ([], []))[1]
    a(f"s_waitcnt vmcnt({len(first)-4})")
    stamp(a, 5)
    a(qk1(0, 0, 0)); a(qk2(0, 0, 0))
    a("s_setprio 3")
    a("s_nop 7")
    a("s_nop 3")
    L = a.label("al")
    a(".p2align 6")
    a(f"{L}:")
    cum = [sum(G.lens[:i]) for i in range(4)]
    step = 0
    for tt in range(4):
        for q in range(4):
            c = q & 1; o = 1 - c
            nq, nt = (q + 1, tt) if q < 3 else (0, (tt + 1) % 4)
            pq, pt = (q - 1, tt) if q > 0 else (3, (tt - 1) % 4)
            extra = list(plan.get((tt, q), ([], []))[0])
            if q == 3: a(f"s_waitcnt vmcnt({waits[tt]})")
            if (tt, q) == (3, 2): extra += [f"s_add_u32 s{s_it}, s{s_it}, 1", f"s_cmp_lt_u32 s{s_it}, {G.iters}"]
            ms = [qk1(o, nq, nt), qk2(o, nq, nt), pv(o, pq, pt, 0), pv(o, pq, pt, 1)]
            for j in range(4):
                a(ms[j])
                if j: a(cv(c, 4 * j - 2))
                for e in range(3):
                    a(ex(c, 4 * j + e))
                    if extra: a(extra.pop(0))
                if j < 3:
                    a(cv(c, 4 * j)); a(ex(c, 4 * j + 3))
                else:
                    a(ex(c, 15)); a(cv(c, 12))
            n = (step + 1) % sum(G.lens)
            if n in cum: a(f"s_setprio {3 - cum.index(n)}")
            a(cv(c, 14))
            step += 1
    a(f"s_cbranch_scc1 {L}")
    a("s_nop 0")
    a(pv(1, 3, 3, 0)); a(pv(1, 3, 3, 1))
    a("s_setprio 0")
    Lk1 = a.label("k1"); Lj = a.label("kj"); Lslow = a.label("slow"); Lst = a.label("store")
    a(f"s_mul_i32 s{s_a}, s{s_wave}, 6144")
    a(f"v_add_u32 v{T[1]}, s{s_a}, v{ka}")
    a(f"s_xor_b32 s{s_a}, s{s_wave}, 4")
    a(f"s_mul_i32 s{s_a}, s{s_a}, 6144")
    a(f"v_add_u32 v{T[0]}, s{s_a}, v{ka}")
    a("s_nop 7")
    stamp(a, 6)
    a(f"s_cmp_eq_u32 s{s_kh}, 0")
    a(f"s_cbranch_scc0 {Lk1}")
    for i in range(2):
        for gq_ in range(3):
            a(f"ds_write_b128 v{T[1]}, {v(O[2+i]+4*gq_,4)} offset:{(i*3+gq_)*1024}")
    a(f"s_branch {Lj}")
    a(f"{Lk1}:")
    for i in range(2):
        for gq_ in range(3):
            a(f"ds_write_b128 v{T[1]}, {v(O[i]+4*gq_,4)} offset:{(i*3+gq_)*1024}")
    a("s_nop 1")
    for i in range(2):
        for r in range(12):
            a(f"v_mov_b32 v{O[i]+r}, v{O[2+i]+r}")
        for r in range(4):
            a(f"v_mov_b32 v{Q1[i]+r}, v{Q1[2+i]+r}")
        for r in range(2):
            a(f"v_mov_b32 v{Q3[0][i]+r}, v{Q3[0][2+i]+r}")
            a(f"v_mov_b32 v{Q3[1][i]+r}, v{Q3[1][2+i]+r}")
    a(f"{Lj}:")
    a("s_waitcnt vmcnt(0) lgkmcnt(0)")
    a("s_barrier")
    for i in range(2):
        for gq_ in range(3):
            a(f"ds_read_b128 {v(O[2+i]+4*gq_,4)}, v{T[0]} offset:{(i*3+gq_)*1024}")
    a(f"s_lshl_b32 s{s_a}, s{s_blk}, 4")
    a(f"s_add_u32 s{s_a}, s{s_a}, s{s_m}")
    a(f"s_lshl_b32 s{s_a}, s{s_a}, 1")
    a(f"s_add_u32 s{s_a}, s{s_a}, s{s_kh}")
    a(f"s_mul_i32 s{s_a}, s{s_a}, {4*20480}")
    a(f"s_add_u32 s{s_a}, s{s_a}, {OBASE}")
    make_srd(a, SO, 32, f"s{s_a}", 4 * 20480)
    a(f"s_lshl_b32 s{s_a}, s{s_n}, 2")
    a(f"s_add_u32 s{s_a}, s{s_a}, s{s_g}")
    a(f"s_mul_i32 s{s_a}, s{s_a}, 5")
    a(f"s_add_u32 s{s_b}, s{s_a}, 1")
    a(f"s_lshr_b32 s{s_b}, s{s_b}, 1")
    a(f"s_lshl_b32 s{s_b}, s{s_b}, 8")
    a(f"s_movk_i32 s{s_a}, 512")
    a(f"s_and_b32 s{s_c}, s{s_g}, 1")
    a(f"s_cselect_b32 s{s_c}, {(-256+8) & 0xffffffff}, s{s_a}")
    a(f"s_add_u32 s{s_c}, s{s_c}, s{s_b}")
    a(f"v_bfe_u32 v{T[2]}, v{lane}, 4, 1")
    a(f"v_mul_u32_u24 v{T[2]}, 20480, v{T[2]}")
    a(f"v_and_b32 v{T[3]}, 15, v{lane}")
    a(f"v_lshl_add_u32 v{T[2]}, v{T[3]}, 4, v{T[2]}")
    a(f"v_lshrrev_b32 v{T[4]}, 5, v{lane}")
    a(f"v_lshl_add_u32 v{T[3]}, v{T[4]}, 20, v{T[2]}")
    a(f"v_lshl_add_u32 v{T[2]}, v{T[4]}, 8, v{T[2]}")
    a(f"v_add_u32 v{T[2]}, s{s_b}, v{T[2]}")
    a(f"v_add_u32 v{T[3]}, s{s_c}, v{T[3]}")
    a("s_waitcnt lgkmcnt(0)")
    for i in range(2):
        for r in range(12):
            a(f"v_add_f32 v{O[i]+r}, v{O[i]+r}, v{O[2+i]+r}")
    def bcast_l():
        for i in range(2):
            a(f"v_mov_b32 v{O[i]+12}, v{O[i]+8}")
            a(f"v_mov_b32 v{O[i]+13}, v{O[i]+8}")
        a("s_nop 1")
        for i in range(2):
            a(f"v_permlane32_swap_b32 v{O[i]+13}, v{O[i]+12}")
    bcast_l()
    a(f"s_mov_b32 s{s_a}, 0x2b800000")
    a(f"s_mov_b32 s{s_b}, 0x5d800000")
    a(f"v_mov_b32 v{T[0]}, 0")
    for q in range(2):
        for r in range(12):
            a(f"v_fma_f32 v{T[0]}, v{O[q]+r}, 0, v{T[0]}")
    a(f"v_cmp_o_f32 vcc, v{T[0]}, v{T[0]}")
    for q in range(2):
        a(f"v_cmp_le_f32 s[34:35], s{s_a}, v{O[q]+12}")
        a(f"s_and_b64 vcc, vcc, s[34:35]")
        a(f"v_cmp_ge_f32 s[34:35], s{s_b}, v{O[q]+12}")
        a(f"s_and_b64 vcc, vcc, s[34:35]")
    a("s_cmp_eq_u64 vcc, -1")
    a(f"s_cbranch_scc0 {Lslow}")
    a(f"{Lst}:")
    a(f"s_mov_b32 s{s_b}, {2*20480}")
    for q in range(2):
        a(f"v_rcp_f32 v{T[4]}, v{O[q]+12}")
        a("s_nop 0")
        for r in range(12):
            a(f"v_mul_f32 v{O[q]+r}, v{T[4]}, v{O[q]+r}")
        for e in range(6):
            a(f"v_cvt_pk_bf16_f32 v{O[q]+e}, v{O[q]+2*e}, v{O[q]+2*e+1}")
        so = "0" if q == 0 else f"s{s_b}"
        a(f"buffer_store_dwordx4 {v(O[q],4)}, v{T[2]}, {srd(SO)}, {so} offen {G.st}")
        a(f"buffer_store_dwordx2 {v(O[q]+4,2)}, v{T[3]}, {srd(SO)}, {so} offen {G.st}")
    a(f"s_lshl_b32 s{s_a}, s{s_blk}, 4")
    a(f"s_add_u32 s{s_a}, s{s_a}, s{s_m}")
    a(f"s_lshl_b32 s{s_xo}, s{s_a}, {6+G.fsh}")
    a(f"s_add_u32 s{s_xo}, s{s_xo}, {F2OFF}")
    a(f"s_lshl_b32 s{s_a}, s{s_kh}, 3")
    a(f"s_add_u32 s{s_a}, s{s_a}, s{s_n}")
    a(f"s_lshl_b32 s{s_a}, s{s_a}, 2")
    a(f"s_add_u32 s{s_a}, s{s_a}, s{s_g}")
    a(f"s_lshl_b32 s{s_a}, s{s_a}, {G.fsh}")
    a(f"s_add_u32 s{s_b}, s{s_a}, s{s_xo}")
    a("s_waitcnt vmcnt(0)")
    if G.wb:
        a("buffer_wbl2 sc1")
        a("s_waitcnt vmcnt(0)")
    set_flag(a, s_b)
    stamp(a, 7)
    stamp(a, 8)
    stamp(a, 9)
    Lfin = a.label("fin")
    a(f"s_cmp_ge_u32 s{s_wave}, 4")
    a(f"s_cbranch_scc1 {Lfin}")

    tr_addrs(a, wa, True, True, None, 0)
    a(f"s_lshl_b32 s{s_a}, s{s_blk}, 4")
    a(f"s_add_u32 s{s_a}, s{s_a}, s{s_m}")
    a(f"s_lshl_b32 s{s_a}, s{s_a}, 2")
    a(f"s_add_u32 s{s_a}, s{s_a}, s{s_g}")
    a(f"s_mul_i32 s{s_a}, s{s_a}, {2*20480}")
    a(f"s_add_u32 s{s_a}, s{s_a}, {OBASE}")
    make_srd(a, SO, 32, f"s{s_a}", 2 * 20480)
    a(f"s_lshr_b32 s{s_a}, s{s_g}, 1")
    a(f"s_lshl_b32 s{s_a}, s{s_a}, {5+G.fsh}")
    a(f"s_add_u32 s{s_b}, s{s_a}, s{s_xo}")
    a(f"v_and_b32 v{T[0]}, 31, v{lane}")
    a(f"v_lshlrev_b32 v{T[0]}, {G.fsh}, v{T[0]}")
    a(f"v_lshlrev_b32 v{T[1]}, 4, v{lane}")
    a(f"v_add_u32 v{T[2]}, 20480, v{T[1]}")
    poll(a, T[0], f"s{s_b}")
    stamp(a, 8)
    for g in range(20):
        if g % 4 == 0: a(f"s_movk_i32 s{s_a}, {1024*g}")
        for ii in range(2):
            a(f"buffer_load_dwordx4 {v(XF+8*g+4*ii,4)}, v{T[1+ii]}, {srd(SO)}, s{s_a} offen offset:{1024*(g%4)} sc1")
    small_gemm(a, XF, ACC2, W2, wa, [WOBASE + 5120 * g for g in range(20)],
               pre={("m", g): f"s_waitcnt vmcnt({38-2*g}) lgkmcnt(0)" for g in range(20)})
    stamp(a, 9)
    make_srd(a, SO, 28, None, 2048 * 2560)
    a(f"s_lshl_b32 s{s_a}, s{s_m}, 2")
    a(f"s_add_u32 s{s_a}, s{s_a}, s{s_g}")
    a(f"s_mul_i32 s{s_a}, s{s_a}, {32*2560}")
    a(f"s_mul_i32 s{s_b}, s{s_blk}, 1280")
    a(f"s_add_u32 s{s_a}, s{s_a}, s{s_b}")
    a(f"s_mul_i32 s{s_b}, s{s_n}, 160")
    a(f"s_add_u32 s{s_a}, s{s_a}, s{s_b}")
    a(f"s_add_u32 s{s_b}, s{s_a}, {16*2560}")
    a(f"v_and_b32 v{T[0]}, 15, v{lane}")
    a(f"v_mul_u32_u24 v{T[0]}, 2560, v{T[0]}")
    a(f"v_lshrrev_b32 v{T[1]}, 4, v{lane}")
    a(f"v_mul_u32_u24 v{T[1]}, 40, v{T[1]}")
    a(f"v_add_u32 v{T[0]}, v{T[0]}, v{T[1]}")
    for ii in range(2):
        r = ACC2 + 20 * ii
        for e in range(10):
            a(f"v_cvt_pk_bf16_f32 v{r+e}, v{r+2*e}, v{r+2*e+1}")
        so = s_a if ii == 0 else s_b
        a(f"buffer_store_dwordx4 {v(r,4)}, v{T[0]}, {srd(SO)}, s{so} offen")
        a(f"buffer_store_dwordx4 {v(r+4,4)}, v{T[0]}, {srd(SO)}, s{so} offen offset:16")
        a(f"buffer_store_dwordx2 {v(r+8,2)}, v{T[0]}, {srd(SO)}, s{so} offen offset:32")
    a(f"s_or_b32 s{s_a}, s{s_m}, s{s_n}")
    a(f"s_or_b32 s{s_a}, s{s_a}, s{s_wave}")
    a(f"s_cbranch_scc1 {Lfin}")
    a(f"s_lshl_b32 s{s_b}, s{s_blk}, 7")
    a(f"s_add_u32 s{s_b}, s{s_b}, {EOFF}")
    set_flag(a, s_b)
    a(f"{Lfin}:")
    dump_stamps(a, 10)
    a(f"{Lend}:")
    a("s_endpgm")

    a(f"{Lslow}:")
    for q in range(2):
        L1 = a.label("s1"); L2 = a.label("s2")
        a(f"v_mov_b32 v{vmx}, 0xff800000")
        a(f"s_mov_b32 s{s_ko}, 0")
        a(f"{L1}:")
        a(ld_k1(0, s_ko)); a(ld_k1(1, s_ko)); a(ld_k3(0, s_ko))
        a("s_waitcnt vmcnt(0)")
        for t in range(2):
            a(qk1(0, q, t)); a(qk2(0, q, t))
            a("s_nop 15")
            for r in range(0, 16, 2):
                a(f"v_max3_f32 v{vmx}, v{S[0]+r}, v{S[0]+r+1}, v{vmx}")
        a(f"s_add_u32 s{s_ko}, s{s_ko}, {PS}")
        a(f"s_cmp_lt_u32 s{s_ko}, {HS}")
        a(f"s_cbranch_scc1 {L1}")
        a(f"v_mov_b32 v{T[0]}, v{vmx}")
        a("s_nop 1")
        a(f"v_permlane32_swap_b32 v{T[0]}, v{vmx}")
        a("s_nop 1")
        a(f"v_max_f32 v{vmx}, v{vmx}, v{T[0]}")
        for r in range(16):
            a(f"v_mov_b32 v{O[q]+r}, 0")
        a(f"s_mov_b32 s{s_ko}, 0")
        a(f"{L2}:")
        a(ld_k1(0, s_ko)); a(ld_k1(1, s_ko)); a(ld_k3(0, s_ko)); a(ld_v(0, s_ko)); a(ld_v(1, s_ko))
        a("s_waitcnt vmcnt(0)")
        for t in range(2):
            a(qk1(0, q, t)); a(qk2(0, q, t))
            a("s_nop 15")
            for r in range(16):
                a(f"v_sub_f32 v{S[0]+r}, v{S[0]+r}, v{vmx}")
            for r in range(16):
                a(ex(0, r))
            a("s_nop 0")
            for r in range(0, 16, 2):
                a(cv(0, r))
            a("s_nop 1")
            a(pv(0, q, t, 0)); a(pv(0, q, t, 1))
        a(f"s_add_u32 s{s_ko}, s{s_ko}, {PS}")
        a(f"s_cmp_lt_u32 s{s_ko}, {HS}")
        a(f"s_cbranch_scc1 {L2}")
    a("s_nop 15")
    bcast_l()
    a("s_nop 1")
    a(f"s_branch {Lst}")
    return name

def build():
    a = Asm()
    name = gen(a)
    out = HEADER + "; @launch grid=(256,1,1) block=(512,1,1) lds=163840\n"
    out += '.amdgcn_target "amdgcn-amd-amdhsa--gfx950"\n.text\n' + a.text()
    out += '.section .rodata,"a"\n.p2align 6\n' + kernel_desc(name, 256, 100 if G.diag else 64)
    return out

if __name__ == "__main__":
    path = sys.argv[1] if len(sys.argv) > 1 else f"cdna_kernels/{NAME}.s"
    G.diag = "diag" in sys.argv
    for x in sys.argv[2:]:
        if "=" in x:
            k, val = x.split("=", 1)
            setattr(G, k, eval(val))
    open(path, "w").write(build())
    print("wrote", path)
```

```python
import sys
sys.path.insert(0, "gen")
from asmlib import *

NAME = "concat_heads__mha_block__softmax_full_mha__prompt"
HS = 163840
PS = 5120
KVL = 0x1400000
OBASE = 0xA00000
FBASE = 0x1000000
FLOFF = 0x40000
F2LOFF = 0x60000
XOFF = 0x70000
GFOFF = 0x78000
F2OFF = 0x80000
EOFF = 0x180000
DBGBASE = 0x2000000
QSCALE = 0x3ea52b5c
SLOT = 36864
SPARE = 4 * SLOT
QAREA = SLOT
WOBASE = 61440
MODE_LDS = 163836
SPIN = 400000
FSH = 7

HEADER = """; Kernarg layout for this problem (72 bytes, ptrs only, base s[0:1]):
"""

SX, SW, SKV, SF, SO = 4, 8, 12, 36, 40
(s_blk, s_m, s_n, s_wave, s_tag, s_k, s_a, s_b, s_c, s_it, s_xo, s_wo, s_m0x, s_m0w, s_kh, s_ko, s_vo, s_g) = range(44, 62)
s_vm = 62
s_st, s_loc, s_fg = 3, 34, 35
lane = 255
T = [0] * 6

class G:
    diag = False; dbg = None; amp = None
    lens = [9, 4, 2, 1]
    rot = True
    pro = 2; la = 3; nb1 = 2
    local = True
    sleep = 2
    iters = 8
    hst = (0, 1); hsam = (0, 0)
    oa = 3
    ost = ''
    warm = False
    lst = ''
    v3 = True
    nowb = False
    wod = 4

PADS = [0, 0, 0, 0]
def pad_hop(a, c):
    if not G.warm: return
    a(f"Lpad_{c}_{PADS[c]}:")
    PADS[c] += 1
    a(f"s_cbranch_execz Lpad_{c}_{PADS[c]}")

def setT(base): T[:] = list(range(base, base + 6))
def srd(d): return f"s[{d}:{d+3}]"

def stamp(a, i):
    if not G.diag: return
    a("s_memtime s[96:97]")
    a("s_memrealtime s[98:99]")
    a("s_waitcnt lgkmcnt(0)")
    a(f"s_mov_b32 s{64+2*i}, s96")
    a(f"s_mov_b32 s{65+2*i}, s98")

def dump_stamps(a, n):
    if not G.diag: return
    a("s_waitcnt vmcnt(0)")
    stamp(a, n)
    a(f"s_lshl_b32 s{s_a}, s2, 3")
    a(f"s_add_u32 s{s_a}, s{s_a}, s{s_wave}")
    a(f"s_lshl_b32 s{s_a}, s{s_a}, 7")
    a(f"s_add_u32 s{s_a}, s{s_a}, {DBGBASE}")
    make_srd(a, SX, 32, f"s{s_a}", 128)
    a(f"v_mov_b32 v{T[0]}, 0")
    for i in range(32):
        a(f"v_mov_b32 v{T[1]}, s{64+i}")
        a(f"buffer_store_dword v{T[1]}, v{T[0]}, s[{SX}:{SX+3}], 0 offen offset:{4*i}")
    if G.dbg is not None:
        Ls = a.label("nodbg")
        a(f"s_lshl_b32 s{s_a}, s2, 3")
        a(f"s_add_u32 s{s_a}, s{s_a}, s{s_wave}")
        a(f"s_cmp_lg_u32 s{s_a}, {G.dbg}")
        a(f"s_cbranch_scc1 {Ls}")
        make_srd(a, SX, 30, None, 256)
        for i in range(1, 14):
            a(f"s_sub_u32 s{s_a}, s{65+2*i}, s65")
            a(f"v_mov_b32 v{T[1]}, s{s_a}")
            a(f"buffer_store_dword v{T[1]}, v{T[0]}, s[{SX}:{SX+3}], 0 offen offset:{4*i}")
        a(f"{Ls}:")

def make_srd(a, d, base, off, nbytes):
    if off is None:
        a(f"s_mov_b64 s[{d}:{d+1}], s[{base}:{base+1}]")
    else:
        a(f"s_add_u32 s{d}, s{base}, {off}")
        a(f"s_addc_u32 s{d+1}, s{base+1}, 0")
    a(f"s_mov_b32 s{d+2}, {nbytes}")
    a(f"s_mov_b32 s{d+3}, 0x00020000")

def img_pos(a, pos, row, c):
    a(f"v_mul_u32_u24 v{row}, 3277, v{pos}")
    a(f"v_lshrrev_b32 v{row}, 16, v{row}")
    a(f"v_mad_i32_i24 v{c}, v{row}, -16, v{pos}")
    a(f"v_mad_i32_i24 v{c}, v{row}, -4, v{c}")
    a(f"v_lshrrev_b32 v{T[5]}, 3, v{row}")
    a(f"v_mad_i32_i24 v{c}, v{T[5]}, -2, v{c}")
    a(f"v_add_u32 v{T[5]}, 20, v{c}")
    a(f"v_min_u32 v{c}, v{c}, v{T[5]}")

def grp_src(a, dst, row, c, ld_sreg):
    a(f"v_cmp_lt_u32 vcc, 9, v{c}")
    a(f"v_add_u32 v{T[5]}, 16, v{row}")
    a(f"v_subrev_u32 v{T[4]}, 10, v{c}")
    a(f"v_cndmask_b32 v{row}, v{row}, v{T[5]}, vcc")
    a(f"v_cndmask_b32 v{c}, v{c}, v{T[4]}, vcc")
    a(f"v_lshlrev_b32 v{c}, 4, v{c}")
    a(f"v_mad_u32_u24 v{dst}, v{row}, s{ld_sreg}, v{c}")

def tr_addrs(a, wa, perm, grp, colhalf_sreg, base):
    a(f"v_bfe_u32 v{T[0]}, v{lane}, 2, 2")
    a(f"v_lshrrev_b32 v{T[1]}, 4, v{lane}")
    a(f"v_and_b32 v{T[2]}, 1, v{T[1]}")
    a(f"v_lshl_add_u32 v{T[0]}, v{T[2] if grp else T[1]}, 3, v{T[0]}")
    a(f"v_mul_u32_u24 v{T[0]}, 320, v{T[0]}")
    if base: a(f"v_add_u32 v{T[0]}, {base}, v{T[0]}")
    a(f"v_lshlrev_b32 v{T[2]}, 5, v{T[2]}")
    if grp:
        a(f"v_lshrrev_b32 v{T[1]}, 1, v{T[1]}")
        a(f"v_mul_u32_u24 v{T[1]}, 160, v{T[1]}")
        a(f"v_add_u32 v{T[2]}, v{T[2]}, v{T[1]}")
    else:
        a(f"s_mul_i32 s{s_a}, s{colhalf_sreg}, 160")
        a(f"v_add_u32 v{T[2]}, s{s_a}, v{T[2]}")
    a(f"v_and_b32 v{T[1]}, 3, v{lane}")
    a(f"v_mad_u32_u24 v{T[2]}, v{T[1]}, {40 if perm else 8}, v{T[2]}")
    for j in range(5):
        a(f"v_add_u32 v{T[1]}, {8*j if perm else 32*j}, v{T[2]}")
        a(f"v_subrev_u32 v{T[3]}, 320, v{T[1]}")
        a(f"v_min_u32 v{T[1]}, v{T[1]}, v{T[3]}")
        a(f"v_add_u32 v{wa[j]}, v{T[1]}, v{T[0]}")

def x_addrs(a, xa, rowbase_sreg):
    a(f"v_and_b32 v{T[0]}, 15, v{lane}")
    a(f"v_lshrrev_b32 v{T[1]}, 1, v{T[0]}")
    a(f"v_lshrrev_b32 v{T[2]}, 4, v{lane}")
    a(f"v_xor_b32 v{T[1]}, v{T[1]}, v{T[2]}")
    a(f"v_lshl_add_u32 v{T[0]}, v{T[0]}, 7, s{rowbase_sreg}")
    a(f"v_lshl_add_u32 v{xa[0]}, v{T[1]}, 4, v{T[0]}")
    a(f"v_xor_b32 v{xa[1]}, 64, v{xa[0]}")

def poll(a, voff, soff, tmp):
    L = a.label("poll"); Ld = a.label("polld")
    a(f"s_mov_b32 s{s_c}, {SPIN}")
    a(f"{L}:")
    a(f"buffer_load_dword v{tmp}, v{voff}, {srd(SF)}, {soff} offen sc1")
    a("s_waitcnt vmcnt(0)")
    a(f"v_cmp_ne_u32 vcc, s{s_tag}, v{tmp}")
    a(f"s_cbranch_vccz {Ld}")
    a(f"s_sub_u32 s{s_c}, s{s_c}, 1")
    a(f"s_cbranch_scc1 {Ld}")
    a(f"s_sleep {G.sleep}")
    a(f"s_branch {L}")
    a(f"{Ld}:")

def flag_regs(a, val=None):
    a(f"v_lshlrev_b32 v{T[4]}, 2, v{lane}")
    a(f"v_mov_b32 v{T[5]}, s{s_tag if val is None else val}")
def flag_store(a, off_sreg, local=False):
    if local:
        a("s_mov_b64 exec, 1")
    else:
        a("s_mov_b32 exec_hi, 0")
    a(f"buffer_store_dword v{T[5]}, v{T[4]}, {srd(SF)}, s{off_sreg} offen {'' if local else 'sc1'}")
    a("s_mov_b64 exec, -1")

def small_gemm(a, BF, ACC, W, wa, gbase, pre, cur0=0, vmw=None, chain=0):
    n = len(gbase)
    cur = [cur0]
    def shift(g):
        out = []
        if not (cur[0] <= gbase[g] and gbase[g] + 1280 - cur[0] <= 65535):
            want = (gbase[g] // 57344) * 57344
            d = want - cur[0]
            out = [(f"v_add_u32 v{wa[j]}, {d}, v{wa[j]}" if d > 0 else f"v_subrev_u32 v{wa[j]}, {-d}, v{wa[j]}") for j in range(5)]
            cur[0] = want
        return out
    def rd(g, j, t): return f"ds_read_b64_tr_b16 {v(W[g&1]+4*j+2*t,2)}, v{wa[j]} offset:{gbase[g]-cur[0]+1280*t}"
    for x in shift(0): a(x)
    for j in range(5):
        a(rd(0, j, 0)); a(rd(0, j, 1))
    for g in range(n):
        last = g == n - 1
        if g % 2 == 0: pad_hop(a, chain)
        for x in pre.get(("h", g), []): a(x)
        if not last:
            for x in shift(g + 1): a(x)
        ex = list(pre.get(("x", g), []))
        for j in range(5):
            if j == 0: a(f"s_waitcnt {('vmcnt(%d) ' % vmw(g)) if vmw else ''}lgkmcnt(6)")
            if j == 2: a(f"s_waitcnt lgkmcnt({0 if last else 4})")
            for ii in range(2):
                d = v(ACC + 4 * (5 * ii + j), 4)
                a(f"v_mfma_f32_16x16x32_bf16 {d}, {v(W[g&1]+4*j,4)}, {v(BF+8*g+4*ii,4)}, {d if g else 0}")
                if not last: a(rd(g + 1, j, ii))
            if ex: a(ex.pop(0))
        for x in ex: a(x)

def gen(a):
    name = NAME + "_kernel"
    kernel_header(a, name)
    Lend = a.label("end"); Lcons = a.label("cons"); Lv = a.label("vtype"); Latt = a.label("att")
    a("s_cmp_ge_u32 s2, 256")
    a(f"s_cbranch_scc1 {Lend}")
    stamp(a, 0)
    a("s_load_dwordx16 s[16:31], s[0:1], 0")
    a("s_load_dwordx2 s[32:33], s[0:1], 64")
    a("s_mov_b64 exec, -1")
    a(f"v_lshrrev_b32 v1, 6, v0")
    a(f"v_and_b32 v{lane}, 63, v0")
    a(f"v_readfirstlane_b32 s{s_wave}, v1")
    a(f"s_and_b32 s{s_a}, s2, 7")
    a(f"s_lshr_b32 s{s_b}, s2, 3")
    a(f"s_lshr_b32 s{s_blk}, s{s_a}, 2")
    a(f"s_and_b32 s{s_a}, s{s_a}, 3")
    a(f"s_lshr_b32 s{s_c}, s{s_b}, 3")
    a(f"s_lshl2_add_u32 s{s_m}, s{s_a}, s{s_c}")
    a(f"s_and_b32 s{s_n}, s{s_b}, 7")
    if G.rot:
        a(f"s_mul_i32 s{s_k}, s{s_c}, 3")
        a(f"s_add_u32 s{s_k}, s{s_k}, s{s_n}")
        a(f"s_add_u32 s{s_k}, s{s_k}, s{s_a}")
        a(f"s_cmp_ge_u32 s{s_k}, 10")
        a(f"s_cselect_b32 s{s_a}, 10, 0")
        a(f"s_sub_u32 s{s_k}, s{s_k}, s{s_a}")
    else:
        a(f"s_mov_b32 s{s_k}, 0")
    a(f"s_and_b32 s{s_g}, s{s_wave}, 3")
    a(f"s_lshr_b32 s{s_kh}, s{s_wave}, 2")
    a(f"s_cbranch_scc0 {Lcons}")

    def common_ptrs():
        a("s_waitcnt lgkmcnt(0)")
        a(f"s_cmp_eq_u32 s{s_blk}, 0")
        a("s_cselect_b64 s[16:17], s[16:17], s[22:23]")
        a("s_cselect_b64 s[18:19], s[18:19], s[24:25]")
        a("s_cselect_b64 s[20:21], s[20:21], s[26:27]")
    def epoch_load():
        a(f"s_lshl_b32 s{s_a}, s{s_blk}, 7")
        a(f"s_add_u32 s{s_a}, s{s_a}, {FBASE+EOFF}")
        a(f"s_load_dword s{s_tag}, s[32:33], s{s_a}")
        make_srd(a, SF, 32, FBASE, EOFF + 0x1000)
    def epoch_fin():
        a("s_waitcnt lgkmcnt(0)")
        a(f"s_mul_i32 s{s_tag}, s{s_tag}, 0x9E3779B1")
        a(f"s_add_u32 s{s_tag}, s{s_tag}, 0x7F4A7C15")

    O = [0, 16, 32, 48]; S = [64, 80]; P = [96, 104]
    K1 = [112, 116, 120, 124]; K3 = [128, 130]; V = [132, 140, 148, 156]
    Q1 = [164, 168, 172, 176]; Q3 = [[180, 182, 184, 186], [188, 190, 192, 194]]
    KVD = 196; sa = [236, 237, 238, 239, 246]
    ka, k3a, va, gwo, gfv, gfd = 240, 241, 242, 243, 244, 245

    def att_addrs():
        a(f"s_lshl3_add_u32 s{s_a}, s{s_blk}, s{s_n}")
        a(f"s_lshl2_add_u32 s{s_a}, s{s_a}, s{s_g}")
        a(f"s_mul_i32 s{s_a}, s{s_a}, {HS}")
        make_srd(a, SKV, 32, f"s{s_a}", HS)
        a(f"v_lshlrev_b32 v{ka}, 4, v{lane}")
        a(f"v_lshlrev_b32 v{k3a}, 3, v{lane}")
        a(f"v_and_b32 v{T[0]}, 31, v{lane}")
        a(f"v_lshrrev_b32 v{T[1]}, 1, v{T[0]}")
        a(f"v_xor_b32 v{T[1]}, v{T[1]}, v{T[0]}")
        a(f"v_and_b32 v{T[1]}, 4, v{T[1]}")
        a(f"v_mul_u32_u24 v{T[1]}, 3, v{T[1]}")
        a(f"v_xor_b32 v{T[1]}, v{T[1]}, v{T[0]}")
        a(f"s_and_b32 s{s_a}, s{s_g}, 1")
        a(f"s_lshl_b32 s{s_a}, s{s_a}, 2")
        a(f"v_add_u32 v{T[1]}, s{s_a}, v{T[1]}")
        a(f"v_subrev_u32 v{T[2]}, 20, v{T[1]}")
        a(f"v_min_u32 v{T[1]}, v{T[1]}, v{T[2]}")
        a(f"v_lshrrev_b32 v{T[2]}, 5, v{lane}")
        a(f"v_mul_u32_u24 v{T[3]}, 320, v{T[2]}")
        a(f"v_lshl_add_u32 v{va}, v{T[1]}, 4, v{T[3]}")
        a(f"v_add_u32 v{va}, 2560, v{va}")
        a(f"s_and_b32 s{s_ko}, s{s_m}, 12")
        a(f"s_lshl1_add_u32 s{s_ko}, s{s_ko}, s{s_kh}")
        a(f"s_mul_i32 s{s_ko}, s{s_ko}, {PS}")
        a(f"s_mov_b32 s{s_vm}, 0x000fffff")
        a(f"s_mov_b32 s{s_vm+1}, 0x000fffff")
        a(f"s_lshl_b32 s{s_fg}, s{s_blk}, 9")
        a(f"s_add_u32 s{s_fg}, s{s_fg}, {GFOFF}")
        a(f"v_and_b32 v{gfv}, 3, v{lane}")
        a(f"v_lshlrev_b32 v{gfv}, 7, v{gfv}")
        a(f"s_min_u32 s{s_a}, s{s_wave}, 4")
        a(f"s_lshl_b32 s{s_b}, s{s_a}, 6")
        a(f"v_add_u32 v{T[0]}, s{s_b}, v{lane}")
        img_pos(a, T[0], T[1], T[2])
        a(f"s_movk_i32 s{s_c}, 1280")
        grp_src(a, gwo, T[1], T[2], s_c)
    def wo_scalars():
        make_srd(a, SW, 20, None, 640 * 1280)
        a(f"s_cmp_gt_u32 s{s_wave}, 4")
        a(f"s_cselect_b32 s{s_c}, {24*5120}, 0")
        a(f"s_lshl_b32 s{s_m0w}, s{s_wave}, 10")
        if G.wod: a(f"s_sub_u32 s{s_m0w}, s{s_m0w}, {G.wod*5120}")
        a(f"s_add_u32 s{s_m0w}, s{s_m0w}, s{s_c}")
        a(f"s_mul_i32 s{s_wo}, s{s_n}, 160")
        a(f"s_lshl3_add_u32 s{s_wo}, s{s_c}, s{s_wo}")
        if G.wod: a(f"s_sub_u32 s{s_wo}, s{s_wo}, {G.wod*32*1280}")
    def ld_k1(b): return f"buffer_load_dwordx4 {v(K1[b],4)}, v{ka}, {srd(SKV)}, s{s_ko} offen offset:{1024*(b&1)} sc1"
    def ld_k3(p): return f"buffer_load_dwordx2 {v(K3[p],2)}, v{k3a}, {srd(SKV)}, s{s_ko} offen offset:2048 sc1"
    def ld_v(b, m=s_vm):
        return (f"s_mov_b64 exec, s[{m}:{m+1}]\n"
                f"buffer_load_dwordx4 {v(V[b],4)}, v{va}, {srd(SKV)}, s{s_ko} offen offset:{1280*(b&1)} sc1\n"
                f"buffer_load_dwordx4 {v(V[b]+4,4)}, v{va}, {srd(SKV)}, s{s_ko} offen offset:{1280*(b&1)+640} sc1\n"
                f"s_mov_b64 exec, -1")
    def adv_pair():
        return [f"s_add_u32 s{s_ko}, s{s_ko}, {2*PS}", f"s_cmp_ge_u32 s{s_ko}, {HS}",
                f"s_cselect_b32 s{s_c}, {HS}, 0", f"s_sub_u32 s{s_ko}, s{s_ko}, s{s_c}"]
    def pad_value():
        a(f"v_and_b32 v{S[0]}, 31, v{lane}")
        a(f"v_cmp_eq_u32 vcc, 20, v{S[0]}")
        a(f"v_mov_b32 v{S[0]+1}, 0x3f803f80")
        a(f"v_mov_b64 {v(P[1],2)}, 0")
        a(f"v_cndmask_b32 v{S[0]}, 0, v{S[0]+1}, vcc")
        a(f"v_mov_b32 v{S[0]+1}, v{S[0]}")
    def pad(b):
        for r in range(0, 8, 2): a(f"v_mov_b64 {v(V[b]+r,2)}, {v(S[0],2)}")
    def zero_acc():
        for q in range(4): a(f"v_mfma_f32_32x32x8_bf16 {v(O[q],16)}, {v(P[1],2)}, {v(P[1],2)}, 0")
        for r in range(2, 8, 2): a(f"v_mov_b64 {v(P[1]+r,2)}, 0")
    first = [("K1", 0), ("K3", 0), ("V", 0), ("V", 0), ("K1", 1), ("V", 1), ("V", 1), ("K1", 2), ("V", 2), ("V", 2), ("K1", 3), ("K3", 1)]
    if G.v3: first += [("V", 3)] * 2
    def kv_first(with_pad):
        a(ld_k1(0)); a(ld_k3(0))
        if with_pad: pad_value(); pad(0)
        a(ld_v(0)); a(ld_k1(1))
        if with_pad: pad(1)
        a(ld_v(1))
        for x in adv_pair(): a(x)
        a(ld_k1(2))
        if with_pad: pad(2)
        a(ld_v(2)); a(ld_k1(3)); a(ld_k3(1))
        if with_pad: pad(3)
        if G.v3:
            a(ld_v(3))
            a("s_mov_b64 s[22:23], 0")

    XF = 0; ACC2 = 160; W2 = [200, 220]
    gx = [160, 161, 162, 163]; gw = [164, 165, 166, 167, 168]; gq = [251, 252, 253, 254, 245]
    wa2 = [246, 247, 248, 249, 250]; xa2 = [210, 211]
    setT(200)
    a(f"v_lshrrev_b32 v{T[0]}, 4, v{lane}")
    a(f"v_xor_b32 v{T[0]}, v{T[0]}, v{lane}")
    a(f"v_and_b32 v{T[0]}, 7, v{T[0]}")
    a(f"v_lshrrev_b32 v{T[1]}, 3, v{lane}")
    a(f"v_mul_u32_u24 v{T[1]}, 1280, v{T[1]}")
    a(f"v_lshl_add_u32 v{gx[0]}, v{T[0]}, 4, v{T[1]}")
    a(f"v_xor_b32 v{gx[1]}, 64, v{gx[0]}")
    a(f"v_add_u32 v{gx[1]}, 9216, v{gx[1]}")
    a(f"v_add_u32 v{gx[2]}, 18432, v{gx[0]}")
    a(f"v_add_u32 v{gx[3]}, 18432, v{gx[1]}")
    a(f"s_movk_i32 s{s_c}, 3840")
    rows = [212 + 2 * i for i in range(5)]
    for i in range(5):
        if i: a(f"v_add_u32 v{T[0]}, {64*i}, v{lane}")
        img_pos(a, T[0] if i else lane, rows[i], rows[i] + 1)
        a(f"v_lshlrev_b32 v{T[3]}, 4, v{rows[i]+1}")
        a(f"v_mad_u32_u24 v{gw[i]}, v{rows[i]}, s{s_c}, v{T[3]}")
        if i & 3: a(f"v_subrev_u32 v{gw[i]}, {1024*i}, v{gw[i]}")
    a(f"s_lshl_b32 s{s_m0x}, s{s_g}, 12")
    a(f"s_mul_i32 s{s_m0w}, s{s_g}, 5120")
    a(f"s_add_u32 s{s_m0w}, s{s_m0w}, 16384")
    a(f"s_lshl2_add_u32 s{s_a}, s{s_m}, s{s_g}")
    a(f"s_mul_i32 s{s_a}, s{s_a}, {32*1280}")
    a(f"s_mul_i32 s{s_fg}, s{s_n}, 320")
    a(f"s_mul_i32 s{s_b}, s{s_g}, {16*3840}")
    a(f"s_add_u32 s{s_fg}, s{s_fg}, s{s_b}")
    a(f"s_add_u32 s{s_loc}, s{s_fg}, 1280")
    a(f"s_mov_b32 s{s_vo}, s{s_k}")
    common_ptrs()
    make_srd(a, SX, 16, f"s{s_a}", 32 * 1280)
    make_srd(a, SW, 18, None, 640 * 3840)
    lseq = []
    def issue_stage(i):
        sl = (i & 3) * SLOT
        a(f"s_add_u32 m0, s{s_m0x}, {sl}")
        a(f"s_lshl_b32 s{s_xo}, s{s_k}, 7")
        for ii in range(4):
            a(f"buffer_load_dwordx4 v{gx[ii]}, {srd(SX)}, s{s_xo} offen offset:{1024*ii} lds")
        a(f"s_mul_i32 s{s_wo}, s{s_k}, {64*3840}")
        a(f"s_add_u32 m0, s{s_m0w}, {sl}")
        a(f"s_add_u32 s{s_wo}, s{s_wo}, s{s_loc}")
        for ii in range(4):
            a(f"buffer_load_dwordx4 v{gw[ii]}, {srd(SW)}, s{s_wo} offen offset:{1024*ii} lds")
        a(f"s_add_u32 m0, s{s_m0w}, {sl+4096}")
        a(f"s_add_u32 s{s_k}, s{s_k}, 1")
        a(f"buffer_load_dwordx4 v{gw[4]}, {srd(SW)}, s{s_wo} offen lds")
        if G.rot:
            a(f"s_cmp_eq_u32 s{s_k}, 10")
            a(f"s_cselect_b32 s{s_k}, 0, s{s_k}")
        lseq.extend([("st", i)] * 9)
    gbase = [2 * SLOT + g * 5120 for g in range(7)] + [SPARE] + [3 * SLOT + g * 5120 for g in range(7)] + [SPARE + 5120] + [g * 5120 for g in range(4)]
    def round_ins(R):
        o = []
        x = f"s_add_u32 s{s_wo}, s{s_st}, {R*4*32*3840}"
        if G.rot:
            x += f"\ns_cmp_ge_u32 s{s_wo}, {640*3840}\ns_cselect_b32 s{s_b}, {640*3840}, 0\ns_sub_u32 s{s_wo}, s{s_wo}, s{s_b}"
        gb = gbase[4 * R:4 * R + 4]
        assert gb[1] == gb[0] + 5120 and gb[2] == gb[0] + 10240
        x += f"\ns_add_u32 s{s_a}, s{s_m0w}, {(gb[0]-16384) & 0xffffffff}"
        if gb[3] != gb[0] + 15360:
            x += f"\ns_cmp_eq_u32 s{s_g}, 3\ns_cselect_b32 s{s_a}, {gb[3]}, s{s_a}"
        x += f"\ns_mov_b32 m0, s{s_a}\ns_add_u32 s{s_a}, s{s_a}, 4096"
        o.append(x)
        for ii in range(4):
            o.append(f"buffer_load_dwordx4 v{gq[ii]}, {srd(SW)}, s{s_wo} offen offset:{1024*ii} lds")
        o.append(f"s_mov_b32 m0, s{s_a}\ns_nop 0\nbuffer_load_dwordx4 v{gq[4]}, {srd(SW)}, s{s_wo} offen lds")
        lseq.extend([("R", R)] * 5)
        return o
    def issue_item(i):
        if i < 10: issue_stage(i)
        elif i < 15:
            for x in round_ins(i - 10): a(x)
    def lwait(key):
        return len(lseq) - 1 - max(i for i, x in enumerate(lseq) if x == key)
    stamp(a, 11)
    issue_stage(0)
    stamp(a, 12)
    epoch_load()
    a(f"s_lshl_b32 s{s_b}, s{s_g}, 12")
    x_addrs(a, xa2, s_b)
    for i in range(1, G.pro): issue_stage(i)
    stamp(a, 13)
    epoch_fin()
    a(f"s_waitcnt vmcnt({lwait(('st',0))})")
    a("s_barrier")
    stamp(a, 1)
    for i in range(G.pro, G.la): issue_stage(i)
    xoff = 0
    for st in range(10):
        sl = (st & 3) * SLOT
        want = 0 if sl < 2 * SLOT else 2 * SLOT
        if want != xoff:
            for r in xa2:
                a(f"v_add_u32 v{r}, {want-xoff}, v{r}" if want > xoff else f"v_subrev_u32 v{r}, {xoff-want}, v{r}")
            xoff = want
        for ks in range(2):
            for ii in range(2):
                a(f"ds_read_b128 {v(XF+16*st+8*ks+4*ii,4)}, v{xa2[ks]} offset:{sl-xoff+2048*ii}")
        if st == 0:
            a(f"s_movk_i32 s{s_c}, 3840")
            for i in range(5):
                grp_src(a, gq[i], rows[i], rows[i] + 1, s_c)
                if i & 3: a(f"v_subrev_u32 v{gq[i]}, {1024*i}, v{gq[i]}")
            a(f"s_lshl1_add_u32 s{s_st}, s{s_vo}, s{s_g}")
            a(f"s_mul_i32 s{s_st}, s{s_st}, {32*3840}")
            a(f"s_mul_i32 s{s_a}, s{s_n}, 160")
            a(f"s_add_u32 s{s_st}, s{s_st}, s{s_a}")
        if st == 1: tr_addrs(a, wa2, True, True, None, 0)
        if st == 2:
            att_addrs()
        if st == 4 and G.warm:
            a("s_mov_b64 exec, 0")
            for c in range(3):
                a(f"s_cmp_eq_u32 s{s_g}, {c}")
                a(f"s_cbranch_scc1 Lpad_{c}_0")
            a("s_branch Lpad_3_0")
            a(".PADRET")
            a("s_mov_b64 exec, -1")
        key = ("st", st + 1) if st < 9 else ("R", 0)
        a(f"s_waitcnt vmcnt({lwait(key)}) lgkmcnt(0)")
        a("s_barrier")
        if st < 9: issue_item(st + G.la)
    stamp(a, 2)
    pre = {}
    nxt = G.la - 1
    for R in range(5):
        ins = round_ins(nxt) if nxt < 5 else []
        nxt += 1
        if ins:
            pre[("x", 4 * R)] = ins[0:2]
            pre[("x", 4 * R + 1)] = ins[2:4]
            pre[("x", 4 * R + 2)] = ins[4:]
        if R < 4:
            pre[("h", 4 * R + 3)] = [f"s_waitcnt vmcnt({lwait(('R', R + 1))})", "s_barrier"]
    qa, qb, md = 0, 1, 2
    half = [f"v_lshrrev_b32 v{qa}, 4, v{lane}", f"v_mul_u32_u24 v{qa}, 5120, v{qa}", f"s_mul_i32 s{s_b}, s{s_g}, 1280",
            f"s_add_u32 s{s_b}, s{s_b}, {QAREA}", f"v_add_u32 v{qa}, s{s_b}, v{qa}"]
    pre[("x", 16)] = half
    pre[("x", 17)] = [f"v_and_b32 v{md}, 15, v{lane}", f"v_lshl_add_u32 v{qb}, v{md}, 3, v{qa}", f"v_lshl_add_u32 v{qa}, v{md}, 4, v{qa}",
                      f"v_mov_b32 v{md}, {MODE_LDS}", f"s_mov_b32 s{s_a}, {QSCALE:#x}\ns_mov_b32 s{s_b}, {QSCALE:#x}"]
    pre[("x", 19)] = [f"ds_read_b32 v{md}, v{md}"]
    small_gemm(a, XF, ACC2, W2, wa2, gbase, pre)
    stamp(a, 3)
    a("s_nop 4")
    assert s_a % 2 == 0 and s_b == s_a + 1
    for ii in range(2):
        r = ACC2 + 20 * ii
        pad_hop(a, 0)
        for e in range(10):
            a(f"v_pk_mul_f32 {v(r+2*e,2)}, {v(r+2*e,2)}, s[{s_a}:{s_b}]")
        for e in range(10):
            a(f"v_cvt_pk_bf16_f32 v{r+e}, v{r+2*e}, v{r+2*e+1}")
        a(f"ds_write_b128 v{qa}, {v(r,4)} offset:{256*ii}")
        a(f"ds_write_b128 v{qa}, {v(r+4,4)} offset:{256*ii+512}")
        a(f"ds_write_b64 v{qb}, {v(r+8,2)} offset:{128*ii+1024}")
    a("s_waitcnt lgkmcnt(0)")
    a(f"v_readfirstlane_b32 s{s_loc}, v{md}")
    a("s_barrier")
    a(f"s_and_b32 s{s_loc}, s{s_loc}, 1")
    a(f"s_lshl_b32 s{s_st}, s{s_loc}, 2")
    stamp(a, 4)
    pad_hop(a, 1)
    kv_first(True)
    pad_hop(a, 1)
    zero_acc()
    wo_scalars()

    a(f"{Latt}:")
    setT(247)
    a(f"s_mul_i32 s{s_b}, s{s_g}, 5120")
    a(f"s_add_u32 s{s_b}, s{s_b}, {QAREA}")
    a(f"v_add_u32 v{T[0]}, s{s_b}, v{ka}")
    a(f"v_and_b32 v{T[1]}, 31, v{lane}")
    a(f"v_lshl_add_u32 v{T[1]}, v{T[1]}, 3, s{s_b}")
    for q in range(4):
        a(f"v_mov_b64 {v(Q3[0][q],2)}, 0")
        a(f"v_mov_b64 {v(Q3[1][q],2)}, 0")
    for q in range(4):
        a(f"ds_read_b128 {v(Q1[q],4)}, v{T[0]} offset:{1280*q}")
    for h in range(2):
        a(f"s_mov_b32 exec_lo, {-1 if h == 0 else 0}")
        a(f"s_mov_b32 exec_hi, {0 if h == 0 else -1}")
        for q in range(4):
            a(f"ds_read_b64 {v(Q3[h][q],2)}, v{T[1]} offset:{1280*q+1024}")
    a("s_mov_b64 exec, -1")
    pad_hop(a, 1)
    a(f"s_mov_b32 s{s_it}, 0")

    def qk1(sb, q, t): return f"v_mfma_f32_32x32x16_bf16 {v(S[sb],16)}, {v(K1[t],4)}, {v(Q1[q],4)}, 0"
    def qk2(sb, q, t): return f"v_mfma_f32_32x32x8_bf16 {v(S[sb],16)}, {v(K3[t>>1],2)}, {v(Q3[t&1][q],2)}, {v(S[sb],16)}"
    def pv(pb, q, t, h): return f"v_mfma_f32_32x32x16_bf16 {v(O[q],16)}, {v(V[t]+4*h,4)}, {v(P[pb]+4*h,4)}, {v(O[q],16)}"
    def ex(q, r): return f"v_exp_f32 v{S[q]+r}, v{S[q]+r}"
    def cv(q, r): return f"v_cvt_pk_bf16_f32 v{P[q]+r//2}, v{S[q]+r}, v{S[q]+r+1}"
    wo_dma = [f"s_min_u32 s{s_c}, s{s_m0w}, 0x20000", f"s_add_u32 m0, s{s_c}, {WOBASE}", f"s_add_u32 s{s_m0w}, s{s_m0w}, 5120",
              f"buffer_load_dwordx4 v{gwo}, {srd(SW)}, s{s_wo} offen lds", f"s_add_u32 s{s_wo}, s{s_wo}, {32*1280}"]
    plan = {}
    for tt in range(4):
        pb = (tt - 1) % 4
        plan[(tt, 1)] = ([ld_v(pb)], [("V", pb)] * 2)
        if G.v3 and pb == 3: plan[(tt, 1)] = ([ld_v(pb, 22), f"s_mov_b64 s[22:23], s[{s_vm}:{s_vm+1}]"], [("V", pb)] * 2)
        if tt & 1:
            plan[(tt, 3)] = ([ld_k1(tt), ld_k3(tt >> 1)], [("K1", tt), ("K3", tt >> 1)])
        else:
            plan[(tt, 3)] = ([ld_k1(tt)], [("K1", tt)])
            plan[(tt, 2)] = (adv_pair(), [])
        if tt > 0:
            plan[(tt, 0)] = (wo_dma, [("WO",)])
    order = [(tt, q) for tt in range(4) for q in range(4)]
    names = []; pos = {}
    for rep in range(2):
        for key in order:
            if rep == 1: pos[key] = len(names)
            names += plan.get(key, ([], []))[1]
    def need(tt):
        nt = (tt + 1) % 4
        return [("K1", nt), ("V", nt), ("K3", nt >> 1)]
    n0 = list(first); waits = {}
    for key in order:
        if key[1] == 3:
            p = pos[key]
            w1 = p - 1 - max(max(i for i in range(p) if names[i] == k) for k in need(key[0]))
            w2 = len(n0) - 1 - max(max(i for i in range(len(n0)) if n0[i] == k) for k in need(key[0]))
            waits[key[0]] = min(w1, w2)
        n0 += plan.get(key, ([], []))[1]
    a(f"s_waitcnt vmcnt({len(first)-4}) lgkmcnt(0)")
    stamp(a, 5)
    a(qk1(0, 0, 0)); a(qk2(0, 0, 0))
    a("s_setprio 3")
    a("s_nop 7")
    a("s_nop 3")
    L = a.label("al")
    a(".p2align 6")
    a(f"{L}:")
    hooks = {G.hst: (0, a.label("hA"), a.label("hAb")),
             G.hsam: (3, a.label("hB"), a.label("hBb")), (0, 2): (4, a.label("hC"), a.label("hCb"))}
    cum = [sum(G.lens[:i]) for i in range(4)]
    step = 0
    for tt in range(4):
        for q in range(4):
            c = q & 1; o = 1 - c
            nq, nt = (q + 1, tt) if q < 3 else (0, (tt + 1) % 4)
            pq, pt = (q - 1, tt) if q > 0 else (3, (tt - 1) % 4)
            extra = list(plan.get((tt, q), ([], []))[0])
            if q & 1: pad_hop(a, 1)
            if (tt, q) in hooks:
                bit, lo, lb = hooks[(tt, q)]
                a(f"s_bitcmp1_b32 s{s_st}, {bit}")
                a(f"s_cbranch_scc1 {lo}")
                a(f"{lb}:")
            if q == 3: a(f"s_waitcnt vmcnt({waits[tt]})")
            if (tt, q) == (2, 1): extra += [f"s_lshl_b32 s{s_st}, s{s_st}, 1"]
            if (tt, q) == (3, 2): extra += [f"s_add_u32 s{s_it}, s{s_it}, 1", f"s_cmp_lt_u32 s{s_it}, {G.iters}"]
            ms = [qk1(o, nq, nt), qk2(o, nq, nt), pv(o, pq, pt, 0), pv(o, pq, pt, 1)]
            for j in range(4):
                a(ms[j])
                if j: a(cv(c, 4 * j - 2))
                for e in range(3):
                    a(ex(c, 4 * j + e))
                    if extra: a(extra.pop(0))
                if j < 3:
                    a(cv(c, 4 * j)); a(ex(c, 4 * j + 3))
                else:
                    a(ex(c, 15)); a(cv(c, 12))
            n = (step + 1) % sum(G.lens)
            if n in cum: a(f"s_setprio {3 - cum.index(n)}")
            a(cv(c, 14))
            step += 1
    a(f"s_cbranch_scc1 {L}")
    a(f"s_mul_i32 s{s_a}, s{s_wave}, 6144")
    a(pv(1, 3, 3, 0)); a(pv(1, 3, 3, 1))
    a("s_setprio 0")
    Lk1 = a.label("k1"); Lj = a.label("kj"); Lslow = a.label("slow"); Lst = a.label("store")
    own, oth, oa1, oa2 = 253, 254, 238, 239
    a(f"v_add_u32 v{own}, s{s_a}, v{ka}")
    a(f"s_xor_b32 s{s_a}, s{s_wave}, 4")
    a(f"s_mul_i32 s{s_a}, s{s_a}, 6144")
    a(f"v_add_u32 v{oth}, s{s_a}, v{ka}")
    stamp(a, 6)
    pad_hop(a, 2)
    a(f"s_lshl4_add_u32 s{s_xo}, s{s_blk}, s{s_m}")
    a(f"s_lshl1_add_u32 s{s_a}, s{s_xo}, s{s_kh}")
    a(f"s_mul_i32 s{s_a}, s{s_a}, {4*20480}")
    a(f"s_add_u32 s{s_a}, s{s_a}, {OBASE}")
    make_srd(a, SO, 32, f"s{s_a}", 4 * 20480)
    a(f"s_cmp_eq_u32 s{s_kh}, 0")
    a(f"s_cbranch_scc0 {Lk1}")
    for i in range(2):
        for gq_ in range(3):
            a(f"ds_write_b128 v{own}, {v(O[2+i]+4*gq_,4)} offset:{(i*3+gq_)*1024}")
    a(f"s_branch {Lj}")
    a(f"{Lk1}:")
    for i in range(2):
        for gq_ in range(3):
            a(f"ds_write_b128 v{own}, {v(O[i]+4*gq_,4)} offset:{(i*3+gq_)*1024}")
    a("s_nop 1")
    for i in range(2):
        for r in range(0, 12, 2):
            a(f"v_mov_b64 {v(O[i]+r,2)}, {v(O[2+i]+r,2)}")
    a(f"{Lj}:")
    pad_hop(a, 2)
    a(f"s_lshl2_add_u32 s{s_vo}, s{s_n}, s{s_g}")
    a(f"s_mul_i32 s{s_b}, s{s_vo}, 5")
    a(f"s_add_u32 s{s_b}, s{s_b}, 1")
    a(f"s_lshr_b32 s{s_b}, s{s_b}, 1")
    a(f"s_lshl_b32 s{s_b}, s{s_b}, 8")
    a(f"s_movk_i32 s{s_a}, 512")
    a(f"s_and_b32 s{s_c}, s{s_g}, 1")
    a(f"s_cselect_b32 s{s_c}, {(-256+8) & 0xffffffff}, s{s_a}")
    a(f"s_add_u32 s{s_c}, s{s_c}, s{s_b}")
    a(f"v_bfe_u32 v{T[2]}, v{lane}, 4, 1")
    a(f"v_mul_u32_u24 v{T[2]}, 20480, v{T[2]}")
    a(f"v_and_b32 v{T[3]}, 15, v{lane}")
    a(f"v_lshl_add_u32 v{T[2]}, v{T[3]}, 4, v{T[2]}")
    a(f"v_lshrrev_b32 v{T[4]}, 5, v{lane}")
    a(f"v_lshl_add_u32 v{T[3]}, v{T[4]}, 20, v{T[2]}")
    a(f"v_lshl_add_u32 v{T[2]}, v{T[4]}, 8, v{T[2]}")
    a(f"v_add_u32 v{oa1}, s{s_b}, v{T[2]}")
    a(f"v_add_u32 v{oa2}, s{s_c}, v{T[3]}")
    a("s_waitcnt vmcnt(0) lgkmcnt(0)")
    a("s_barrier")
    for i in range(2):
        for gq_ in (2, 0, 1):
            a(f"ds_read_b128 {v(O[2+i]+4*gq_,4)}, v{oth} offset:{(i*3+gq_)*1024}")
    a(f"s_cmp_eq_u32 s{s_loc}, 0")
    a(f"s_cselect_b32 s{s_k}, {FSH}, 2")
    a(f"s_mov_b32 s{s_a}, {F2LOFF}")
    a(f"s_cselect_b32 s{s_a}, {F2OFF}, s{s_a}")
    a(f"s_lshl_b32 s{s_xo}, s{s_xo}, 6")
    a(f"s_lshl_b32 s{s_xo}, s{s_xo}, s{s_k}")
    a(f"s_add_u32 s{s_xo}, s{s_xo}, s{s_a}")
    a(f"s_lshl_b32 s{s_a}, s{s_kh}, 5")
    a(f"s_add_u32 s{s_vo}, s{s_vo}, s{s_a}")
    a(f"s_lshl_b32 s{s_vo}, s{s_vo}, s{s_k}")
    a(f"s_add_u32 s{s_vo}, s{s_vo}, s{s_xo}")
    pad_hop(a, 2)
    flag_regs(a)
    a(f"s_mov_b32 s{s_a}, 0x2b800000")
    a(f"s_mov_b32 s{s_b}, 0x5d800000")
    a("s_waitcnt lgkmcnt(0)")
    for i in range(2):
        for r in (8, 10, 0, 2, 4, 6):
            a(f"v_pk_add_f32 {v(O[i]+r,2)}, {v(O[i]+r,2)}, {v(O[2+i]+r,2)}")
    def bcast_l():
        for i in range(2):
            a(f"v_mov_b32 v{O[i]+12}, v{O[i]+8}")
            a(f"v_mov_b32 v{O[i]+13}, v{O[i]+8}")
        a("s_nop 1")
        for i in range(2):
            a(f"v_permlane32_swap_b32 v{O[i]+13}, v{O[i]+12}")
    bcast_l()
    pad_hop(a, 2)
    for q in range(2):
        a(f"v_pk_mul_f32 {v(O[q]+14,2)}, {v(O[q],2)}, 0 op_sel_hi:[1,0]")
        for r in range(2, 12, 2):
            a(f"v_pk_fma_f32 {v(O[q]+14,2)}, {v(O[q]+r,2)}, 0, {v(O[q]+14,2)} op_sel_hi:[1,0,1]")
    a(f"v_cmp_o_f32 vcc, v{O[0]+14}, v{O[0]+15}")
    a(f"v_cmp_o_f32 s[16:17], v{O[1]+14}, v{O[1]+15}")
    a(f"v_min_f32 v{T[0]}, v{O[0]+12}, v{O[1]+12}")
    a(f"v_max_f32 v{T[1]}, v{O[0]+12}, v{O[1]+12}")
    a(f"s_and_b64 vcc, vcc, s[16:17]")
    a(f"v_cmp_le_f32 s[16:17], s{s_a}, v{T[0]}")
    a(f"v_cmp_ge_f32 s[18:19], s{s_b}, v{T[1]}")
    a(f"s_and_b64 vcc, vcc, s[16:17]")
    a(f"s_and_b64 vcc, vcc, s[18:19]")
    a("s_cmp_eq_u64 vcc, -1")
    a(f"s_cbranch_scc0 {Lslow}")
    a(f"{Lst}:")
    pad_hop(a, 2)
    a(f"v_rcp_f32 v{O[0]+12}, v{O[0]+12}")
    a(f"v_rcp_f32 v{O[1]+12}, v{O[1]+12}")
    a(f"s_mov_b32 s{s_b}, {2*20480}")
    for q in range(2):
        for r in range(0, 12, 2):
            a(f"v_pk_mul_f32 {v(O[q]+r,2)}, {v(O[q]+r,2)}, {v(O[q]+12,2)} op_sel_hi:[1,0]")
        for e in range(6):
            a(f"v_cvt_pk_bf16_f32 v{O[q]+e}, v{O[q]+2*e}, v{O[q]+2*e+1}")
    Log = a.label("og"); Loj = a.label("oj"); Lo2 = a.label("o2"); Lo3 = a.label("o3")
    a(f"s_cmp_eq_u32 s{s_loc}, 0")
    a(f"s_cbranch_scc1 {Log}")
    for fl in ("", "sc1"):
        for q in range(2):
            so = "0" if q == 0 else f"s{s_b}"
            a(f"buffer_store_dwordx4 {v(O[q],4)}, v{oa1}, {srd(SO)}, {so} offen {fl}")
            a(f"buffer_store_dwordx2 {v(O[q]+4,2)}, v{oa2}, {srd(SO)}, {so} offen {fl}")
        if fl == "":
            a(f"s_branch {Loj}")
            a(f"{Log}:")
    a(f"{Loj}:")
    pad_hop(a, 2)
    wa4 = [240, 241, 242, 243, 244]; ol = [245, 246]; pf = 238
    a(f"v_add_u32 v{ol[1]}, 20480, v{ka}")
    a(f"v_mov_b32 v{ol[0]}, v{ka}")
    a(f"s_mul_i32 s{s_c}, s{s_kh}, {10*5120}")
    a(f"s_add_u32 s{s_c}, s{s_c}, {WOBASE}")
    tr_addrs(a, wa4, True, True, None, f"s{s_c}")
    a(f"s_lshl4_add_u32 s{s_a}, s{s_blk}, s{s_m}")
    a(f"s_lshl2_add_u32 s{s_a}, s{s_a}, s{s_g}")
    a(f"s_mul_i32 s{s_a}, s{s_a}, {2*20480}")
    a(f"s_mul_i32 s{s_b}, s{s_kh}, 10240")
    a(f"s_add_u32 s{s_a}, s{s_a}, s{s_b}")
    a(f"s_add_u32 s{s_a}, s{s_a}, {OBASE}")
    pad_hop(a, 2)
    make_srd(a, SKV, 32, f"s{s_a}", 20480 + 10240)
    a(f"s_and_b32 s{s_a}, s{s_g}, 2")
    a(f"s_add_u32 s{s_a}, s{s_a}, s{s_kh}")
    a(f"s_lshl_b32 s{s_a}, s{s_a}, 4")
    a(f"s_lshl_b32 s{s_a}, s{s_a}, s{s_k}")
    a(f"s_add_u32 s{s_xo}, s{s_xo}, s{s_a}")
    a(f"s_cmp_eq_u32 s{s_loc}, 0")
    a("s_waitcnt vmcnt(0)")
    a(f"s_cbranch_scc1 {Lo2}")
    flag_store(a, s_vo, True)
    a(f"s_branch {Lo3}")
    a(f"{Lo2}:")
    flag_store(a, s_vo, False)
    a(f"{Lo3}:")
    pad_hop(a, 2)
    stamp(a, 7)
    a(f"v_and_b32 v{pf}, 15, v{lane}")
    a(f"v_lshlrev_b32 v{pf}, s{s_k}, v{pf}")
    a(f"s_movk_i32 s{s_a}, 4096")
    a(f"s_movk_i32 s{s_b}, 8192")
    poll(a, pf, f"s{s_xo}", T[0])
    stamp(a, 8)
    def ld_o(g, ii):
        so = ["0", f"s{s_a}", f"s{s_b}"][g // 4]
        return f"buffer_load_dwordx4 {v(XF+8*g+4*ii,4)}, v{ol[ii]}, {srd(SKV)}, {so} offen offset:{1024*(g%4)} sc1"
    for g in range(G.oa):
        a(ld_o(g, 0)); a(ld_o(g, 1))
    pre = {("x", g): [ld_o(g + G.oa, 0), ld_o(g + G.oa, 1)] for g in range(10 - G.oa)}
    oc = [100, 101, 102]; tw = 103
    for i in range(3):
        pre.setdefault(("x", 7 + i), [])
        pre[("x", 7 + i)] += [f"v_add_u32 v{oc[i]}, {64*i}, v{lane}\nv_mul_u32_u24 v{T[0]}, 6554, v{oc[i]}", f"v_lshrrev_b32 v{T[0]}, 16, v{T[0]}\nv_lshlrev_b32 v{oc[i]}, 4, v{oc[i]}",
                              f"v_mul_u32_u24 v{T[0]}, {2560-160}, v{T[0]}\nv_add_u32 v{oc[i]}, v{oc[i]}, v{T[0]}"]
    small_gemm(a, XF, ACC2, W2, wa4, [5120 * g for g in range(10)], pre,
               vmw=lambda g: 2 * (min(10, g + G.oa) - g - 1), chain=3)
    stamp(a, 9)
    pad_hop(a, 3)
    Le1 = a.label("e1"); Le2 = a.label("e2")
    a(f"v_and_b32 v{T[0]}, 15, v{lane}")
    a(f"v_lshrrev_b32 v{T[1]}, 4, v{lane}")
    a(f"v_mul_u32_u24 v{T[0]}, 160, v{T[0]}")
    a(f"v_mad_u32_u24 v{T[0]}, v{T[1]}, 40, v{T[0]}")
    a(f"s_mul_i32 s{s_a}, s{s_wave}, 6144")
    a(f"v_add_u32 v{tw}, s{s_a}, v{T[0]}")
    a(f"s_cmp_eq_u32 s{s_kh}, 0")
    a(f"s_cbranch_scc0 {Le1}")
    for j in range(5): a(f"ds_write_b128 v{oth}, {v(ACC2+20+4*j,4)} offset:{1024*j}")
    a(f"s_branch {Le2}")
    a(f"{Le1}:")
    for j in range(5): a(f"ds_write_b128 v{oth}, {v(ACC2+4*j,4)} offset:{1024*j}")
    a("s_nop 1")
    for r in range(0, 20, 2): a(f"v_mov_b64 {v(ACC2+r,2)}, {v(ACC2+20+r,2)}")
    a(f"{Le2}:")
    pad_hop(a, 3)
    a(f"s_lshl2_add_u32 s{s_a}, s{s_m}, s{s_g}")
    a(f"s_lshl1_add_u32 s{s_a}, s{s_a}, s{s_kh}")
    a(f"s_mul_i32 s{s_a}, s{s_a}, {16*2560}")
    a(f"s_mul_i32 s{s_b}, s{s_blk}, 1280")
    a(f"s_add_u32 s{s_a}, s{s_a}, s{s_b}")
    a(f"s_mul_i32 s{s_b}, s{s_n}, 160")
    a(f"s_add_u32 s{s_a}, s{s_a}, s{s_b}")
    make_srd(a, SO, 28, f"s{s_a}", 15 * 2560 + 160)
    a("s_waitcnt lgkmcnt(0)")
    a("s_barrier")
    for j in range(5): a(f"ds_read_b128 {v(ACC2+20+4*j,4)}, v{own} offset:{1024*j}")
    for j in range(5):
        a(f"s_waitcnt lgkmcnt({4-j})")
        r = ACC2 + 4 * j
        a(f"v_pk_add_f32 {v(r,2)}, {v(r,2)}, {v(r+20,2)}")
        a(f"v_pk_add_f32 {v(r+2,2)}, {v(r+2,2)}, {v(r+22,2)}")
        a(f"v_cvt_pk_bf16_f32 v{r}, v{r}, v{r+1}")
        a(f"v_cvt_pk_bf16_f32 v{r+1}, v{r+2}, v{r+3}")
    pad_hop(a, 3)
    for j in range(5): a(f"ds_write_b64 v{tw}, {v(ACC2+4*j,2)} offset:{8*j}")
    a("s_waitcnt lgkmcnt(0)")
    for i in range(3): a(f"ds_read_b128 {v(ACC2+20+4*i,4)}, v{own} offset:{1024*i}")
    for i in range(3):
        a(f"s_waitcnt lgkmcnt({2-i})")
        a(f"buffer_store_dwordx4 {v(ACC2+20+4*i,4)}, v{oc[i]}, {srd(SO)}, 0 offen {G.ost}")
    Lfin = a.label("fin")
    a(f"s_or_b32 s{s_a}, s{s_m}, s{s_n}")
    a(f"s_or_b32 s{s_a}, s{s_a}, s{s_wave}")
    a(f"s_cbranch_scc1 {Lfin}")
    a(f"s_lshl_b32 s{s_b}, s{s_blk}, 7")
    a(f"s_add_u32 s{s_b}, s{s_b}, {EOFF}")
    flag_store(a, s_b, False)
    a(f"{Lfin}:")
    dump_stamps(a, 10)
    a(f"{Lend}:")
    a("s_endpgm")

    a(f"{Lcons}:")
    setT(247)
    ACC = 0
    X = [[80 + 16 * b + 4 * i for i in range(4)] for b in range(2)]
    W = [[112 + 20 * b + 4 * j for j in range(5)] for b in range(2)]
    xa = [152, 153]; wa = [154, 155, 156, 157, 158]; xt, xv = 159, 160
    s_wm, s_wn = s_xo, s_wo
    a("s_getpc_b64 s[4:5]")
    a(f"Lpc_{name}:")
    a(f"s_sub_u32 s4, s4, Lpc_{name}-{name}")
    a("s_subb_u32 s5, s5, 0")
    a(f"s_mov_b32 s6, Lcode_end-{name}")
    a("s_mov_b32 s7, 0x00020000")
    a("v_lshlrev_b32 v1, 7, v0")
    a(f"buffer_load_dword v{xt}, v1, s[4:7], 0 offen")
    a(f"s_and_b32 s{s_wm}, s{s_wave}, 1")
    a(f"s_lshr_b32 s{s_wn}, s{s_wave}, 1")
    a(f"s_lshl_b32 s{s_b}, s{s_wm}, 13")
    x_addrs(a, xa, s_b)
    for r in range(0, 80, 2): a(f"v_mov_b64 {v(ACC+r,2)}, 0")
    common_ptrs()
    epoch_load()
    att_addrs()
    a(f"s_and_b32 s{s_a}, s{s_n}, 3")
    a(f"s_lshl2_add_u32 s{s_a}, s{s_blk}, s{s_a}")
    a(f"s_lshl1_add_u32 s{s_a}, s{s_a}, s{s_wn}")
    a(f"s_mul_i32 s{s_a}, s{s_a}, {4*HS}")
    a(f"s_lshl1_add_u32 s{s_b}, s{s_m}, s{s_wm}")
    a(f"s_mul_i32 s{s_b}, s{s_b}, {PS}")
    a(f"s_add_u32 s{s_a}, s{s_a}, s{s_b}")
    make_srd(a, SO, 32, f"s{s_a}", 3 * HS + PS)
    a(f"s_lshl3_add_u32 s{s_a}, s{s_blk}, s{s_n}")
    a(f"s_lshl1_add_u32 s{s_a}, s{s_a}, s{s_wn}")
    a(f"s_lshl4_add_u32 s{s_a}, s{s_a}, s{s_m}")
    a(f"s_lshl1_add_u32 s{s_vo}, s{s_a}, s{s_wm}")
    a(f"s_lshr_b32 s{s_k}, s{s_vo}, 3")
    a(f"s_lshl_b32 s{s_k}, s{s_k}, 7")
    a(f"s_and_b32 s{s_a}, s{s_vo}, 7")
    a(f"s_lshl2_add_u32 s{s_k}, s{s_a}, s{s_k}")
    a(f"s_add_u32 s{s_k}, s{s_k}, {FLOFF}")
    a(f"s_and_b32 s{s_vo}, s2, 7")
    a(f"s_lshl_b32 s{s_vo}, s{s_vo}, 7")
    a(f"s_add_u32 s{s_vo}, s{s_vo}, {GFOFF}")
    epoch_fin()
    a(f"s_getreg_b32 s{s_loc}, hwreg(HW_REG_XCC_ID)")
    a(f"s_and_b32 s{s_loc}, s{s_loc}, 15")
    a(f"s_add_u32 s{s_loc}, s{s_loc}, s{s_tag}")
    a(f"s_and_b32 s{s_a}, s2, 7")
    a(f"s_lshl_b32 s{s_m0w}, s{s_a}, 12")
    a(f"s_add_u32 s{s_m0w}, s{s_m0w}, {XOFF}")
    a(f"s_lshr_b32 s{s_a}, s2, 3")
    a(f"s_lshl_b32 s{s_a}, s{s_a}, 7")
    a(f"s_add_u32 s{s_b}, s{s_a}, s{s_m0w}")
    Lnp = a.label("nopub")
    a(f"s_cmp_lg_u32 s{s_wave}, 0")
    a(f"s_cbranch_scc1 {Lnp}")
    flag_regs(a, s_loc)
    flag_store(a, s_b, False)
    a(f"{Lnp}:")
    a(f"v_and_b32 v{xv}, 31, v{lane}")
    a(f"v_lshlrev_b32 v{xv}, 7, v{xv}")
    a(f"s_mov_b32 s{s_it}, 0")
    a(f"s_mov_b32 s{s_m0x}, {(-3*SLOT) & 0xffffffff}")
    a(f"s_cmp_ge_u32 s{s_n}, 4")
    a(f"s_cbranch_scc1 {Lv}")

    def p1_reads(ks, b):
        out = [f"ds_read_b128 {v(X[b][i],4)}, v{xa[ks]} offset:{2048*i}" for i in range(4)]
        for j in range(5):
            for t in range(2):
                out.append(f"ds_read_b64_tr_b16 {v(W[b][j]+2*t,2)}, v{wa[j]} offset:{ks*10240+1280*t}")
        return out
    st_code = {}
    Lcj = a.label("cj")
    def consumer(ktype):
        tr_addrs(a, wa, ktype, False, s_wn, 16384)
        if ktype:
            a(f"v_lshrrev_b32 v{T[0]}, 4, v{lane}")
            a(f"s_mov_b32 s{s_a}, {HS}")
            a(f"v_mul_lo_u32 v{T[0]}, v{T[0]}, s{s_a}")
            a(f"v_and_b32 v{T[1]}, 7, v{lane}")
            a(f"v_and_b32 v{T[2]}, 8, v{lane}")
            a(f"v_lshl_add_u32 v{T[1]}, v{T[2]}, 1, v{T[1]}")
            a(f"v_lshl_add_u32 v{sa[0]}, v{T[1]}, 4, v{T[0]}")
            a(f"v_lshl_add_u32 v{sa[1]}, v{T[1]}, 3, v{T[0]}")
        else:
            a(f"v_lshrrev_b32 v{T[0]}, 4, v{lane}")
            a(f"v_mul_u32_u24 v{T[0]}, 320, v{T[0]}")
            a(f"v_and_b32 v{T[1]}, 15, v{lane}")
            a(f"s_mov_b32 s{s_a}, {HS-320}")
            for j in range(5):
                a(f"v_add_u32 v{T[2]}, {16*j}, v{T[1]}")
                a(f"v_mul_u32_u24 v{T[3]}, 3277, v{T[2]}")
                a(f"v_lshrrev_b32 v{T[3]}, 16, v{T[3]}")
                a(f"v_lshl_add_u32 v{T[2]}, v{T[2]}, 4, v{T[0]}")
                a(f"v_mad_u32_u24 v{sa[j]}, v{T[3]}, s{s_a}, v{T[2]}")
        def mf(b):
            out = []
            for j in range(5):
                for i in range(4):
                    d = v(ACC + 4 * (5 * i + j), 4)
                    A, B = (W[b][j], X[b][i]) if ktype else (X[b][i], W[b][j])
                    out.append(f"v_mfma_f32_16x16x32_bf16 {d}, {v(A,4)}, {v(B,4)}, {d}")
            return out
        Lp = a.label("p1"); Ll = a.label("p1l")
        a("s_barrier")
        stamp(a, 1)
        for x in p1_reads(0, 0): a(x)
        a(f"{Lp}:")
        a("s_waitcnt lgkmcnt(8)")
        e = p1_reads(1, 1) + [f"s_add_u32 s{s_it}, s{s_it}, 1", f"s_and_b32 s{s_a}, s{s_it}, 3",
                              f"s_cselect_b32 s{s_a}, {SLOT}, s{s_m0x}", f"s_cmp_eq_u32 s{s_it}, 10"]
        for k, x in enumerate(mf(0)):
            if k == 4: a("s_waitcnt lgkmcnt(4)")
            a(x)
            if e: a(e.pop(0))
        a("s_waitcnt lgkmcnt(8)")
        m1 = mf(1)
        adds = [f"v_add_u32 v{r}, s{s_a}, v{r}" for r in xa + wa]
        for k in range(4):
            a(m1[k])
            for x in adds[2 * k:2 * k + 2]: a(x)
        a("s_waitcnt lgkmcnt(0)")
        a("s_barrier")
        a(f"s_cbranch_scc1 {Ll}")
        e = p1_reads(0, 0)
        for x in m1[4:]:
            a(x)
            if e: a(e.pop(0))
        a(f"s_cmp_lg_u32 s{s_it}, 7")
        a(f"s_cbranch_scc1 {Lp}")
        a(f"buffer_load_dword v{xt}, v{xv}, {srd(SF)}, s{s_m0w} offen sc1")
        a(f"s_branch {Lp}")
        a(f"{Ll}:")
        for x in m1[4:]: a(x)
        Lt = a.label("xt"); Ltd = a.label("xtd")
        a(f"s_mov_b32 s{s_c}, {SPIN}")
        a(f"{Lt}:")
        a("s_waitcnt vmcnt(0)")
        a(f"v_subrev_u32 v{T[0]}, s{s_tag}, v{xt}")
        a(f"v_cmp_lt_u32 vcc, 15, v{T[0]}")
        a(f"s_cbranch_vccz {Ltd}")
        a(f"s_sub_u32 s{s_c}, s{s_c}, 1")
        a(f"s_cbranch_scc1 {Ltd}")
        a(f"s_sleep {G.sleep}")
        a(f"buffer_load_dword v{xt}, v{xv}, {srd(SF)}, s{s_m0w} offen sc1")
        a(f"s_branch {Lt}")
        a(f"{Ltd}:")
        a(f"v_cmp_ne_u32 vcc, s{s_loc}, v{xt}")
        a("s_cmp_eq_u64 vcc, 0")
        a(f"s_cselect_b32 s{s_loc}, {1 if G.local else 0}, 0")
        stamp(a, 2)
        def stores(fl, so, cvt):
            if ktype:
                for i in range(4):
                    r = KVD + 10 * i
                    if cvt:
                        for e in range(10): a(f"v_cvt_pk_bf16_f32 v{r+e}, v{ACC+20*i+2*e}, v{ACC+20*i+2*e+1}")
                    o = (i >> 1) * 1024 + (i & 1) * 128
                    a(f"buffer_store_dwordx4 {v(r,4)}, v{sa[0]}, {srd(SO)}, {so} offen offset:{o} {fl}")
                    a(f"buffer_store_dwordx4 {v(r+4,4)}, v{sa[0]}, {srd(SO)}, {so} offen offset:{o+512} {fl}")
                    a(f"buffer_store_dwordx2 {v(r+8,2)}, v{sa[1]}, {srd(SO)}, {so} offen offset:{2048+(i>>1)*256+(i&1)*64} {fl}")
            else:
                for j in range(5):
                    for i2 in range(2):
                        r = KVD + 8 * j + 4 * i2
                        if cvt:
                            r0 = ACC + 4 * (5 * (2 * i2) + j); r1 = ACC + 4 * (5 * (2 * i2 + 1) + j)
                            a(f"v_cvt_pk_bf16_f32 v{r}, v{r0}, v{r0+1}")
                            a(f"v_cvt_pk_bf16_f32 v{r+1}, v{r0+2}, v{r0+3}")
                            a(f"v_cvt_pk_bf16_f32 v{r+2}, v{r1}, v{r1+1}")
                            a(f"v_cvt_pk_bf16_f32 v{r+3}, v{r1+2}, v{r1+3}")
                        a(f"buffer_store_dwordx4 {v(r,4)}, v{sa[j]}, {srd(SO)}, {so} offen offset:{2560+1280*i2} {fl}")
        st_code[ktype] = stores
        Lg = a.label("glob")
        a(f"s_cmp_eq_u32 s{s_loc}, 0")
        a(f"s_cbranch_scc1 {Lg}")
        stores(G.lst, "0", True)
        a(f"s_branch {Lcj}")
        a(f"{Lg}:")
        stores("sc1", "0", True)
        if ktype: a(f"s_branch {Lcj}")
    consumer(True)
    a(f"{Lv}:")
    consumer(False)
    a(f"{Lcj}:")
    pad_hop(a, 2)
    a(f"v_mov_b32 v{T[0]}, {MODE_LDS}")
    a(f"v_mov_b32 v{T[1]}, s{s_loc}")
    a(f"ds_write_b32 v{T[0]}, v{T[1]}")
    pad_value()
    for b in range(4): pad(b)
    zero_acc()
    wo_scalars()
    flag_regs(a)
    Lg2 = a.label("g2")
    a(f"s_cmp_eq_u32 s{s_loc}, 0")
    a("s_waitcnt lgkmcnt(0)")
    a(f"s_cbranch_scc1 {Lg2}")
    pad_hop(a, 2)
    a(f"s_lshl4_add_u32 s{s_b}, s{s_blk}, s{s_n}")
    a(f"s_lshr_b32 s{s_a}, s{s_m}, 2")
    a(f"s_lshl2_add_u32 s{s_b}, s{s_b}, s{s_a}")
    a(f"s_lshl_b32 s{s_b}, s{s_b}, 7")
    a(f"s_add_u32 s{s_b}, s{s_b}, {FLOFF}")
    a(f"v_and_b32 v{T[0]}, 7, v{lane}")
    a(f"v_lshrrev_b32 v{T[1]}, 5, v{lane}")
    a(f"v_lshlrev_b32 v{T[0]}, 2, v{T[0]}")
    a(f"v_lshl_add_u32 v{T[0]}, v{T[1]}, 12, v{T[0]}")
    for i in range(G.nb1): a("s_barrier")
    a("s_waitcnt vmcnt(0)")
    flag_store(a, s_k, True)
    stamp(a, 3)
    for i in range(4 - G.nb1): a("s_barrier")
    poll(a, T[0], f"s{s_b}", T[1])
    stamp(a, 4)
    kv_first(False)
    a(f"s_lshr_b32 s{s_a}, s2, 3")
    a(f"s_or_b32 s{s_a}, s{s_a}, s{s_wave}")
    a(f"s_cselect_b32 s{s_st}, 4, 5")
    a("s_barrier")
    a(f"s_branch {Latt}")
    def group_wait():
        L = a.label("gp"); Ld = a.label("gpd")
        a(f"s_lshl_b32 s{s_b}, s{s_blk}, 6")
        a(f"s_lshr_b32 s{s_a}, s{s_m}, 2")
        a(f"s_add_u32 s{s_b}, s{s_b}, s{s_a}")
        a(f"s_lshl_b32 s{s_b}, s{s_b}, 7")
        a(f"s_add_u32 s{s_b}, s{s_b}, {FLOFF}")
        a(f"v_lshrrev_b32 v{T[0]}, 2, v{lane}")
        a(f"v_and_b32 v{T[1]}, 3, v{lane}")
        a(f"v_lshlrev_b32 v{T[1]}, 3, v{T[1]}")
        a(f"v_lshl_add_u32 v{T[0]}, v{T[0]}, 9, v{T[1]}")
        a(f"s_mov_b32 s{s_c}, {SPIN}")
        a(f"{L}:")
        a(f"buffer_load_dwordx2 {v(T[1],2)}, v{T[0]}, {srd(SF)}, s{s_b} offen sc1")
        a("s_waitcnt vmcnt(0)")
        a(f"v_cmp_ne_u32 vcc, s{s_tag}, v{T[1]}")
        a(f"v_cmp_ne_u32 s[16:17], s{s_tag}, v{T[2]}")
        a("s_or_b64 vcc, vcc, s[16:17]")
        a(f"s_cbranch_scc0 {Ld}")
        a(f"s_sub_u32 s{s_c}, s{s_c}, 1")
        a(f"s_cbranch_scc1 {Ld}")
        a(f"s_sleep {G.sleep}")
        a(f"s_branch {L}")
        a(f"{Ld}:")
    a(f"{Lg2}:")
    for i in range(4): a("s_barrier")
    a("s_waitcnt vmcnt(0)")
    a("s_mov_b64 exec, 1")
    a(f"buffer_store_dword v{T[5]}, v{T[4]}, {srd(SF)}, s{s_k} offen sc1")
    a("s_mov_b64 exec, -1")
    stamp(a, 3)
    Lne = a.label("ne")
    a(f"s_lshr_b32 s{s_a}, s2, 3")
    a(f"s_or_b32 s{s_a}, s{s_a}, s{s_wave}")
    a(f"s_cbranch_scc1 {Lne}")
    group_wait()
    flag_store(a, s_vo, False)
    a(f"{Lne}:")
    poll(a, gfv, f"s{s_fg}", T[1])
    stamp(a, 4)
    kv_first(False)
    a(f"s_mov_b32 s{s_st}, 0")
    a("s_barrier")
    a(f"s_branch {Latt}")

    a(f"{hooks[G.hst][1]}:")
    stamp(a, 11)
    a(f"s_bitset0_b32 s{s_st}, 0")
    group_wait()
    stamp(a, 12)
    if not G.nowb: a("buffer_wbl2 sc1")
    a("s_waitcnt vmcnt(0)")
    flag_regs(a)
    flag_store(a, s_vo, False)
    stamp(a, 13)
    a(f"s_branch {hooks[G.hst][2]}")
    a(f"{hooks[G.hsam][1]}:")
    a(f"buffer_load_dword v{gfd}, v{gfv}, {srd(SF)}, s{s_fg} offen sc1")
    a(f"s_mov_b32 s{s_st}, 16")
    a(f"s_branch {hooks[G.hsam][2]}")
    a(f"{hooks[(0,2)][1]}:")
    nafter = (pos[(0, 2)] - pos[G.hsam]) % (len(names) // 2)
    stamp(a, 14)
    a(f"s_waitcnt vmcnt({nafter})")
    stamp(a, 15)
    a(f"s_mov_b32 s{s_st}, 0")
    a(f"v_cmp_ne_u32 vcc, s{s_tag}, v{gfd}")
    a(f"s_cbranch_vccz {hooks[(0,2)][2]}")
    poll(a, gfv, f"s{s_fg}", gfd)
    stamp(a, 15)
    a(f"s_branch {hooks[(0,2)][2]}")

    a(f"{Lslow}:")
    vmx = gfd
    Ls0 = a.label("s0")
    a(f"s_cmp_eq_u32 s{s_kh}, 0")
    a(f"s_cbranch_scc1 {Ls0}")
    for i in range(2):
        for r in range(0, 4, 2): a(f"v_mov_b64 {v(Q1[i]+r,2)}, {v(Q1[2+i]+r,2)}")
        for h in range(2): a(f"v_mov_b64 {v(Q3[h][i],2)}, {v(Q3[h][2+i],2)}")
    a(f"{Ls0}:")
    for q in range(2):
        L1 = a.label("s1"); L2 = a.label("s2")
        a(f"v_mov_b32 v{vmx}, 0xff800000")
        a(f"s_mov_b32 s{s_ko}, 0")
        a(f"{L1}:")
        a(ld_k1(0)); a(ld_k1(1)); a(ld_k3(0))
        a("s_waitcnt vmcnt(0)")
        for t in range(2):
            a(qk1(0, q, t)); a(qk2(0, q, t))
            a("s_nop 15")
            for r in range(0, 16, 2):
                a(f"v_max3_f32 v{vmx}, v{S[0]+r}, v{S[0]+r+1}, v{vmx}")
        a(f"s_add_u32 s{s_ko}, s{s_ko}, {PS}")
        a(f"s_cmp_lt_u32 s{s_ko}, {HS}")
        a(f"s_cbranch_scc1 {L1}")
        a(f"v_mov_b32 v{T[0]}, v{vmx}")
        a("s_nop 1")
        a(f"v_permlane32_swap_b32 v{T[0]}, v{vmx}")
        a("s_nop 1")
        a(f"v_max_f32 v{vmx}, v{vmx}, v{T[0]}")
        for r in range(0, 16, 2):
            a(f"v_mov_b64 {v(O[q]+r,2)}, 0")
        a(f"s_mov_b32 s{s_ko}, 0")
        a(f"{L2}:")
        a(ld_k1(0)); a(ld_k1(1)); a(ld_k3(0)); a(ld_v(0)); a(ld_v(1))
        a("s_waitcnt vmcnt(0)")
        for t in range(2):
            a(qk1(0, q, t)); a(qk2(0, q, t))
            a("s_nop 15")
            for r in range(16):
                a(f"v_sub_f32 v{S[0]+r}, v{S[0]+r}, v{vmx}")
            for r in range(16):
                a(ex(0, r))
            a("s_nop 0")
            for r in range(0, 16, 2):
                a(cv(0, r))
            a("s_nop 1")
            a(pv(0, q, t, 0)); a(pv(0, q, t, 1))
        a(f"s_add_u32 s{s_ko}, s{s_ko}, {PS}")
        a(f"s_cmp_lt_u32 s{s_ko}, {HS}")
        a(f"s_cbranch_scc1 {L2}")
    a("s_nop 15")
    bcast_l()
    a("s_nop 1")
    a(f"s_branch {Lst}")
    a("Lcode_end:")
    return name

def build():
    a = Asm()
    PADS[:] = [0, 0, 0, 0]
    name = gen(a)
    if G.warm:
        i = a.lines.index(".PADRET")
        a.lines[i:i+1] = [f"Lpad_{c}_{PADS[c]}:" for c in range(4)]
    out = HEADER + "; @launch grid=(256,1,1) block=(512,1,1) lds=163840\n"
    out += '.amdgcn_target "amdgcn-amd-amdhsa--gfx950"\n.text\n' + a.text()
    out += '.section .rodata,"a"\n.p2align 6\n' + kernel_desc(name, 256, 100 if G.diag else 64)
    return out

if __name__ == "__main__":
    path = sys.argv[1] if len(sys.argv) > 1 else f"cdna_kernels/{NAME}.s"
    G.diag = "diag" in sys.argv
    for x in sys.argv[2:]:
        if "=" in x:
            k, val = x.split("=", 1)
            assert hasattr(G, k), k
            setattr(G, k, eval(val))
    open(path, "w").write(build())
    print("wrote", path)
```

```python
import sys
sys.path.insert(0, "gen")
from asmlib import *

NAME = "concat_heads__mha_block__softmax_full_mha__prompt"
HS = 163840
PS = 5120
KVL = 0x1400000
OBASE = 0xA00000
FBASE = 0x1000000
FLOFF = 0x40000
F2LOFF = 0x60000
XOFF = 0x70000
GFOFF = 0x78000
F2OFF = 0x80000
EOFF = 0x180000
DBGBASE = 0x2000000
QSCALE = 0x3ea52b5c
SLOT = 36864
SPARE = 4 * SLOT
QAREA = SLOT
WOBASE = 61440
MODE_LDS = 163836
SPIN = 400000
FSH = 7

HEADER = """; Kernarg layout for this problem (72 bytes, ptrs only, base s[0:1]):
"""

SX, SW, SKV, SF, SO = 4, 8, 12, 36, 40
(s_blk, s_m, s_n, s_wave, s_tag, s_k, s_a, s_b, s_c, s_it, s_xo, s_wo, s_m0x, s_m0w, s_kh, s_ko, s_vo, s_g) = range(44, 62)
s_vm = 62
s_st, s_loc, s_fg = 3, 34, 35
lane = 255
T = [0] * 6

class G:
    diag = False; dbg = None; amp = None
    lens = [9, 4, 2, 1]
    rot = True
    pro = 2; la = 3; nb1 = 2
    local = True
    sleep = 2
    iters = 8
    hst = (0, 1); hsam = (0, 0)
    oa = 3
    ost = 'nt'
    olst = ''
    ewb = None
    warm = False
    lst = ''
    v3 = True
    nowb = False
    wod = 4

PADS = [0, 0, 0, 0]
def pad_hop(a, c):
    if not G.warm: return
    a(f"Lpad_{c}_{PADS[c]}:")
    PADS[c] += 1
    a(f"s_cbranch_execz Lpad_{c}_{PADS[c]}")

def setT(base): T[:] = list(range(base, base + 6))
def srd(d): return f"s[{d}:{d+3}]"

def stamp(a, i):
    if not G.diag: return
    a("s_memtime s[96:97]")
    a("s_memrealtime s[98:99]")
    a("s_waitcnt lgkmcnt(0)")
    a(f"s_mov_b32 s{64+2*i}, s96")
    a(f"s_mov_b32 s{65+2*i}, s98")

def dump_stamps(a, n):
    if not G.diag: return
    a("s_waitcnt vmcnt(0)")
    stamp(a, n)
    a(f"s_lshl_b32 s{s_a}, s2, 3")
    a(f"s_add_u32 s{s_a}, s{s_a}, s{s_wave}")
    a(f"s_lshl_b32 s{s_a}, s{s_a}, 7")
    a(f"s_add_u32 s{s_a}, s{s_a}, {DBGBASE}")
    make_srd(a, SX, 32, f"s{s_a}", 128)
    a(f"v_mov_b32 v{T[0]}, 0")
    for i in range(32):
        a(f"v_mov_b32 v{T[1]}, s{64+i}")
        a(f"buffer_store_dword v{T[1]}, v{T[0]}, s[{SX}:{SX+3}], 0 offen offset:{4*i}")
    if G.dbg is not None:
        Ls = a.label("nodbg")
        a(f"s_lshl_b32 s{s_a}, s2, 3")
        a(f"s_add_u32 s{s_a}, s{s_a}, s{s_wave}")
        a(f"s_cmp_lg_u32 s{s_a}, {G.dbg}")
        a(f"s_cbranch_scc1 {Ls}")
        make_srd(a, SX, 30, None, 256)
        for i in range(1, 14):
            a(f"s_sub_u32 s{s_a}, s{65+2*i}, s65")
            a(f"v_mov_b32 v{T[1]}, s{s_a}")
            a(f"buffer_store_dword v{T[1]}, v{T[0]}, s[{SX}:{SX+3}], 0 offen offset:{4*i}")
        a(f"{Ls}:")

def make_srd(a, d, base, off, nbytes):
    if off is None:
        a(f"s_mov_b64 s[{d}:{d+1}], s[{base}:{base+1}]")
    else:
        a(f"s_add_u32 s{d}, s{base}, {off}")
        a(f"s_addc_u32 s{d+1}, s{base+1}, 0")
    a(f"s_mov_b32 s{d+2}, {nbytes}")
    a(f"s_mov_b32 s{d+3}, 0x00020000")

def img_pos(a, pos, row, c):
    a(f"v_mul_u32_u24 v{row}, 3277, v{pos}")
    a(f"v_lshrrev_b32 v{row}, 16, v{row}")
    a(f"v_mad_i32_i24 v{c}, v{row}, -16, v{pos}")
    a(f"v_mad_i32_i24 v{c}, v{row}, -4, v{c}")
    a(f"v_lshrrev_b32 v{T[5]}, 3, v{row}")
    a(f"v_mad_i32_i24 v{c}, v{T[5]}, -2, v{c}")
    a(f"v_add_u32 v{T[5]}, 20, v{c}")
    a(f"v_min_u32 v{c}, v{c}, v{T[5]}")

def grp_src(a, dst, row, c, ld_sreg):
    a(f"v_cmp_lt_u32 vcc, 9, v{c}")
    a(f"v_add_u32 v{T[5]}, 16, v{row}")
    a(f"v_subrev_u32 v{T[4]}, 10, v{c}")
    a(f"v_cndmask_b32 v{row}, v{row}, v{T[5]}, vcc")
    a(f"v_cndmask_b32 v{c}, v{c}, v{T[4]}, vcc")
    a(f"v_lshlrev_b32 v{c}, 4, v{c}")
    a(f"v_mad_u32_u24 v{dst}, v{row}, s{ld_sreg}, v{c}")

def tr_addrs(a, wa, perm, grp, colhalf_sreg, base):
    a(f"v_bfe_u32 v{T[0]}, v{lane}, 2, 2")
    a(f"v_lshrrev_b32 v{T[1]}, 4, v{lane}")
    a(f"v_and_b32 v{T[2]}, 1, v{T[1]}")
    a(f"v_lshl_add_u32 v{T[0]}, v{T[2] if grp else T[1]}, 3, v{T[0]}")
    a(f"v_mul_u32_u24 v{T[0]}, 320, v{T[0]}")
    if base: a(f"v_add_u32 v{T[0]}, {base}, v{T[0]}")
    a(f"v_lshlrev_b32 v{T[2]}, 5, v{T[2]}")
    if grp:
        a(f"v_lshrrev_b32 v{T[1]}, 1, v{T[1]}")
        a(f"v_mul_u32_u24 v{T[1]}, 160, v{T[1]}")
        a(f"v_add_u32 v{T[2]}, v{T[2]}, v{T[1]}")
    else:
        a(f"s_mul_i32 s{s_a}, s{colhalf_sreg}, 160")
        a(f"v_add_u32 v{T[2]}, s{s_a}, v{T[2]}")
    a(f"v_and_b32 v{T[1]}, 3, v{lane}")
    a(f"v_mad_u32_u24 v{T[2]}, v{T[1]}, {40 if perm else 8}, v{T[2]}")
    for j in range(5):
        a(f"v_add_u32 v{T[1]}, {8*j if perm else 32*j}, v{T[2]}")
        a(f"v_subrev_u32 v{T[3]}, 320, v{T[1]}")
        a(f"v_min_u32 v{T[1]}, v{T[1]}, v{T[3]}")
        a(f"v_add_u32 v{wa[j]}, v{T[1]}, v{T[0]}")

def x_addrs(a, xa, rowbase_sreg):
    a(f"v_and_b32 v{T[0]}, 15, v{lane}")
    a(f"v_lshrrev_b32 v{T[1]}, 1, v{T[0]}")
    a(f"v_lshrrev_b32 v{T[2]}, 4, v{lane}")
    a(f"v_xor_b32 v{T[1]}, v{T[1]}, v{T[2]}")
    a(f"v_lshl_add_u32 v{T[0]}, v{T[0]}, 7, s{rowbase_sreg}")
    a(f"v_lshl_add_u32 v{xa[0]}, v{T[1]}, 4, v{T[0]}")
    a(f"v_xor_b32 v{xa[1]}, 64, v{xa[0]}")

def poll(a, voff, soff, tmp):
    L = a.label("poll"); Ld = a.label("polld")
    a(f"s_mov_b32 s{s_c}, {SPIN}")
    a(f"{L}:")
    a(f"buffer_load_dword v{tmp}, v{voff}, {srd(SF)}, {soff} offen sc1")
    a("s_waitcnt vmcnt(0)")
    a(f"v_cmp_ne_u32 vcc, s{s_tag}, v{tmp}")
    a(f"s_cbranch_vccz {Ld}")
    a(f"s_sub_u32 s{s_c}, s{s_c}, 1")
    a(f"s_cbranch_scc1 {Ld}")
    a(f"s_sleep {G.sleep}")
    a(f"s_branch {L}")
    a(f"{Ld}:")

def flag_regs(a, val=None):
    a(f"v_lshlrev_b32 v{T[4]}, 2, v{lane}")
    a(f"v_mov_b32 v{T[5]}, s{s_tag if val is None else val}")
def flag_store(a, off_sreg, local=False):
    if local:
        a("s_mov_b64 exec, 1")
    else:
        a("s_mov_b32 exec_hi, 0")
    a(f"buffer_store_dword v{T[5]}, v{T[4]}, {srd(SF)}, s{off_sreg} offen {'' if local else 'sc1'}")
    a("s_mov_b64 exec, -1")

def small_gemm(a, BF, ACC, W, wa, gbase, pre, cur0=0, vmw=None, chain=0):
    n = len(gbase)
    cur = [cur0]
    def shift(g):
        out = []
        if not (cur[0] <= gbase[g] and gbase[g] + 1280 - cur[0] <= 65535):
            want = (gbase[g] // 57344) * 57344
            d = want - cur[0]
            out = [(f"v_add_u32 v{wa[j]}, {d}, v{wa[j]}" if d > 0 else f"v_subrev_u32 v{wa[j]}, {-d}, v{wa[j]}") for j in range(5)]
            cur[0] = want
        return out
    def rd(g, j, t): return f"ds_read_b64_tr_b16 {v(W[g&1]+4*j+2*t,2)}, v{wa[j]} offset:{gbase[g]-cur[0]+1280*t}"
    for x in shift(0): a(x)
    for j in range(5):
        a(rd(0, j, 0)); a(rd(0, j, 1))
    for g in range(n):
        last = g == n - 1
        if g % 2 == 0: pad_hop(a, chain)
        for x in pre.get(("h", g), []): a(x)
        if not last:
            for x in shift(g + 1): a(x)
        ex = list(pre.get(("x", g), []))
        for j in range(5):
            if j == 0: a(f"s_waitcnt {('vmcnt(%d) ' % vmw(g)) if vmw else ''}lgkmcnt(6)")
            if j == 2: a(f"s_waitcnt lgkmcnt({0 if last else 4})")
            for ii in range(2):
                d = v(ACC + 4 * (5 * ii + j), 4)
                a(f"v_mfma_f32_16x16x32_bf16 {d}, {v(W[g&1]+4*j,4)}, {v(BF+8*g+4*ii,4)}, {d if g else 0}")
                if not last: a(rd(g + 1, j, ii))
            if ex: a(ex.pop(0))
        for x in ex: a(x)

def gen(a):
    name = NAME + "_kernel"
    kernel_header(a, name)
    Lend = a.label("end"); Lcons = a.label("cons"); Lv = a.label("vtype"); Latt = a.label("att")
    a("s_cmp_ge_u32 s2, 256")
    a(f"s_cbranch_scc1 {Lend}")
    stamp(a, 0)
    a("s_load_dwordx16 s[16:31], s[0:1], 0")
    a("s_load_dwordx2 s[32:33], s[0:1], 64")
    a("s_mov_b64 exec, -1")
    a(f"v_lshrrev_b32 v1, 6, v0")
    a(f"v_and_b32 v{lane}, 63, v0")
    a(f"v_readfirstlane_b32 s{s_wave}, v1")
    a(f"s_and_b32 s{s_a}, s2, 7")
    a(f"s_lshr_b32 s{s_b}, s2, 3")
    a(f"s_lshr_b32 s{s_blk}, s{s_a}, 2")
    a(f"s_and_b32 s{s_a}, s{s_a}, 3")
    a(f"s_lshr_b32 s{s_c}, s{s_b}, 3")
    a(f"s_lshl2_add_u32 s{s_m}, s{s_a}, s{s_c}")
    a(f"s_and_b32 s{s_n}, s{s_b}, 7")
    if G.rot:
        a(f"s_mul_i32 s{s_k}, s{s_c}, 3")
        a(f"s_add_u32 s{s_k}, s{s_k}, s{s_n}")
        a(f"s_add_u32 s{s_k}, s{s_k}, s{s_a}")
        a(f"s_cmp_ge_u32 s{s_k}, 10")
        a(f"s_cselect_b32 s{s_a}, 10, 0")
        a(f"s_sub_u32 s{s_k}, s{s_k}, s{s_a}")
    else:
        a(f"s_mov_b32 s{s_k}, 0")
    a(f"s_and_b32 s{s_g}, s{s_wave}, 3")
    a(f"s_lshr_b32 s{s_kh}, s{s_wave}, 2")
    a(f"s_cbranch_scc0 {Lcons}")

    def common_ptrs():
        a("s_waitcnt lgkmcnt(0)")
        a(f"s_cmp_eq_u32 s{s_blk}, 0")
        a("s_cselect_b64 s[16:17], s[16:17], s[22:23]")
        a("s_cselect_b64 s[18:19], s[18:19], s[24:25]")
        a("s_cselect_b64 s[20:21], s[20:21], s[26:27]")
    def epoch_load():
        a(f"s_lshl_b32 s{s_a}, s{s_blk}, 7")
        a(f"s_add_u32 s{s_a}, s{s_a}, {FBASE+EOFF}")
        a(f"s_load_dword s{s_tag}, s[32:33], s{s_a}")
        make_srd(a, SF, 32, FBASE, EOFF + 0x1000)
    def epoch_fin():
        a("s_waitcnt lgkmcnt(0)")
        a(f"s_mul_i32 s{s_tag}, s{s_tag}, 0x9E3779B1")
        a(f"s_add_u32 s{s_tag}, s{s_tag}, 0x7F4A7C15")

    O = [0, 16, 32, 48]; S = [64, 80]; P = [96, 104]
    K1 = [112, 116, 120, 124]; K3 = [128, 130]; V = [132, 140, 148, 156]
    Q1 = [164, 168, 172, 176]; Q3 = [[180, 182, 184, 186], [188, 190, 192, 194]]
    KVD = 196; sa = [236, 237, 238, 239, 246]
    ka, k3a, va, gwo, gfv, gfd = 240, 241, 242, 243, 244, 245

    def att_addrs():
        a(f"s_lshl3_add_u32 s{s_a}, s{s_blk}, s{s_n}")
        a(f"s_lshl2_add_u32 s{s_a}, s{s_a}, s{s_g}")
        a(f"s_mul_i32 s{s_a}, s{s_a}, {HS}")
        make_srd(a, SKV, 32, f"s{s_a}", HS)
        a(f"v_lshlrev_b32 v{ka}, 4, v{lane}")
        a(f"v_lshlrev_b32 v{k3a}, 3, v{lane}")
        a(f"v_and_b32 v{T[0]}, 31, v{lane}")
        a(f"v_lshrrev_b32 v{T[1]}, 1, v{T[0]}")
        a(f"v_xor_b32 v{T[1]}, v{T[1]}, v{T[0]}")
        a(f"v_and_b32 v{T[1]}, 4, v{T[1]}")
        a(f"v_mul_u32_u24 v{T[1]}, 3, v{T[1]}")
        a(f"v_xor_b32 v{T[1]}, v{T[1]}, v{T[0]}")
        a(f"s_and_b32 s{s_a}, s{s_g}, 1")
        a(f"s_lshl_b32 s{s_a}, s{s_a}, 2")
        a(f"v_add_u32 v{T[1]}, s{s_a}, v{T[1]}")
        a(f"v_subrev_u32 v{T[2]}, 20, v{T[1]}")
        a(f"v_min_u32 v{T[1]}, v{T[1]}, v{T[2]}")
        a(f"v_lshrrev_b32 v{T[2]}, 5, v{lane}")
        a(f"v_mul_u32_u24 v{T[3]}, 320, v{T[2]}")
        a(f"v_lshl_add_u32 v{va}, v{T[1]}, 4, v{T[3]}")
        a(f"v_add_u32 v{va}, 2560, v{va}")
        a(f"s_and_b32 s{s_ko}, s{s_m}, 12")
        a(f"s_lshl1_add_u32 s{s_ko}, s{s_ko}, s{s_kh}")
        a(f"s_mul_i32 s{s_ko}, s{s_ko}, {PS}")
        a(f"s_mov_b32 s{s_vm}, 0x000fffff")
        a(f"s_mov_b32 s{s_vm+1}, 0x000fffff")
        a(f"s_lshl_b32 s{s_fg}, s{s_blk}, 9")
        a(f"s_add_u32 s{s_fg}, s{s_fg}, {GFOFF}")
        a(f"v_and_b32 v{gfv}, 3, v{lane}")
        a(f"v_lshlrev_b32 v{gfv}, 7, v{gfv}")
        a(f"s_min_u32 s{s_a}, s{s_wave}, 4")
        a(f"s_lshl_b32 s{s_b}, s{s_a}, 6")
        a(f"v_add_u32 v{T[0]}, s{s_b}, v{lane}")
        img_pos(a, T[0], T[1], T[2])
        a(f"s_movk_i32 s{s_c}, 1280")
        grp_src(a, gwo, T[1], T[2], s_c)
    def wo_scalars():
        make_srd(a, SW, 20, None, 640 * 1280)
        a(f"s_cmp_gt_u32 s{s_wave}, 4")
        a(f"s_cselect_b32 s{s_c}, {24*5120}, 0")
        a(f"s_lshl_b32 s{s_m0w}, s{s_wave}, 10")
        if G.wod: a(f"s_sub_u32 s{s_m0w}, s{s_m0w}, {G.wod*5120}")
        a(f"s_add_u32 s{s_m0w}, s{s_m0w}, s{s_c}")
        a(f"s_mul_i32 s{s_wo}, s{s_n}, 160")
        a(f"s_lshl3_add_u32 s{s_wo}, s{s_c}, s{s_wo}")
        if G.wod: a(f"s_sub_u32 s{s_wo}, s{s_wo}, {G.wod*32*1280}")
    def ld_k1(b): return f"buffer_load_dwordx4 {v(K1[b],4)}, v{ka}, {srd(SKV)}, s{s_ko} offen offset:{1024*(b&1)} sc1"
    def ld_k3(p): return f"buffer_load_dwordx2 {v(K3[p],2)}, v{k3a}, {srd(SKV)}, s{s_ko} offen offset:2048 sc1"
    def ld_v(b, m=s_vm):
        return (f"s_mov_b64 exec, s[{m}:{m+1}]\n"
                f"buffer_load_dwordx4 {v(V[b],4)}, v{va}, {srd(SKV)}, s{s_ko} offen offset:{1280*(b&1)} sc1\n"
                f"buffer_load_dwordx4 {v(V[b]+4,4)}, v{va}, {srd(SKV)}, s{s_ko} offen offset:{1280*(b&1)+640} sc1\n"
                f"s_mov_b64 exec, -1")
    def adv_pair():
        return [f"s_add_u32 s{s_ko}, s{s_ko}, {2*PS}", f"s_cmp_ge_u32 s{s_ko}, {HS}",
                f"s_cselect_b32 s{s_c}, {HS}, 0", f"s_sub_u32 s{s_ko}, s{s_ko}, s{s_c}"]
    def pad_value():
        a(f"v_and_b32 v{S[0]}, 31, v{lane}")
        a(f"v_cmp_eq_u32 vcc, 20, v{S[0]}")
        a(f"v_mov_b32 v{S[0]+1}, 0x3f803f80")
        a(f"v_mov_b64 {v(P[1],2)}, 0")
        a(f"v_cndmask_b32 v{S[0]}, 0, v{S[0]+1}, vcc")
        a(f"v_mov_b32 v{S[0]+1}, v{S[0]}")
    def pad(b):
        for r in range(0, 8, 2): a(f"v_mov_b64 {v(V[b]+r,2)}, {v(S[0],2)}")
    def zero_acc():
        for q in range(4): a(f"v_mfma_f32_32x32x8_bf16 {v(O[q],16)}, {v(P[1],2)}, {v(P[1],2)}, 0")
        for r in range(2, 8, 2): a(f"v_mov_b64 {v(P[1]+r,2)}, 0")
    first = [("K1", 0), ("K3", 0), ("V", 0), ("V", 0), ("K1", 1), ("V", 1), ("V", 1), ("K1", 2), ("V", 2), ("V", 2), ("K1", 3), ("K3", 1)]
    if G.v3: first += [("V", 3)] * 2
    def kv_first(with_pad):
        a(ld_k1(0)); a(ld_k3(0))
        if with_pad: pad_value(); pad(0)
        a(ld_v(0)); a(ld_k1(1))
        if with_pad: pad(1)
        a(ld_v(1))
        for x in adv_pair(): a(x)
        a(ld_k1(2))
        if with_pad: pad(2)
        a(ld_v(2)); a(ld_k1(3)); a(ld_k3(1))
        if with_pad: pad(3)
        if G.v3:
            a(ld_v(3))
            a("s_mov_b64 s[22:23], 0")

    XF = 0; ACC2 = 160; W2 = [200, 220]
    gx = [160, 161, 162, 163]; gw = [164, 165, 166, 167, 168]; gq = [251, 252, 253, 254, 245]
    wa2 = [246, 247, 248, 249, 250]; xa2 = [210, 211]
    setT(200)
    a(f"v_lshrrev_b32 v{T[0]}, 4, v{lane}")
    a(f"v_xor_b32 v{T[0]}, v{T[0]}, v{lane}")
    a(f"v_and_b32 v{T[0]}, 7, v{T[0]}")
    a(f"v_lshrrev_b32 v{T[1]}, 3, v{lane}")
    a(f"v_mul_u32_u24 v{T[1]}, 1280, v{T[1]}")
    a(f"v_lshl_add_u32 v{gx[0]}, v{T[0]}, 4, v{T[1]}")
    a(f"v_xor_b32 v{gx[1]}, 64, v{gx[0]}")
    a(f"v_add_u32 v{gx[1]}, 9216, v{gx[1]}")
    a(f"v_add_u32 v{gx[2]}, 18432, v{gx[0]}")
    a(f"v_add_u32 v{gx[3]}, 18432, v{gx[1]}")
    a(f"s_movk_i32 s{s_c}, 3840")
    rows = [212 + 2 * i for i in range(5)]
    for i in range(5):
        if i: a(f"v_add_u32 v{T[0]}, {64*i}, v{lane}")
        img_pos(a, T[0] if i else lane, rows[i], rows[i] + 1)
        a(f"v_lshlrev_b32 v{T[3]}, 4, v{rows[i]+1}")
        a(f"v_mad_u32_u24 v{gw[i]}, v{rows[i]}, s{s_c}, v{T[3]}")
        if i & 3: a(f"v_subrev_u32 v{gw[i]}, {1024*i}, v{gw[i]}")
    a(f"s_lshl_b32 s{s_m0x}, s{s_g}, 12")
    a(f"s_mul_i32 s{s_m0w}, s{s_g}, 5120")
    a(f"s_add_u32 s{s_m0w}, s{s_m0w}, 16384")
    a(f"s_lshl2_add_u32 s{s_a}, s{s_m}, s{s_g}")
    a(f"s_mul_i32 s{s_a}, s{s_a}, {32*1280}")
    a(f"s_mul_i32 s{s_fg}, s{s_n}, 320")
    a(f"s_mul_i32 s{s_b}, s{s_g}, {16*3840}")
    a(f"s_add_u32 s{s_fg}, s{s_fg}, s{s_b}")
    a(f"s_add_u32 s{s_loc}, s{s_fg}, 1280")
    a(f"s_mov_b32 s{s_vo}, s{s_k}")
    common_ptrs()
    make_srd(a, SX, 16, f"s{s_a}", 32 * 1280)
    make_srd(a, SW, 18, None, 640 * 3840)
    lseq = []
    def issue_stage(i):
        sl = (i & 3) * SLOT
        a(f"s_add_u32 m0, s{s_m0x}, {sl}")
        a(f"s_lshl_b32 s{s_xo}, s{s_k}, 7")
        for ii in range(4):
            a(f"buffer_load_dwordx4 v{gx[ii]}, {srd(SX)}, s{s_xo} offen offset:{1024*ii} lds")
        a(f"s_mul_i32 s{s_wo}, s{s_k}, {64*3840}")
        a(f"s_add_u32 m0, s{s_m0w}, {sl}")
        a(f"s_add_u32 s{s_wo}, s{s_wo}, s{s_loc}")
        for ii in range(4):
            a(f"buffer_load_dwordx4 v{gw[ii]}, {srd(SW)}, s{s_wo} offen offset:{1024*ii} lds")
        a(f"s_add_u32 m0, s{s_m0w}, {sl+4096}")
        a(f"s_add_u32 s{s_k}, s{s_k}, 1")
        a(f"buffer_load_dwordx4 v{gw[4]}, {srd(SW)}, s{s_wo} offen lds")
        if G.rot:
            a(f"s_cmp_eq_u32 s{s_k}, 10")
            a(f"s_cselect_b32 s{s_k}, 0, s{s_k}")
        lseq.extend([("st", i)] * 9)
    gbase = [2 * SLOT + g * 5120 for g in range(7)] + [SPARE] + [3 * SLOT + g * 5120 for g in range(7)] + [SPARE + 5120] + [g * 5120 for g in range(4)]
    def round_ins(R):
        o = []
        x = f"s_add_u32 s{s_wo}, s{s_st}, {R*4*32*3840}"
        if G.rot:
            x += f"\ns_cmp_ge_u32 s{s_wo}, {640*3840}\ns_cselect_b32 s{s_b}, {640*3840}, 0\ns_sub_u32 s{s_wo}, s{s_wo}, s{s_b}"
        gb = gbase[4 * R:4 * R + 4]
        assert gb[1] == gb[0] + 5120 and gb[2] == gb[0] + 10240
        x += f"\ns_add_u32 s{s_a}, s{s_m0w}, {(gb[0]-16384) & 0xffffffff}"
        if gb[3] != gb[0] + 15360:
            x += f"\ns_cmp_eq_u32 s{s_g}, 3\ns_cselect_b32 s{s_a}, {gb[3]}, s{s_a}"
        x += f"\ns_mov_b32 m0, s{s_a}\ns_add_u32 s{s_a}, s{s_a}, 4096"
        o.append(x)
        for ii in range(4):
            o.append(f"buffer_load_dwordx4 v{gq[ii]}, {srd(SW)}, s{s_wo} offen offset:{1024*ii} lds")
        o.append(f"s_mov_b32 m0, s{s_a}\ns_nop 0\nbuffer_load_dwordx4 v{gq[4]}, {srd(SW)}, s{s_wo} offen lds")
        lseq.extend([("R", R)] * 5)
        return o
    def issue_item(i):
        if i < 10: issue_stage(i)
        elif i < 15:
            for x in round_ins(i - 10): a(x)
    def lwait(key):
        return len(lseq) - 1 - max(i for i, x in enumerate(lseq) if x == key)
    stamp(a, 11)
    issue_stage(0)
    stamp(a, 12)
    epoch_load()
    a(f"s_lshl_b32 s{s_b}, s{s_g}, 12")
    x_addrs(a, xa2, s_b)
    for i in range(1, G.pro): issue_stage(i)
    stamp(a, 13)
    epoch_fin()
    a(f"s_waitcnt vmcnt({lwait(('st',0))})")
    a("s_barrier")
    stamp(a, 1)
    for i in range(G.pro, G.la): issue_stage(i)
    xoff = 0
    for st in range(10):
        sl = (st & 3) * SLOT
        want = 0 if sl < 2 * SLOT else 2 * SLOT
        if want != xoff:
            for r in xa2:
                a(f"v_add_u32 v{r}, {want-xoff}, v{r}" if want > xoff else f"v_subrev_u32 v{r}, {xoff-want}, v{r}")
            xoff = want
        for ks in range(2):
            for ii in range(2):
                a(f"ds_read_b128 {v(XF+16*st+8*ks+4*ii,4)}, v{xa2[ks]} offset:{sl-xoff+2048*ii}")
        if st == 0:
            a(f"s_movk_i32 s{s_c}, 3840")
            for i in range(5):
                grp_src(a, gq[i], rows[i], rows[i] + 1, s_c)
                if i & 3: a(f"v_subrev_u32 v{gq[i]}, {1024*i}, v{gq[i]}")
            a(f"s_lshl1_add_u32 s{s_st}, s{s_vo}, s{s_g}")
            a(f"s_mul_i32 s{s_st}, s{s_st}, {32*3840}")
            a(f"s_mul_i32 s{s_a}, s{s_n}, 160")
            a(f"s_add_u32 s{s_st}, s{s_st}, s{s_a}")
        if st == 1: tr_addrs(a, wa2, True, True, None, 0)
        if st == 2:
            att_addrs()
        if st == 4 and G.warm:
            a("s_mov_b64 exec, 0")
            for c in range(3):
                a(f"s_cmp_eq_u32 s{s_g}, {c}")
                a(f"s_cbranch_scc1 Lpad_{c}_0")
            a("s_branch Lpad_3_0")
            a(".PADRET")
            a("s_mov_b64 exec, -1")
        key = ("st", st + 1) if st < 9 else ("R", 0)
        a(f"s_waitcnt vmcnt({lwait(key)}) lgkmcnt(0)")
        a("s_barrier")
        if st < 9: issue_item(st + G.la)
    stamp(a, 2)
    pre = {}
    nxt = G.la - 1
    for R in range(5):
        ins = round_ins(nxt) if nxt < 5 else []
        nxt += 1
        if ins:
            pre[("x", 4 * R)] = ins[0:2]
            pre[("x", 4 * R + 1)] = ins[2:4]
            pre[("x", 4 * R + 2)] = ins[4:]
        if R < 4:
            pre[("h", 4 * R + 3)] = [f"s_waitcnt vmcnt({lwait(('R', R + 1))})", "s_barrier"]
    qa, qb, md = 0, 1, 2
    half = [f"v_lshrrev_b32 v{qa}, 4, v{lane}", f"v_mul_u32_u24 v{qa}, 5120, v{qa}", f"s_mul_i32 s{s_b}, s{s_g}, 1280",
            f"s_add_u32 s{s_b}, s{s_b}, {QAREA}", f"v_add_u32 v{qa}, s{s_b}, v{qa}"]
    pre[("x", 16)] = half
    pre[("x", 17)] = [f"v_and_b32 v{md}, 15, v{lane}", f"v_lshl_add_u32 v{qb}, v{md}, 3, v{qa}", f"v_lshl_add_u32 v{qa}, v{md}, 4, v{qa}",
                      f"v_mov_b32 v{md}, {MODE_LDS}", f"s_mov_b32 s{s_a}, {QSCALE:#x}\ns_mov_b32 s{s_b}, {QSCALE:#x}"]
    pre[("x", 19)] = [f"ds_read_b32 v{md}, v{md}"]
    small_gemm(a, XF, ACC2, W2, wa2, gbase, pre)
    stamp(a, 3)
    a("s_nop 4")
    assert s_a % 2 == 0 and s_b == s_a + 1
    for ii in range(2):
        r = ACC2 + 20 * ii
        pad_hop(a, 0)
        for e in range(10):
            a(f"v_pk_mul_f32 {v(r+2*e,2)}, {v(r+2*e,2)}, s[{s_a}:{s_b}]")
        for e in range(10):
            a(f"v_cvt_pk_bf16_f32 v{r+e}, v{r+2*e}, v{r+2*e+1}")
        a(f"ds_write_b128 v{qa}, {v(r,4)} offset:{256*ii}")
        a(f"ds_write_b128 v{qa}, {v(r+4,4)} offset:{256*ii+512}")
        a(f"ds_write_b64 v{qb}, {v(r+8,2)} offset:{128*ii+1024}")
    a("s_waitcnt lgkmcnt(0)")
    a(f"v_readfirstlane_b32 s{s_loc}, v{md}")
    a("s_barrier")
    a(f"s_and_b32 s{s_loc}, s{s_loc}, 1")
    a(f"s_lshl_b32 s{s_st}, s{s_loc}, 2")
    stamp(a, 4)
    pad_hop(a, 1)
    kv_first(True)
    pad_hop(a, 1)
    zero_acc()
    wo_scalars()

    a(f"{Latt}:")
    setT(247)
    a(f"s_mul_i32 s{s_b}, s{s_g}, 5120")
    a(f"s_add_u32 s{s_b}, s{s_b}, {QAREA}")
    a(f"v_add_u32 v{T[0]}, s{s_b}, v{ka}")
    a(f"v_and_b32 v{T[1]}, 31, v{lane}")
    a(f"v_lshl_add_u32 v{T[1]}, v{T[1]}, 3, s{s_b}")
    for q in range(4):
        a(f"v_mov_b64 {v(Q3[0][q],2)}, 0")
        a(f"v_mov_b64 {v(Q3[1][q],2)}, 0")
    for q in range(4):
        a(f"ds_read_b128 {v(Q1[q],4)}, v{T[0]} offset:{1280*q}")
    for h in range(2):
        a(f"s_mov_b32 exec_lo, {-1 if h == 0 else 0}")
        a(f"s_mov_b32 exec_hi, {0 if h == 0 else -1}")
        for q in range(4):
            a(f"ds_read_b64 {v(Q3[h][q],2)}, v{T[1]} offset:{1280*q+1024}")
    a("s_mov_b64 exec, -1")
    pad_hop(a, 1)
    a(f"s_mov_b32 s{s_it}, 0")

    def qk1(sb, q, t): return f"v_mfma_f32_32x32x16_bf16 {v(S[sb],16)}, {v(K1[t],4)}, {v(Q1[q],4)}, 0"
    def qk2(sb, q, t): return f"v_mfma_f32_32x32x8_bf16 {v(S[sb],16)}, {v(K3[t>>1],2)}, {v(Q3[t&1][q],2)}, {v(S[sb],16)}"
    def pv(pb, q, t, h): return f"v_mfma_f32_32x32x16_bf16 {v(O[q],16)}, {v(V[t]+4*h,4)}, {v(P[pb]+4*h,4)}, {v(O[q],16)}"
    def ex(q, r): return f"v_exp_f32 v{S[q]+r}, v{S[q]+r}"
    def cv(q, r): return f"v_cvt_pk_bf16_f32 v{P[q]+r//2}, v{S[q]+r}, v{S[q]+r+1}"
    wo_dma = [f"s_min_u32 s{s_c}, s{s_m0w}, 0x20000", f"s_add_u32 m0, s{s_c}, {WOBASE}", f"s_add_u32 s{s_m0w}, s{s_m0w}, 5120",
              f"buffer_load_dwordx4 v{gwo}, {srd(SW)}, s{s_wo} offen lds", f"s_add_u32 s{s_wo}, s{s_wo}, {32*1280}"]
    plan = {}
    for tt in range(4):
        pb = (tt - 1) % 4
        plan[(tt, 1)] = ([ld_v(pb)], [("V", pb)] * 2)
        if G.v3 and pb == 3: plan[(tt, 1)] = ([ld_v(pb, 22), f"s_mov_b64 s[22:23], s[{s_vm}:{s_vm+1}]"], [("V", pb)] * 2)
        if tt & 1:
            plan[(tt, 3)] = ([ld_k1(tt), ld_k3(tt >> 1)], [("K1", tt), ("K3", tt >> 1)])
        else:
            plan[(tt, 3)] = ([ld_k1(tt)], [("K1", tt)])
            plan[(tt, 2)] = (adv_pair(), [])
        if tt > 0:
            plan[(tt, 0)] = (wo_dma, [("WO",)])
    order = [(tt, q) for tt in range(4) for q in range(4)]
    names = []; pos = {}
    for rep in range(2):
        for key in order:
            if rep == 1: pos[key] = len(names)
            names += plan.get(key, ([], []))[1]
    def need(tt):
        nt = (tt + 1) % 4
        return [("K1", nt), ("V", nt), ("K3", nt >> 1)]
    n0 = list(first); waits = {}
    for key in order:
        if key[1] == 3:
            p = pos[key]
            w1 = p - 1 - max(max(i for i in range(p) if names[i] == k) for k in need(key[0]))
            w2 = len(n0) - 1 - max(max(i for i in range(len(n0)) if n0[i] == k) for k in need(key[0]))
            waits[key[0]] = min(w1, w2)
        n0 += plan.get(key, ([], []))[1]
    a(f"s_waitcnt vmcnt({len(first)-4}) lgkmcnt(0)")
    stamp(a, 5)
    a(qk1(0, 0, 0)); a(qk2(0, 0, 0))
    a("s_setprio 3")
    a("s_nop 7")
    a("s_nop 3")
    L = a.label("al")
    a(".p2align 6")
    a(f"{L}:")
    hooks = {G.hst: (0, a.label("hA"), a.label("hAb")),
             G.hsam: (3, a.label("hB"), a.label("hBb")), (0, 2): (4, a.label("hC"), a.label("hCb"))}
    cum = [sum(G.lens[:i]) for i in range(4)]
    step = 0
    for tt in range(4):
        for q in range(4):
            c = q & 1; o = 1 - c
            nq, nt = (q + 1, tt) if q < 3 else (0, (tt + 1) % 4)
            pq, pt = (q - 1, tt) if q > 0 else (3, (tt - 1) % 4)
            extra = list(plan.get((tt, q), ([], []))[0])
            if q & 1: pad_hop(a, 1)
            if (tt, q) in hooks:
                bit, lo, lb = hooks[(tt, q)]
                a(f"s_bitcmp1_b32 s{s_st}, {bit}")
                a(f"s_cbranch_scc1 {lo}")
                a(f"{lb}:")
            if q == 3: a(f"s_waitcnt vmcnt({waits[tt]})")
            if (tt, q) == (2, 1): extra += [f"s_lshl_b32 s{s_st}, s{s_st}, 1"]
            if (tt, q) == (3, 2): extra += [f"s_add_u32 s{s_it}, s{s_it}, 1", f"s_cmp_lt_u32 s{s_it}, {G.iters}"]
            ms = [qk1(o, nq, nt), qk2(o, nq, nt), pv(o, pq, pt, 0), pv(o, pq, pt, 1)]
            for j in range(4):
                a(ms[j])
                if j: a(cv(c, 4 * j - 2))
                for e in range(3):
                    a(ex(c, 4 * j + e))
                    if extra: a(extra.pop(0))
                if j < 3:
                    a(cv(c, 4 * j)); a(ex(c, 4 * j + 3))
                else:
                    a(ex(c, 15)); a(cv(c, 12))
            n = (step + 1) % sum(G.lens)
            if n in cum: a(f"s_setprio {3 - cum.index(n)}")
            a(cv(c, 14))
            step += 1
    a(f"s_cbranch_scc1 {L}")
    a(f"s_mul_i32 s{s_a}, s{s_wave}, 6144")
    a(pv(1, 3, 3, 0)); a(pv(1, 3, 3, 1))
    a("s_setprio 0")
    Lk1 = a.label("k1"); Lj = a.label("kj"); Lslow = a.label("slow"); Lst = a.label("store")
    own, oth, oa1, oa2 = 253, 254, 238, 239
    a(f"v_add_u32 v{own}, s{s_a}, v{ka}")
    a(f"s_xor_b32 s{s_a}, s{s_wave}, 4")
    a(f"s_mul_i32 s{s_a}, s{s_a}, 6144")
    a(f"v_add_u32 v{oth}, s{s_a}, v{ka}")
    stamp(a, 6)
    pad_hop(a, 2)
    a(f"s_lshl4_add_u32 s{s_xo}, s{s_blk}, s{s_m}")
    a(f"s_lshl1_add_u32 s{s_a}, s{s_xo}, s{s_kh}")
    a(f"s_mul_i32 s{s_a}, s{s_a}, {4*20480}")
    a(f"s_add_u32 s{s_a}, s{s_a}, {OBASE}")
    make_srd(a, SO, 32, f"s{s_a}", 4 * 20480)
    a(f"s_cmp_eq_u32 s{s_kh}, 0")
    a(f"s_cbranch_scc0 {Lk1}")
    for i in range(2):
        for gq_ in range(3):
            a(f"ds_write_b128 v{own}, {v(O[2+i]+4*gq_,4)} offset:{(i*3+gq_)*1024}")
    a(f"s_branch {Lj}")
    a(f"{Lk1}:")
    for i in range(2):
        for gq_ in range(3):
            a(f"ds_write_b128 v{own}, {v(O[i]+4*gq_,4)} offset:{(i*3+gq_)*1024}")
    a("s_nop 1")
    for i in range(2):
        for r in range(0, 12, 2):
            a(f"v_mov_b64 {v(O[i]+r,2)}, {v(O[2+i]+r,2)}")
    a(f"{Lj}:")
    pad_hop(a, 2)
    a(f"s_lshl2_add_u32 s{s_vo}, s{s_n}, s{s_g}")
    a(f"s_mul_i32 s{s_b}, s{s_vo}, 5")
    a(f"s_add_u32 s{s_b}, s{s_b}, 1")
    a(f"s_lshr_b32 s{s_b}, s{s_b}, 1")
    a(f"s_lshl_b32 s{s_b}, s{s_b}, 8")
    a(f"s_movk_i32 s{s_a}, 512")
    a(f"s_and_b32 s{s_c}, s{s_g}, 1")
    a(f"s_cselect_b32 s{s_c}, {(-256+8) & 0xffffffff}, s{s_a}")
    a(f"s_add_u32 s{s_c}, s{s_c}, s{s_b}")
    a(f"v_bfe_u32 v{T[2]}, v{lane}, 4, 1")
    a(f"v_mul_u32_u24 v{T[2]}, 20480, v{T[2]}")
    a(f"v_and_b32 v{T[3]}, 15, v{lane}")
    a(f"v_lshl_add_u32 v{T[2]}, v{T[3]}, 4, v{T[2]}")
    a(f"v_lshrrev_b32 v{T[4]}, 5, v{lane}")
    a(f"v_lshl_add_u32 v{T[3]}, v{T[4]}, 20, v{T[2]}")
    a(f"v_lshl_add_u32 v{T[2]}, v{T[4]}, 8, v{T[2]}")
    a(f"v_add_u32 v{oa1}, s{s_b}, v{T[2]}")
    a(f"v_add_u32 v{oa2}, s{s_c}, v{T[3]}")
    a("s_waitcnt vmcnt(0) lgkmcnt(0)")
    a("s_barrier")
    for i in range(2):
        for gq_ in (2, 0, 1):
            a(f"ds_read_b128 {v(O[2+i]+4*gq_,4)}, v{oth} offset:{(i*3+gq_)*1024}")
    a(f"s_cmp_eq_u32 s{s_loc}, 0")
    a(f"s_cselect_b32 s{s_k}, {FSH}, 2")
    a(f"s_mov_b32 s{s_a}, {F2LOFF}")
    a(f"s_cselect_b32 s{s_a}, {F2OFF}, s{s_a}")
    a(f"s_lshl_b32 s{s_xo}, s{s_xo}, 6")
    a(f"s_lshl_b32 s{s_xo}, s{s_xo}, s{s_k}")
    a(f"s_add_u32 s{s_xo}, s{s_xo}, s{s_a}")
    a(f"s_lshl_b32 s{s_a}, s{s_kh}, 5")
    a(f"s_add_u32 s{s_vo}, s{s_vo}, s{s_a}")
    a(f"s_lshl_b32 s{s_vo}, s{s_vo}, s{s_k}")
    a(f"s_add_u32 s{s_vo}, s{s_vo}, s{s_xo}")
    pad_hop(a, 2)
    flag_regs(a)
    a(f"s_mov_b32 s{s_a}, 0x2b800000")
    a(f"s_mov_b32 s{s_b}, 0x5d800000")
    a("s_waitcnt lgkmcnt(0)")
    for i in range(2):
        for r in (8, 10, 0, 2, 4, 6):
            a(f"v_pk_add_f32 {v(O[i]+r,2)}, {v(O[i]+r,2)}, {v(O[2+i]+r,2)}")
    def bcast_l():
        for i in range(2):
            a(f"v_mov_b32 v{O[i]+12}, v{O[i]+8}")
            a(f"v_mov_b32 v{O[i]+13}, v{O[i]+8}")
        a("s_nop 1")
        for i in range(2):
            a(f"v_permlane32_swap_b32 v{O[i]+13}, v{O[i]+12}")
    bcast_l()
    pad_hop(a, 2)
    for q in range(2):
        a(f"v_pk_mul_f32 {v(O[q]+14,2)}, {v(O[q],2)}, 0 op_sel_hi:[1,0]")
        for r in range(2, 12, 2):
            a(f"v_pk_fma_f32 {v(O[q]+14,2)}, {v(O[q]+r,2)}, 0, {v(O[q]+14,2)} op_sel_hi:[1,0,1]")
    a(f"v_cmp_o_f32 vcc, v{O[0]+14}, v{O[0]+15}")
    a(f"v_cmp_o_f32 s[16:17], v{O[1]+14}, v{O[1]+15}")
    a(f"v_min_f32 v{T[0]}, v{O[0]+12}, v{O[1]+12}")
    a(f"v_max_f32 v{T[1]}, v{O[0]+12}, v{O[1]+12}")
    a(f"s_and_b64 vcc, vcc, s[16:17]")
    a(f"v_cmp_le_f32 s[16:17], s{s_a}, v{T[0]}")
    a(f"v_cmp_ge_f32 s[18:19], s{s_b}, v{T[1]}")
    a(f"s_and_b64 vcc, vcc, s[16:17]")
    a(f"s_and_b64 vcc, vcc, s[18:19]")
    a("s_cmp_eq_u64 vcc, -1")
    a(f"s_cbranch_scc0 {Lslow}")
    a(f"{Lst}:")
    pad_hop(a, 2)
    a(f"v_rcp_f32 v{O[0]+12}, v{O[0]+12}")
    a(f"v_rcp_f32 v{O[1]+12}, v{O[1]+12}")
    a(f"s_mov_b32 s{s_b}, {2*20480}")
    for q in range(2):
        for r in range(0, 12, 2):
            a(f"v_pk_mul_f32 {v(O[q]+r,2)}, {v(O[q]+r,2)}, {v(O[q]+12,2)} op_sel_hi:[1,0]")
        for e in range(6):
            a(f"v_cvt_pk_bf16_f32 v{O[q]+e}, v{O[q]+2*e}, v{O[q]+2*e+1}")
    Log = a.label("og"); Loj = a.label("oj"); Lo2 = a.label("o2"); Lo3 = a.label("o3")
    a(f"s_cmp_eq_u32 s{s_loc}, 0")
    a(f"s_cbranch_scc1 {Log}")
    for fl in (G.olst, "sc1"):
        for q in range(2):
            so = "0" if q == 0 else f"s{s_b}"
            a(f"buffer_store_dwordx4 {v(O[q],4)}, v{oa1}, {srd(SO)}, {so} offen {fl}")
            a(f"buffer_store_dwordx2 {v(O[q]+4,2)}, v{oa2}, {srd(SO)}, {so} offen {fl}")
        if fl != "sc1":
            a(f"s_branch {Loj}")
            a(f"{Log}:")
    a(f"{Loj}:")
    pad_hop(a, 2)
    wa4 = [240, 241, 242, 243, 244]; ol = [245, 246]; pf = 238
    a(f"v_add_u32 v{ol[1]}, 20480, v{ka}")
    a(f"v_mov_b32 v{ol[0]}, v{ka}")
    a(f"s_mul_i32 s{s_c}, s{s_kh}, {10*5120}")
    a(f"s_add_u32 s{s_c}, s{s_c}, {WOBASE}")
    tr_addrs(a, wa4, True, True, None, f"s{s_c}")
    a(f"s_lshl4_add_u32 s{s_a}, s{s_blk}, s{s_m}")
    a(f"s_lshl2_add_u32 s{s_a}, s{s_a}, s{s_g}")
    a(f"s_mul_i32 s{s_a}, s{s_a}, {2*20480}")
    a(f"s_mul_i32 s{s_b}, s{s_kh}, 10240")
    a(f"s_add_u32 s{s_a}, s{s_a}, s{s_b}")
    a(f"s_add_u32 s{s_a}, s{s_a}, {OBASE}")
    pad_hop(a, 2)
    make_srd(a, SKV, 32, f"s{s_a}", 20480 + 10240)
    a(f"s_and_b32 s{s_a}, s{s_g}, 2")
    a(f"s_add_u32 s{s_a}, s{s_a}, s{s_kh}")
    a(f"s_lshl_b32 s{s_a}, s{s_a}, 4")
    a(f"s_lshl_b32 s{s_a}, s{s_a}, s{s_k}")
    a(f"s_add_u32 s{s_xo}, s{s_xo}, s{s_a}")
    a(f"s_cmp_eq_u32 s{s_loc}, 0")
    a("s_waitcnt vmcnt(0)")
    a(f"s_cbranch_scc1 {Lo2}")
    flag_store(a, s_vo, True)
    a(f"s_branch {Lo3}")
    a(f"{Lo2}:")
    flag_store(a, s_vo, False)
    a(f"{Lo3}:")
    pad_hop(a, 2)
    stamp(a, 7)
    a(f"v_and_b32 v{pf}, 15, v{lane}")
    a(f"v_lshlrev_b32 v{pf}, s{s_k}, v{pf}")
    a(f"s_movk_i32 s{s_a}, 4096")
    a(f"s_movk_i32 s{s_b}, 8192")
    poll(a, pf, f"s{s_xo}", T[0])
    stamp(a, 8)
    def ld_o(g, ii):
        so = ["0", f"s{s_a}", f"s{s_b}"][g // 4]
        return f"buffer_load_dwordx4 {v(XF+8*g+4*ii,4)}, v{ol[ii]}, {srd(SKV)}, {so} offen offset:{1024*(g%4)} sc1"
    for g in range(G.oa):
        a(ld_o(g, 0)); a(ld_o(g, 1))
    pre = {("x", g): [ld_o(g + G.oa, 0), ld_o(g + G.oa, 1)] for g in range(10 - G.oa)}
    oc = [100, 101, 102]; tw = 103
    for i in range(3):
        pre.setdefault(("x", 7 + i), [])
        pre[("x", 7 + i)] += [f"v_add_u32 v{oc[i]}, {64*i}, v{lane}\nv_mul_u32_u24 v{T[0]}, 6554, v{oc[i]}", f"v_lshrrev_b32 v{T[0]}, 16, v{T[0]}\nv_lshlrev_b32 v{oc[i]}, 4, v{oc[i]}",
                              f"v_mul_u32_u24 v{T[0]}, {2560-160}, v{T[0]}\nv_add_u32 v{oc[i]}, v{oc[i]}, v{T[0]}"]
    if G.ewb is not None:
        Lwb = a.label("ewb")
        pre.setdefault(("h", G.ewb), [])
        pre[("h", G.ewb)] += [f"s_lshr_b32 s{s_c}, s2, 3", f"s_or_b32 s{s_c}, s{s_c}, s{s_wave}", f"s_cbranch_scc1 {Lwb}", "buffer_wbl2 sc1", f"{Lwb}:"]
    small_gemm(a, XF, ACC2, W2, wa4, [5120 * g for g in range(10)], pre,
               vmw=lambda g: 2 * (min(10, g + G.oa) - g - 1), chain=3)
    stamp(a, 9)
    pad_hop(a, 3)
    Le1 = a.label("e1"); Le2 = a.label("e2")
    a(f"v_and_b32 v{T[0]}, 15, v{lane}")
    a(f"v_lshrrev_b32 v{T[1]}, 4, v{lane}")
    a(f"v_mul_u32_u24 v{T[0]}, 160, v{T[0]}")
    a(f"v_mad_u32_u24 v{T[0]}, v{T[1]}, 40, v{T[0]}")
    a(f"s_mul_i32 s{s_a}, s{s_wave}, 6144")
    a(f"v_add_u32 v{tw}, s{s_a}, v{T[0]}")
    a(f"s_cmp_eq_u32 s{s_kh}, 0")
    a(f"s_cbranch_scc0 {Le1}")
    for j in range(5): a(f"ds_write_b128 v{oth}, {v(ACC2+20+4*j,4)} offset:{1024*j}")
    a(f"s_branch {Le2}")
    a(f"{Le1}:")
    for j in range(5): a(f"ds_write_b128 v{oth}, {v(ACC2+4*j,4)} offset:{1024*j}")
    a("s_nop 1")
    for r in range(0, 20, 2): a(f"v_mov_b64 {v(ACC2+r,2)}, {v(ACC2+20+r,2)}")
    a(f"{Le2}:")
    pad_hop(a, 3)
    a(f"s_lshl2_add_u32 s{s_a}, s{s_m}, s{s_g}")
    a(f"s_lshl1_add_u32 s{s_a}, s{s_a}, s{s_kh}")
    a(f"s_mul_i32 s{s_a}, s{s_a}, {16*2560}")
    a(f"s_mul_i32 s{s_b}, s{s_blk}, 1280")
    a(f"s_add_u32 s{s_a}, s{s_a}, s{s_b}")
    a(f"s_mul_i32 s{s_b}, s{s_n}, 160")
    a(f"s_add_u32 s{s_a}, s{s_a}, s{s_b}")
    make_srd(a, SO, 28, f"s{s_a}", 15 * 2560 + 160)
    a("s_waitcnt lgkmcnt(0)")
    a("s_barrier")
    for j in range(5): a(f"ds_read_b128 {v(ACC2+20+4*j,4)}, v{own} offset:{1024*j}")
    for j in range(5):
        a(f"s_waitcnt lgkmcnt({4-j})")
        r = ACC2 + 4 * j
        a(f"v_pk_add_f32 {v(r,2)}, {v(r,2)}, {v(r+20,2)}")
        a(f"v_pk_add_f32 {v(r+2,2)}, {v(r+2,2)}, {v(r+22,2)}")
        a(f"v_cvt_pk_bf16_f32 v{r}, v{r}, v{r+1}")
        a(f"v_cvt_pk_bf16_f32 v{r+1}, v{r+2}, v{r+3}")
    pad_hop(a, 3)
    for j in range(5): a(f"ds_write_b64 v{tw}, {v(ACC2+4*j,2)} offset:{8*j}")
    a("s_waitcnt lgkmcnt(0)")
    for i in range(3): a(f"ds_read_b128 {v(ACC2+20+4*i,4)}, v{own} offset:{1024*i}")
    for i in range(3):
        a(f"s_waitcnt lgkmcnt({2-i})")
        a(f"buffer_store_dwordx4 {v(ACC2+20+4*i,4)}, v{oc[i]}, {srd(SO)}, 0 offen {G.ost}")
    Lfin = a.label("fin")
    a(f"s_or_b32 s{s_a}, s{s_m}, s{s_n}")
    a(f"s_or_b32 s{s_a}, s{s_a}, s{s_wave}")
    a(f"s_cbranch_scc1 {Lfin}")
    a(f"s_lshl_b32 s{s_b}, s{s_blk}, 7")
    a(f"s_add_u32 s{s_b}, s{s_b}, {EOFF}")
    flag_store(a, s_b, False)
    a(f"{Lfin}:")
    dump_stamps(a, 10)
    a(f"{Lend}:")
    a("s_endpgm")

    a(f"{Lcons}:")
    setT(247)
    ACC = 0
    X = [[80 + 16 * b + 4 * i for i in range(4)] for b in range(2)]
    W = [[112 + 20 * b + 4 * j for j in range(5)] for b in range(2)]
    xa = [152, 153]; wa = [154, 155, 156, 157, 158]; xt, xv = 159, 160
    s_wm, s_wn = s_xo, s_wo
    a("s_getpc_b64 s[4:5]")
    a(f"Lpc_{name}:")
    a(f"s_sub_u32 s4, s4, Lpc_{name}-{name}")
    a("s_subb_u32 s5, s5, 0")
    a(f"s_mov_b32 s6, Lcode_end-{name}")
    a("s_mov_b32 s7, 0x00020000")
    a("v_lshlrev_b32 v1, 7, v0")
    a(f"buffer_load_dword v{xt}, v1, s[4:7], 0 offen")
    a(f"s_and_b32 s{s_wm}, s{s_wave}, 1")
    a(f"s_lshr_b32 s{s_wn}, s{s_wave}, 1")
    a(f"s_lshl_b32 s{s_b}, s{s_wm}, 13")
    x_addrs(a, xa, s_b)
    for r in range(0, 80, 2): a(f"v_mov_b64 {v(ACC+r,2)}, 0")
    common_ptrs()
    epoch_load()
    att_addrs()
    a(f"s_and_b32 s{s_a}, s{s_n}, 3")
    a(f"s_lshl2_add_u32 s{s_a}, s{s_blk}, s{s_a}")
    a(f"s_lshl1_add_u32 s{s_a}, s{s_a}, s{s_wn}")
    a(f"s_mul_i32 s{s_a}, s{s_a}, {4*HS}")
    a(f"s_lshl1_add_u32 s{s_b}, s{s_m}, s{s_wm}")
    a(f"s_mul_i32 s{s_b}, s{s_b}, {PS}")
    a(f"s_add_u32 s{s_a}, s{s_a}, s{s_b}")
    make_srd(a, SO, 32, f"s{s_a}", 3 * HS + PS)
    a(f"s_lshl3_add_u32 s{s_a}, s{s_blk}, s{s_n}")
    a(f"s_lshl1_add_u32 s{s_a}, s{s_a}, s{s_wn}")
    a(f"s_lshl4_add_u32 s{s_a}, s{s_a}, s{s_m}")
    a(f"s_lshl1_add_u32 s{s_vo}, s{s_a}, s{s_wm}")
    a(f"s_lshr_b32 s{s_k}, s{s_vo}, 3")
    a(f"s_lshl_b32 s{s_k}, s{s_k}, 7")
    a(f"s_and_b32 s{s_a}, s{s_vo}, 7")
    a(f"s_lshl2_add_u32 s{s_k}, s{s_a}, s{s_k}")
    a(f"s_add_u32 s{s_k}, s{s_k}, {FLOFF}")
    a(f"s_and_b32 s{s_vo}, s2, 7")
    a(f"s_lshl_b32 s{s_vo}, s{s_vo}, 7")
    a(f"s_add_u32 s{s_vo}, s{s_vo}, {GFOFF}")
    epoch_fin()
    a(f"s_getreg_b32 s{s_loc}, hwreg(HW_REG_XCC_ID)")
    a(f"s_and_b32 s{s_loc}, s{s_loc}, 15")
    a(f"s_add_u32 s{s_loc}, s{s_loc}, s{s_tag}")
    a(f"s_and_b32 s{s_a}, s2, 7")
    a(f"s_lshl_b32 s{s_m0w}, s{s_a}, 12")
    a(f"s_add_u32 s{s_m0w}, s{s_m0w}, {XOFF}")
    a(f"s_lshr_b32 s{s_a}, s2, 3")
    a(f"s_lshl_b32 s{s_a}, s{s_a}, 7")
    a(f"s_add_u32 s{s_b}, s{s_a}, s{s_m0w}")
    Lnp = a.label("nopub")
    a(f"s_cmp_lg_u32 s{s_wave}, 0")
    a(f"s_cbranch_scc1 {Lnp}")
    flag_regs(a, s_loc)
    flag_store(a, s_b, False)
    a(f"{Lnp}:")
    a(f"v_and_b32 v{xv}, 31, v{lane}")
    a(f"v_lshlrev_b32 v{xv}, 7, v{xv}")
    a(f"s_mov_b32 s{s_it}, 0")
    a(f"s_mov_b32 s{s_m0x}, {(-3*SLOT) & 0xffffffff}")
    a(f"s_cmp_ge_u32 s{s_n}, 4")
    a(f"s_cbranch_scc1 {Lv}")

    def p1_reads(ks, b):
        out = [f"ds_read_b128 {v(X[b][i],4)}, v{xa[ks]} offset:{2048*i}" for i in range(4)]
        for j in range(5):
            for t in range(2):
                out.append(f"ds_read_b64_tr_b16 {v(W[b][j]+2*t,2)}, v{wa[j]} offset:{ks*10240+1280*t}")
        return out
    st_code = {}
    Lcj = a.label("cj")
    def consumer(ktype):
        tr_addrs(a, wa, ktype, False, s_wn, 16384)
        if ktype:
            a(f"v_lshrrev_b32 v{T[0]}, 4, v{lane}")
            a(f"s_mov_b32 s{s_a}, {HS}")
            a(f"v_mul_lo_u32 v{T[0]}, v{T[0]}, s{s_a}")
            a(f"v_and_b32 v{T[1]}, 7, v{lane}")
            a(f"v_and_b32 v{T[2]}, 8, v{lane}")
            a(f"v_lshl_add_u32 v{T[1]}, v{T[2]}, 1, v{T[1]}")
            a(f"v_lshl_add_u32 v{sa[0]}, v{T[1]}, 4, v{T[0]}")
            a(f"v_lshl_add_u32 v{sa[1]}, v{T[1]}, 3, v{T[0]}")
        else:
            a(f"v_lshrrev_b32 v{T[0]}, 4, v{lane}")
            a(f"v_mul_u32_u24 v{T[0]}, 320, v{T[0]}")
            a(f"v_and_b32 v{T[1]}, 15, v{lane}")
            a(f"s_mov_b32 s{s_a}, {HS-320}")
            for j in range(5):
                a(f"v_add_u32 v{T[2]}, {16*j}, v{T[1]}")
                a(f"v_mul_u32_u24 v{T[3]}, 3277, v{T[2]}")
                a(f"v_lshrrev_b32 v{T[3]}, 16, v{T[3]}")
                a(f"v_lshl_add_u32 v{T[2]}, v{T[2]}, 4, v{T[0]}")
                a(f"v_mad_u32_u24 v{sa[j]}, v{T[3]}, s{s_a}, v{T[2]}")
        def mf(b):
            out = []
            for j in range(5):
                for i in range(4):
                    d = v(ACC + 4 * (5 * i + j), 4)
                    A, B = (W[b][j], X[b][i]) if ktype else (X[b][i], W[b][j])
                    out.append(f"v_mfma_f32_16x16x32_bf16 {d}, {v(A,4)}, {v(B,4)}, {d}")
            return out
        Lp = a.label("p1"); Ll = a.label("p1l")
        a("s_barrier")
        stamp(a, 1)
        for x in p1_reads(0, 0): a(x)
        a(f"{Lp}:")
        a("s_waitcnt lgkmcnt(8)")
        e = p1_reads(1, 1) + [f"s_add_u32 s{s_it}, s{s_it}, 1", f"s_and_b32 s{s_a}, s{s_it}, 3",
                              f"s_cselect_b32 s{s_a}, {SLOT}, s{s_m0x}", f"s_cmp_eq_u32 s{s_it}, 10"]
        for k, x in enumerate(mf(0)):
            if k == 4: a("s_waitcnt lgkmcnt(4)")
            a(x)
            if e: a(e.pop(0))
        a("s_waitcnt lgkmcnt(8)")
        m1 = mf(1)
        adds = [f"v_add_u32 v{r}, s{s_a}, v{r}" for r in xa + wa]
        for k in range(4):
            a(m1[k])
            for x in adds[2 * k:2 * k + 2]: a(x)
        a("s_waitcnt lgkmcnt(0)")
        a("s_barrier")
        a(f"s_cbranch_scc1 {Ll}")
        e = p1_reads(0, 0)
        for x in m1[4:]:
            a(x)
            if e: a(e.pop(0))
        a(f"s_cmp_lg_u32 s{s_it}, 7")
        a(f"s_cbranch_scc1 {Lp}")
        a(f"buffer_load_dword v{xt}, v{xv}, {srd(SF)}, s{s_m0w} offen sc1")
        a(f"s_branch {Lp}")
        a(f"{Ll}:")
        for x in m1[4:]: a(x)
        Lt = a.label("xt"); Ltd = a.label("xtd")
        a(f"s_mov_b32 s{s_c}, {SPIN}")
        a(f"{Lt}:")
        a("s_waitcnt vmcnt(0)")
        a(f"v_subrev_u32 v{T[0]}, s{s_tag}, v{xt}")
        a(f"v_cmp_lt_u32 vcc, 15, v{T[0]}")
        a(f"s_cbranch_vccz {Ltd}")
        a(f"s_sub_u32 s{s_c}, s{s_c}, 1")
        a(f"s_cbranch_scc1 {Ltd}")
        a(f"s_sleep {G.sleep}")
        a(f"buffer_load_dword v{xt}, v{xv}, {srd(SF)}, s{s_m0w} offen sc1")
        a(f"s_branch {Lt}")
        a(f"{Ltd}:")
        a(f"v_cmp_ne_u32 vcc, s{s_loc}, v{xt}")
        a("s_cmp_eq_u64 vcc, 0")
        a(f"s_cselect_b32 s{s_loc}, {1 if G.local else 0}, 0")
        stamp(a, 2)
        def stores(fl, so, cvt):
            if ktype:
                for i in range(4):
                    r = KVD + 10 * i
                    if cvt:
                        for e in range(10): a(f"v_cvt_pk_bf16_f32 v{r+e}, v{ACC+20*i+2*e}, v{ACC+20*i+2*e+1}")
                    o = (i >> 1) * 1024 + (i & 1) * 128
                    a(f"buffer_store_dwordx4 {v(r,4)}, v{sa[0]}, {srd(SO)}, {so} offen offset:{o} {fl}")
                    a(f"buffer_store_dwordx4 {v(r+4,4)}, v{sa[0]}, {srd(SO)}, {so} offen offset:{o+512} {fl}")
                    a(f"buffer_store_dwordx2 {v(r+8,2)}, v{sa[1]}, {srd(SO)}, {so} offen offset:{2048+(i>>1)*256+(i&1)*64} {fl}")
            else:
                for j in range(5):
                    for i2 in range(2):
                        r = KVD + 8 * j + 4 * i2
                        if cvt:
                            r0 = ACC + 4 * (5 * (2 * i2) + j); r1 = ACC + 4 * (5 * (2 * i2 + 1) + j)
                            a(f"v_cvt_pk_bf16_f32 v{r}, v{r0}, v{r0+1}")
                            a(f"v_cvt_pk_bf16_f32 v{r+1}, v{r0+2}, v{r0+3}")
                            a(f"v_cvt_pk_bf16_f32 v{r+2}, v{r1}, v{r1+1}")
                            a(f"v_cvt_pk_bf16_f32 v{r+3}, v{r1+2}, v{r1+3}")
                        a(f"buffer_store_dwordx4 {v(r,4)}, v{sa[j]}, {srd(SO)}, {so} offen offset:{2560+1280*i2} {fl}")
        st_code[ktype] = stores
        Lg = a.label("glob")
        a(f"s_cmp_eq_u32 s{s_loc}, 0")
        a(f"s_cbranch_scc1 {Lg}")
        stores(G.lst, "0", True)
        a(f"s_branch {Lcj}")
        a(f"{Lg}:")
        stores("sc1", "0", True)
        if ktype: a(f"s_branch {Lcj}")
    consumer(True)
    a(f"{Lv}:")
    consumer(False)
    a(f"{Lcj}:")
    pad_hop(a, 2)
    a(f"v_mov_b32 v{T[0]}, {MODE_LDS}")
    a(f"v_mov_b32 v{T[1]}, s{s_loc}")
    a(f"ds_write_b32 v{T[0]}, v{T[1]}")
    pad_value()
    for b in range(4): pad(b)
    zero_acc()
    wo_scalars()
    flag_regs(a)
    Lg2 = a.label("g2")
    a(f"s_cmp_eq_u32 s{s_loc}, 0")
    a("s_waitcnt lgkmcnt(0)")
    a(f"s_cbranch_scc1 {Lg2}")
    pad_hop(a, 2)
    a(f"s_lshl4_add_u32 s{s_b}, s{s_blk}, s{s_n}")
    a(f"s_lshr_b32 s{s_a}, s{s_m}, 2")
    a(f"s_lshl2_add_u32 s{s_b}, s{s_b}, s{s_a}")
    a(f"s_lshl_b32 s{s_b}, s{s_b}, 7")
    a(f"s_add_u32 s{s_b}, s{s_b}, {FLOFF}")
    a(f"v_and_b32 v{T[0]}, 7, v{lane}")
    a(f"v_lshrrev_b32 v{T[1]}, 5, v{lane}")
    a(f"v_lshlrev_b32 v{T[0]}, 2, v{T[0]}")
    a(f"v_lshl_add_u32 v{T[0]}, v{T[1]}, 12, v{T[0]}")
    for i in range(G.nb1): a("s_barrier")
    a("s_waitcnt vmcnt(0)")
    flag_store(a, s_k, True)
    stamp(a, 3)
    for i in range(4 - G.nb1): a("s_barrier")
    poll(a, T[0], f"s{s_b}", T[1])
    stamp(a, 4)
    kv_first(False)
    a(f"s_lshr_b32 s{s_a}, s2, 3")
    a(f"s_or_b32 s{s_a}, s{s_a}, s{s_wave}")
    a(f"s_cselect_b32 s{s_st}, 4, 5")
    a("s_barrier")
    a(f"s_branch {Latt}")
    def group_wait():
        L = a.label("gp"); Ld = a.label("gpd")
        a(f"s_lshl_b32 s{s_b}, s{s_blk}, 6")
        a(f"s_lshr_b32 s{s_a}, s{s_m}, 2")
        a(f"s_add_u32 s{s_b}, s{s_b}, s{s_a}")
        a(f"s_lshl_b32 s{s_b}, s{s_b}, 7")
        a(f"s_add_u32 s{s_b}, s{s_b}, {FLOFF}")
        a(f"v_lshrrev_b32 v{T[0]}, 2, v{lane}")
        a(f"v_and_b32 v{T[1]}, 3, v{lane}")
        a(f"v_lshlrev_b32 v{T[1]}, 3, v{T[1]}")
        a(f"v_lshl_add_u32 v{T[0]}, v{T[0]}, 9, v{T[1]}")
        a(f"s_mov_b32 s{s_c}, {SPIN}")
        a(f"{L}:")
        a(f"buffer_load_dwordx2 {v(T[1],2)}, v{T[0]}, {srd(SF)}, s{s_b} offen sc1")
        a("s_waitcnt vmcnt(0)")
        a(f"v_cmp_ne_u32 vcc, s{s_tag}, v{T[1]}")
        a(f"v_cmp_ne_u32 s[16:17], s{s_tag}, v{T[2]}")
        a("s_or_b64 vcc, vcc, s[16:17]")
        a(f"s_cbranch_scc0 {Ld}")
        a(f"s_sub_u32 s{s_c}, s{s_c}, 1")
        a(f"s_cbranch_scc1 {Ld}")
        a(f"s_sleep {G.sleep}")
        a(f"s_branch {L}")
        a(f"{Ld}:")
    a(f"{Lg2}:")
    for i in range(4): a("s_barrier")
    a("s_waitcnt vmcnt(0)")
    a("s_mov_b64 exec, 1")
    a(f"buffer_store_dword v{T[5]}, v{T[4]}, {srd(SF)}, s{s_k} offen sc1")
    a("s_mov_b64 exec, -1")
    stamp(a, 3)
    Lne = a.label("ne")
    a(f"s_lshr_b32 s{s_a}, s2, 3")
    a(f"s_or_b32 s{s_a}, s{s_a}, s{s_wave}")
    a(f"s_cbranch_scc1 {Lne}")
    group_wait()
    flag_store(a, s_vo, False)
    a(f"{Lne}:")
    poll(a, gfv, f"s{s_fg}", T[1])
    stamp(a, 4)
    kv_first(False)
    a(f"s_mov_b32 s{s_st}, 0")
    a("s_barrier")
    a(f"s_branch {Latt}")

    a(f"{hooks[G.hst][1]}:")
    stamp(a, 11)
    a(f"s_bitset0_b32 s{s_st}, 0")
    group_wait()
    stamp(a, 12)
    if not G.nowb: a("buffer_wbl2 sc1")
    a("s_waitcnt vmcnt(0)")
    flag_regs(a)
    flag_store(a, s_vo, False)
    stamp(a, 13)
    a(f"s_branch {hooks[G.hst][2]}")
    a(f"{hooks[G.hsam][1]}:")
    a(f"buffer_load_dword v{gfd}, v{gfv}, {srd(SF)}, s{s_fg} offen sc1")
    a(f"s_mov_b32 s{s_st}, 16")
    a(f"s_branch {hooks[G.hsam][2]}")
    a(f"{hooks[(0,2)][1]}:")
    nafter = (pos[(0, 2)] - pos[G.hsam]) % (len(names) // 2)
    stamp(a, 14)
    a(f"s_waitcnt vmcnt({nafter})")
    stamp(a, 15)
    a(f"s_mov_b32 s{s_st}, 0")
    a(f"v_cmp_ne_u32 vcc, s{s_tag}, v{gfd}")
    a(f"s_cbranch_vccz {hooks[(0,2)][2]}")
    poll(a, gfv, f"s{s_fg}", gfd)
    stamp(a, 15)
    a(f"s_branch {hooks[(0,2)][2]}")

    a(f"{Lslow}:")
    vmx = gfd
    Ls0 = a.label("s0")
    a(f"s_cmp_eq_u32 s{s_kh}, 0")
    a(f"s_cbranch_scc1 {Ls0}")
    for i in range(2):
        for r in range(0, 4, 2): a(f"v_mov_b64 {v(Q1[i]+r,2)}, {v(Q1[2+i]+r,2)}")
        for h in range(2): a(f"v_mov_b64 {v(Q3[h][i],2)}, {v(Q3[h][2+i],2)}")
    a(f"{Ls0}:")
    for q in range(2):
        L1 = a.label("s1"); L2 = a.label("s2")
        a(f"v_mov_b32 v{vmx}, 0xff800000")
        a(f"s_mov_b32 s{s_ko}, 0")
        a(f"{L1}:")
        a(ld_k1(0)); a(ld_k1(1)); a(ld_k3(0))
        a("s_waitcnt vmcnt(0)")
        for t in range(2):
            a(qk1(0, q, t)); a(qk2(0, q, t))
            a("s_nop 15")
            for r in range(0, 16, 2):
                a(f"v_max3_f32 v{vmx}, v{S[0]+r}, v{S[0]+r+1}, v{vmx}")
        a(f"s_add_u32 s{s_ko}, s{s_ko}, {PS}")
        a(f"s_cmp_lt_u32 s{s_ko}, {HS}")
        a(f"s_cbranch_scc1 {L1}")
        a(f"v_mov_b32 v{T[0]}, v{vmx}")
        a("s_nop 1")
        a(f"v_permlane32_swap_b32 v{T[0]}, v{vmx}")
        a("s_nop 1")
        a(f"v_max_f32 v{vmx}, v{vmx}, v{T[0]}")
        for r in range(0, 16, 2):
            a(f"v_mov_b64 {v(O[q]+r,2)}, 0")
        a(f"s_mov_b32 s{s_ko}, 0")
        a(f"{L2}:")
        a(ld_k1(0)); a(ld_k1(1)); a(ld_k3(0)); a(ld_v(0)); a(ld_v(1))
        a("s_waitcnt vmcnt(0)")
        for t in range(2):
            a(qk1(0, q, t)); a(qk2(0, q, t))
            a("s_nop 15")
            for r in range(16):
                a(f"v_sub_f32 v{S[0]+r}, v{S[0]+r}, v{vmx}")
            for r in range(16):
                a(ex(0, r))
            a("s_nop 0")
            for r in range(0, 16, 2):
                a(cv(0, r))
            a("s_nop 1")
            a(pv(0, q, t, 0)); a(pv(0, q, t, 1))
        a(f"s_add_u32 s{s_ko}, s{s_ko}, {PS}")
        a(f"s_cmp_lt_u32 s{s_ko}, {HS}")
        a(f"s_cbranch_scc1 {L2}")
    a("s_nop 15")
    bcast_l()
    a("s_nop 1")
    a(f"s_branch {Lst}")
    a("Lcode_end:")
    return name

def build():
    a = Asm()
    PADS[:] = [0, 0, 0, 0]
    name = gen(a)
    if G.warm:
        i = a.lines.index(".PADRET")
        a.lines[i:i+1] = [f"Lpad_{c}_{PADS[c]}:" for c in range(4)]
    out = HEADER + "; @launch grid=(256,1,1) block=(512,1,1) lds=163840\n"
    out += '.amdgcn_target "amdgcn-amd-amdhsa--gfx950"\n.text\n' + a.text()
    out += '.section .rodata,"a"\n.p2align 6\n' + kernel_desc(name, 256, 100 if G.diag else 64)
    return out

if __name__ == "__main__":
    path = sys.argv[1] if len(sys.argv) > 1 else f"cdna_kernels/{NAME}.s"
    G.diag = "diag" in sys.argv
    for x in sys.argv[2:]:
        if "=" in x:
            k, val = x.split("=", 1)
            assert hasattr(G, k), k
            setattr(G, k, eval(val))
    open(path, "w").write(build())
    print("wrote", path)
```

```python
import sys
sys.path.insert(0, "gen")
from asmlib import *

NAME = "concat_heads__mha_block__softmax_full_mha__prompt"
HS = 163840
PS = 5120
KVL = 0x1400000
OBASE = 0xA00000
FBASE = 0x1000000
FLOFF = 0x40000
F2LOFF = 0x60000
XOFF = 0x70000
GFOFF = 0x78000
F2OFF = 0x80000
EOFF = 0x180000
DBGBASE = 0x2000000
QSCALE = 0x3ea52b5c
SLOT = 36864
SPARE = 4 * SLOT
QAREA = SLOT
WOBASE = 61440
MODE_LDS = 163836
SPIN = 400000
FSH = 7

HEADER = """; Kernarg layout for this problem (72 bytes, ptrs only, base s[0:1]):
"""

SX, SW, SKV, SF, SO = 4, 8, 12, 36, 40
(s_blk, s_m, s_n, s_wave, s_tag, s_k, s_a, s_b, s_c, s_it, s_xo, s_wo, s_m0x, s_m0w, s_kh, s_ko, s_vo, s_g) = range(44, 62)
s_vm = 62
s_st, s_loc, s_fg = 3, 34, 35
lane = 255
T = [0] * 6

class G:
    diag = False; dbg = None; amp = None
    lens = [9, 4, 2, 1]
    rot = True
    pro = 2; la = 3; nb1 = 2
    local = True
    sleep = 2
    iters = 8
    hst = (0, 1); hsam = (0, 0)
    oa = 3
    ost = 'nt'
    olst = ''
    ewb = None
    warm = False
    lst = ''
    v3 = True
    nowb = False
    wod = 4

PADS = [0, 0, 0, 0]
def pad_hop(a, c):
    if not G.warm: return
    a(f"Lpad_{c}_{PADS[c]}:")
    PADS[c] += 1
    a(f"s_cbranch_execz Lpad_{c}_{PADS[c]}")

def setT(base): T[:] = list(range(base, base + 6))
def srd(d): return f"s[{d}:{d+3}]"

def stamp(a, i):
    if not G.diag: return
    a("s_memtime s[96:97]")
    a("s_memrealtime s[98:99]")
    a("s_waitcnt lgkmcnt(0)")
    a(f"s_mov_b32 s{64+2*i}, s96")
    a(f"s_mov_b32 s{65+2*i}, s98")

def dump_stamps(a, n):
    if not G.diag: return
    a("s_waitcnt vmcnt(0)")
    stamp(a, n)
    a(f"s_lshl_b32 s{s_a}, s2, 3")
    a(f"s_add_u32 s{s_a}, s{s_a}, s{s_wave}")
    a(f"s_lshl_b32 s{s_a}, s{s_a}, 7")
    a(f"s_add_u32 s{s_a}, s{s_a}, {DBGBASE}")
    make_srd(a, SX, 32, f"s{s_a}", 128)
    a(f"v_mov_b32 v{T[0]}, 0")
    for i in range(32):
        a(f"v_mov_b32 v{T[1]}, s{64+i}")
        a(f"buffer_store_dword v{T[1]}, v{T[0]}, s[{SX}:{SX+3}], 0 offen offset:{4*i}")
    if G.dbg is not None:
        Ls = a.label("nodbg")
        a(f"s_lshl_b32 s{s_a}, s2, 3")
        a(f"s_add_u32 s{s_a}, s{s_a}, s{s_wave}")
        a(f"s_cmp_lg_u32 s{s_a}, {G.dbg}")
        a(f"s_cbranch_scc1 {Ls}")
        make_srd(a, SX, 30, None, 256)
        for i in range(1, 14):
            a(f"s_sub_u32 s{s_a}, s{65+2*i}, s65")
            a(f"v_mov_b32 v{T[1]}, s{s_a}")
            a(f"buffer_store_dword v{T[1]}, v{T[0]}, s[{SX}:{SX+3}], 0 offen offset:{4*i}")
        if G.amp is not None:
            Lw = a.label("amp")
            a(f"s_sub_u32 s{s_a}, s{65+2*G.amp}, s65")
            a(f"s_mul_i32 s{s_a}, s{s_a}, 4")
            a(f"s_add_u32 s{s_a}, s{s_a}, 1000")
            a(f"{Lw}:")
            a("s_memrealtime s[98:99]")
            a("s_waitcnt lgkmcnt(0)")
            a(f"s_sub_u32 s{s_b}, s98, s{65+2*n}")
            a(f"s_cmp_lt_u32 s{s_b}, s{s_a}")
            a(f"s_cbranch_scc1 {Lw}")
        a(f"{Ls}:")

def make_srd(a, d, base, off, nbytes):
    if off is None:
        a(f"s_mov_b64 s[{d}:{d+1}], s[{base}:{base+1}]")
    else:
        a(f"s_add_u32 s{d}, s{base}, {off}")
        a(f"s_addc_u32 s{d+1}, s{base+1}, 0")
    a(f"s_mov_b32 s{d+2}, {nbytes}")
    a(f"s_mov_b32 s{d+3}, 0x00020000")

def img_pos(a, pos, row, c):
    a(f"v_mul_u32_u24 v{row}, 3277, v{pos}")
    a(f"v_lshrrev_b32 v{row}, 16, v{row}")
    a(f"v_mad_i32_i24 v{c}, v{row}, -16, v{pos}")
    a(f"v_mad_i32_i24 v{c}, v{row}, -4, v{c}")
    a(f"v_lshrrev_b32 v{T[5]}, 3, v{row}")
    a(f"v_mad_i32_i24 v{c}, v{T[5]}, -2, v{c}")
    a(f"v_add_u32 v{T[5]}, 20, v{c}")
    a(f"v_min_u32 v{c}, v{c}, v{T[5]}")

def grp_src(a, dst, row, c, ld_sreg):
    a(f"v_cmp_lt_u32 vcc, 9, v{c}")
    a(f"v_add_u32 v{T[5]}, 16, v{row}")
    a(f"v_subrev_u32 v{T[4]}, 10, v{c}")
    a(f"v_cndmask_b32 v{row}, v{row}, v{T[5]}, vcc")
    a(f"v_cndmask_b32 v{c}, v{c}, v{T[4]}, vcc")
    a(f"v_lshlrev_b32 v{c}, 4, v{c}")
    a(f"v_mad_u32_u24 v{dst}, v{row}, s{ld_sreg}, v{c}")

def tr_addrs(a, wa, perm, grp, colhalf_sreg, base):
    a(f"v_bfe_u32 v{T[0]}, v{lane}, 2, 2")
    a(f"v_lshrrev_b32 v{T[1]}, 4, v{lane}")
    a(f"v_and_b32 v{T[2]}, 1, v{T[1]}")
    a(f"v_lshl_add_u32 v{T[0]}, v{T[2] if grp else T[1]}, 3, v{T[0]}")
    a(f"v_mul_u32_u24 v{T[0]}, 320, v{T[0]}")
    if base: a(f"v_add_u32 v{T[0]}, {base}, v{T[0]}")
    a(f"v_lshlrev_b32 v{T[2]}, 5, v{T[2]}")
    if grp:
        a(f"v_lshrrev_b32 v{T[1]}, 1, v{T[1]}")
        a(f"v_mul_u32_u24 v{T[1]}, 160, v{T[1]}")
        a(f"v_add_u32 v{T[2]}, v{T[2]}, v{T[1]}")
    else:
        a(f"s_mul_i32 s{s_a}, s{colhalf_sreg}, 160")
        a(f"v_add_u32 v{T[2]}, s{s_a}, v{T[2]}")
    a(f"v_and_b32 v{T[1]}, 3, v{lane}")
    a(f"v_mad_u32_u24 v{T[2]}, v{T[1]}, {40 if perm else 8}, v{T[2]}")
    for j in range(5):
        a(f"v_add_u32 v{T[1]}, {8*j if perm else 32*j}, v{T[2]}")
        a(f"v_subrev_u32 v{T[3]}, 320, v{T[1]}")
        a(f"v_min_u32 v{T[1]}, v{T[1]}, v{T[3]}")
        a(f"v_add_u32 v{wa[j]}, v{T[1]}, v{T[0]}")

def x_addrs(a, xa, rowbase_sreg):
    a(f"v_and_b32 v{T[0]}, 15, v{lane}")
    a(f"v_lshrrev_b32 v{T[1]}, 1, v{T[0]}")
    a(f"v_lshrrev_b32 v{T[2]}, 4, v{lane}")
    a(f"v_xor_b32 v{T[1]}, v{T[1]}, v{T[2]}")
    a(f"v_lshl_add_u32 v{T[0]}, v{T[0]}, 7, s{rowbase_sreg}")
    a(f"v_lshl_add_u32 v{xa[0]}, v{T[1]}, 4, v{T[0]}")
    a(f"v_xor_b32 v{xa[1]}, 64, v{xa[0]}")

def poll(a, voff, soff, tmp):
    L = a.label("poll"); Ld = a.label("polld")
    a(f"s_mov_b32 s{s_c}, {SPIN}")
    a(f"{L}:")
    a(f"buffer_load_dword v{tmp}, v{voff}, {srd(SF)}, {soff} offen sc1")
    a("s_waitcnt vmcnt(0)")
    a(f"v_cmp_ne_u32 vcc, s{s_tag}, v{tmp}")
    a(f"s_cbranch_vccz {Ld}")
    a(f"s_sub_u32 s{s_c}, s{s_c}, 1")
    a(f"s_cbranch_scc1 {Ld}")
    a(f"s_sleep {G.sleep}")
    a(f"s_branch {L}")
    a(f"{Ld}:")

def flag_regs(a, val=None):
    a(f"v_lshlrev_b32 v{T[4]}, 2, v{lane}")
    a(f"v_mov_b32 v{T[5]}, s{s_tag if val is None else val}")
def flag_store(a, off_sreg, local=False):
    if local:
        a("s_mov_b64 exec, 1")
    else:
        a("s_mov_b32 exec_hi, 0")
    a(f"buffer_store_dword v{T[5]}, v{T[4]}, {srd(SF)}, s{off_sreg} offen {'' if local else 'sc1'}")
    a("s_mov_b64 exec, -1")

def small_gemm(a, BF, ACC, W, wa, gbase, pre, cur0=0, vmw=None, chain=0):
    n = len(gbase)
    cur = [cur0]
    def shift(g):
        out = []
        if not (cur[0] <= gbase[g] and gbase[g] + 1280 - cur[0] <= 65535):
            want = (gbase[g] // 57344) * 57344
            d = want - cur[0]
            out = [(f"v_add_u32 v{wa[j]}, {d}, v{wa[j]}" if d > 0 else f"v_subrev_u32 v{wa[j]}, {-d}, v{wa[j]}") for j in range(5)]
            cur[0] = want
        return out
    def rd(g, j, t): return f"ds_read_b64_tr_b16 {v(W[g&1]+4*j+2*t,2)}, v{wa[j]} offset:{gbase[g]-cur[0]+1280*t}"
    for x in shift(0): a(x)
    for j in range(5):
        a(rd(0, j, 0)); a(rd(0, j, 1))
    for g in range(n):
        last = g == n - 1
        if g % 2 == 0: pad_hop(a, chain)
        for x in pre.get(("h", g), []): a(x)
        if not last:
            for x in shift(g + 1): a(x)
        ex = list(pre.get(("x", g), []))
        for j in range(5):
            if j == 0: a(f"s_waitcnt {('vmcnt(%d) ' % vmw(g)) if vmw else ''}lgkmcnt(6)")
            if j == 2: a(f"s_waitcnt lgkmcnt({0 if last else 4})")
            for ii in range(2):
                d = v(ACC + 4 * (5 * ii + j), 4)
                a(f"v_mfma_f32_16x16x32_bf16 {d}, {v(W[g&1]+4*j,4)}, {v(BF+8*g+4*ii,4)}, {d if g else 0}")
                if not last: a(rd(g + 1, j, ii))
            if ex: a(ex.pop(0))
        for x in ex: a(x)

def gen(a):
    name = NAME + "_kernel"
    kernel_header(a, name)
    Lend = a.label("end"); Lcons = a.label("cons"); Lv = a.label("vtype"); Latt = a.label("att")
    a("s_cmp_ge_u32 s2, 256")
    a(f"s_cbranch_scc1 {Lend}")
    stamp(a, 0)
    a("s_load_dwordx16 s[16:31], s[0:1], 0")
    a("s_load_dwordx2 s[32:33], s[0:1], 64")
    a("s_mov_b64 exec, -1")
    a(f"v_lshrrev_b32 v1, 6, v0")
    a(f"v_and_b32 v{lane}, 63, v0")
    a(f"v_readfirstlane_b32 s{s_wave}, v1")
    a(f"s_and_b32 s{s_a}, s2, 7")
    a(f"s_lshr_b32 s{s_b}, s2, 3")
    a(f"s_lshr_b32 s{s_blk}, s{s_a}, 2")
    a(f"s_and_b32 s{s_a}, s{s_a}, 3")
    a(f"s_lshr_b32 s{s_c}, s{s_b}, 3")
    a(f"s_lshl2_add_u32 s{s_m}, s{s_a}, s{s_c}")
    a(f"s_and_b32 s{s_n}, s{s_b}, 7")
    if G.rot:
        a(f"s_mul_i32 s{s_k}, s{s_c}, 3")
        a(f"s_add_u32 s{s_k}, s{s_k}, s{s_n}")
        a(f"s_add_u32 s{s_k}, s{s_k}, s{s_a}")
        a(f"s_cmp_ge_u32 s{s_k}, 10")
        a(f"s_cselect_b32 s{s_a}, 10, 0")
        a(f"s_sub_u32 s{s_k}, s{s_k}, s{s_a}")
    else:
        a(f"s_mov_b32 s{s_k}, 0")
    a(f"s_and_b32 s{s_g}, s{s_wave}, 3")
    a(f"s_lshr_b32 s{s_kh}, s{s_wave}, 2")
    a(f"s_cbranch_scc0 {Lcons}")

    def common_ptrs():
        a("s_waitcnt lgkmcnt(0)")
        a(f"s_cmp_eq_u32 s{s_blk}, 0")
        a("s_cselect_b64 s[16:17], s[16:17], s[22:23]")
        a("s_cselect_b64 s[18:19], s[18:19], s[24:25]")
        a("s_cselect_b64 s[20:21], s[20:21], s[26:27]")
    def epoch_load():
        a(f"s_lshl_b32 s{s_a}, s{s_blk}, 7")
        a(f"s_add_u32 s{s_a}, s{s_a}, {FBASE+EOFF}")
        a(f"s_load_dword s{s_tag}, s[32:33], s{s_a}")
        make_srd(a, SF, 32, FBASE, EOFF + 0x1000)
    def epoch_fin():
        a("s_waitcnt lgkmcnt(0)")
        a(f"s_mul_i32 s{s_tag}, s{s_tag}, 0x9E3779B1")
        a(f"s_add_u32 s{s_tag}, s{s_tag}, 0x7F4A7C15")

    O = [0, 16, 32, 48]; S = [64, 80]; P = [96, 104]
    K1 = [112, 116, 120, 124]; K3 = [128, 130]; V = [132, 140, 148, 156]
    Q1 = [164, 168, 172, 176]; Q3 = [[180, 182, 184, 186], [188, 190, 192, 194]]
    KVD = 196; sa = [236, 237, 238, 239, 246]
    ka, k3a, va, gwo, gfv, gfd = 240, 241, 242, 243, 244, 245

    def att_addrs():
        a(f"s_lshl3_add_u32 s{s_a}, s{s_blk}, s{s_n}")
        a(f"s_lshl2_add_u32 s{s_a}, s{s_a}, s{s_g}")
        a(f"s_mul_i32 s{s_a}, s{s_a}, {HS}")
        make_srd(a, SKV, 32, f"s{s_a}", HS)
        a(f"v_lshlrev_b32 v{ka}, 4, v{lane}")
        a(f"v_lshlrev_b32 v{k3a}, 3, v{lane}")
        a(f"v_and_b32 v{T[0]}, 31, v{lane}")
        a(f"v_lshrrev_b32 v{T[1]}, 1, v{T[0]}")
        a(f"v_xor_b32 v{T[1]}, v{T[1]}, v{T[0]}")
        a(f"v_and_b32 v{T[1]}, 4, v{T[1]}")
        a(f"v_mul_u32_u24 v{T[1]}, 3, v{T[1]}")
        a(f"v_xor_b32 v{T[1]}, v{T[1]}, v{T[0]}")
        a(f"s_and_b32 s{s_a}, s{s_g}, 1")
        a(f"s_lshl_b32 s{s_a}, s{s_a}, 2")
        a(f"v_add_u32 v{T[1]}, s{s_a}, v{T[1]}")
        a(f"v_subrev_u32 v{T[2]}, 20, v{T[1]}")
        a(f"v_min_u32 v{T[1]}, v{T[1]}, v{T[2]}")
        a(f"v_lshrrev_b32 v{T[2]}, 5, v{lane}")
        a(f"v_mul_u32_u24 v{T[3]}, 320, v{T[2]}")
        a(f"v_lshl_add_u32 v{va}, v{T[1]}, 4, v{T[3]}")
        a(f"v_add_u32 v{va}, 2560, v{va}")
        a(f"s_and_b32 s{s_ko}, s{s_m}, 12")
        a(f"s_lshl1_add_u32 s{s_ko}, s{s_ko}, s{s_kh}")
        a(f"s_mul_i32 s{s_ko}, s{s_ko}, {PS}")
        a(f"s_mov_b32 s{s_vm}, 0x000fffff")
        a(f"s_mov_b32 s{s_vm+1}, 0x000fffff")
        a(f"s_lshl_b32 s{s_fg}, s{s_blk}, 9")
        a(f"s_add_u32 s{s_fg}, s{s_fg}, {GFOFF}")
        a(f"v_and_b32 v{gfv}, 3, v{lane}")
        a(f"v_lshlrev_b32 v{gfv}, 7, v{gfv}")
        a(f"s_min_u32 s{s_a}, s{s_wave}, 4")
        a(f"s_lshl_b32 s{s_b}, s{s_a}, 6")
        a(f"v_add_u32 v{T[0]}, s{s_b}, v{lane}")
        img_pos(a, T[0], T[1], T[2])
        a(f"s_movk_i32 s{s_c}, 1280")
        grp_src(a, gwo, T[1], T[2], s_c)
    def wo_scalars():
        make_srd(a, SW, 20, None, 640 * 1280)
        a(f"s_cmp_gt_u32 s{s_wave}, 4")
        a(f"s_cselect_b32 s{s_c}, {24*5120}, 0")
        a(f"s_lshl_b32 s{s_m0w}, s{s_wave}, 10")
        if G.wod: a(f"s_sub_u32 s{s_m0w}, s{s_m0w}, {G.wod*5120}")
        a(f"s_add_u32 s{s_m0w}, s{s_m0w}, s{s_c}")
        a(f"s_mul_i32 s{s_wo}, s{s_n}, 160")
        a(f"s_lshl3_add_u32 s{s_wo}, s{s_c}, s{s_wo}")
        if G.wod: a(f"s_sub_u32 s{s_wo}, s{s_wo}, {G.wod*32*1280}")
    def ld_k1(b): return f"buffer_load_dwordx4 {v(K1[b],4)}, v{ka}, {srd(SKV)}, s{s_ko} offen offset:{1024*(b&1)} sc1"
    def ld_k3(p): return f"buffer_load_dwordx2 {v(K3[p],2)}, v{k3a}, {srd(SKV)}, s{s_ko} offen offset:2048 sc1"
    def ld_v(b, m=s_vm):
        return (f"s_mov_b64 exec, s[{m}:{m+1}]\n"
                f"buffer_load_dwordx4 {v(V[b],4)}, v{va}, {srd(SKV)}, s{s_ko} offen offset:{1280*(b&1)} sc1\n"
                f"buffer_load_dwordx4 {v(V[b]+4,4)}, v{va}, {srd(SKV)}, s{s_ko} offen offset:{1280*(b&1)+640} sc1\n"
                f"s_mov_b64 exec, -1")
    def adv_pair():
        return [f"s_add_u32 s{s_ko}, s{s_ko}, {2*PS}", f"s_cmp_ge_u32 s{s_ko}, {HS}",
                f"s_cselect_b32 s{s_c}, {HS}, 0", f"s_sub_u32 s{s_ko}, s{s_ko}, s{s_c}"]
    def pad_value():
        a(f"v_and_b32 v{S[0]}, 31, v{lane}")
        a(f"v_cmp_eq_u32 vcc, 20, v{S[0]}")
        a(f"v_mov_b32 v{S[0]+1}, 0x3f803f80")
        a(f"v_mov_b64 {v(P[1],2)}, 0")
        a(f"v_cndmask_b32 v{S[0]}, 0, v{S[0]+1}, vcc")
        a(f"v_mov_b32 v{S[0]+1}, v{S[0]}")
    def pad(b):
        for r in range(0, 8, 2): a(f"v_mov_b64 {v(V[b]+r,2)}, {v(S[0],2)}")
    def zero_acc():
        for q in range(4): a(f"v_mfma_f32_32x32x8_bf16 {v(O[q],16)}, {v(P[1],2)}, {v(P[1],2)}, 0")
        for r in range(2, 8, 2): a(f"v_mov_b64 {v(P[1]+r,2)}, 0")
    first = [("K1", 0), ("K3", 0), ("V", 0), ("V", 0), ("K1", 1), ("V", 1), ("V", 1), ("K1", 2), ("V", 2), ("V", 2), ("K1", 3), ("K3", 1)]
    if G.v3: first += [("V", 3)] * 2
    def kv_first(with_pad):
        a(ld_k1(0)); a(ld_k3(0))
        if with_pad: pad_value(); pad(0)
        a(ld_v(0)); a(ld_k1(1))
        if with_pad: pad(1)
        a(ld_v(1))
        for x in adv_pair(): a(x)
        a(ld_k1(2))
        if with_pad: pad(2)
        a(ld_v(2)); a(ld_k1(3)); a(ld_k3(1))
        if with_pad: pad(3)
        if G.v3:
            a(ld_v(3))
            a("s_mov_b64 s[22:23], 0")

    XF = 0; ACC2 = 160; W2 = [200, 220]
    gx = [160, 161, 162, 163]; gw = [164, 165, 166, 167, 168]; gq = [251, 252, 253, 254, 245]
    wa2 = [246, 247, 248, 249, 250]; xa2 = [210, 211]
    setT(200)
    a(f"v_lshrrev_b32 v{T[0]}, 4, v{lane}")
    a(f"v_xor_b32 v{T[0]}, v{T[0]}, v{lane}")
    a(f"v_and_b32 v{T[0]}, 7, v{T[0]}")
    a(f"v_lshrrev_b32 v{T[1]}, 3, v{lane}")
    a(f"v_mul_u32_u24 v{T[1]}, 1280, v{T[1]}")
    a(f"v_lshl_add_u32 v{gx[0]}, v{T[0]}, 4, v{T[1]}")
    a(f"v_xor_b32 v{gx[1]}, 64, v{gx[0]}")
    a(f"v_add_u32 v{gx[1]}, 9216, v{gx[1]}")
    a(f"v_add_u32 v{gx[2]}, 18432, v{gx[0]}")
    a(f"v_add_u32 v{gx[3]}, 18432, v{gx[1]}")
    a(f"s_movk_i32 s{s_c}, 3840")
    rows = [212 + 2 * i for i in range(5)]
    for i in range(5):
        if i: a(f"v_add_u32 v{T[0]}, {64*i}, v{lane}")
        img_pos(a, T[0] if i else lane, rows[i], rows[i] + 1)
        a(f"v_lshlrev_b32 v{T[3]}, 4, v{rows[i]+1}")
        a(f"v_mad_u32_u24 v{gw[i]}, v{rows[i]}, s{s_c}, v{T[3]}")
        if i & 3: a(f"v_subrev_u32 v{gw[i]}, {1024*i}, v{gw[i]}")
    a(f"s_lshl_b32 s{s_m0x}, s{s_g}, 12")
    a(f"s_mul_i32 s{s_m0w}, s{s_g}, 5120")
    a(f"s_add_u32 s{s_m0w}, s{s_m0w}, 16384")
    a(f"s_lshl2_add_u32 s{s_a}, s{s_m}, s{s_g}")
    a(f"s_mul_i32 s{s_a}, s{s_a}, {32*1280}")
    a(f"s_mul_i32 s{s_fg}, s{s_n}, 320")
    a(f"s_mul_i32 s{s_b}, s{s_g}, {16*3840}")
    a(f"s_add_u32 s{s_fg}, s{s_fg}, s{s_b}")
    a(f"s_add_u32 s{s_loc}, s{s_fg}, 1280")
    a(f"s_mov_b32 s{s_vo}, s{s_k}")
    common_ptrs()
    make_srd(a, SX, 16, f"s{s_a}", 32 * 1280)
    make_srd(a, SW, 18, None, 640 * 3840)
    lseq = []
    def issue_stage(i):
        sl = (i & 3) * SLOT
        a(f"s_add_u32 m0, s{s_m0x}, {sl}")
        a(f"s_lshl_b32 s{s_xo}, s{s_k}, 7")
        for ii in range(4):
            a(f"buffer_load_dwordx4 v{gx[ii]}, {srd(SX)}, s{s_xo} offen offset:{1024*ii} lds")
        a(f"s_mul_i32 s{s_wo}, s{s_k}, {64*3840}")
        a(f"s_add_u32 m0, s{s_m0w}, {sl}")
        a(f"s_add_u32 s{s_wo}, s{s_wo}, s{s_loc}")
        for ii in range(4):
            a(f"buffer_load_dwordx4 v{gw[ii]}, {srd(SW)}, s{s_wo} offen offset:{1024*ii} lds")
        a(f"s_add_u32 m0, s{s_m0w}, {sl+4096}")
        a(f"s_add_u32 s{s_k}, s{s_k}, 1")
        a(f"buffer_load_dwordx4 v{gw[4]}, {srd(SW)}, s{s_wo} offen lds")
        if G.rot:
            a(f"s_cmp_eq_u32 s{s_k}, 10")
            a(f"s_cselect_b32 s{s_k}, 0, s{s_k}")
        lseq.extend([("st", i)] * 9)
    gbase = [2 * SLOT + g * 5120 for g in range(7)] + [SPARE] + [3 * SLOT + g * 5120 for g in range(7)] + [SPARE + 5120] + [g * 5120 for g in range(4)]
    def round_ins(R):
        o = []
        x = f"s_add_u32 s{s_wo}, s{s_st}, {R*4*32*3840}"
        if G.rot:
            x += f"\ns_cmp_ge_u32 s{s_wo}, {640*3840}\ns_cselect_b32 s{s_b}, {640*3840}, 0\ns_sub_u32 s{s_wo}, s{s_wo}, s{s_b}"
        gb = gbase[4 * R:4 * R + 4]
        assert gb[1] == gb[0] + 5120 and gb[2] == gb[0] + 10240
        x += f"\ns_add_u32 s{s_a}, s{s_m0w}, {(gb[0]-16384) & 0xffffffff}"
        if gb[3] != gb[0] + 15360:
            x += f"\ns_cmp_eq_u32 s{s_g}, 3\ns_cselect_b32 s{s_a}, {gb[3]}, s{s_a}"
        x += f"\ns_mov_b32 m0, s{s_a}\ns_add_u32 s{s_a}, s{s_a}, 4096"
        o.append(x)
        for ii in range(4):
            o.append(f"buffer_load_dwordx4 v{gq[ii]}, {srd(SW)}, s{s_wo} offen offset:{1024*ii} lds")
        o.append(f"s_mov_b32 m0, s{s_a}\ns_nop 0\nbuffer_load_dwordx4 v{gq[4]}, {srd(SW)}, s{s_wo} offen lds")
        lseq.extend([("R", R)] * 5)
        return o
    def issue_item(i):
        if i < 10: issue_stage(i)
        elif i < 15:
            for x in round_ins(i - 10): a(x)
    def lwait(key):
        return len(lseq) - 1 - max(i for i, x in enumerate(lseq) if x == key)
    stamp(a, 11)
    issue_stage(0)
    stamp(a, 12)
    epoch_load()
    a(f"s_lshl_b32 s{s_b}, s{s_g}, 12")
    x_addrs(a, xa2, s_b)
    for i in range(1, G.pro): issue_stage(i)
    stamp(a, 13)
    epoch_fin()
    a(f"s_waitcnt vmcnt({lwait(('st',0))})")
    a("s_barrier")
    stamp(a, 1)
    for i in range(G.pro, G.la): issue_stage(i)
    xoff = 0
    for st in range(10):
        sl = (st & 3) * SLOT
        want = 0 if sl < 2 * SLOT else 2 * SLOT
        if want != xoff:
            for r in xa2:
                a(f"v_add_u32 v{r}, {want-xoff}, v{r}" if want > xoff else f"v_subrev_u32 v{r}, {xoff-want}, v{r}")
            xoff = want
        for ks in range(2):
            for ii in range(2):
                a(f"ds_read_b128 {v(XF+16*st+8*ks+4*ii,4)}, v{xa2[ks]} offset:{sl-xoff+2048*ii}")
        if st == 0:
            a(f"s_movk_i32 s{s_c}, 3840")
            for i in range(5):
                grp_src(a, gq[i], rows[i], rows[i] + 1, s_c)
                if i & 3: a(f"v_subrev_u32 v{gq[i]}, {1024*i}, v{gq[i]}")
            a(f"s_lshl1_add_u32 s{s_st}, s{s_vo}, s{s_g}")
            a(f"s_mul_i32 s{s_st}, s{s_st}, {32*3840}")
            a(f"s_mul_i32 s{s_a}, s{s_n}, 160")
            a(f"s_add_u32 s{s_st}, s{s_st}, s{s_a}")
        if st == 1: tr_addrs(a, wa2, True, True, None, 0)
        if st == 2:
            att_addrs()
        if st == 4 and G.warm:
            a("s_mov_b64 exec, 0")
            for c in range(3):
                a(f"s_cmp_eq_u32 s{s_g}, {c}")
                a(f"s_cbranch_scc1 Lpad_{c}_0")
            a("s_branch Lpad_3_0")
            a(".PADRET")
            a("s_mov_b64 exec, -1")
        key = ("st", st + 1) if st < 9 else ("R", 0)
        a(f"s_waitcnt vmcnt({lwait(key)}) lgkmcnt(0)")
        a("s_barrier")
        if st < 9: issue_item(st + G.la)
    stamp(a, 2)
    pre = {}
    nxt = G.la - 1
    for R in range(5):
        ins = round_ins(nxt) if nxt < 5 else []
        nxt += 1
        if ins:
            pre[("x", 4 * R)] = ins[0:2]
            pre[("x", 4 * R + 1)] = ins[2:4]
            pre[("x", 4 * R + 2)] = ins[4:]
        if R < 4:
            pre[("h", 4 * R + 3)] = [f"s_waitcnt vmcnt({lwait(('R', R + 1))})", "s_barrier"]
    qa, qb, md = 0, 1, 2
    half = [f"v_lshrrev_b32 v{qa}, 4, v{lane}", f"v_mul_u32_u24 v{qa}, 5120, v{qa}", f"s_mul_i32 s{s_b}, s{s_g}, 1280",
            f"s_add_u32 s{s_b}, s{s_b}, {QAREA}", f"v_add_u32 v{qa}, s{s_b}, v{qa}"]
    pre[("x", 16)] = half
    pre[("x", 17)] = [f"v_and_b32 v{md}, 15, v{lane}", f"v_lshl_add_u32 v{qb}, v{md}, 3, v{qa}", f"v_lshl_add_u32 v{qa}, v{md}, 4, v{qa}",
                      f"v_mov_b32 v{md}, {MODE_LDS}", f"s_mov_b32 s{s_a}, {QSCALE:#x}\ns_mov_b32 s{s_b}, {QSCALE:#x}"]
    pre[("x", 19)] = [f"ds_read_b32 v{md}, v{md}"]
    small_gemm(a, XF, ACC2, W2, wa2, gbase, pre)
    stamp(a, 3)
    a("s_nop 4")
    assert s_a % 2 == 0 and s_b == s_a + 1
    for ii in range(2):
        r = ACC2 + 20 * ii
        pad_hop(a, 0)
        for e in range(10):
            a(f"v_pk_mul_f32 {v(r+2*e,2)}, {v(r+2*e,2)}, s[{s_a}:{s_b}]")
        for e in range(10):
            a(f"v_cvt_pk_bf16_f32 v{r+e}, v{r+2*e}, v{r+2*e+1}")
        a(f"ds_write_b128 v{qa}, {v(r,4)} offset:{256*ii}")
        a(f"ds_write_b128 v{qa}, {v(r+4,4)} offset:{256*ii+512}")
        a(f"ds_write_b64 v{qb}, {v(r+8,2)} offset:{128*ii+1024}")
    a("s_waitcnt lgkmcnt(0)")
    a(f"v_readfirstlane_b32 s{s_loc}, v{md}")
    a("s_barrier")
    a(f"s_and_b32 s{s_loc}, s{s_loc}, 1")
    a(f"s_lshl_b32 s{s_st}, s{s_loc}, 2")
    stamp(a, 4)
    pad_hop(a, 1)
    kv_first(True)
    pad_hop(a, 1)
    zero_acc()
    wo_scalars()

    a(f"{Latt}:")
    setT(247)
    a(f"s_mul_i32 s{s_b}, s{s_g}, 5120")
    a(f"s_add_u32 s{s_b}, s{s_b}, {QAREA}")
    a(f"v_add_u32 v{T[0]}, s{s_b}, v{ka}")
    a(f"v_and_b32 v{T[1]}, 31, v{lane}")
    a(f"v_lshl_add_u32 v{T[1]}, v{T[1]}, 3, s{s_b}")
    for q in range(4):
        a(f"v_mov_b64 {v(Q3[0][q],2)}, 0")
        a(f"v_mov_b64 {v(Q3[1][q],2)}, 0")
    for q in range(4):
        a(f"ds_read_b128 {v(Q1[q],4)}, v{T[0]} offset:{1280*q}")
    for h in range(2):
        a(f"s_mov_b32 exec_lo, {-1 if h == 0 else 0}")
        a(f"s_mov_b32 exec_hi, {0 if h == 0 else -1}")
        for q in range(4):
            a(f"ds_read_b64 {v(Q3[h][q],2)}, v{T[1]} offset:{1280*q+1024}")
    a("s_mov_b64 exec, -1")
    pad_hop(a, 1)
    a(f"s_mov_b32 s{s_it}, 0")

    def qk1(sb, q, t): return f"v_mfma_f32_32x32x16_bf16 {v(S[sb],16)}, {v(K1[t],4)}, {v(Q1[q],4)}, 0"
    def qk2(sb, q, t): return f"v_mfma_f32_32x32x8_bf16 {v(S[sb],16)}, {v(K3[t>>1],2)}, {v(Q3[t&1][q],2)}, {v(S[sb],16)}"
    def pv(pb, q, t, h): return f"v_mfma_f32_32x32x16_bf16 {v(O[q],16)}, {v(V[t]+4*h,4)}, {v(P[pb]+4*h,4)}, {v(O[q],16)}"
    def ex(q, r): return f"v_exp_f32 v{S[q]+r}, v{S[q]+r}"
    def cv(q, r): return f"v_cvt_pk_bf16_f32 v{P[q]+r//2}, v{S[q]+r}, v{S[q]+r+1}"
    wo_dma = [f"s_min_u32 s{s_c}, s{s_m0w}, 0x20000", f"s_add_u32 m0, s{s_c}, {WOBASE}", f"s_add_u32 s{s_m0w}, s{s_m0w}, 5120",
              f"buffer_load_dwordx4 v{gwo}, {srd(SW)}, s{s_wo} offen lds", f"s_add_u32 s{s_wo}, s{s_wo}, {32*1280}"]
    plan = {}
    for tt in range(4):
        pb = (tt - 1) % 4
        plan[(tt, 1)] = ([ld_v(pb)], [("V", pb)] * 2)
        if G.v3 and pb == 3: plan[(tt, 1)] = ([ld_v(pb, 22), f"s_mov_b64 s[22:23], s[{s_vm}:{s_vm+1}]"], [("V", pb)] * 2)
        if tt & 1:
            plan[(tt, 3)] = ([ld_k1(tt), ld_k3(tt >> 1)], [("K1", tt), ("K3", tt >> 1)])
        else:
            plan[(tt, 3)] = ([ld_k1(tt)], [("K1", tt)])
            plan[(tt, 2)] = (adv_pair(), [])
        if tt > 0:
            plan[(tt, 0)] = (wo_dma, [("WO",)])
    order = [(tt, q) for tt in range(4) for q in range(4)]
    names = []; pos = {}
    for rep in range(2):
        for key in order:
            if rep == 1: pos[key] = len(names)
            names += plan.get(key, ([], []))[1]
    def need(tt):
        nt = (tt + 1) % 4
        return [("K1", nt), ("V", nt), ("K3", nt >> 1)]
    n0 = list(first); waits = {}
    for key in order:
        if key[1] == 3:
            p = pos[key]
            w1 = p - 1 - max(max(i for i in range(p) if names[i] == k) for k in need(key[0]))
            w2 = len(n0) - 1 - max(max(i for i in range(len(n0)) if n0[i] == k) for k in need(key[0]))
            waits[key[0]] = min(w1, w2)
        n0 += plan.get(key, ([], []))[1]
    a(f"s_waitcnt vmcnt({len(first)-4}) lgkmcnt(0)")
    stamp(a, 5)
    a(qk1(0, 0, 0)); a(qk2(0, 0, 0))
    a("s_setprio 3")
    a("s_nop 7")
    a("s_nop 3")
    L = a.label("al")
    a(".p2align 6")
    a(f"{L}:")
    hooks = {G.hst: (0, a.label("hA"), a.label("hAb")),
             G.hsam: (3, a.label("hB"), a.label("hBb")), (0, 2): (4, a.label("hC"), a.label("hCb"))}
    cum = [sum(G.lens[:i]) for i in range(4)]
    step = 0
    for tt in range(4):
        for q in range(4):
            c = q & 1; o = 1 - c
            nq, nt = (q + 1, tt) if q < 3 else (0, (tt + 1) % 4)
            pq, pt = (q - 1, tt) if q > 0 else (3, (tt - 1) % 4)
            extra = list(plan.get((tt, q), ([], []))[0])
            if q & 1: pad_hop(a, 1)
            if (tt, q) in hooks:
                bit, lo, lb = hooks[(tt, q)]
                a(f"s_bitcmp1_b32 s{s_st}, {bit}")
                a(f"s_cbranch_scc1 {lo}")
                a(f"{lb}:")
            if q == 3: a(f"s_waitcnt vmcnt({waits[tt]})")
            if (tt, q) == (2, 1): extra += [f"s_lshl_b32 s{s_st}, s{s_st}, 1"]
            if (tt, q) == (3, 2): extra += [f"s_add_u32 s{s_it}, s{s_it}, 1", f"s_cmp_lt_u32 s{s_it}, {G.iters}"]
            ms = [qk1(o, nq, nt), qk2(o, nq, nt), pv(o, pq, pt, 0), pv(o, pq, pt, 1)]
            for j in range(4):
                a(ms[j])
                if j: a(cv(c, 4 * j - 2))
                for e in range(3):
                    a(ex(c, 4 * j + e))
                    if extra: a(extra.pop(0))
                if j < 3:
                    a(cv(c, 4 * j)); a(ex(c, 4 * j + 3))
                else:
                    a(ex(c, 15)); a(cv(c, 12))
            n = (step + 1) % sum(G.lens)
            if n in cum: a(f"s_setprio {3 - cum.index(n)}")
            a(cv(c, 14))
            step += 1
    a(f"s_cbranch_scc1 {L}")
    a(f"s_mul_i32 s{s_a}, s{s_wave}, 6144")
    a(pv(1, 3, 3, 0)); a(pv(1, 3, 3, 1))
    a("s_setprio 0")
    Lk1 = a.label("k1"); Lj = a.label("kj"); Lslow = a.label("slow"); Lst = a.label("store")
    own, oth, oa1, oa2 = 253, 254, 238, 239
    a(f"v_add_u32 v{own}, s{s_a}, v{ka}")
    a(f"s_xor_b32 s{s_a}, s{s_wave}, 4")
    a(f"s_mul_i32 s{s_a}, s{s_a}, 6144")
    a(f"v_add_u32 v{oth}, s{s_a}, v{ka}")
    stamp(a, 6)
    pad_hop(a, 2)
    a(f"s_lshl4_add_u32 s{s_xo}, s{s_blk}, s{s_m}")
    a(f"s_lshl1_add_u32 s{s_a}, s{s_xo}, s{s_kh}")
    a(f"s_mul_i32 s{s_a}, s{s_a}, {4*20480}")
    a(f"s_add_u32 s{s_a}, s{s_a}, {OBASE}")
    make_srd(a, SO, 32, f"s{s_a}", 4 * 20480)
    a(f"s_cmp_eq_u32 s{s_kh}, 0")
    a(f"s_cbranch_scc0 {Lk1}")
    for i in range(2):
        for gq_ in range(3):
            a(f"ds_write_b128 v{own}, {v(O[2+i]+4*gq_,4)} offset:{(i*3+gq_)*1024}")
    a(f"s_branch {Lj}")
    a(f"{Lk1}:")
    for i in range(2):
        for gq_ in range(3):
            a(f"ds_write_b128 v{own}, {v(O[i]+4*gq_,4)} offset:{(i*3+gq_)*1024}")
    a("s_nop 1")
    for i in range(2):
        for r in range(0, 12, 2):
            a(f"v_mov_b64 {v(O[i]+r,2)}, {v(O[2+i]+r,2)}")
    a(f"{Lj}:")
    pad_hop(a, 2)
    a(f"s_lshl2_add_u32 s{s_vo}, s{s_n}, s{s_g}")
    a(f"s_mul_i32 s{s_b}, s{s_vo}, 5")
    a(f"s_add_u32 s{s_b}, s{s_b}, 1")
    a(f"s_lshr_b32 s{s_b}, s{s_b}, 1")
    a(f"s_lshl_b32 s{s_b}, s{s_b}, 8")
    a(f"s_movk_i32 s{s_a}, 512")
    a(f"s_and_b32 s{s_c}, s{s_g}, 1")
    a(f"s_cselect_b32 s{s_c}, {(-256+8) & 0xffffffff}, s{s_a}")
    a(f"s_add_u32 s{s_c}, s{s_c}, s{s_b}")
    a(f"v_bfe_u32 v{T[2]}, v{lane}, 4, 1")
    a(f"v_mul_u32_u24 v{T[2]}, 20480, v{T[2]}")
    a(f"v_and_b32 v{T[3]}, 15, v{lane}")
    a(f"v_lshl_add_u32 v{T[2]}, v{T[3]}, 4, v{T[2]}")
    a(f"v_lshrrev_b32 v{T[4]}, 5, v{lane}")
    a(f"v_lshl_add_u32 v{T[3]}, v{T[4]}, 20, v{T[2]}")
    a(f"v_lshl_add_u32 v{T[2]}, v{T[4]}, 8, v{T[2]}")
    a(f"v_add_u32 v{oa1}, s{s_b}, v{T[2]}")
    a(f"v_add_u32 v{oa2}, s{s_c}, v{T[3]}")
    a("s_waitcnt vmcnt(0) lgkmcnt(0)")
    a("s_barrier")
    for i in range(2):
        for gq_ in (2, 0, 1):
            a(f"ds_read_b128 {v(O[2+i]+4*gq_,4)}, v{oth} offset:{(i*3+gq_)*1024}")
    a(f"s_cmp_eq_u32 s{s_loc}, 0")
    a(f"s_cselect_b32 s{s_k}, {FSH}, 2")
    a(f"s_mov_b32 s{s_a}, {F2LOFF}")
    a(f"s_cselect_b32 s{s_a}, {F2OFF}, s{s_a}")
    a(f"s_lshl_b32 s{s_xo}, s{s_xo}, 6")
    a(f"s_lshl_b32 s{s_xo}, s{s_xo}, s{s_k}")
    a(f"s_add_u32 s{s_xo}, s{s_xo}, s{s_a}")
    a(f"s_lshl_b32 s{s_a}, s{s_kh}, 5")
    a(f"s_add_u32 s{s_vo}, s{s_vo}, s{s_a}")
    a(f"s_lshl_b32 s{s_vo}, s{s_vo}, s{s_k}")
    a(f"s_add_u32 s{s_vo}, s{s_vo}, s{s_xo}")
    pad_hop(a, 2)
    flag_regs(a)
    a(f"s_mov_b32 s{s_a}, 0x2b800000")
    a(f"s_mov_b32 s{s_b}, 0x5d800000")
    a("s_waitcnt lgkmcnt(0)")
    for i in range(2):
        for r in (8, 10, 0, 2, 4, 6):
            a(f"v_pk_add_f32 {v(O[i]+r,2)}, {v(O[i]+r,2)}, {v(O[2+i]+r,2)}")
    def bcast_l():
        for i in range(2):
            a(f"v_mov_b32 v{O[i]+12}, v{O[i]+8}")
            a(f"v_mov_b32 v{O[i]+13}, v{O[i]+8}")
        a("s_nop 1")
        for i in range(2):
            a(f"v_permlane32_swap_b32 v{O[i]+13}, v{O[i]+12}")
    bcast_l()
    pad_hop(a, 2)
    for q in range(2):
        a(f"v_pk_mul_f32 {v(O[q]+14,2)}, {v(O[q],2)}, 0 op_sel_hi:[1,0]")
        for r in range(2, 12, 2):
            a(f"v_pk_fma_f32 {v(O[q]+14,2)}, {v(O[q]+r,2)}, 0, {v(O[q]+14,2)} op_sel_hi:[1,0,1]")
    a(f"v_cmp_o_f32 vcc, v{O[0]+14}, v{O[0]+15}")
    a(f"v_cmp_o_f32 s[16:17], v{O[1]+14}, v{O[1]+15}")
    a(f"v_min_f32 v{T[0]}, v{O[0]+12}, v{O[1]+12}")
    a(f"v_max_f32 v{T[1]}, v{O[0]+12}, v{O[1]+12}")
    a(f"s_and_b64 vcc, vcc, s[16:17]")
    a(f"v_cmp_le_f32 s[16:17], s{s_a}, v{T[0]}")
    a(f"v_cmp_ge_f32 s[18:19], s{s_b}, v{T[1]}")
    a(f"s_and_b64 vcc, vcc, s[16:17]")
    a(f"s_and_b64 vcc, vcc, s[18:19]")
    a("s_cmp_eq_u64 vcc, -1")
    a(f"s_cbranch_scc0 {Lslow}")
    a(f"{Lst}:")
    pad_hop(a, 2)
    a(f"v_rcp_f32 v{O[0]+12}, v{O[0]+12}")
    a(f"v_rcp_f32 v{O[1]+12}, v{O[1]+12}")
    a(f"s_mov_b32 s{s_b}, {2*20480}")
    for q in range(2):
        for r in range(0, 12, 2):
            a(f"v_pk_mul_f32 {v(O[q]+r,2)}, {v(O[q]+r,2)}, {v(O[q]+12,2)} op_sel_hi:[1,0]")
        for e in range(6):
            a(f"v_cvt_pk_bf16_f32 v{O[q]+e}, v{O[q]+2*e}, v{O[q]+2*e+1}")
    Log = a.label("og"); Loj = a.label("oj"); Lo2 = a.label("o2"); Lo3 = a.label("o3")
    a(f"s_cmp_eq_u32 s{s_loc}, 0")
    a(f"s_cbranch_scc1 {Log}")
    for fl in (G.olst, "sc1"):
        for q in range(2):
            so = "0" if q == 0 else f"s{s_b}"
            a(f"buffer_store_dwordx4 {v(O[q],4)}, v{oa1}, {srd(SO)}, {so} offen {fl}")
            a(f"buffer_store_dwordx2 {v(O[q]+4,2)}, v{oa2}, {srd(SO)}, {so} offen {fl}")
        if fl != "sc1":
            a(f"s_branch {Loj}")
            a(f"{Log}:")
    a(f"{Loj}:")
    pad_hop(a, 2)
    wa4 = [240, 241, 242, 243, 244]; ol = [245, 246]; pf = 238
    a(f"v_add_u32 v{ol[1]}, 20480, v{ka}")
    a(f"v_mov_b32 v{ol[0]}, v{ka}")
    a(f"s_mul_i32 s{s_c}, s{s_kh}, {10*5120}")
    a(f"s_add_u32 s{s_c}, s{s_c}, {WOBASE}")
    tr_addrs(a, wa4, True, True, None, f"s{s_c}")
    a(f"s_lshl4_add_u32 s{s_a}, s{s_blk}, s{s_m}")
    a(f"s_lshl2_add_u32 s{s_a}, s{s_a}, s{s_g}")
    a(f"s_mul_i32 s{s_a}, s{s_a}, {2*20480}")
    a(f"s_mul_i32 s{s_b}, s{s_kh}, 10240")
    a(f"s_add_u32 s{s_a}, s{s_a}, s{s_b}")
    a(f"s_add_u32 s{s_a}, s{s_a}, {OBASE}")
    pad_hop(a, 2)
    make_srd(a, SKV, 32, f"s{s_a}", 20480 + 10240)
    a(f"s_and_b32 s{s_a}, s{s_g}, 2")
    a(f"s_add_u32 s{s_a}, s{s_a}, s{s_kh}")
    a(f"s_lshl_b32 s{s_a}, s{s_a}, 4")
    a(f"s_lshl_b32 s{s_a}, s{s_a}, s{s_k}")
    a(f"s_add_u32 s{s_xo}, s{s_xo}, s{s_a}")
    a(f"s_cmp_eq_u32 s{s_loc}, 0")
    a("s_waitcnt vmcnt(0)")
    a(f"s_cbranch_scc1 {Lo2}")
    flag_store(a, s_vo, True)
    a(f"s_branch {Lo3}")
    a(f"{Lo2}:")
    flag_store(a, s_vo, False)
    a(f"{Lo3}:")
    pad_hop(a, 2)
    stamp(a, 7)
    a(f"v_and_b32 v{pf}, 15, v{lane}")
    a(f"v_lshlrev_b32 v{pf}, s{s_k}, v{pf}")
    a(f"s_movk_i32 s{s_a}, 4096")
    a(f"s_movk_i32 s{s_b}, 8192")
    poll(a, pf, f"s{s_xo}", T[0])
    stamp(a, 8)
    def ld_o(g, ii):
        so = ["0", f"s{s_a}", f"s{s_b}"][g // 4]
        return f"buffer_load_dwordx4 {v(XF+8*g+4*ii,4)}, v{ol[ii]}, {srd(SKV)}, {so} offen offset:{1024*(g%4)} sc1"
    for g in range(G.oa):
        a(ld_o(g, 0)); a(ld_o(g, 1))
    pre = {("x", g): [ld_o(g + G.oa, 0), ld_o(g + G.oa, 1)] for g in range(10 - G.oa)}
    oc = [100, 101, 102]; tw = 103
    for i in range(3):
        pre.setdefault(("x", 7 + i), [])
        pre[("x", 7 + i)] += [f"v_add_u32 v{oc[i]}, {64*i}, v{lane}\nv_mul_u32_u24 v{T[0]}, 6554, v{oc[i]}", f"v_lshrrev_b32 v{T[0]}, 16, v{T[0]}\nv_lshlrev_b32 v{oc[i]}, 4, v{oc[i]}",
                              f"v_mul_u32_u24 v{T[0]}, {2560-160}, v{T[0]}\nv_add_u32 v{oc[i]}, v{oc[i]}, v{T[0]}"]
    if G.ewb is not None:
        Lwb = a.label("ewb")
        pre[("x", 9)].insert(0, f"s_lshr_b32 s{s_c}, s2, 3\ns_lshl3_add_u32 s{s_c}, s{s_c}, s{s_wave}\ns_cmp_lg_u32 s{s_c}, {G.ewb}\ns_cbranch_scc1 {Lwb}\nbuffer_wbl2 sc1\n{Lwb}:")
    small_gemm(a, XF, ACC2, W2, wa4, [5120 * g for g in range(10)], pre,
               vmw=lambda g: 2 * (min(10, g + G.oa) - g - 1), chain=3)
    stamp(a, 9)
    pad_hop(a, 3)
    Le1 = a.label("e1"); Le2 = a.label("e2")
    a(f"v_and_b32 v{T[0]}, 15, v{lane}")
    a(f"v_lshrrev_b32 v{T[1]}, 4, v{lane}")
    a(f"v_mul_u32_u24 v{T[0]}, 160, v{T[0]}")
    a(f"v_mad_u32_u24 v{T[0]}, v{T[1]}, 40, v{T[0]}")
    a(f"s_mul_i32 s{s_a}, s{s_wave}, 6144")
    a(f"v_add_u32 v{tw}, s{s_a}, v{T[0]}")
    a(f"s_cmp_eq_u32 s{s_kh}, 0")
    a(f"s_cbranch_scc0 {Le1}")
    for j in range(5): a(f"ds_write_b128 v{oth}, {v(ACC2+20+4*j,4)} offset:{1024*j}")
    a(f"s_branch {Le2}")
    a(f"{Le1}:")
    for j in range(5): a(f"ds_write_b128 v{oth}, {v(ACC2+4*j,4)} offset:{1024*j}")
    a("s_nop 1")
    for r in range(0, 20, 2): a(f"v_mov_b64 {v(ACC2+r,2)}, {v(ACC2+20+r,2)}")
    a(f"{Le2}:")
    pad_hop(a, 3)
    a(f"s_lshl2_add_u32 s{s_a}, s{s_m}, s{s_g}")
    a(f"s_lshl1_add_u32 s{s_a}, s{s_a}, s{s_kh}")
    a(f"s_mul_i32 s{s_a}, s{s_a}, {16*2560}")
    a(f"s_mul_i32 s{s_b}, s{s_blk}, 1280")
    a(f"s_add_u32 s{s_a}, s{s_a}, s{s_b}")
    a(f"s_mul_i32 s{s_b}, s{s_n}, 160")
    a(f"s_add_u32 s{s_a}, s{s_a}, s{s_b}")
    make_srd(a, SO, 28, f"s{s_a}", 15 * 2560 + 160)
    a("s_waitcnt lgkmcnt(0)")
    a("s_barrier")
    for j in range(5): a(f"ds_read_b128 {v(ACC2+20+4*j,4)}, v{own} offset:{1024*j}")
    for j in range(5):
        a(f"s_waitcnt lgkmcnt({4-j})")
        r = ACC2 + 4 * j
        a(f"v_pk_add_f32 {v(r,2)}, {v(r,2)}, {v(r+20,2)}")
        a(f"v_pk_add_f32 {v(r+2,2)}, {v(r+2,2)}, {v(r+22,2)}")
        a(f"v_cvt_pk_bf16_f32 v{r}, v{r}, v{r+1}")
        a(f"v_cvt_pk_bf16_f32 v{r+1}, v{r+2}, v{r+3}")
    pad_hop(a, 3)
    for j in range(5): a(f"ds_write_b64 v{tw}, {v(ACC2+4*j,2)} offset:{8*j}")
    a("s_waitcnt lgkmcnt(0)")
    for i in range(3): a(f"ds_read_b128 {v(ACC2+20+4*i,4)}, v{own} offset:{1024*i}")
    for i in range(3):
        a(f"s_waitcnt lgkmcnt({2-i})")
        a(f"buffer_store_dwordx4 {v(ACC2+20+4*i,4)}, v{oc[i]}, {srd(SO)}, 0 offen {G.ost}")
    Lfin = a.label("fin")
    a(f"s_or_b32 s{s_a}, s{s_m}, s{s_n}")
    a(f"s_or_b32 s{s_a}, s{s_a}, s{s_wave}")
    a(f"s_cbranch_scc1 {Lfin}")
    a(f"s_lshl_b32 s{s_b}, s{s_blk}, 7")
    a(f"s_add_u32 s{s_b}, s{s_b}, {EOFF}")
    flag_store(a, s_b, False)
    a(f"{Lfin}:")
    dump_stamps(a, 10)
    a(f"{Lend}:")
    a("s_endpgm")

    a(f"{Lcons}:")
    setT(247)
    ACC = 0
    X = [[80 + 16 * b + 4 * i for i in range(4)] for b in range(2)]
    W = [[112 + 20 * b + 4 * j for j in range(5)] for b in range(2)]
    xa = [152, 153]; wa = [154, 155, 156, 157, 158]; xt, xv = 159, 160
    s_wm, s_wn = s_xo, s_wo
    a("s_getpc_b64 s[4:5]")
    a(f"Lpc_{name}:")
    a(f"s_sub_u32 s4, s4, Lpc_{name}-{name}")
    a("s_subb_u32 s5, s5, 0")
    a(f"s_mov_b32 s6, Lcode_end-{name}")
    a("s_mov_b32 s7, 0x00020000")
    a("v_lshlrev_b32 v1, 7, v0")
    a(f"buffer_load_dword v{xt}, v1, s[4:7], 0 offen")
    a(f"s_and_b32 s{s_wm}, s{s_wave}, 1")
    a(f"s_lshr_b32 s{s_wn}, s{s_wave}, 1")
    a(f"s_lshl_b32 s{s_b}, s{s_wm}, 13")
    x_addrs(a, xa, s_b)
    for r in range(0, 80, 2): a(f"v_mov_b64 {v(ACC+r,2)}, 0")
    common_ptrs()
    epoch_load()
    att_addrs()
    a(f"s_and_b32 s{s_a}, s{s_n}, 3")
    a(f"s_lshl2_add_u32 s{s_a}, s{s_blk}, s{s_a}")
    a(f"s_lshl1_add_u32 s{s_a}, s{s_a}, s{s_wn}")
    a(f"s_mul_i32 s{s_a}, s{s_a}, {4*HS}")
    a(f"s_lshl1_add_u32 s{s_b}, s{s_m}, s{s_wm}")
    a(f"s_mul_i32 s{s_b}, s{s_b}, {PS}")
    a(f"s_add_u32 s{s_a}, s{s_a}, s{s_b}")
    make_srd(a, SO, 32, f"s{s_a}", 3 * HS + PS)
    a(f"s_lshl3_add_u32 s{s_a}, s{s_blk}, s{s_n}")
    a(f"s_lshl1_add_u32 s{s_a}, s{s_a}, s{s_wn}")
    a(f"s_lshl4_add_u32 s{s_a}, s{s_a}, s{s_m}")
    a(f"s_lshl1_add_u32 s{s_vo}, s{s_a}, s{s_wm}")
    a(f"s_lshr_b32 s{s_k}, s{s_vo}, 3")
    a(f"s_lshl_b32 s{s_k}, s{s_k}, 7")
    a(f"s_and_b32 s{s_a}, s{s_vo}, 7")
    a(f"s_lshl2_add_u32 s{s_k}, s{s_a}, s{s_k}")
    a(f"s_add_u32 s{s_k}, s{s_k}, {FLOFF}")
    a(f"s_and_b32 s{s_vo}, s2, 7")
    a(f"s_lshl_b32 s{s_vo}, s{s_vo}, 7")
    a(f"s_add_u32 s{s_vo}, s{s_vo}, {GFOFF}")
    epoch_fin()
    a(f"s_getreg_b32 s{s_loc}, hwreg(HW_REG_XCC_ID)")
    a(f"s_and_b32 s{s_loc}, s{s_loc}, 15")
    a(f"s_add_u32 s{s_loc}, s{s_loc}, s{s_tag}")
    a(f"s_and_b32 s{s_a}, s2, 7")
    a(f"s_lshl_b32 s{s_m0w}, s{s_a}, 12")
    a(f"s_add_u32 s{s_m0w}, s{s_m0w}, {XOFF}")
    a(f"s_lshr_b32 s{s_a}, s2, 3")
    a(f"s_lshl_b32 s{s_a}, s{s_a}, 7")
    a(f"s_add_u32 s{s_b}, s{s_a}, s{s_m0w}")
    Lnp = a.label("nopub")
    a(f"s_cmp_lg_u32 s{s_wave}, 0")
    a(f"s_cbranch_scc1 {Lnp}")
    flag_regs(a, s_loc)
    flag_store(a, s_b, False)
    a(f"{Lnp}:")
    a(f"v_and_b32 v{xv}, 31, v{lane}")
    a(f"v_lshlrev_b32 v{xv}, 7, v{xv}")
    a(f"s_mov_b32 s{s_it}, 0")
    a(f"s_mov_b32 s{s_m0x}, {(-3*SLOT) & 0xffffffff}")
    a(f"s_cmp_ge_u32 s{s_n}, 4")
    a(f"s_cbranch_scc1 {Lv}")

    def p1_reads(ks, b):
        out = [f"ds_read_b128 {v(X[b][i],4)}, v{xa[ks]} offset:{2048*i}" for i in range(4)]
        for j in range(5):
            for t in range(2):
                out.append(f"ds_read_b64_tr_b16 {v(W[b][j]+2*t,2)}, v{wa[j]} offset:{ks*10240+1280*t}")
        return out
    st_code = {}
    Lcj = a.label("cj")
    def consumer(ktype):
        tr_addrs(a, wa, ktype, False, s_wn, 16384)
        if ktype:
            a(f"v_lshrrev_b32 v{T[0]}, 4, v{lane}")
            a(f"s_mov_b32 s{s_a}, {HS}")
            a(f"v_mul_lo_u32 v{T[0]}, v{T[0]}, s{s_a}")
            a(f"v_and_b32 v{T[1]}, 7, v{lane}")
            a(f"v_and_b32 v{T[2]}, 8, v{lane}")
            a(f"v_lshl_add_u32 v{T[1]}, v{T[2]}, 1, v{T[1]}")
            a(f"v_lshl_add_u32 v{sa[0]}, v{T[1]}, 4, v{T[0]}")
            a(f"v_lshl_add_u32 v{sa[1]}, v{T[1]}, 3, v{T[0]}")
        else:
            a(f"v_lshrrev_b32 v{T[0]}, 4, v{lane}")
            a(f"v_mul_u32_u24 v{T[0]}, 320, v{T[0]}")
            a(f"v_and_b32 v{T[1]}, 15, v{lane}")
            a(f"s_mov_b32 s{s_a}, {HS-320}")
            for j in range(5):
                a(f"v_add_u32 v{T[2]}, {16*j}, v{T[1]}")
                a(f"v_mul_u32_u24 v{T[3]}, 3277, v{T[2]}")
                a(f"v_lshrrev_b32 v{T[3]}, 16, v{T[3]}")
                a(f"v_lshl_add_u32 v{T[2]}, v{T[2]}, 4, v{T[0]}")
                a(f"v_mad_u32_u24 v{sa[j]}, v{T[3]}, s{s_a}, v{T[2]}")
        def mf(b):
            out = []
            for j in range(5):
                for i in range(4):
                    d = v(ACC + 4 * (5 * i + j), 4)
                    A, B = (W[b][j], X[b][i]) if ktype else (X[b][i], W[b][j])
                    out.append(f"v_mfma_f32_16x16x32_bf16 {d}, {v(A,4)}, {v(B,4)}, {d}")
            return out
        Lp = a.label("p1"); Ll = a.label("p1l")
        a("s_barrier")
        stamp(a, 1)
        for x in p1_reads(0, 0): a(x)
        a(f"{Lp}:")
        a("s_waitcnt lgkmcnt(8)")
        e = p1_reads(1, 1) + [f"s_add_u32 s{s_it}, s{s_it}, 1", f"s_and_b32 s{s_a}, s{s_it}, 3",
                              f"s_cselect_b32 s{s_a}, {SLOT}, s{s_m0x}", f"s_cmp_eq_u32 s{s_it}, 10"]
        for k, x in enumerate(mf(0)):
            if k == 4: a("s_waitcnt lgkmcnt(4)")
            a(x)
            if e: a(e.pop(0))
        a("s_waitcnt lgkmcnt(8)")
        m1 = mf(1)
        adds = [f"v_add_u32 v{r}, s{s_a}, v{r}" for r in xa + wa]
        for k in range(4):
            a(m1[k])
            for x in adds[2 * k:2 * k + 2]: a(x)
        a("s_waitcnt lgkmcnt(0)")
        a("s_barrier")
        a(f"s_cbranch_scc1 {Ll}")
        e = p1_reads(0, 0)
        for x in m1[4:]:
            a(x)
            if e: a(e.pop(0))
        a(f"s_cmp_lg_u32 s{s_it}, 7")
        a(f"s_cbranch_scc1 {Lp}")
        a(f"buffer_load_dword v{xt}, v{xv}, {srd(SF)}, s{s_m0w} offen sc1")
        a(f"s_branch {Lp}")
        a(f"{Ll}:")
        for x in m1[4:]: a(x)
        Lt = a.label("xt"); Ltd = a.label("xtd")
        a(f"s_mov_b32 s{s_c}, {SPIN}")
        a(f"{Lt}:")
        a("s_waitcnt vmcnt(0)")
        a(f"v_subrev_u32 v{T[0]}, s{s_tag}, v{xt}")
        a(f"v_cmp_lt_u32 vcc, 15, v{T[0]}")
        a(f"s_cbranch_vccz {Ltd}")
        a(f"s_sub_u32 s{s_c}, s{s_c}, 1")
        a(f"s_cbranch_scc1 {Ltd}")
        a(f"s_sleep {G.sleep}")
        a(f"buffer_load_dword v{xt}, v{xv}, {srd(SF)}, s{s_m0w} offen sc1")
        a(f"s_branch {Lt}")
        a(f"{Ltd}:")
        a(f"v_cmp_ne_u32 vcc, s{s_loc}, v{xt}")
        a("s_cmp_eq_u64 vcc, 0")
        a(f"s_cselect_b32 s{s_loc}, {1 if G.local else 0}, 0")
        stamp(a, 2)
        def stores(fl, so, cvt):
            if ktype:
                for i in range(4):
                    r = KVD + 10 * i
                    if cvt:
                        for e in range(10): a(f"v_cvt_pk_bf16_f32 v{r+e}, v{ACC+20*i+2*e}, v{ACC+20*i+2*e+1}")
                    o = (i >> 1) * 1024 + (i & 1) * 128
                    a(f"buffer_store_dwordx4 {v(r,4)}, v{sa[0]}, {srd(SO)}, {so} offen offset:{o} {fl}")
                    a(f"buffer_store_dwordx4 {v(r+4,4)}, v{sa[0]}, {srd(SO)}, {so} offen offset:{o+512} {fl}")
                    a(f"buffer_store_dwordx2 {v(r+8,2)}, v{sa[1]}, {srd(SO)}, {so} offen offset:{2048+(i>>1)*256+(i&1)*64} {fl}")
            else:
                for j in range(5):
                    for i2 in range(2):
                        r = KVD + 8 * j + 4 * i2
                        if cvt:
                            r0 = ACC + 4 * (5 * (2 * i2) + j); r1 = ACC + 4 * (5 * (2 * i2 + 1) + j)
                            a(f"v_cvt_pk_bf16_f32 v{r}, v{r0}, v{r0+1}")
                            a(f"v_cvt_pk_bf16_f32 v{r+1}, v{r0+2}, v{r0+3}")
                            a(f"v_cvt_pk_bf16_f32 v{r+2}, v{r1}, v{r1+1}")
                            a(f"v_cvt_pk_bf16_f32 v{r+3}, v{r1+2}, v{r1+3}")
                        a(f"buffer_store_dwordx4 {v(r,4)}, v{sa[j]}, {srd(SO)}, {so} offen offset:{2560+1280*i2} {fl}")
        st_code[ktype] = stores
        Lg = a.label("glob")
        a(f"s_cmp_eq_u32 s{s_loc}, 0")
        a(f"s_cbranch_scc1 {Lg}")
        stores(G.lst, "0", True)
        a(f"s_branch {Lcj}")
        a(f"{Lg}:")
        stores("sc1", "0", True)
        if ktype: a(f"s_branch {Lcj}")
    consumer(True)
    a(f"{Lv}:")
    consumer(False)
    a(f"{Lcj}:")
    pad_hop(a, 2)
    a(f"v_mov_b32 v{T[0]}, {MODE_LDS}")
    a(f"v_mov_b32 v{T[1]}, s{s_loc}")
    a(f"ds_write_b32 v{T[0]}, v{T[1]}")
    pad_value()
    for b in range(4): pad(b)
    zero_acc()
    wo_scalars()
    flag_regs(a)
    Lg2 = a.label("g2")
    a(f"s_cmp_eq_u32 s{s_loc}, 0")
    a("s_waitcnt lgkmcnt(0)")
    a(f"s_cbranch_scc1 {Lg2}")
    pad_hop(a, 2)
    a(f"s_lshl4_add_u32 s{s_b}, s{s_blk}, s{s_n}")
    a(f"s_lshr_b32 s{s_a}, s{s_m}, 2")
    a(f"s_lshl2_add_u32 s{s_b}, s{s_b}, s{s_a}")
    a(f"s_lshl_b32 s{s_b}, s{s_b}, 7")
    a(f"s_add_u32 s{s_b}, s{s_b}, {FLOFF}")
    a(f"v_and_b32 v{T[0]}, 7, v{lane}")
    a(f"v_lshrrev_b32 v{T[1]}, 5, v{lane}")
    a(f"v_lshlrev_b32 v{T[0]}, 2, v{T[0]}")
    a(f"v_lshl_add_u32 v{T[0]}, v{T[1]}, 12, v{T[0]}")
    for i in range(G.nb1): a("s_barrier")
    a("s_waitcnt vmcnt(0)")
    flag_store(a, s_k, True)
    stamp(a, 3)
    for i in range(4 - G.nb1): a("s_barrier")
    poll(a, T[0], f"s{s_b}", T[1])
    stamp(a, 4)
    kv_first(False)
    a(f"s_lshr_b32 s{s_a}, s2, 3")
    a(f"s_or_b32 s{s_a}, s{s_a}, s{s_wave}")
    a(f"s_cselect_b32 s{s_st}, 4, 5")
    a("s_barrier")
    a(f"s_branch {Latt}")
    def group_wait():
        L = a.label("gp"); Ld = a.label("gpd")
        a(f"s_lshl_b32 s{s_b}, s{s_blk}, 6")
        a(f"s_lshr_b32 s{s_a}, s{s_m}, 2")
        a(f"s_add_u32 s{s_b}, s{s_b}, s{s_a}")
        a(f"s_lshl_b32 s{s_b}, s{s_b}, 7")
        a(f"s_add_u32 s{s_b}, s{s_b}, {FLOFF}")
        a(f"v_lshrrev_b32 v{T[0]}, 2, v{lane}")
        a(f"v_and_b32 v{T[1]}, 3, v{lane}")
        a(f"v_lshlrev_b32 v{T[1]}, 3, v{T[1]}")
        a(f"v_lshl_add_u32 v{T[0]}, v{T[0]}, 9, v{T[1]}")
        a(f"s_mov_b32 s{s_c}, {SPIN}")
        a(f"{L}:")
        a(f"buffer_load_dwordx2 {v(T[1],2)}, v{T[0]}, {srd(SF)}, s{s_b} offen sc1")
        a("s_waitcnt vmcnt(0)")
        a(f"v_cmp_ne_u32 vcc, s{s_tag}, v{T[1]}")
        a(f"v_cmp_ne_u32 s[16:17], s{s_tag}, v{T[2]}")
        a("s_or_b64 vcc, vcc, s[16:17]")
        a(f"s_cbranch_scc0 {Ld}")
        a(f"s_sub_u32 s{s_c}, s{s_c}, 1")
        a(f"s_cbranch_scc1 {Ld}")
        a(f"s_sleep {G.sleep}")
        a(f"s_branch {L}")
        a(f"{Ld}:")
    a(f"{Lg2}:")
    for i in range(4): a("s_barrier")
    a("s_waitcnt vmcnt(0)")
    a("s_mov_b64 exec, 1")
    a(f"buffer_store_dword v{T[5]}, v{T[4]}, {srd(SF)}, s{s_k} offen sc1")
    a("s_mov_b64 exec, -1")
    stamp(a, 3)
    Lne = a.label("ne")
    a(f"s_lshr_b32 s{s_a}, s2, 3")
    a(f"s_or_b32 s{s_a}, s{s_a}, s{s_wave}")
    a(f"s_cbranch_scc1 {Lne}")
    group_wait()
    flag_store(a, s_vo, False)
    a(f"{Lne}:")
    poll(a, gfv, f"s{s_fg}", T[1])
    stamp(a, 4)
    kv_first(False)
    a(f"s_mov_b32 s{s_st}, 0")
    a("s_barrier")
    a(f"s_branch {Latt}")

    a(f"{hooks[G.hst][1]}:")
    stamp(a, 11)
    a(f"s_bitset0_b32 s{s_st}, 0")
    group_wait()
    stamp(a, 12)
    if not G.nowb: a("buffer_wbl2 sc1")
    a("s_waitcnt vmcnt(0)")
    flag_regs(a)
    flag_store(a, s_vo, False)
    stamp(a, 13)
    a(f"s_branch {hooks[G.hst][2]}")
    a(f"{hooks[G.hsam][1]}:")
    a(f"buffer_load_dword v{gfd}, v{gfv}, {srd(SF)}, s{s_fg} offen sc1")
    a(f"s_mov_b32 s{s_st}, 16")
    a(f"s_branch {hooks[G.hsam][2]}")
    a(f"{hooks[(0,2)][1]}:")
    nafter = (pos[(0, 2)] - pos[G.hsam]) % (len(names) // 2)
    stamp(a, 14)
    a(f"s_waitcnt vmcnt({nafter})")
    stamp(a, 15)
    a(f"s_mov_b32 s{s_st}, 0")
    a(f"v_cmp_ne_u32 vcc, s{s_tag}, v{gfd}")
    a(f"s_cbranch_vccz {hooks[(0,2)][2]}")
    poll(a, gfv, f"s{s_fg}", gfd)
    stamp(a, 15)
    a(f"s_branch {hooks[(0,2)][2]}")

    a(f"{Lslow}:")
    vmx = gfd
    Ls0 = a.label("s0")
    a(f"s_cmp_eq_u32 s{s_kh}, 0")
    a(f"s_cbranch_scc1 {Ls0}")
    for i in range(2):
        for r in range(0, 4, 2): a(f"v_mov_b64 {v(Q1[i]+r,2)}, {v(Q1[2+i]+r,2)}")
        for h in range(2): a(f"v_mov_b64 {v(Q3[h][i],2)}, {v(Q3[h][2+i],2)}")
    a(f"{Ls0}:")
    for q in range(2):
        L1 = a.label("s1"); L2 = a.label("s2")
        a(f"v_mov_b32 v{vmx}, 0xff800000")
        a(f"s_mov_b32 s{s_ko}, 0")
        a(f"{L1}:")
        a(ld_k1(0)); a(ld_k1(1)); a(ld_k3(0))
        a("s_waitcnt vmcnt(0)")
        for t in range(2):
            a(qk1(0, q, t)); a(qk2(0, q, t))
            a("s_nop 15")
            for r in range(0, 16, 2):
                a(f"v_max3_f32 v{vmx}, v{S[0]+r}, v{S[0]+r+1}, v{vmx}")
        a(f"s_add_u32 s{s_ko}, s{s_ko}, {PS}")
        a(f"s_cmp_lt_u32 s{s_ko}, {HS}")
        a(f"s_cbranch_scc1 {L1}")
        a(f"v_mov_b32 v{T[0]}, v{vmx}")
        a("s_nop 1")
        a(f"v_permlane32_swap_b32 v{T[0]}, v{vmx}")
        a("s_nop 1")
        a(f"v_max_f32 v{vmx}, v{vmx}, v{T[0]}")
        for r in range(0, 16, 2):
            a(f"v_mov_b64 {v(O[q]+r,2)}, 0")
        a(f"s_mov_b32 s{s_ko}, 0")
        a(f"{L2}:")
        a(ld_k1(0)); a(ld_k1(1)); a(ld_k3(0)); a(ld_v(0)); a(ld_v(1))
        a("s_waitcnt vmcnt(0)")
        for t in range(2):
            a(qk1(0, q, t)); a(qk2(0, q, t))
            a("s_nop 15")
            for r in range(16):
                a(f"v_sub_f32 v{S[0]+r}, v{S[0]+r}, v{vmx}")
            for r in range(16):
                a(ex(0, r))
            a("s_nop 0")
            for r in range(0, 16, 2):
                a(cv(0, r))
            a("s_nop 1")
            a(pv(0, q, t, 0)); a(pv(0, q, t, 1))
        a(f"s_add_u32 s{s_ko}, s{s_ko}, {PS}")
        a(f"s_cmp_lt_u32 s{s_ko}, {HS}")
        a(f"s_cbranch_scc1 {L2}")
    a("s_nop 15")
    bcast_l()
    a("s_nop 1")
    a(f"s_branch {Lst}")
    a("Lcode_end:")
    return name

def build():
    a = Asm()
    PADS[:] = [0, 0, 0, 0]
    name = gen(a)
    if G.warm:
        i = a.lines.index(".PADRET")
        a.lines[i:i+1] = [f"Lpad_{c}_{PADS[c]}:" for c in range(4)]
    out = HEADER + "; @launch grid=(256,1,1) block=(512,1,1) lds=163840\n"
    out += '.amdgcn_target "amdgcn-amd-amdhsa--gfx950"\n.text\n' + a.text()
    out += '.section .rodata,"a"\n.p2align 6\n' + kernel_desc(name, 256, 100 if G.diag else 64)
    return out

if __name__ == "__main__":
    path = sys.argv[1] if len(sys.argv) > 1 else f"cdna_kernels/{NAME}.s"
    G.diag = "diag" in sys.argv
    for x in sys.argv[2:]:
        if "=" in x:
            k, val = x.split("=", 1)
            assert hasattr(G, k), k
            setattr(G, k, eval(val))
    open(path, "w").write(build())
    print("wrote", path)
```

```python
import sys
sys.path.insert(0, "gen")
from asmlib import *

NAME = "concat_heads__mha_block__softmax_full_mha__prompt"
HS = 163840
PS = 5120
KVL = 0x1400000
OBASE = 0xA00000
FBASE = 0x1000000
FLOFF = 0x40000
F2LOFF = 0x60000
XOFF = 0x70000
GFOFF = 0x78000
F2OFF = 0x80000
EOFF = 0x180000
DBGBASE = 0x2000000
QSCALE = 0x3ea52b5c
SLOT = 36864
SPARE = 4 * SLOT
QAREA = SLOT
WOBASE = 61440
MODE_LDS = 163836
SPIN = 400000
FSH = 7

HEADER = """; Kernarg layout for this problem (72 bytes, ptrs only, base s[0:1]):
"""

SX, SW, SKV, SF, SO = 4, 8, 12, 36, 40
(s_blk, s_m, s_n, s_wave, s_tag, s_k, s_a, s_b, s_c, s_it, s_xo, s_wo, s_m0x, s_m0w, s_kh, s_ko, s_vo, s_g) = range(44, 62)
s_vm = 62
s_st, s_loc, s_fg = 3, 34, 35
lane = 255
T = [0] * 6

class G:
    diag = False; dbg = None; amp = None
    lens = [9, 4, 2, 1]
    rot = True
    pro = 2; la = 3; nb1 = 2
    local = True
    sleep = 2
    iters = 8
    hst = (0, 1); hsam = (0, 0)
    oa = 3
    lwb = False
    ost = 'nt'
    olst = ''
    ewb = None
    warm = False
    lst = ''
    v3 = True
    nowb = False
    wod = 4

PADS = [0, 0, 0, 0]
def pad_hop(a, c):
    if not G.warm: return
    a(f"Lpad_{c}_{PADS[c]}:")
    PADS[c] += 1
    a(f"s_cbranch_execz Lpad_{c}_{PADS[c]}")

def setT(base): T[:] = list(range(base, base + 6))
def srd(d): return f"s[{d}:{d+3}]"

def stamp(a, i):
    if not G.diag: return
    a("s_memtime s[96:97]")
    a("s_memrealtime s[98:99]")
    a("s_waitcnt lgkmcnt(0)")
    a(f"s_mov_b32 s{64+2*i}, s96")
    a(f"s_mov_b32 s{65+2*i}, s98")

def dump_stamps(a, n):
    if not G.diag: return
    a("s_waitcnt vmcnt(0)")
    stamp(a, n)
    a(f"s_lshl_b32 s{s_a}, s2, 3")
    a(f"s_add_u32 s{s_a}, s{s_a}, s{s_wave}")
    a(f"s_lshl_b32 s{s_a}, s{s_a}, 7")
    a(f"s_add_u32 s{s_a}, s{s_a}, {DBGBASE}")
    make_srd(a, SX, 32, f"s{s_a}", 128)
    a(f"v_mov_b32 v{T[0]}, 0")
    for i in range(32):
        a(f"v_mov_b32 v{T[1]}, s{64+i}")
        a(f"buffer_store_dword v{T[1]}, v{T[0]}, s[{SX}:{SX+3}], 0 offen offset:{4*i}")
    if G.lwb:
        L1 = a.label("lwb"); L2 = a.label("lwb2")
        a(f"s_lshr_b32 s{s_a}, s2, 3")
        a(f"s_or_b32 s{s_a}, s{s_a}, s{s_wave}")
        a(f"s_cbranch_scc1 {L2}")
        a(f"{L1}:")
        a("s_memrealtime s[98:99]")
        a("s_waitcnt lgkmcnt(0)")
        a(f"s_sub_u32 s{s_b}, s98, s{65+2*n}")
        a(f"s_cmp_lt_u32 s{s_b}, 400")
        a(f"s_cbranch_scc1 {L1}")
        a("buffer_wbl2 sc1")
        a("s_waitcnt vmcnt(0)")
        a(f"{L2}:")
    if G.dbg is not None:
        Ls = a.label("nodbg")
        a(f"s_lshl_b32 s{s_a}, s2, 3")
        a(f"s_add_u32 s{s_a}, s{s_a}, s{s_wave}")
        a(f"s_cmp_lg_u32 s{s_a}, {G.dbg}")
        a(f"s_cbranch_scc1 {Ls}")
        make_srd(a, SX, 30, None, 256)
        for i in range(1, 14):
            a(f"s_sub_u32 s{s_a}, s{65+2*i}, s65")
            a(f"v_mov_b32 v{T[1]}, s{s_a}")
            a(f"buffer_store_dword v{T[1]}, v{T[0]}, s[{SX}:{SX+3}], 0 offen offset:{4*i}")
        if G.amp is not None:
            Lw = a.label("amp")
            a(f"s_sub_u32 s{s_a}, s{65+2*G.amp}, s65")
            a(f"s_mul_i32 s{s_a}, s{s_a}, 4")
            a(f"s_add_u32 s{s_a}, s{s_a}, 1000")
            a(f"{Lw}:")
            a("s_memrealtime s[98:99]")
            a("s_waitcnt lgkmcnt(0)")
            a(f"s_sub_u32 s{s_b}, s98, s{65+2*n}")
            a(f"s_cmp_lt_u32 s{s_b}, s{s_a}")
            a(f"s_cbranch_scc1 {Lw}")
        a(f"{Ls}:")

def make_srd(a, d, base, off, nbytes):
    if off is None:
        a(f"s_mov_b64 s[{d}:{d+1}], s[{base}:{base+1}]")
    else:
        a(f"s_add_u32 s{d}, s{base}, {off}")
        a(f"s_addc_u32 s{d+1}, s{base+1}, 0")
    a(f"s_mov_b32 s{d+2}, {nbytes}")
    a(f"s_mov_b32 s{d+3}, 0x00020000")

def img_pos(a, pos, row, c):
    a(f"v_mul_u32_u24 v{row}, 3277, v{pos}")
    a(f"v_lshrrev_b32 v{row}, 16, v{row}")
    a(f"v_mad_i32_i24 v{c}, v{row}, -16, v{pos}")
    a(f"v_mad_i32_i24 v{c}, v{row}, -4, v{c}")
    a(f"v_lshrrev_b32 v{T[5]}, 3, v{row}")
    a(f"v_mad_i32_i24 v{c}, v{T[5]}, -2, v{c}")
    a(f"v_add_u32 v{T[5]}, 20, v{c}")
    a(f"v_min_u32 v{c}, v{c}, v{T[5]}")

def grp_src(a, dst, row, c, ld_sreg):
    a(f"v_cmp_lt_u32 vcc, 9, v{c}")
    a(f"v_add_u32 v{T[5]}, 16, v{row}")
    a(f"v_subrev_u32 v{T[4]}, 10, v{c}")
    a(f"v_cndmask_b32 v{row}, v{row}, v{T[5]}, vcc")
    a(f"v_cndmask_b32 v{c}, v{c}, v{T[4]}, vcc")
    a(f"v_lshlrev_b32 v{c}, 4, v{c}")
    a(f"v_mad_u32_u24 v{dst}, v{row}, s{ld_sreg}, v{c}")

def tr_addrs(a, wa, perm, grp, colhalf_sreg, base):
    a(f"v_bfe_u32 v{T[0]}, v{lane}, 2, 2")
    a(f"v_lshrrev_b32 v{T[1]}, 4, v{lane}")
    a(f"v_and_b32 v{T[2]}, 1, v{T[1]}")
    a(f"v_lshl_add_u32 v{T[0]}, v{T[2] if grp else T[1]}, 3, v{T[0]}")
    a(f"v_mul_u32_u24 v{T[0]}, 320, v{T[0]}")
    if base: a(f"v_add_u32 v{T[0]}, {base}, v{T[0]}")
    a(f"v_lshlrev_b32 v{T[2]}, 5, v{T[2]}")
    if grp:
        a(f"v_lshrrev_b32 v{T[1]}, 1, v{T[1]}")
        a(f"v_mul_u32_u24 v{T[1]}, 160, v{T[1]}")
        a(f"v_add_u32 v{T[2]}, v{T[2]}, v{T[1]}")
    else:
        a(f"s_mul_i32 s{s_a}, s{colhalf_sreg}, 160")
        a(f"v_add_u32 v{T[2]}, s{s_a}, v{T[2]}")
    a(f"v_and_b32 v{T[1]}, 3, v{lane}")
    a(f"v_mad_u32_u24 v{T[2]}, v{T[1]}, {40 if perm else 8}, v{T[2]}")
    for j in range(5):
        a(f"v_add_u32 v{T[1]}, {8*j if perm else 32*j}, v{T[2]}")
        a(f"v_subrev_u32 v{T[3]}, 320, v{T[1]}")
        a(f"v_min_u32 v{T[1]}, v{T[1]}, v{T[3]}")
        a(f"v_add_u32 v{wa[j]}, v{T[1]}, v{T[0]}")

def x_addrs(a, xa, rowbase_sreg):
    a(f"v_and_b32 v{T[0]}, 15, v{lane}")
    a(f"v_lshrrev_b32 v{T[1]}, 1, v{T[0]}")
    a(f"v_lshrrev_b32 v{T[2]}, 4, v{lane}")
    a(f"v_xor_b32 v{T[1]}, v{T[1]}, v{T[2]}")
    a(f"v_lshl_add_u32 v{T[0]}, v{T[0]}, 7, s{rowbase_sreg}")
    a(f"v_lshl_add_u32 v{xa[0]}, v{T[1]}, 4, v{T[0]}")
    a(f"v_xor_b32 v{xa[1]}, 64, v{xa[0]}")

def poll(a, voff, soff, tmp):
    L = a.label("poll"); Ld = a.label("polld")
    a(f"s_mov_b32 s{s_c}, {SPIN}")
    a(f"{L}:")
    a(f"buffer_load_dword v{tmp}, v{voff}, {srd(SF)}, {soff} offen sc1")
    a("s_waitcnt vmcnt(0)")
    a(f"v_cmp_ne_u32 vcc, s{s_tag}, v{tmp}")
    a(f"s_cbranch_vccz {Ld}")
    a(f"s_sub_u32 s{s_c}, s{s_c}, 1")
    a(f"s_cbranch_scc1 {Ld}")
    a(f"s_sleep {G.sleep}")
    a(f"s_branch {L}")
    a(f"{Ld}:")

def flag_regs(a, val=None):
    a(f"v_lshlrev_b32 v{T[4]}, 2, v{lane}")
    a(f"v_mov_b32 v{T[5]}, s{s_tag if val is None else val}")
def flag_store(a, off_sreg, local=False):
    if local:
        a("s_mov_b64 exec, 1")
    else:
        a("s_mov_b32 exec_hi, 0")
    a(f"buffer_store_dword v{T[5]}, v{T[4]}, {srd(SF)}, s{off_sreg} offen {'' if local else 'sc1'}")
    a("s_mov_b64 exec, -1")

def small_gemm(a, BF, ACC, W, wa, gbase, pre, cur0=0, vmw=None, chain=0):
    n = len(gbase)
    cur = [cur0]
    def shift(g):
        out = []
        if not (cur[0] <= gbase[g] and gbase[g] + 1280 - cur[0] <= 65535):
            want = (gbase[g] // 57344) * 57344
            d = want - cur[0]
            out = [(f"v_add_u32 v{wa[j]}, {d}, v{wa[j]}" if d > 0 else f"v_subrev_u32 v{wa[j]}, {-d}, v{wa[j]}") for j in range(5)]
            cur[0] = want
        return out
    def rd(g, j, t): return f"ds_read_b64_tr_b16 {v(W[g&1]+4*j+2*t,2)}, v{wa[j]} offset:{gbase[g]-cur[0]+1280*t}"
    for x in shift(0): a(x)
    for j in range(5):
        a(rd(0, j, 0)); a(rd(0, j, 1))
    for g in range(n):
        last = g == n - 1
        if g % 2 == 0: pad_hop(a, chain)
        for x in pre.get(("h", g), []): a(x)
        if not last:
            for x in shift(g + 1): a(x)
        ex = list(pre.get(("x", g), []))
        for j in range(5):
            if j == 0: a(f"s_waitcnt {('vmcnt(%d) ' % vmw(g)) if vmw else ''}lgkmcnt(6)")
            if j == 2: a(f"s_waitcnt lgkmcnt({0 if last else 4})")
            for ii in range(2):
                d = v(ACC + 4 * (5 * ii + j), 4)
                a(f"v_mfma_f32_16x16x32_bf16 {d}, {v(W[g&1]+4*j,4)}, {v(BF+8*g+4*ii,4)}, {d if g else 0}")
                if not last: a(rd(g + 1, j, ii))
            if ex: a(ex.pop(0))
        for x in ex: a(x)

def gen(a):
    name = NAME + "_kernel"
    kernel_header(a, name)
    Lend = a.label("end"); Lcons = a.label("cons"); Lv = a.label("vtype"); Latt = a.label("att")
    a("s_cmp_ge_u32 s2, 256")
    a(f"s_cbranch_scc1 {Lend}")
    stamp(a, 0)
    a("s_load_dwordx16 s[16:31], s[0:1], 0")
    a("s_load_dwordx2 s[32:33], s[0:1], 64")
    a("s_mov_b64 exec, -1")
    a(f"v_lshrrev_b32 v1, 6, v0")
    a(f"v_and_b32 v{lane}, 63, v0")
    a(f"v_readfirstlane_b32 s{s_wave}, v1")
    a(f"s_and_b32 s{s_a}, s2, 7")
    a(f"s_lshr_b32 s{s_b}, s2, 3")
    a(f"s_lshr_b32 s{s_blk}, s{s_a}, 2")
    a(f"s_and_b32 s{s_a}, s{s_a}, 3")
    a(f"s_lshr_b32 s{s_c}, s{s_b}, 3")
    a(f"s_lshl2_add_u32 s{s_m}, s{s_a}, s{s_c}")
    a(f"s_and_b32 s{s_n}, s{s_b}, 7")
    if G.rot:
        a(f"s_mul_i32 s{s_k}, s{s_c}, 3")
        a(f"s_add_u32 s{s_k}, s{s_k}, s{s_n}")
        a(f"s_add_u32 s{s_k}, s{s_k}, s{s_a}")
        a(f"s_cmp_ge_u32 s{s_k}, 10")
        a(f"s_cselect_b32 s{s_a}, 10, 0")
        a(f"s_sub_u32 s{s_k}, s{s_k}, s{s_a}")
    else:
        a(f"s_mov_b32 s{s_k}, 0")
    a(f"s_and_b32 s{s_g}, s{s_wave}, 3")
    a(f"s_lshr_b32 s{s_kh}, s{s_wave}, 2")
    a(f"s_cbranch_scc0 {Lcons}")

    def common_ptrs():
        a("s_waitcnt lgkmcnt(0)")
        a(f"s_cmp_eq_u32 s{s_blk}, 0")
        a("s_cselect_b64 s[16:17], s[16:17], s[22:23]")
        a("s_cselect_b64 s[18:19], s[18:19], s[24:25]")
        a("s_cselect_b64 s[20:21], s[20:21], s[26:27]")
    def epoch_load():
        a(f"s_lshl_b32 s{s_a}, s{s_blk}, 7")
        a(f"s_add_u32 s{s_a}, s{s_a}, {FBASE+EOFF}")
        a(f"s_load_dword s{s_tag}, s[32:33], s{s_a}")
        make_srd(a, SF, 32, FBASE, EOFF + 0x1000)
    def epoch_fin():
        a("s_waitcnt lgkmcnt(0)")
        a(f"s_mul_i32 s{s_tag}, s{s_tag}, 0x9E3779B1")
        a(f"s_add_u32 s{s_tag}, s{s_tag}, 0x7F4A7C15")

    O = [0, 16, 32, 48]; S = [64, 80]; P = [96, 104]
    K1 = [112, 116, 120, 124]; K3 = [128, 130]; V = [132, 140, 148, 156]
    Q1 = [164, 168, 172, 176]; Q3 = [[180, 182, 184, 186], [188, 190, 192, 194]]
    KVD = 196; sa = [236, 237, 238, 239, 246]
    ka, k3a, va, gwo, gfv, gfd = 240, 241, 242, 243, 244, 245

    def att_addrs():
        a(f"s_lshl3_add_u32 s{s_a}, s{s_blk}, s{s_n}")
        a(f"s_lshl2_add_u32 s{s_a}, s{s_a}, s{s_g}")
        a(f"s_mul_i32 s{s_a}, s{s_a}, {HS}")
        make_srd(a, SKV, 32, f"s{s_a}", HS)
        a(f"v_lshlrev_b32 v{ka}, 4, v{lane}")
        a(f"v_lshlrev_b32 v{k3a}, 3, v{lane}")
        a(f"v_and_b32 v{T[0]}, 31, v{lane}")
        a(f"v_lshrrev_b32 v{T[1]}, 1, v{T[0]}")
        a(f"v_xor_b32 v{T[1]}, v{T[1]}, v{T[0]}")
        a(f"v_and_b32 v{T[1]}, 4, v{T[1]}")
        a(f"v_mul_u32_u24 v{T[1]}, 3, v{T[1]}")
        a(f"v_xor_b32 v{T[1]}, v{T[1]}, v{T[0]}")
        a(f"s_and_b32 s{s_a}, s{s_g}, 1")
        a(f"s_lshl_b32 s{s_a}, s{s_a}, 2")
        a(f"v_add_u32 v{T[1]}, s{s_a}, v{T[1]}")
        a(f"v_subrev_u32 v{T[2]}, 20, v{T[1]}")
        a(f"v_min_u32 v{T[1]}, v{T[1]}, v{T[2]}")
        a(f"v_lshrrev_b32 v{T[2]}, 5, v{lane}")
        a(f"v_mul_u32_u24 v{T[3]}, 320, v{T[2]}")
        a(f"v_lshl_add_u32 v{va}, v{T[1]}, 4, v{T[3]}")
        a(f"v_add_u32 v{va}, 2560, v{va}")
        a(f"s_and_b32 s{s_ko}, s{s_m}, 12")
        a(f"s_lshl1_add_u32 s{s_ko}, s{s_ko}, s{s_kh}")
        a(f"s_mul_i32 s{s_ko}, s{s_ko}, {PS}")
        a(f"s_mov_b32 s{s_vm}, 0x000fffff")
        a(f"s_mov_b32 s{s_vm+1}, 0x000fffff")
        a(f"s_lshl_b32 s{s_fg}, s{s_blk}, 9")
        a(f"s_add_u32 s{s_fg}, s{s_fg}, {GFOFF}")
        a(f"v_and_b32 v{gfv}, 3, v{lane}")
        a(f"v_lshlrev_b32 v{gfv}, 7, v{gfv}")
        a(f"s_min_u32 s{s_a}, s{s_wave}, 4")
        a(f"s_lshl_b32 s{s_b}, s{s_a}, 6")
        a(f"v_add_u32 v{T[0]}, s{s_b}, v{lane}")
        img_pos(a, T[0], T[1], T[2])
        a(f"s_movk_i32 s{s_c}, 1280")
        grp_src(a, gwo, T[1], T[2], s_c)
    def wo_scalars():
        make_srd(a, SW, 20, None, 640 * 1280)
        a(f"s_cmp_gt_u32 s{s_wave}, 4")
        a(f"s_cselect_b32 s{s_c}, {24*5120}, 0")
        a(f"s_lshl_b32 s{s_m0w}, s{s_wave}, 10")
        if G.wod: a(f"s_sub_u32 s{s_m0w}, s{s_m0w}, {G.wod*5120}")
        a(f"s_add_u32 s{s_m0w}, s{s_m0w}, s{s_c}")
        a(f"s_mul_i32 s{s_wo}, s{s_n}, 160")
        a(f"s_lshl3_add_u32 s{s_wo}, s{s_c}, s{s_wo}")
        if G.wod: a(f"s_sub_u32 s{s_wo}, s{s_wo}, {G.wod*32*1280}")
    def ld_k1(b): return f"buffer_load_dwordx4 {v(K1[b],4)}, v{ka}, {srd(SKV)}, s{s_ko} offen offset:{1024*(b&1)} sc1"
    def ld_k3(p): return f"buffer_load_dwordx2 {v(K3[p],2)}, v{k3a}, {srd(SKV)}, s{s_ko} offen offset:2048 sc1"
    def ld_v(b, m=s_vm):
        return (f"s_mov_b64 exec, s[{m}:{m+1}]\n"
                f"buffer_load_dwordx4 {v(V[b],4)}, v{va}, {srd(SKV)}, s{s_ko} offen offset:{1280*(b&1)} sc1\n"
                f"buffer_load_dwordx4 {v(V[b]+4,4)}, v{va}, {srd(SKV)}, s{s_ko} offen offset:{1280*(b&1)+640} sc1\n"
                f"s_mov_b64 exec, -1")
    def adv_pair():
        return [f"s_add_u32 s{s_ko}, s{s_ko}, {2*PS}", f"s_cmp_ge_u32 s{s_ko}, {HS}",
                f"s_cselect_b32 s{s_c}, {HS}, 0", f"s_sub_u32 s{s_ko}, s{s_ko}, s{s_c}"]
    def pad_value():
        a(f"v_and_b32 v{S[0]}, 31, v{lane}")
        a(f"v_cmp_eq_u32 vcc, 20, v{S[0]}")
        a(f"v_mov_b32 v{S[0]+1}, 0x3f803f80")
        a(f"v_mov_b64 {v(P[1],2)}, 0")
        a(f"v_cndmask_b32 v{S[0]}, 0, v{S[0]+1}, vcc")
        a(f"v_mov_b32 v{S[0]+1}, v{S[0]}")
    def pad(b):
        for r in range(0, 8, 2): a(f"v_mov_b64 {v(V[b]+r,2)}, {v(S[0],2)}")
    def zero_acc():
        for q in range(4): a(f"v_mfma_f32_32x32x8_bf16 {v(O[q],16)}, {v(P[1],2)}, {v(P[1],2)}, 0")
        for r in range(2, 8, 2): a(f"v_mov_b64 {v(P[1]+r,2)}, 0")
    first = [("K1", 0), ("K3", 0), ("V", 0), ("V", 0), ("K1", 1), ("V", 1), ("V", 1), ("K1", 2), ("V", 2), ("V", 2), ("K1", 3), ("K3", 1)]
    if G.v3: first += [("V", 3)] * 2
    def kv_first(with_pad):
        a(ld_k1(0)); a(ld_k3(0))
        if with_pad: pad_value(); pad(0)
        a(ld_v(0)); a(ld_k1(1))
        if with_pad: pad(1)
        a(ld_v(1))
        for x in adv_pair(): a(x)
        a(ld_k1(2))
        if with_pad: pad(2)
        a(ld_v(2)); a(ld_k1(3)); a(ld_k3(1))
        if with_pad: pad(3)
        if G.v3:
            a(ld_v(3))
            a("s_mov_b64 s[22:23], 0")

    XF = 0; ACC2 = 160; W2 = [200, 220]
    gx = [160, 161, 162, 163]; gw = [164, 165, 166, 167, 168]; gq = [251, 252, 253, 254, 245]
    wa2 = [246, 247, 248, 249, 250]; xa2 = [210, 211]
    setT(200)
    a(f"v_lshrrev_b32 v{T[0]}, 4, v{lane}")
    a(f"v_xor_b32 v{T[0]}, v{T[0]}, v{lane}")
    a(f"v_and_b32 v{T[0]}, 7, v{T[0]}")
    a(f"v_lshrrev_b32 v{T[1]}, 3, v{lane}")
    a(f"v_mul_u32_u24 v{T[1]}, 1280, v{T[1]}")
    a(f"v_lshl_add_u32 v{gx[0]}, v{T[0]}, 4, v{T[1]}")
    a(f"v_xor_b32 v{gx[1]}, 64, v{gx[0]}")
    a(f"v_add_u32 v{gx[1]}, 9216, v{gx[1]}")
    a(f"v_add_u32 v{gx[2]}, 18432, v{gx[0]}")
    a(f"v_add_u32 v{gx[3]}, 18432, v{gx[1]}")
    a(f"s_movk_i32 s{s_c}, 3840")
    rows = [212 + 2 * i for i in range(5)]
    for i in range(5):
        if i: a(f"v_add_u32 v{T[0]}, {64*i}, v{lane}")
        img_pos(a, T[0] if i else lane, rows[i], rows[i] + 1)
        a(f"v_lshlrev_b32 v{T[3]}, 4, v{rows[i]+1}")
        a(f"v_mad_u32_u24 v{gw[i]}, v{rows[i]}, s{s_c}, v{T[3]}")
        if i & 3: a(f"v_subrev_u32 v{gw[i]}, {1024*i}, v{gw[i]}")
    a(f"s_lshl_b32 s{s_m0x}, s{s_g}, 12")
    a(f"s_mul_i32 s{s_m0w}, s{s_g}, 5120")
    a(f"s_add_u32 s{s_m0w}, s{s_m0w}, 16384")
    a(f"s_lshl2_add_u32 s{s_a}, s{s_m}, s{s_g}")
    a(f"s_mul_i32 s{s_a}, s{s_a}, {32*1280}")
    a(f"s_mul_i32 s{s_fg}, s{s_n}, 320")
    a(f"s_mul_i32 s{s_b}, s{s_g}, {16*3840}")
    a(f"s_add_u32 s{s_fg}, s{s_fg}, s{s_b}")
    a(f"s_add_u32 s{s_loc}, s{s_fg}, 1280")
    a(f"s_mov_b32 s{s_vo}, s{s_k}")
    common_ptrs()
    make_srd(a, SX, 16, f"s{s_a}", 32 * 1280)
    make_srd(a, SW, 18, None, 640 * 3840)
    lseq = []
    def issue_stage(i):
        sl = (i & 3) * SLOT
        a(f"s_add_u32 m0, s{s_m0x}, {sl}")
        a(f"s_lshl_b32 s{s_xo}, s{s_k}, 7")
        for ii in range(4):
            a(f"buffer_load_dwordx4 v{gx[ii]}, {srd(SX)}, s{s_xo} offen offset:{1024*ii} lds")
        a(f"s_mul_i32 s{s_wo}, s{s_k}, {64*3840}")
        a(f"s_add_u32 m0, s{s_m0w}, {sl}")
        a(f"s_add_u32 s{s_wo}, s{s_wo}, s{s_loc}")
        for ii in range(4):
            a(f"buffer_load_dwordx4 v{gw[ii]}, {srd(SW)}, s{s_wo} offen offset:{1024*ii} lds")
        a(f"s_add_u32 m0, s{s_m0w}, {sl+4096}")
        a(f"s_add_u32 s{s_k}, s{s_k}, 1")
        a(f"buffer_load_dwordx4 v{gw[4]}, {srd(SW)}, s{s_wo} offen lds")
        if G.rot:
            a(f"s_cmp_eq_u32 s{s_k}, 10")
            a(f"s_cselect_b32 s{s_k}, 0, s{s_k}")
        lseq.extend([("st", i)] * 9)
    gbase = [2 * SLOT + g * 5120 for g in range(7)] + [SPARE] + [3 * SLOT + g * 5120 for g in range(7)] + [SPARE + 5120] + [g * 5120 for g in range(4)]
    def round_ins(R):
        o = []
        x = f"s_add_u32 s{s_wo}, s{s_st}, {R*4*32*3840}"
        if G.rot:
            x += f"\ns_cmp_ge_u32 s{s_wo}, {640*3840}\ns_cselect_b32 s{s_b}, {640*3840}, 0\ns_sub_u32 s{s_wo}, s{s_wo}, s{s_b}"
        gb = gbase[4 * R:4 * R + 4]
        assert gb[1] == gb[0] + 5120 and gb[2] == gb[0] + 10240
        x += f"\ns_add_u32 s{s_a}, s{s_m0w}, {(gb[0]-16384) & 0xffffffff}"
        if gb[3] != gb[0] + 15360:
            x += f"\ns_cmp_eq_u32 s{s_g}, 3\ns_cselect_b32 s{s_a}, {gb[3]}, s{s_a}"
        x += f"\ns_mov_b32 m0, s{s_a}\ns_add_u32 s{s_a}, s{s_a}, 4096"
        o.append(x)
        for ii in range(4):
            o.append(f"buffer_load_dwordx4 v{gq[ii]}, {srd(SW)}, s{s_wo} offen offset:{1024*ii} lds")
        o.append(f"s_mov_b32 m0, s{s_a}\ns_nop 0\nbuffer_load_dwordx4 v{gq[4]}, {srd(SW)}, s{s_wo} offen lds")
        lseq.extend([("R", R)] * 5)
        return o
    def issue_item(i):
        if i < 10: issue_stage(i)
        elif i < 15:
            for x in round_ins(i - 10): a(x)
    def lwait(key):
        return len(lseq) - 1 - max(i for i, x in enumerate(lseq) if x == key)
    stamp(a, 11)
    issue_stage(0)
    stamp(a, 12)
    epoch_load()
    a(f"s_lshl_b32 s{s_b}, s{s_g}, 12")
    x_addrs(a, xa2, s_b)
    for i in range(1, G.pro): issue_stage(i)
    stamp(a, 13)
    epoch_fin()
    a(f"s_waitcnt vmcnt({lwait(('st',0))})")
    a("s_barrier")
    stamp(a, 1)
    for i in range(G.pro, G.la): issue_stage(i)
    xoff = 0
    for st in range(10):
        sl = (st & 3) * SLOT
        want = 0 if sl < 2 * SLOT else 2 * SLOT
        if want != xoff:
            for r in xa2:
                a(f"v_add_u32 v{r}, {want-xoff}, v{r}" if want > xoff else f"v_subrev_u32 v{r}, {xoff-want}, v{r}")
            xoff = want
        for ks in range(2):
            for ii in range(2):
                a(f"ds_read_b128 {v(XF+16*st+8*ks+4*ii,4)}, v{xa2[ks]} offset:{sl-xoff+2048*ii}")
        if st == 0:
            a(f"s_movk_i32 s{s_c}, 3840")
            for i in range(5):
                grp_src(a, gq[i], rows[i], rows[i] + 1, s_c)
                if i & 3: a(f"v_subrev_u32 v{gq[i]}, {1024*i}, v{gq[i]}")
            a(f"s_lshl1_add_u32 s{s_st}, s{s_vo}, s{s_g}")
            a(f"s_mul_i32 s{s_st}, s{s_st}, {32*3840}")
            a(f"s_mul_i32 s{s_a}, s{s_n}, 160")
            a(f"s_add_u32 s{s_st}, s{s_st}, s{s_a}")
        if st == 1: tr_addrs(a, wa2, True, True, None, 0)
        if st == 2:
            att_addrs()
        if st == 4 and G.warm:
            a("s_mov_b64 exec, 0")
            for c in range(3):
                a(f"s_cmp_eq_u32 s{s_g}, {c}")
                a(f"s_cbranch_scc1 Lpad_{c}_0")
            a("s_branch Lpad_3_0")
            a(".PADRET")
            a("s_mov_b64 exec, -1")
        key = ("st", st + 1) if st < 9 else ("R", 0)
        a(f"s_waitcnt vmcnt({lwait(key)}) lgkmcnt(0)")
        a("s_barrier")
        if st < 9: issue_item(st + G.la)
    stamp(a, 2)
    pre = {}
    nxt = G.la - 1
    for R in range(5):
        ins = round_ins(nxt) if nxt < 5 else []
        nxt += 1
        if ins:
            pre[("x", 4 * R)] = ins[0:2]
            pre[("x", 4 * R + 1)] = ins[2:4]
            pre[("x", 4 * R + 2)] = ins[4:]
        if R < 4:
            pre[("h", 4 * R + 3)] = [f"s_waitcnt vmcnt({lwait(('R', R + 1))})", "s_barrier"]
    qa, qb, md = 0, 1, 2
    half = [f"v_lshrrev_b32 v{qa}, 4, v{lane}", f"v_mul_u32_u24 v{qa}, 5120, v{qa}", f"s_mul_i32 s{s_b}, s{s_g}, 1280",
            f"s_add_u32 s{s_b}, s{s_b}, {QAREA}", f"v_add_u32 v{qa}, s{s_b}, v{qa}"]
    pre[("x", 16)] = half
    pre[("x", 17)] = [f"v_and_b32 v{md}, 15, v{lane}", f"v_lshl_add_u32 v{qb}, v{md}, 3, v{qa}", f"v_lshl_add_u32 v{qa}, v{md}, 4, v{qa}",
                      f"v_mov_b32 v{md}, {MODE_LDS}", f"s_mov_b32 s{s_a}, {QSCALE:#x}\ns_mov_b32 s{s_b}, {QSCALE:#x}"]
    pre[("x", 19)] = [f"ds_read_b32 v{md}, v{md}"]
    small_gemm(a, XF, ACC2, W2, wa2, gbase, pre)
    stamp(a, 3)
    a("s_nop 4")
    assert s_a % 2 == 0 and s_b == s_a + 1
    for ii in range(2):
        r = ACC2 + 20 * ii
        pad_hop(a, 0)
        for e in range(10):
            a(f"v_pk_mul_f32 {v(r+2*e,2)}, {v(r+2*e,2)}, s[{s_a}:{s_b}]")
        for e in range(10):
            a(f"v_cvt_pk_bf16_f32 v{r+e}, v{r+2*e}, v{r+2*e+1}")
        a(f"ds_write_b128 v{qa}, {v(r,4)} offset:{256*ii}")
        a(f"ds_write_b128 v{qa}, {v(r+4,4)} offset:{256*ii+512}")
        a(f"ds_write_b64 v{qb}, {v(r+8,2)} offset:{128*ii+1024}")
    a("s_waitcnt lgkmcnt(0)")
    a(f"v_readfirstlane_b32 s{s_loc}, v{md}")
    a("s_barrier")
    a(f"s_and_b32 s{s_loc}, s{s_loc}, 1")
    a(f"s_lshl_b32 s{s_st}, s{s_loc}, 2")
    stamp(a, 4)
    pad_hop(a, 1)
    kv_first(True)
    pad_hop(a, 1)
    zero_acc()
    wo_scalars()

    a(f"{Latt}:")
    setT(247)
    a(f"s_mul_i32 s{s_b}, s{s_g}, 5120")
    a(f"s_add_u32 s{s_b}, s{s_b}, {QAREA}")
    a(f"v_add_u32 v{T[0]}, s{s_b}, v{ka}")
    a(f"v_and_b32 v{T[1]}, 31, v{lane}")
    a(f"v_lshl_add_u32 v{T[1]}, v{T[1]}, 3, s{s_b}")
    for q in range(4):
        a(f"v_mov_b64 {v(Q3[0][q],2)}, 0")
        a(f"v_mov_b64 {v(Q3[1][q],2)}, 0")
    for q in range(4):
        a(f"ds_read_b128 {v(Q1[q],4)}, v{T[0]} offset:{1280*q}")
    for h in range(2):
        a(f"s_mov_b32 exec_lo, {-1 if h == 0 else 0}")
        a(f"s_mov_b32 exec_hi, {0 if h == 0 else -1}")
        for q in range(4):
            a(f"ds_read_b64 {v(Q3[h][q],2)}, v{T[1]} offset:{1280*q+1024}")
    a("s_mov_b64 exec, -1")
    pad_hop(a, 1)
    a(f"s_mov_b32 s{s_it}, 0")

    def qk1(sb, q, t): return f"v_mfma_f32_32x32x16_bf16 {v(S[sb],16)}, {v(K1[t],4)}, {v(Q1[q],4)}, 0"
    def qk2(sb, q, t): return f"v_mfma_f32_32x32x8_bf16 {v(S[sb],16)}, {v(K3[t>>1],2)}, {v(Q3[t&1][q],2)}, {v(S[sb],16)}"
    def pv(pb, q, t, h): return f"v_mfma_f32_32x32x16_bf16 {v(O[q],16)}, {v(V[t]+4*h,4)}, {v(P[pb]+4*h,4)}, {v(O[q],16)}"
    def ex(q, r): return f"v_exp_f32 v{S[q]+r}, v{S[q]+r}"
    def cv(q, r): return f"v_cvt_pk_bf16_f32 v{P[q]+r//2}, v{S[q]+r}, v{S[q]+r+1}"
    wo_dma = [f"s_min_u32 s{s_c}, s{s_m0w}, 0x20000", f"s_add_u32 m0, s{s_c}, {WOBASE}", f"s_add_u32 s{s_m0w}, s{s_m0w}, 5120",
              f"buffer_load_dwordx4 v{gwo}, {srd(SW)}, s{s_wo} offen lds", f"s_add_u32 s{s_wo}, s{s_wo}, {32*1280}"]
    plan = {}
    for tt in range(4):
        pb = (tt - 1) % 4
        plan[(tt, 1)] = ([ld_v(pb)], [("V", pb)] * 2)
        if G.v3 and pb == 3: plan[(tt, 1)] = ([ld_v(pb, 22), f"s_mov_b64 s[22:23], s[{s_vm}:{s_vm+1}]"], [("V", pb)] * 2)
        if tt & 1:
            plan[(tt, 3)] = ([ld_k1(tt), ld_k3(tt >> 1)], [("K1", tt), ("K3", tt >> 1)])
        else:
            plan[(tt, 3)] = ([ld_k1(tt)], [("K1", tt)])
            plan[(tt, 2)] = (adv_pair(), [])
        if tt > 0:
            plan[(tt, 0)] = (wo_dma, [("WO",)])
    order = [(tt, q) for tt in range(4) for q in range(4)]
    names = []; pos = {}
    for rep in range(2):
        for key in order:
            if rep == 1: pos[key] = len(names)
            names += plan.get(key, ([], []))[1]
    def need(tt):
        nt = (tt + 1) % 4
        return [("K1", nt), ("V", nt), ("K3", nt >> 1)]
    n0 = list(first); waits = {}
    for key in order:
        if key[1] == 3:
            p = pos[key]
            w1 = p - 1 - max(max(i for i in range(p) if names[i] == k) for k in need(key[0]))
            w2 = len(n0) - 1 - max(max(i for i in range(len(n0)) if n0[i] == k) for k in need(key[0]))
            waits[key[0]] = min(w1, w2)
        n0 += plan.get(key, ([], []))[1]
    a(f"s_waitcnt vmcnt({len(first)-4}) lgkmcnt(0)")
    stamp(a, 5)
    a(qk1(0, 0, 0)); a(qk2(0, 0, 0))
    a("s_setprio 3")
    a("s_nop 7")
    a("s_nop 3")
    L = a.label("al")
    a(".p2align 6")
    a(f"{L}:")
    hooks = {G.hst: (0, a.label("hA"), a.label("hAb")),
             G.hsam: (3, a.label("hB"), a.label("hBb")), (0, 2): (4, a.label("hC"), a.label("hCb"))}
    cum = [sum(G.lens[:i]) for i in range(4)]
    step = 0
    for tt in range(4):
        for q in range(4):
            c = q & 1; o = 1 - c
            nq, nt = (q + 1, tt) if q < 3 else (0, (tt + 1) % 4)
            pq, pt = (q - 1, tt) if q > 0 else (3, (tt - 1) % 4)
            extra = list(plan.get((tt, q), ([], []))[0])
            if q & 1: pad_hop(a, 1)
            if (tt, q) in hooks:
                bit, lo, lb = hooks[(tt, q)]
                a(f"s_bitcmp1_b32 s{s_st}, {bit}")
                a(f"s_cbranch_scc1 {lo}")
                a(f"{lb}:")
            if q == 3: a(f"s_waitcnt vmcnt({waits[tt]})")
            if (tt, q) == (2, 1): extra += [f"s_lshl_b32 s{s_st}, s{s_st}, 1"]
            if (tt, q) == (3, 2): extra += [f"s_add_u32 s{s_it}, s{s_it}, 1", f"s_cmp_lt_u32 s{s_it}, {G.iters}"]
            ms = [qk1(o, nq, nt), qk2(o, nq, nt), pv(o, pq, pt, 0), pv(o, pq, pt, 1)]
            for j in range(4):
                a(ms[j])
                if j: a(cv(c, 4 * j - 2))
                for e in range(3):
                    a(ex(c, 4 * j + e))
                    if extra: a(extra.pop(0))
                if j < 3:
                    a(cv(c, 4 * j)); a(ex(c, 4 * j + 3))
                else:
                    a(ex(c, 15)); a(cv(c, 12))
            n = (step + 1) % sum(G.lens)
            if n in cum: a(f"s_setprio {3 - cum.index(n)}")
            a(cv(c, 14))
            step += 1
    a(f"s_cbranch_scc1 {L}")
    a(f"s_mul_i32 s{s_a}, s{s_wave}, 6144")
    a(pv(1, 3, 3, 0)); a(pv(1, 3, 3, 1))
    a("s_setprio 0")
    Lk1 = a.label("k1"); Lj = a.label("kj"); Lslow = a.label("slow"); Lst = a.label("store")
    own, oth, oa1, oa2 = 253, 254, 238, 239
    a(f"v_add_u32 v{own}, s{s_a}, v{ka}")
    a(f"s_xor_b32 s{s_a}, s{s_wave}, 4")
    a(f"s_mul_i32 s{s_a}, s{s_a}, 6144")
    a(f"v_add_u32 v{oth}, s{s_a}, v{ka}")
    stamp(a, 6)
    pad_hop(a, 2)
    a(f"s_lshl4_add_u32 s{s_xo}, s{s_blk}, s{s_m}")
    a(f"s_lshl1_add_u32 s{s_a}, s{s_xo}, s{s_kh}")
    a(f"s_mul_i32 s{s_a}, s{s_a}, {4*20480}")
    a(f"s_add_u32 s{s_a}, s{s_a}, {OBASE}")
    make_srd(a, SO, 32, f"s{s_a}", 4 * 20480)
    a(f"s_cmp_eq_u32 s{s_kh}, 0")
    a(f"s_cbranch_scc0 {Lk1}")
    for i in range(2):
        for gq_ in range(3):
            a(f"ds_write_b128 v{own}, {v(O[2+i]+4*gq_,4)} offset:{(i*3+gq_)*1024}")
    a(f"s_branch {Lj}")
    a(f"{Lk1}:")
    for i in range(2):
        for gq_ in range(3):
            a(f"ds_write_b128 v{own}, {v(O[i]+4*gq_,4)} offset:{(i*3+gq_)*1024}")
    a("s_nop 1")
    for i in range(2):
        for r in range(0, 12, 2):
            a(f"v_mov_b64 {v(O[i]+r,2)}, {v(O[2+i]+r,2)}")
    a(f"{Lj}:")
    pad_hop(a, 2)
    a(f"s_lshl2_add_u32 s{s_vo}, s{s_n}, s{s_g}")
    a(f"s_mul_i32 s{s_b}, s{s_vo}, 5")
    a(f"s_add_u32 s{s_b}, s{s_b}, 1")
    a(f"s_lshr_b32 s{s_b}, s{s_b}, 1")
    a(f"s_lshl_b32 s{s_b}, s{s_b}, 8")
    a(f"s_movk_i32 s{s_a}, 512")
    a(f"s_and_b32 s{s_c}, s{s_g}, 1")
    a(f"s_cselect_b32 s{s_c}, {(-256+8) & 0xffffffff}, s{s_a}")
    a(f"s_add_u32 s{s_c}, s{s_c}, s{s_b}")
    a(f"v_bfe_u32 v{T[2]}, v{lane}, 4, 1")
    a(f"v_mul_u32_u24 v{T[2]}, 20480, v{T[2]}")
    a(f"v_and_b32 v{T[3]}, 15, v{lane}")
    a(f"v_lshl_add_u32 v{T[2]}, v{T[3]}, 4, v{T[2]}")
    a(f"v_lshrrev_b32 v{T[4]}, 5, v{lane}")
    a(f"v_lshl_add_u32 v{T[3]}, v{T[4]}, 20, v{T[2]}")
    a(f"v_lshl_add_u32 v{T[2]}, v{T[4]}, 8, v{T[2]}")
    a(f"v_add_u32 v{oa1}, s{s_b}, v{T[2]}")
    a(f"v_add_u32 v{oa2}, s{s_c}, v{T[3]}")
    a("s_waitcnt vmcnt(0) lgkmcnt(0)")
    a("s_barrier")
    for i in range(2):
        for gq_ in (2, 0, 1):
            a(f"ds_read_b128 {v(O[2+i]+4*gq_,4)}, v{oth} offset:{(i*3+gq_)*1024}")
    a(f"s_cmp_eq_u32 s{s_loc}, 0")
    a(f"s_cselect_b32 s{s_k}, {FSH}, 2")
    a(f"s_mov_b32 s{s_a}, {F2LOFF}")
    a(f"s_cselect_b32 s{s_a}, {F2OFF}, s{s_a}")
    a(f"s_lshl_b32 s{s_xo}, s{s_xo}, 6")
    a(f"s_lshl_b32 s{s_xo}, s{s_xo}, s{s_k}")
    a(f"s_add_u32 s{s_xo}, s{s_xo}, s{s_a}")
    a(f"s_lshl_b32 s{s_a}, s{s_kh}, 5")
    a(f"s_add_u32 s{s_vo}, s{s_vo}, s{s_a}")
    a(f"s_lshl_b32 s{s_vo}, s{s_vo}, s{s_k}")
    a(f"s_add_u32 s{s_vo}, s{s_vo}, s{s_xo}")
    pad_hop(a, 2)
    flag_regs(a)
    a(f"s_mov_b32 s{s_a}, 0x2b800000")
    a(f"s_mov_b32 s{s_b}, 0x5d800000")
    a("s_waitcnt lgkmcnt(0)")
    for i in range(2):
        for r in (8, 10, 0, 2, 4, 6):
            a(f"v_pk_add_f32 {v(O[i]+r,2)}, {v(O[i]+r,2)}, {v(O[2+i]+r,2)}")
    def bcast_l():
        for i in range(2):
            a(f"v_mov_b32 v{O[i]+12}, v{O[i]+8}")
            a(f"v_mov_b32 v{O[i]+13}, v{O[i]+8}")
        a("s_nop 1")
        for i in range(2):
            a(f"v_permlane32_swap_b32 v{O[i]+13}, v{O[i]+12}")
    bcast_l()
    pad_hop(a, 2)
    for q in range(2):
        a(f"v_pk_mul_f32 {v(O[q]+14,2)}, {v(O[q],2)}, 0 op_sel_hi:[1,0]")
        for r in range(2, 12, 2):
            a(f"v_pk_fma_f32 {v(O[q]+14,2)}, {v(O[q]+r,2)}, 0, {v(O[q]+14,2)} op_sel_hi:[1,0,1]")
    a(f"v_cmp_o_f32 vcc, v{O[0]+14}, v{O[0]+15}")
    a(f"v_cmp_o_f32 s[16:17], v{O[1]+14}, v{O[1]+15}")
    a(f"v_min_f32 v{T[0]}, v{O[0]+12}, v{O[1]+12}")
    a(f"v_max_f32 v{T[1]}, v{O[0]+12}, v{O[1]+12}")
    a(f"s_and_b64 vcc, vcc, s[16:17]")
    a(f"v_cmp_le_f32 s[16:17], s{s_a}, v{T[0]}")
    a(f"v_cmp_ge_f32 s[18:19], s{s_b}, v{T[1]}")
    a(f"s_and_b64 vcc, vcc, s[16:17]")
    a(f"s_and_b64 vcc, vcc, s[18:19]")
    a("s_cmp_eq_u64 vcc, -1")
    a(f"s_cbranch_scc0 {Lslow}")
    a(f"{Lst}:")
    pad_hop(a, 2)
    a(f"v_rcp_f32 v{O[0]+12}, v{O[0]+12}")
    a(f"v_rcp_f32 v{O[1]+12}, v{O[1]+12}")
    a(f"s_mov_b32 s{s_b}, {2*20480}")
    for q in range(2):
        for r in range(0, 12, 2):
            a(f"v_pk_mul_f32 {v(O[q]+r,2)}, {v(O[q]+r,2)}, {v(O[q]+12,2)} op_sel_hi:[1,0]")
        for e in range(6):
            a(f"v_cvt_pk_bf16_f32 v{O[q]+e}, v{O[q]+2*e}, v{O[q]+2*e+1}")
    Log = a.label("og"); Loj = a.label("oj"); Lo2 = a.label("o2"); Lo3 = a.label("o3")
    a(f"s_cmp_eq_u32 s{s_loc}, 0")
    a(f"s_cbranch_scc1 {Log}")
    for fl in (G.olst, "sc1"):
        for q in range(2):
            so = "0" if q == 0 else f"s{s_b}"
            a(f"buffer_store_dwordx4 {v(O[q],4)}, v{oa1}, {srd(SO)}, {so} offen {fl}")
            a(f"buffer_store_dwordx2 {v(O[q]+4,2)}, v{oa2}, {srd(SO)}, {so} offen {fl}")
        if fl != "sc1":
            a(f"s_branch {Loj}")
            a(f"{Log}:")
    a(f"{Loj}:")
    pad_hop(a, 2)
    wa4 = [240, 241, 242, 243, 244]; ol = [245, 246]; pf = 238
    a(f"v_add_u32 v{ol[1]}, 20480, v{ka}")
    a(f"v_mov_b32 v{ol[0]}, v{ka}")
    a(f"s_mul_i32 s{s_c}, s{s_kh}, {10*5120}")
    a(f"s_add_u32 s{s_c}, s{s_c}, {WOBASE}")
    tr_addrs(a, wa4, True, True, None, f"s{s_c}")
    a(f"s_lshl4_add_u32 s{s_a}, s{s_blk}, s{s_m}")
    a(f"s_lshl2_add_u32 s{s_a}, s{s_a}, s{s_g}")
    a(f"s_mul_i32 s{s_a}, s{s_a}, {2*20480}")
    a(f"s_mul_i32 s{s_b}, s{s_kh}, 10240")
    a(f"s_add_u32 s{s_a}, s{s_a}, s{s_b}")
    a(f"s_add_u32 s{s_a}, s{s_a}, {OBASE}")
    pad_hop(a, 2)
    make_srd(a, SKV, 32, f"s{s_a}", 20480 + 10240)
    a(f"s_and_b32 s{s_a}, s{s_g}, 2")
    a(f"s_add_u32 s{s_a}, s{s_a}, s{s_kh}")
    a(f"s_lshl_b32 s{s_a}, s{s_a}, 4")
    a(f"s_lshl_b32 s{s_a}, s{s_a}, s{s_k}")
    a(f"s_add_u32 s{s_xo}, s{s_xo}, s{s_a}")
    a(f"s_cmp_eq_u32 s{s_loc}, 0")
    a("s_waitcnt vmcnt(0)")
    a(f"s_cbranch_scc1 {Lo2}")
    flag_store(a, s_vo, True)
    a(f"s_branch {Lo3}")
    a(f"{Lo2}:")
    flag_store(a, s_vo, False)
    a(f"{Lo3}:")
    pad_hop(a, 2)
    stamp(a, 7)
    a(f"v_and_b32 v{pf}, 15, v{lane}")
    a(f"v_lshlrev_b32 v{pf}, s{s_k}, v{pf}")
    a(f"s_movk_i32 s{s_a}, 4096")
    a(f"s_movk_i32 s{s_b}, 8192")
    poll(a, pf, f"s{s_xo}", T[0])
    stamp(a, 8)
    def ld_o(g, ii):
        so = ["0", f"s{s_a}", f"s{s_b}"][g // 4]
        return f"buffer_load_dwordx4 {v(XF+8*g+4*ii,4)}, v{ol[ii]}, {srd(SKV)}, {so} offen offset:{1024*(g%4)} sc1"
    for g in range(G.oa):
        a(ld_o(g, 0)); a(ld_o(g, 1))
    pre = {("x", g): [ld_o(g + G.oa, 0), ld_o(g + G.oa, 1)] for g in range(10 - G.oa)}
    oc = [100, 101, 102]; tw = 103
    for i in range(3):
        pre.setdefault(("x", 7 + i), [])
        pre[("x", 7 + i)] += [f"v_add_u32 v{oc[i]}, {64*i}, v{lane}\nv_mul_u32_u24 v{T[0]}, 6554, v{oc[i]}", f"v_lshrrev_b32 v{T[0]}, 16, v{T[0]}\nv_lshlrev_b32 v{oc[i]}, 4, v{oc[i]}",
                              f"v_mul_u32_u24 v{T[0]}, {2560-160}, v{T[0]}\nv_add_u32 v{oc[i]}, v{oc[i]}, v{T[0]}"]
    if G.ewb is not None:
        Lwb = a.label("ewb")
        pre[("x", 9)].insert(0, f"s_lshr_b32 s{s_c}, s2, 3\ns_lshl3_add_u32 s{s_c}, s{s_c}, s{s_wave}\ns_cmp_lg_u32 s{s_c}, {G.ewb}\ns_cbranch_scc1 {Lwb}\nbuffer_wbl2 sc1\n{Lwb}:")
    small_gemm(a, XF, ACC2, W2, wa4, [5120 * g for g in range(10)], pre,
               vmw=lambda g: 2 * (min(10, g + G.oa) - g - 1), chain=3)
    stamp(a, 9)
    pad_hop(a, 3)
    Le1 = a.label("e1"); Le2 = a.label("e2")
    a(f"v_and_b32 v{T[0]}, 15, v{lane}")
    a(f"v_lshrrev_b32 v{T[1]}, 4, v{lane}")
    a(f"v_mul_u32_u24 v{T[0]}, 160, v{T[0]}")
    a(f"v_mad_u32_u24 v{T[0]}, v{T[1]}, 40, v{T[0]}")
    a(f"s_mul_i32 s{s_a}, s{s_wave}, 6144")
    a(f"v_add_u32 v{tw}, s{s_a}, v{T[0]}")
    a(f"s_cmp_eq_u32 s{s_kh}, 0")
    a(f"s_cbranch_scc0 {Le1}")
    for j in range(5): a(f"ds_write_b128 v{oth}, {v(ACC2+20+4*j,4)} offset:{1024*j}")
    a(f"s_branch {Le2}")
    a(f"{Le1}:")
    for j in range(5): a(f"ds_write_b128 v{oth}, {v(ACC2+4*j,4)} offset:{1024*j}")
    a("s_nop 1")
    for r in range(0, 20, 2): a(f"v_mov_b64 {v(ACC2+r,2)}, {v(ACC2+20+r,2)}")
    a(f"{Le2}:")
    pad_hop(a, 3)
    a(f"s_lshl2_add_u32 s{s_a}, s{s_m}, s{s_g}")
    a(f"s_lshl1_add_u32 s{s_a}, s{s_a}, s{s_kh}")
    a(f"s_mul_i32 s{s_a}, s{s_a}, {16*2560}")
    a(f"s_mul_i32 s{s_b}, s{s_blk}, 1280")
    a(f"s_add_u32 s{s_a}, s{s_a}, s{s_b}")
    a(f"s_mul_i32 s{s_b}, s{s_n}, 160")
    a(f"s_add_u32 s{s_a}, s{s_a}, s{s_b}")
    make_srd(a, SO, 28, f"s{s_a}", 15 * 2560 + 160)
    a("s_waitcnt lgkmcnt(0)")
    a("s_barrier")
    for j in range(5): a(f"ds_read_b128 {v(ACC2+20+4*j,4)}, v{own} offset:{1024*j}")
    for j in range(5):
        a(f"s_waitcnt lgkmcnt({4-j})")
        r = ACC2 + 4 * j
        a(f"v_pk_add_f32 {v(r,2)}, {v(r,2)}, {v(r+20,2)}")
        a(f"v_pk_add_f32 {v(r+2,2)}, {v(r+2,2)}, {v(r+22,2)}")
        a(f"v_cvt_pk_bf16_f32 v{r}, v{r}, v{r+1}")
        a(f"v_cvt_pk_bf16_f32 v{r+1}, v{r+2}, v{r+3}")
    pad_hop(a, 3)
    for j in range(5): a(f"ds_write_b64 v{tw}, {v(ACC2+4*j,2)} offset:{8*j}")
    a("s_waitcnt lgkmcnt(0)")
    for i in range(3): a(f"ds_read_b128 {v(ACC2+20+4*i,4)}, v{own} offset:{1024*i}")
    for i in range(3):
        a(f"s_waitcnt lgkmcnt({2-i})")
        a(f"buffer_store_dwordx4 {v(ACC2+20+4*i,4)}, v{oc[i]}, {srd(SO)}, 0 offen {G.ost}")
    Lfin = a.label("fin")
    a(f"s_or_b32 s{s_a}, s{s_m}, s{s_n}")
    a(f"s_or_b32 s{s_a}, s{s_a}, s{s_wave}")
    a(f"s_cbranch_scc1 {Lfin}")
    a(f"s_lshl_b32 s{s_b}, s{s_blk}, 7")
    a(f"s_add_u32 s{s_b}, s{s_b}, {EOFF}")
    flag_store(a, s_b, False)
    a(f"{Lfin}:")
    dump_stamps(a, 10)
    a(f"{Lend}:")
    a("s_endpgm")

    a(f"{Lcons}:")
    setT(247)
    ACC = 0
    X = [[80 + 16 * b + 4 * i for i in range(4)] for b in range(2)]
    W = [[112 + 20 * b + 4 * j for j in range(5)] for b in range(2)]
    xa = [152, 153]; wa = [154, 155, 156, 157, 158]; xt, xv = 159, 160
    s_wm, s_wn = s_xo, s_wo
    a("s_getpc_b64 s[4:5]")
    a(f"Lpc_{name}:")
    a(f"s_sub_u32 s4, s4, Lpc_{name}-{name}")
    a("s_subb_u32 s5, s5, 0")
    a(f"s_mov_b32 s6, Lcode_end-{name}")
    a("s_mov_b32 s7, 0x00020000")
    a("v_lshlrev_b32 v1, 7, v0")
    a(f"buffer_load_dword v{xt}, v1, s[4:7], 0 offen")
    a(f"s_and_b32 s{s_wm}, s{s_wave}, 1")
    a(f"s_lshr_b32 s{s_wn}, s{s_wave}, 1")
    a(f"s_lshl_b32 s{s_b}, s{s_wm}, 13")
    x_addrs(a, xa, s_b)
    for r in range(0, 80, 2): a(f"v_mov_b64 {v(ACC+r,2)}, 0")
    common_ptrs()
    epoch_load()
    att_addrs()
    a(f"s_and_b32 s{s_a}, s{s_n}, 3")
    a(f"s_lshl2_add_u32 s{s_a}, s{s_blk}, s{s_a}")
    a(f"s_lshl1_add_u32 s{s_a}, s{s_a}, s{s_wn}")
    a(f"s_mul_i32 s{s_a}, s{s_a}, {4*HS}")
    a(f"s_lshl1_add_u32 s{s_b}, s{s_m}, s{s_wm}")
    a(f"s_mul_i32 s{s_b}, s{s_b}, {PS}")
    a(f"s_add_u32 s{s_a}, s{s_a}, s{s_b}")
    make_srd(a, SO, 32, f"s{s_a}", 3 * HS + PS)
    a(f"s_lshl3_add_u32 s{s_a}, s{s_blk}, s{s_n}")
    a(f"s_lshl1_add_u32 s{s_a}, s{s_a}, s{s_wn}")
    a(f"s_lshl4_add_u32 s{s_a}, s{s_a}, s{s_m}")
    a(f"s_lshl1_add_u32 s{s_vo}, s{s_a}, s{s_wm}")
    a(f"s_lshr_b32 s{s_k}, s{s_vo}, 3")
    a(f"s_lshl_b32 s{s_k}, s{s_k}, 7")
    a(f"s_and_b32 s{s_a}, s{s_vo}, 7")
    a(f"s_lshl2_add_u32 s{s_k}, s{s_a}, s{s_k}")
    a(f"s_add_u32 s{s_k}, s{s_k}, {FLOFF}")
    a(f"s_and_b32 s{s_vo}, s2, 7")
    a(f"s_lshl_b32 s{s_vo}, s{s_vo}, 7")
    a(f"s_add_u32 s{s_vo}, s{s_vo}, {GFOFF}")
    epoch_fin()
    a(f"s_getreg_b32 s{s_loc}, hwreg(HW_REG_XCC_ID)")
    a(f"s_and_b32 s{s_loc}, s{s_loc}, 15")
    a(f"s_add_u32 s{s_loc}, s{s_loc}, s{s_tag}")
    a(f"s_and_b32 s{s_a}, s2, 7")
    a(f"s_lshl_b32 s{s_m0w}, s{s_a}, 12")
    a(f"s_add_u32 s{s_m0w}, s{s_m0w}, {XOFF}")
    a(f"s_lshr_b32 s{s_a}, s2, 3")
    a(f"s_lshl_b32 s{s_a}, s{s_a}, 7")
    a(f"s_add_u32 s{s_b}, s{s_a}, s{s_m0w}")
    Lnp = a.label("nopub")
    a(f"s_cmp_lg_u32 s{s_wave}, 0")
    a(f"s_cbranch_scc1 {Lnp}")
    flag_regs(a, s_loc)
    flag_store(a, s_b, False)
    a(f"{Lnp}:")
    a(f"v_and_b32 v{xv}, 31, v{lane}")
    a(f"v_lshlrev_b32 v{xv}, 7, v{xv}")
    a(f"s_mov_b32 s{s_it}, 0")
    a(f"s_mov_b32 s{s_m0x}, {(-3*SLOT) & 0xffffffff}")
    a(f"s_cmp_ge_u32 s{s_n}, 4")
    a(f"s_cbranch_scc1 {Lv}")

    def p1_reads(ks, b):
        out = [f"ds_read_b128 {v(X[b][i],4)}, v{xa[ks]} offset:{2048*i}" for i in range(4)]
        for j in range(5):
            for t in range(2):
                out.append(f"ds_read_b64_tr_b16 {v(W[b][j]+2*t,2)}, v{wa[j]} offset:{ks*10240+1280*t}")
        return out
    st_code = {}
    Lcj = a.label("cj")
    def consumer(ktype):
        tr_addrs(a, wa, ktype, False, s_wn, 16384)
        if ktype:
            a(f"v_lshrrev_b32 v{T[0]}, 4, v{lane}")
            a(f"s_mov_b32 s{s_a}, {HS}")
            a(f"v_mul_lo_u32 v{T[0]}, v{T[0]}, s{s_a}")
            a(f"v_and_b32 v{T[1]}, 7, v{lane}")
            a(f"v_and_b32 v{T[2]}, 8, v{lane}")
            a(f"v_lshl_add_u32 v{T[1]}, v{T[2]}, 1, v{T[1]}")
            a(f"v_lshl_add_u32 v{sa[0]}, v{T[1]}, 4, v{T[0]}")
            a(f"v_lshl_add_u32 v{sa[1]}, v{T[1]}, 3, v{T[0]}")
        else:
            a(f"v_lshrrev_b32 v{T[0]}, 4, v{lane}")
            a(f"v_mul_u32_u24 v{T[0]}, 320, v{T[0]}")
            a(f"v_and_b32 v{T[1]}, 15, v{lane}")
            a(f"s_mov_b32 s{s_a}, {HS-320}")
            for j in range(5):
                a(f"v_add_u32 v{T[2]}, {16*j}, v{T[1]}")
                a(f"v_mul_u32_u24 v{T[3]}, 3277, v{T[2]}")
                a(f"v_lshrrev_b32 v{T[3]}, 16, v{T[3]}")
                a(f"v_lshl_add_u32 v{T[2]}, v{T[2]}, 4, v{T[0]}")
                a(f"v_mad_u32_u24 v{sa[j]}, v{T[3]}, s{s_a}, v{T[2]}")
        def mf(b):
            out = []
            for j in range(5):
                for i in range(4):
                    d = v(ACC + 4 * (5 * i + j), 4)
                    A, B = (W[b][j], X[b][i]) if ktype else (X[b][i], W[b][j])
                    out.append(f"v_mfma_f32_16x16x32_bf16 {d}, {v(A,4)}, {v(B,4)}, {d}")
            return out
        Lp = a.label("p1"); Ll = a.label("p1l")
        a("s_barrier")
        stamp(a, 1)
        for x in p1_reads(0, 0): a(x)
        a(f"{Lp}:")
        a("s_waitcnt lgkmcnt(8)")
        e = p1_reads(1, 1) + [f"s_add_u32 s{s_it}, s{s_it}, 1", f"s_and_b32 s{s_a}, s{s_it}, 3",
                              f"s_cselect_b32 s{s_a}, {SLOT}, s{s_m0x}", f"s_cmp_eq_u32 s{s_it}, 10"]
        for k, x in enumerate(mf(0)):
            if k == 4: a("s_waitcnt lgkmcnt(4)")
            a(x)
            if e: a(e.pop(0))
        a("s_waitcnt lgkmcnt(8)")
        m1 = mf(1)
        adds = [f"v_add_u32 v{r}, s{s_a}, v{r}" for r in xa + wa]
        for k in range(4):
            a(m1[k])
            for x in adds[2 * k:2 * k + 2]: a(x)
        a("s_waitcnt lgkmcnt(0)")
        a("s_barrier")
        a(f"s_cbranch_scc1 {Ll}")
        e = p1_reads(0, 0)
        for x in m1[4:]:
            a(x)
            if e: a(e.pop(0))
        a(f"s_cmp_lg_u32 s{s_it}, 7")
        a(f"s_cbranch_scc1 {Lp}")
        a(f"buffer_load_dword v{xt}, v{xv}, {srd(SF)}, s{s_m0w} offen sc1")
        a(f"s_branch {Lp}")
        a(f"{Ll}:")
        for x in m1[4:]: a(x)
        Lt = a.label("xt"); Ltd = a.label("xtd")
        a(f"s_mov_b32 s{s_c}, {SPIN}")
        a(f"{Lt}:")
        a("s_waitcnt vmcnt(0)")
        a(f"v_subrev_u32 v{T[0]}, s{s_tag}, v{xt}")
        a(f"v_cmp_lt_u32 vcc, 15, v{T[0]}")
        a(f"s_cbranch_vccz {Ltd}")
        a(f"s_sub_u32 s{s_c}, s{s_c}, 1")
        a(f"s_cbranch_scc1 {Ltd}")
        a(f"s_sleep {G.sleep}")
        a(f"buffer_load_dword v{xt}, v{xv}, {srd(SF)}, s{s_m0w} offen sc1")
        a(f"s_branch {Lt}")
        a(f"{Ltd}:")
        a(f"v_cmp_ne_u32 vcc, s{s_loc}, v{xt}")
        a("s_cmp_eq_u64 vcc, 0")
        a(f"s_cselect_b32 s{s_loc}, {1 if G.local else 0}, 0")
        stamp(a, 2)
        def stores(fl, so, cvt):
            if ktype:
                for i in range(4):
                    r = KVD + 10 * i
                    if cvt:
                        for e in range(10): a(f"v_cvt_pk_bf16_f32 v{r+e}, v{ACC+20*i+2*e}, v{ACC+20*i+2*e+1}")
                    o = (i >> 1) * 1024 + (i & 1) * 128
                    a(f"buffer_store_dwordx4 {v(r,4)}, v{sa[0]}, {srd(SO)}, {so} offen offset:{o} {fl}")
                    a(f"buffer_store_dwordx4 {v(r+4,4)}, v{sa[0]}, {srd(SO)}, {so} offen offset:{o+512} {fl}")
                    a(f"buffer_store_dwordx2 {v(r+8,2)}, v{sa[1]}, {srd(SO)}, {so} offen offset:{2048+(i>>1)*256+(i&1)*64} {fl}")
            else:
                for j in range(5):
                    for i2 in range(2):
                        r = KVD + 8 * j + 4 * i2
                        if cvt:
                            r0 = ACC + 4 * (5 * (2 * i2) + j); r1 = ACC + 4 * (5 * (2 * i2 + 1) + j)
                            a(f"v_cvt_pk_bf16_f32 v{r}, v{r0}, v{r0+1}")
                            a(f"v_cvt_pk_bf16_f32 v{r+1}, v{r0+2}, v{r0+3}")
                            a(f"v_cvt_pk_bf16_f32 v{r+2}, v{r1}, v{r1+1}")
                            a(f"v_cvt_pk_bf16_f32 v{r+3}, v{r1+2}, v{r1+3}")
                        a(f"buffer_store_dwordx4 {v(r,4)}, v{sa[j]}, {srd(SO)}, {so} offen offset:{2560+1280*i2} {fl}")
        st_code[ktype] = stores
        Lg = a.label("glob")
        a(f"s_cmp_eq_u32 s{s_loc}, 0")
        a(f"s_cbranch_scc1 {Lg}")
        stores(G.lst, "0", True)
        a(f"s_branch {Lcj}")
        a(f"{Lg}:")
        stores("sc1", "0", True)
        if ktype: a(f"s_branch {Lcj}")
    consumer(True)
    a(f"{Lv}:")
    consumer(False)
    a(f"{Lcj}:")
    pad_hop(a, 2)
    a(f"v_mov_b32 v{T[0]}, {MODE_LDS}")
    a(f"v_mov_b32 v{T[1]}, s{s_loc}")
    a(f"ds_write_b32 v{T[0]}, v{T[1]}")
    pad_value()
    for b in range(4): pad(b)
    zero_acc()
    wo_scalars()
    flag_regs(a)
    Lg2 = a.label("g2")
    a(f"s_cmp_eq_u32 s{s_loc}, 0")
    a("s_waitcnt lgkmcnt(0)")
    a(f"s_cbranch_scc1 {Lg2}")
    pad_hop(a, 2)
    a(f"s_lshl4_add_u32 s{s_b}, s{s_blk}, s{s_n}")
    a(f"s_lshr_b32 s{s_a}, s{s_m}, 2")
    a(f"s_lshl2_add_u32 s{s_b}, s{s_b}, s{s_a}")
    a(f"s_lshl_b32 s{s_b}, s{s_b}, 7")
    a(f"s_add_u32 s{s_b}, s{s_b}, {FLOFF}")
    a(f"v_and_b32 v{T[0]}, 7, v{lane}")
    a(f"v_lshrrev_b32 v{T[1]}, 5, v{lane}")
    a(f"v_lshlrev_b32 v{T[0]}, 2, v{T[0]}")
    a(f"v_lshl_add_u32 v{T[0]}, v{T[1]}, 12, v{T[0]}")
    for i in range(G.nb1): a("s_barrier")
    a("s_waitcnt vmcnt(0)")
    flag_store(a, s_k, True)
    stamp(a, 3)
    for i in range(4 - G.nb1): a("s_barrier")
    poll(a, T[0], f"s{s_b}", T[1])
    stamp(a, 4)
    kv_first(False)
    a(f"s_lshr_b32 s{s_a}, s2, 3")
    a(f"s_or_b32 s{s_a}, s{s_a}, s{s_wave}")
    a(f"s_cselect_b32 s{s_st}, 4, 5")
    a("s_barrier")
    a(f"s_branch {Latt}")
    def group_wait():
        L = a.label("gp"); Ld = a.label("gpd")
        a(f"s_lshl_b32 s{s_b}, s{s_blk}, 6")
        a(f"s_lshr_b32 s{s_a}, s{s_m}, 2")
        a(f"s_add_u32 s{s_b}, s{s_b}, s{s_a}")
        a(f"s_lshl_b32 s{s_b}, s{s_b}, 7")
        a(f"s_add_u32 s{s_b}, s{s_b}, {FLOFF}")
        a(f"v_lshrrev_b32 v{T[0]}, 2, v{lane}")
        a(f"v_and_b32 v{T[1]}, 3, v{lane}")
        a(f"v_lshlrev_b32 v{T[1]}, 3, v{T[1]}")
        a(f"v_lshl_add_u32 v{T[0]}, v{T[0]}, 9, v{T[1]}")
        a(f"s_mov_b32 s{s_c}, {SPIN}")
        a(f"{L}:")
        a(f"buffer_load_dwordx2 {v(T[1],2)}, v{T[0]}, {srd(SF)}, s{s_b} offen sc1")
        a("s_waitcnt vmcnt(0)")
        a(f"v_cmp_ne_u32 vcc, s{s_tag}, v{T[1]}")
        a(f"v_cmp_ne_u32 s[16:17], s{s_tag}, v{T[2]}")
        a("s_or_b64 vcc, vcc, s[16:17]")
        a(f"s_cbranch_scc0 {Ld}")
        a(f"s_sub_u32 s{s_c}, s{s_c}, 1")
        a(f"s_cbranch_scc1 {Ld}")
        a(f"s_sleep {G.sleep}")
        a(f"s_branch {L}")
        a(f"{Ld}:")
    a(f"{Lg2}:")
    for i in range(4): a("s_barrier")
    a("s_waitcnt vmcnt(0)")
    a("s_mov_b64 exec, 1")
    a(f"buffer_store_dword v{T[5]}, v{T[4]}, {srd(SF)}, s{s_k} offen sc1")
    a("s_mov_b64 exec, -1")
    stamp(a, 3)
    Lne = a.label("ne")
    a(f"s_lshr_b32 s{s_a}, s2, 3")
    a(f"s_or_b32 s{s_a}, s{s_a}, s{s_wave}")
    a(f"s_cbranch_scc1 {Lne}")
    group_wait()
    flag_store(a, s_vo, False)
    a(f"{Lne}:")
    poll(a, gfv, f"s{s_fg}", T[1])
    stamp(a, 4)
    kv_first(False)
    a(f"s_mov_b32 s{s_st}, 0")
    a("s_barrier")
    a(f"s_branch {Latt}")

    a(f"{hooks[G.hst][1]}:")
    stamp(a, 11)
    a(f"s_bitset0_b32 s{s_st}, 0")
    group_wait()
    stamp(a, 12)
    if not G.nowb: a("buffer_wbl2 sc1")
    a("s_waitcnt vmcnt(0)")
    flag_regs(a)
    flag_store(a, s_vo, False)
    stamp(a, 13)
    a(f"s_branch {hooks[G.hst][2]}")
    a(f"{hooks[G.hsam][1]}:")
    a(f"buffer_load_dword v{gfd}, v{gfv}, {srd(SF)}, s{s_fg} offen sc1")
    a(f"s_mov_b32 s{s_st}, 16")
    a(f"s_branch {hooks[G.hsam][2]}")
    a(f"{hooks[(0,2)][1]}:")
    nafter = (pos[(0, 2)] - pos[G.hsam]) % (len(names) // 2)
    stamp(a, 14)
    a(f"s_waitcnt vmcnt({nafter})")
    stamp(a, 15)
    a(f"s_mov_b32 s{s_st}, 0")
    a(f"v_cmp_ne_u32 vcc, s{s_tag}, v{gfd}")
    a(f"s_cbranch_vccz {hooks[(0,2)][2]}")
    poll(a, gfv, f"s{s_fg}", gfd)
    stamp(a, 15)
    a(f"s_branch {hooks[(0,2)][2]}")

    a(f"{Lslow}:")
    vmx = gfd
    Ls0 = a.label("s0")
    a(f"s_cmp_eq_u32 s{s_kh}, 0")
    a(f"s_cbranch_scc1 {Ls0}")
    for i in range(2):
        for r in range(0, 4, 2): a(f"v_mov_b64 {v(Q1[i]+r,2)}, {v(Q1[2+i]+r,2)}")
        for h in range(2): a(f"v_mov_b64 {v(Q3[h][i],2)}, {v(Q3[h][2+i],2)}")
    a(f"{Ls0}:")
    for q in range(2):
        L1 = a.label("s1"); L2 = a.label("s2")
        a(f"v_mov_b32 v{vmx}, 0xff800000")
        a(f"s_mov_b32 s{s_ko}, 0")
        a(f"{L1}:")
        a(ld_k1(0)); a(ld_k1(1)); a(ld_k3(0))
        a("s_waitcnt vmcnt(0)")
        for t in range(2):
            a(qk1(0, q, t)); a(qk2(0, q, t))
            a("s_nop 15")
            for r in range(0, 16, 2):
                a(f"v_max3_f32 v{vmx}, v{S[0]+r}, v{S[0]+r+1}, v{vmx}")
        a(f"s_add_u32 s{s_ko}, s{s_ko}, {PS}")
        a(f"s_cmp_lt_u32 s{s_ko}, {HS}")
        a(f"s_cbranch_scc1 {L1}")
        a(f"v_mov_b32 v{T[0]}, v{vmx}")
        a("s_nop 1")
        a(f"v_permlane32_swap_b32 v{T[0]}, v{vmx}")
        a("s_nop 1")
        a(f"v_max_f32 v{vmx}, v{vmx}, v{T[0]}")
        for r in range(0, 16, 2):
            a(f"v_mov_b64 {v(O[q]+r,2)}, 0")
        a(f"s_mov_b32 s{s_ko}, 0")
        a(f"{L2}:")
        a(ld_k1(0)); a(ld_k1(1)); a(ld_k3(0)); a(ld_v(0)); a(ld_v(1))
        a("s_waitcnt vmcnt(0)")
        for t in range(2):
            a(qk1(0, q, t)); a(qk2(0, q, t))
            a("s_nop 15")
            for r in range(16):
                a(f"v_sub_f32 v{S[0]+r}, v{S[0]+r}, v{vmx}")
            for r in range(16):
                a(ex(0, r))
            a("s_nop 0")
            for r in range(0, 16, 2):
                a(cv(0, r))
            a("s_nop 1")
            a(pv(0, q, t, 0)); a(pv(0, q, t, 1))
        a(f"s_add_u32 s{s_ko}, s{s_ko}, {PS}")
        a(f"s_cmp_lt_u32 s{s_ko}, {HS}")
        a(f"s_cbranch_scc1 {L2}")
    a("s_nop 15")
    bcast_l()
    a("s_nop 1")
    a(f"s_branch {Lst}")
    a("Lcode_end:")
    return name

def build():
    a = Asm()
    PADS[:] = [0, 0, 0, 0]
    name = gen(a)
    if G.warm:
        i = a.lines.index(".PADRET")
        a.lines[i:i+1] = [f"Lpad_{c}_{PADS[c]}:" for c in range(4)]
    out = HEADER + "; @launch grid=(256,1,1) block=(512,1,1) lds=163840\n"
    out += '.amdgcn_target "amdgcn-amd-amdhsa--gfx950"\n.text\n' + a.text()
    out += '.section .rodata,"a"\n.p2align 6\n' + kernel_desc(name, 256, 100 if G.diag else 64)
    return out

if __name__ == "__main__":
    path = sys.argv[1] if len(sys.argv) > 1 else f"cdna_kernels/{NAME}.s"
    G.diag = "diag" in sys.argv
    for x in sys.argv[2:]:
        if "=" in x:
            k, val = x.split("=", 1)
            assert hasattr(G, k), k
            setattr(G, k, eval(val))
    open(path, "w").write(build())
    print("wrote", path)
```

```python
import sys
sys.path.insert(0, "gen")
from asmlib import *

NAME = "concat_heads__mha_block__softmax_full_mha__prompt"
HS = 163840
PS = 5120
KVL = 0x1400000
OBASE = 0xA00000
FBASE = 0x1000000
FLOFF = 0x40000
F2LOFF = 0x60000
XOFF = 0x70000
GFOFF = 0x78000
F2OFF = 0x80000
EOFF = 0x180000
DBGBASE = 0x2000000
QSCALE = 0x3ea52b5c
SLOT = 36864
SPARE = 4 * SLOT
QAREA = SLOT
WOBASE = 61440
MODE_LDS = 163836
RFLAG = 163712
SPIN = 400000
FSH = 7

HEADER = """; Kernarg layout for this problem (72 bytes, ptrs only, base s[0:1]):
"""

SX, SW, SKV, SF, SO = 4, 8, 12, 36, 40
(s_blk, s_m, s_n, s_wave, s_tag, s_k, s_a, s_b, s_c, s_it, s_xo, s_wo, s_m0x, s_m0w, s_kh, s_ko, s_vo, s_g) = range(44, 62)
s_vm = 62
s_st, s_loc, s_fg = 3, 34, 35
lane = 255
T = [0] * 6

class G:
    diag = False; dbg = None; amp = None
    lens = [9, 4, 2, 1]
    rot = True
    pro = 2; la = 3; nb1 = 2
    local = True
    sleep = 2
    iters = 8
    hst = (0, 1); hsam = (0, 0)
    oa = 4
    kill = True
    tP = False
    hchk = (1, 0)
    hpub = (2, 1)
    rpg = 8
    early = True
    roll = 3
    xit = 2
    nkv = 39
    tO = True
    tKV = False
    xs = 0
    p2prio = 1
    dsh = 0
    dst = 3
    qpf = 0
    rst = 0
    rmul = 3
    rn = 1
    lwb = False
    ost = 'nt'
    olst = ''
    ewb = None
    warm = False
    lst = ''
    v3 = True
    nowb = False
    wod = 3

PADS = [0, 0, 0, 0]
def pad_hop(a, c):
    if not G.warm: return
    a(f"Lpad_{c}_{PADS[c]}:")
    PADS[c] += 1
    a(f"s_cbranch_execz Lpad_{c}_{PADS[c]}")

def setT(base): T[:] = list(range(base, base + 6))
def srd(d): return f"s[{d}:{d+3}]"

def stamp(a, i):
    if not G.diag: return
    a("s_memtime s[96:97]")
    a("s_memrealtime s[98:99]")
    a("s_waitcnt lgkmcnt(0)")
    a(f"s_mov_b32 s{64+2*i}, s96")
    a(f"s_mov_b32 s{65+2*i}, s98")

def dump_stamps(a, n):
    if not G.diag: return
    a("s_waitcnt vmcnt(0)")
    stamp(a, n)
    a(f"s_lshl_b32 s{s_a}, s2, 3")
    a(f"s_add_u32 s{s_a}, s{s_a}, s{s_wave}")
    a(f"s_lshl_b32 s{s_a}, s{s_a}, 7")
    a(f"s_add_u32 s{s_a}, s{s_a}, {DBGBASE}")
    make_srd(a, SX, 32, f"s{s_a}", 128)
    a(f"v_mov_b32 v{T[0]}, 0")
    for i in range(32):
        a(f"v_mov_b32 v{T[1]}, s{64+i}")
        a(f"buffer_store_dword v{T[1]}, v{T[0]}, s[{SX}:{SX+3}], 0 offen offset:{4*i}")
    if G.lwb:
        L1 = a.label("lwb"); L2 = a.label("lwb2")
        a(f"s_lshr_b32 s{s_a}, s2, 3")
        a(f"s_or_b32 s{s_a}, s{s_a}, s{s_wave}")
        a(f"s_cbranch_scc1 {L2}")
        a(f"{L1}:")
        a("s_memrealtime s[98:99]")
        a("s_waitcnt lgkmcnt(0)")
        a(f"s_sub_u32 s{s_b}, s98, s{65+2*n}")
        a(f"s_cmp_lt_u32 s{s_b}, 400")
        a(f"s_cbranch_scc1 {L1}")
        a("buffer_wbl2 sc1")
        a("s_waitcnt vmcnt(0)")
        a(f"{L2}:")
    if G.dbg is not None:
        Ls = a.label("nodbg")
        a(f"s_lshl_b32 s{s_a}, s2, 3")
        a(f"s_add_u32 s{s_a}, s{s_a}, s{s_wave}")
        a(f"s_cmp_lg_u32 s{s_a}, {G.dbg}")
        a(f"s_cbranch_scc1 {Ls}")
        make_srd(a, SX, 30, None, 256)
        for i in range(1, 14):
            a(f"s_sub_u32 s{s_a}, s{65+2*i}, s65")
            a(f"v_mov_b32 v{T[1]}, s{s_a}")
            a(f"buffer_store_dword v{T[1]}, v{T[0]}, s[{SX}:{SX+3}], 0 offen offset:{4*i}")
        if G.amp is not None:
            Lw = a.label("amp")
            a(f"s_sub_u32 s{s_a}, s{65+2*G.amp}, s65")
            a(f"s_mul_i32 s{s_a}, s{s_a}, 4")
            a(f"s_add_u32 s{s_a}, s{s_a}, 1000")
            a(f"{Lw}:")
            a("s_memrealtime s[98:99]")
            a("s_waitcnt lgkmcnt(0)")
            a(f"s_sub_u32 s{s_b}, s98, s{65+2*n}")
            a(f"s_cmp_lt_u32 s{s_b}, s{s_a}")
            a(f"s_cbranch_scc1 {Lw}")
        a(f"{Ls}:")

def make_srd(a, d, base, off, nbytes):
    if off is None:
        a(f"s_mov_b64 s[{d}:{d+1}], s[{base}:{base+1}]")
    else:
        a(f"s_add_u32 s{d}, s{base}, {off}")
        a(f"s_addc_u32 s{d+1}, s{base+1}, 0")
    a(f"s_mov_b32 s{d+2}, {nbytes}")
    a(f"s_mov_b32 s{d+3}, 0x00020000")

def img_pos(a, pos, row, c):
    a(f"v_mul_u32_u24 v{row}, 3277, v{pos}")
    a(f"v_lshrrev_b32 v{row}, 16, v{row}")
    a(f"v_mad_i32_i24 v{c}, v{row}, -16, v{pos}")
    a(f"v_mad_i32_i24 v{c}, v{row}, -4, v{c}")
    a(f"v_lshrrev_b32 v{T[5]}, 3, v{row}")
    a(f"v_mad_i32_i24 v{c}, v{T[5]}, -2, v{c}")
    a(f"v_add_u32 v{T[5]}, 20, v{c}")
    a(f"v_min_u32 v{c}, v{c}, v{T[5]}")

def grp_src(a, dst, row, c, ld_sreg):
    a(f"v_cmp_lt_u32 vcc, 9, v{c}")
    a(f"v_add_u32 v{T[5]}, 16, v{row}")
    a(f"v_subrev_u32 v{T[4]}, 10, v{c}")
    a(f"v_cndmask_b32 v{row}, v{row}, v{T[5]}, vcc")
    a(f"v_cndmask_b32 v{c}, v{c}, v{T[4]}, vcc")
    a(f"v_lshlrev_b32 v{c}, 4, v{c}")
    a(f"v_mad_u32_u24 v{dst}, v{row}, s{ld_sreg}, v{c}")

def tr_addrs(a, wa, perm, grp, colhalf_sreg, base):
    a(f"v_bfe_u32 v{T[0]}, v{lane}, 2, 2")
    a(f"v_lshrrev_b32 v{T[1]}, 4, v{lane}")
    a(f"v_and_b32 v{T[2]}, 1, v{T[1]}")
    a(f"v_lshl_add_u32 v{T[0]}, v{T[2] if grp else T[1]}, 3, v{T[0]}")
    a(f"v_mul_u32_u24 v{T[0]}, 320, v{T[0]}")
    if base: a(f"v_add_u32 v{T[0]}, {base}, v{T[0]}")
    a(f"v_lshlrev_b32 v{T[2]}, 5, v{T[2]}")
    if grp:
        a(f"v_lshrrev_b32 v{T[1]}, 1, v{T[1]}")
        a(f"v_mul_u32_u24 v{T[1]}, 160, v{T[1]}")
        a(f"v_add_u32 v{T[2]}, v{T[2]}, v{T[1]}")
    else:
        a(f"s_mul_i32 s{s_a}, s{colhalf_sreg}, 160")
        a(f"v_add_u32 v{T[2]}, s{s_a}, v{T[2]}")
    a(f"v_and_b32 v{T[1]}, 3, v{lane}")
    a(f"v_mad_u32_u24 v{T[2]}, v{T[1]}, {40 if perm else 8}, v{T[2]}")
    for j in range(5):
        a(f"v_add_u32 v{T[1]}, {8*j if perm else 32*j}, v{T[2]}")
        a(f"v_subrev_u32 v{T[3]}, 320, v{T[1]}")
        a(f"v_min_u32 v{T[1]}, v{T[1]}, v{T[3]}")
        a(f"v_add_u32 v{wa[j]}, v{T[1]}, v{T[0]}")

def x_addrs(a, xa, rowbase_sreg):
    a(f"v_and_b32 v{T[0]}, 15, v{lane}")
    a(f"v_lshrrev_b32 v{T[1]}, 1, v{T[0]}")
    a(f"v_lshrrev_b32 v{T[2]}, 4, v{lane}")
    a(f"v_xor_b32 v{T[1]}, v{T[1]}, v{T[2]}")
    a(f"v_lshl_add_u32 v{T[0]}, v{T[0]}, 7, s{rowbase_sreg}")
    a(f"v_lshl_add_u32 v{xa[0]}, v{T[1]}, 4, v{T[0]}")
    a(f"v_xor_b32 v{xa[1]}, 64, v{xa[0]}")

def poll(a, voff, soff, tmp):
    L = a.label("poll"); Ld = a.label("polld")
    a(f"s_mov_b32 s{s_c}, {SPIN}")
    a(f"{L}:")
    a(f"buffer_load_dword v{tmp}, v{voff}, {srd(SF)}, {soff} offen sc1")
    a("s_waitcnt vmcnt(0)")
    a(f"v_cmp_ne_u32 vcc, s{s_tag}, v{tmp}")
    a(f"s_cbranch_vccz {Ld}")
    a(f"s_sub_u32 s{s_c}, s{s_c}, 1")
    a(f"s_cbranch_scc1 {Ld}")
    a(f"s_sleep {G.sleep}")
    a(f"s_branch {L}")
    a(f"{Ld}:")

def flag_regs(a, val=None):
    a(f"v_lshlrev_b32 v{T[4]}, 2, v{lane}")
    a(f"v_mov_b32 v{T[5]}, s{s_tag if val is None else val}")
def flag_store(a, off_sreg, local=False):
    if local:
        a("s_mov_b64 exec, 1")
    else:
        a("s_mov_b32 exec_hi, 0")
    a(f"buffer_store_dword v{T[5]}, v{T[4]}, {srd(SF)}, s{off_sreg} offen {'' if local else 'sc1'}")
    a("s_mov_b64 exec, -1")

def small_gemm(a, BF, ACC, W, wa, gbase, pre, cur0=0, vmw=None, chain=0):
    n = len(gbase)
    cur = [cur0]
    def shift(g):
        out = []
        if not (cur[0] <= gbase[g] and gbase[g] + 1280 - cur[0] <= 65535):
            want = (gbase[g] // 57344) * 57344
            d = want - cur[0]
            out = [(f"v_add_u32 v{wa[j]}, {d}, v{wa[j]}" if d > 0 else f"v_subrev_u32 v{wa[j]}, {-d}, v{wa[j]}") for j in range(5)]
            cur[0] = want
        return out
    def rd(g, j, t): return f"ds_read_b64_tr_b16 {v(W[g&1]+4*j+2*t,2)}, v{wa[j]} offset:{gbase[g]-cur[0]+1280*t}"
    for x in shift(0): a(x)
    for j in range(5):
        a(rd(0, j, 0)); a(rd(0, j, 1))
    for g in range(n):
        last = g == n - 1
        if g % 2 == 0: pad_hop(a, chain)
        for x in pre.get(("h", g), []): a(x)
        if not last:
            for x in shift(g + 1): a(x)
        ex = list(pre.get(("x", g), []))
        for j in range(5):
            if j == 0: a(f"s_waitcnt {('vmcnt(%d) ' % vmw(g)) if vmw else ''}lgkmcnt(6)")
            if G.roll == 2 or last:
                if j == 2: a(f"s_waitcnt lgkmcnt({0 if last else 4})")
            else:
                if j == 2: a("s_waitcnt lgkmcnt(6)")
                if j == 4: a("s_waitcnt lgkmcnt(8)")
            for ii in range(2):
                d = v(ACC + 4 * (5 * ii + j), 4)
                a(f"v_mfma_f32_16x16x32_bf16 {d}, {v(W[g&1]+4*j,4)}, {v(BF+8*g+4*ii,4)}, {d if g else 0}")
                if not last: a(rd(g + 1, j, ii))
            if ex: a(ex.pop(0))
        for x in ex: a(x)

def gen(a):
    name = NAME + "_kernel"
    kernel_header(a, name)
    Lend = a.label("end"); Lcons = a.label("cons"); Lv = a.label("vtype"); Latt = a.label("att")
    a("s_cmp_ge_u32 s2, 256")
    a(f"s_cbranch_scc1 {Lend}")
    stamp(a, 0)
    a("s_load_dwordx16 s[16:31], s[0:1], 0")
    a("s_load_dwordx2 s[32:33], s[0:1], 64")
    a("s_mov_b64 exec, -1")
    a(f"v_lshrrev_b32 v1, 6, v0")
    a(f"v_and_b32 v{lane}, 63, v0")
    a(f"v_readfirstlane_b32 s{s_wave}, v1")
    a(f"s_and_b32 s{s_a}, s2, 7")
    a(f"s_lshr_b32 s{s_b}, s2, 3")
    a(f"s_lshr_b32 s{s_blk}, s{s_a}, 2")
    a(f"s_and_b32 s{s_a}, s{s_a}, 3")
    a(f"s_lshr_b32 s{s_c}, s{s_b}, 3")
    a(f"s_lshl2_add_u32 s{s_m}, s{s_a}, s{s_c}")
    a(f"s_and_b32 s{s_n}, s{s_b}, 7")
    if G.rot:
        if G.rot == 2:
            a(f"s_add_u32 s{s_k}, s{s_c}, s{s_n}")
            a(f"s_and_b32 s{s_k}, s{s_k}, 1")
            a(f"s_mul_i32 s{s_k}, s{s_k}, 5")
        elif G.rot == 5:
            a(f"s_mul_i32 s{s_k}, s{s_c}, 5")
            a(f"s_lshr_b32 s{s_k}, s{s_k}, 1")
            a(f"s_add_u32 s{s_k}, s{s_k}, s{s_a}")
            a(f"s_lshr_b32 s{s_a}, s{s_n}, 2")
            a(f"s_add_u32 s{s_k}, s{s_k}, s{s_a}")
            a(f"s_add_u32 s{s_k}, s{s_k}, s{s_n}")
        elif G.rot == 6:
            a(f"s_mul_i32 s{s_k}, s{s_c}, 5")
            a(f"s_lshr_b32 s{s_k}, s{s_k}, 1")
            a(f"s_lshr_b32 s{s_a}, s{s_n}, 2")
            a(f"s_add_u32 s{s_k}, s{s_k}, s{s_a}")
            a(f"s_add_u32 s{s_k}, s{s_k}, s{s_n}")
        elif G.rot == 4:
            a(f"s_add_u32 s{s_k}, s{s_c}, s{s_n}")
            a(f"s_and_b32 s{s_k}, s{s_k}, 3")
            a(f"s_mul_i32 s{s_k}, s{s_k}, 5")
            a(f"s_lshr_b32 s{s_k}, s{s_k}, 1")
        else:
            a(f"s_mul_i32 s{s_k}, s{s_c}, 3")
            a(f"s_add_u32 s{s_k}, s{s_k}, s{s_n}")
            a(f"s_add_u32 s{s_k}, s{s_k}, s{s_a}")
        a(f"s_cmp_ge_u32 s{s_k}, 10")
        a(f"s_cselect_b32 s{s_a}, 10, 0")
        a(f"s_sub_u32 s{s_k}, s{s_k}, s{s_a}")
    else:
        a(f"s_mov_b32 s{s_k}, 0")
    a(f"s_and_b32 s{s_g}, s{s_wave}, 3")
    a(f"s_lshr_b32 s{s_kh}, s{s_wave}, 2")
    a(f"s_cbranch_scc0 {Lcons}")

    def common_ptrs():
        a("s_waitcnt lgkmcnt(0)")
        a(f"s_cmp_eq_u32 s{s_blk}, 0")
        a("s_cselect_b64 s[16:17], s[16:17], s[22:23]")
        a("s_cselect_b64 s[18:19], s[18:19], s[24:25]")
        a("s_cselect_b64 s[20:21], s[20:21], s[26:27]")
    def epoch_load():
        a(f"s_lshl_b32 s{s_a}, s{s_blk}, 7")
        a(f"s_add_u32 s{s_a}, s{s_a}, {FBASE+EOFF}")
        a(f"s_load_dword s{s_tag}, s[32:33], s{s_a}")
        make_srd(a, SF, 32, FBASE, EOFF + 0x1000)
    def epoch_fin():
        a("s_waitcnt lgkmcnt(0)")
        a(f"s_mul_i32 s{s_tag}, s{s_tag}, 0x9E3779B1")
        a(f"s_add_u32 s{s_tag}, s{s_tag}, 0x7F4A7C15")

    O = [0, 16, 32, 48]; S = [64, 80]; P = [96, 104]
    K1 = [112, 116, 120, 124]; K3 = [128, 130]; V = [132, 140, 148, 156]
    Q1 = [164, 168, 172, 176]; Q3 = [[180, 182, 184, 186], [188, 190, 192, 194]]
    KVD = 196; sa = [236, 237, 238, 239, 246]
    ka, k3a, va, gwo, gfv, gfd = 240, 241, 242, 243, 244, 245

    def att_addrs():
        a(f"s_lshl3_add_u32 s{s_a}, s{s_blk}, s{s_n}")
        a(f"s_lshl2_add_u32 s{s_a}, s{s_a}, s{s_g}")
        a(f"s_mul_i32 s{s_a}, s{s_a}, {HS}")
        make_srd(a, SKV, 32, f"s{s_a}", HS)
        a(f"v_lshlrev_b32 v{ka}, 4, v{lane}")
        a(f"v_lshlrev_b32 v{k3a}, 3, v{lane}")
        a(f"v_and_b32 v{T[0]}, 31, v{lane}")
        a(f"v_lshrrev_b32 v{T[1]}, 1, v{T[0]}")
        a(f"v_xor_b32 v{T[1]}, v{T[1]}, v{T[0]}")
        a(f"v_and_b32 v{T[1]}, 4, v{T[1]}")
        a(f"v_mul_u32_u24 v{T[1]}, 3, v{T[1]}")
        a(f"v_xor_b32 v{T[1]}, v{T[1]}, v{T[0]}")
        a(f"s_and_b32 s{s_a}, s{s_g}, 1")
        a(f"s_lshl_b32 s{s_a}, s{s_a}, 2")
        a(f"v_add_u32 v{T[1]}, s{s_a}, v{T[1]}")
        a(f"v_subrev_u32 v{T[2]}, 20, v{T[1]}")
        a(f"v_min_u32 v{T[1]}, v{T[1]}, v{T[2]}")
        a(f"v_lshrrev_b32 v{T[2]}, 5, v{lane}")
        a(f"v_mul_u32_u24 v{T[3]}, 320, v{T[2]}")
        a(f"v_lshl_add_u32 v{va}, v{T[1]}, 4, v{T[3]}")
        a(f"v_add_u32 v{va}, 2560, v{va}")
        a(f"s_and_b32 s{s_ko}, s{s_m}, 12")
        a(f"s_lshl1_add_u32 s{s_ko}, s{s_ko}, s{s_kh}")
        a(f"s_mul_i32 s{s_ko}, s{s_ko}, {PS}")
        a(f"s_mov_b32 s{s_vm}, 0x000fffff")
        a(f"s_mov_b32 s{s_vm+1}, 0x000fffff")
        a(f"s_lshl_b32 s{s_fg}, s{s_blk}, 9")
        a(f"s_add_u32 s{s_fg}, s{s_fg}, {GFOFF}")
        a(f"v_and_b32 v{gfv}, 3, v{lane}")
        a(f"v_lshlrev_b32 v{gfv}, 7, v{gfv}")
        a(f"s_min_u32 s{s_a}, s{s_wave}, 4")
        a(f"s_lshl_b32 s{s_b}, s{s_a}, 6")
        a(f"v_add_u32 v{T[0]}, s{s_b}, v{lane}")
        img_pos(a, T[0], T[1], T[2])
        a(f"s_movk_i32 s{s_c}, 1280")
        grp_src(a, gwo, T[1], T[2], s_c)
    def wo_scalars():
        make_srd(a, SW, 20, None, 640 * 1280)
        a(f"s_cmp_gt_u32 s{s_wave}, 4")
        a(f"s_cselect_b32 s{s_c}, {24*5120}, 0")
        a(f"s_lshl_b32 s{s_m0w}, s{s_wave}, 10")
        if G.wod: a(f"s_sub_u32 s{s_m0w}, s{s_m0w}, {G.wod*5120}")
        a(f"s_add_u32 s{s_m0w}, s{s_m0w}, s{s_c}")
        a(f"s_mul_i32 s{s_wo}, s{s_n}, 160")
        a(f"s_lshl3_add_u32 s{s_wo}, s{s_c}, s{s_wo}")
        if G.wod: a(f"s_sub_u32 s{s_wo}, s{s_wo}, {G.wod*32*1280}")
    def ld_k1(b): return f"buffer_load_dwordx4 {v(K1[b],4)}, v{ka}, {srd(SKV)}, s{s_ko} offen offset:{1024*(b&1)} sc1"
    def ld_k3(p): return f"buffer_load_dwordx2 {v(K3[p],2)}, v{k3a}, {srd(SKV)}, s{s_ko} offen offset:2048 sc1"
    def ld_v(b, m=s_vm):
        return (f"s_mov_b64 exec, s[{m}:{m+1}]\n"
                f"buffer_load_dwordx4 {v(V[b],4)}, v{va}, {srd(SKV)}, s{s_ko} offen offset:{1280*(b&1)} sc1\n"
                f"buffer_load_dwordx4 {v(V[b]+4,4)}, v{va}, {srd(SKV)}, s{s_ko} offen offset:{1280*(b&1)+640} sc1\n"
                f"s_mov_b64 exec, -1")
    def adv_pair():
        return [f"s_add_u32 s{s_ko}, s{s_ko}, {2*PS}", f"s_cmp_ge_u32 s{s_ko}, {HS}",
                f"s_cselect_b32 s{s_c}, {HS}, 0", f"s_sub_u32 s{s_ko}, s{s_ko}, s{s_c}"]
    def pad_value():
        a(f"v_and_b32 v{S[0]}, 31, v{lane}")
        a(f"v_cmp_eq_u32 vcc, 20, v{S[0]}")
        a(f"v_mov_b32 v{S[0]+1}, 0x3f803f80")
        a(f"v_mov_b64 {v(P[1],2)}, 0")
        a(f"v_cndmask_b32 v{S[0]}, 0, v{S[0]+1}, vcc")
        a(f"v_mov_b32 v{S[0]+1}, v{S[0]}")
    def pad(b):
        for r in range(0, 8, 2): a(f"v_mov_b64 {v(V[b]+r,2)}, {v(S[0],2)}")
    def zero_acc():
        for q in range(4): a(f"v_mfma_f32_32x32x8_bf16 {v(O[q],16)}, {v(P[1],2)}, {v(P[1],2)}, 0")
        for r in range(2, 8, 2): a(f"v_mov_b64 {v(P[1]+r,2)}, 0")
    first = [("K1", 0), ("K3", 0), ("V", 0), ("V", 0), ("K1", 1), ("V", 1), ("V", 1), ("K1", 2), ("V", 2), ("V", 2), ("K1", 3), ("K3", 1)]
    if G.v3: first += [("V", 3)] * 2
    def kv_first(with_pad):
        a(ld_k1(0)); a(ld_k3(0))
        if with_pad: pad_value(); pad(0)
        a(ld_v(0)); a(ld_k1(1))
        if with_pad: pad(1)
        a(ld_v(1))
        for x in adv_pair(): a(x)
        a(ld_k1(2))
        if with_pad: pad(2)
        a(ld_v(2)); a(ld_k1(3)); a(ld_k3(1))
        if with_pad: pad(3)
        if G.v3:
            a(ld_v(3))
            a("s_mov_b64 s[22:23], 0")

    XF = 0; ACC2 = 160; W2 = [200, 220]
    gx = [160, 161, 162, 163]; gw = [164, 165, 166, 167, 168]; gq = [251, 252, 253, 254, 245]
    wa2 = [246, 247, 248, 249, 250]; xa2 = [210, 211]
    setT(200)
    a(f"v_lshrrev_b32 v{T[0]}, 4, v{lane}")
    a(f"v_xor_b32 v{T[0]}, v{T[0]}, v{lane}")
    a(f"v_and_b32 v{T[0]}, 7, v{T[0]}")
    a(f"v_lshrrev_b32 v{T[1]}, 3, v{lane}")
    a(f"v_mul_u32_u24 v{T[1]}, 1280, v{T[1]}")
    a(f"v_lshl_add_u32 v{gx[0]}, v{T[0]}, 4, v{T[1]}")
    a(f"v_xor_b32 v{gx[1]}, 64, v{gx[0]}")
    a(f"v_add_u32 v{gx[1]}, 9216, v{gx[1]}")
    a(f"v_add_u32 v{gx[2]}, 18432, v{gx[0]}")
    a(f"v_add_u32 v{gx[3]}, 18432, v{gx[1]}")
    a(f"s_movk_i32 s{s_c}, 3840")
    rows = [212 + 2 * i for i in range(5)]
    for i in range(5):
        if i: a(f"v_add_u32 v{T[0]}, {64*i}, v{lane}")
        img_pos(a, T[0] if i else lane, rows[i], rows[i] + 1)
        a(f"v_lshlrev_b32 v{T[3]}, 4, v{rows[i]+1}")
        a(f"v_mad_u32_u24 v{gw[i]}, v{rows[i]}, s{s_c}, v{T[3]}")
        if i & 3: a(f"v_subrev_u32 v{gw[i]}, {1024*i}, v{gw[i]}")
    a(f"s_lshl_b32 s{s_m0x}, s{s_g}, 12")
    a(f"s_mul_i32 s{s_m0w}, s{s_g}, 5120")
    a(f"s_add_u32 s{s_m0w}, s{s_m0w}, 16384")
    a(f"s_lshl2_add_u32 s{s_a}, s{s_m}, s{s_g}")
    a(f"s_mul_i32 s{s_a}, s{s_a}, {32*1280}")
    a(f"s_mul_i32 s{s_fg}, s{s_n}, 320")
    a(f"s_mul_i32 s{s_b}, s{s_g}, {16*3840}")
    a(f"s_add_u32 s{s_fg}, s{s_fg}, s{s_b}")
    a(f"s_add_u32 s{s_loc}, s{s_fg}, 1280")
    a(f"s_mov_b32 s{s_vo}, s{s_k}")
    common_ptrs()
    make_srd(a, SX, 16, f"s{s_a}", 32 * 1280)
    make_srd(a, SW, 18, None, 640 * 3840)
    lseq = []
    def issue_stage(i):
        sl = (i & 3) * SLOT
        a(f"s_add_u32 m0, s{s_m0x}, {sl}")
        a(f"s_lshl_b32 s{s_xo}, s{s_k}, 7")
        for ii in range(4):
            a(f"buffer_load_dwordx4 v{gx[ii]}, {srd(SX)}, s{s_xo} offen offset:{1024*ii} lds")
        a(f"s_mul_i32 s{s_wo}, s{s_k}, {64*3840}")
        a(f"s_add_u32 m0, s{s_m0w}, {sl}")
        a(f"s_add_u32 s{s_wo}, s{s_wo}, s{s_loc}")
        for ii in range(4):
            a(f"buffer_load_dwordx4 v{gw[ii]}, {srd(SW)}, s{s_wo} offen offset:{1024*ii} lds")
        a(f"s_add_u32 m0, s{s_m0w}, {sl+4096}")
        a(f"s_add_u32 s{s_k}, s{s_k}, 1")
        a(f"buffer_load_dwordx4 v{gw[4]}, {srd(SW)}, s{s_wo} offen lds")
        if G.rot:
            a(f"s_cmp_eq_u32 s{s_k}, 10")
            a(f"s_cselect_b32 s{s_k}, 0, s{s_k}")
        lseq.extend([("st", i)] * 9)
    gbase = [2 * SLOT + g * 5120 for g in range(7)] + [SPARE] + [3 * SLOT + g * 5120 for g in range(7)] + [SPARE + 5120] + [g * 5120 for g in range(4)]
    def round_ins(R):
        o = []
        x = f"s_add_u32 s{s_wo}, s{s_st}, {R*4*32*3840}"
        if G.rot:
            x += f"\ns_cmp_ge_u32 s{s_wo}, {640*3840}\ns_cselect_b32 s{s_b}, {640*3840}, 0\ns_sub_u32 s{s_wo}, s{s_wo}, s{s_b}"
        gb = gbase[4 * R:4 * R + 4]
        assert gb[1] == gb[0] + 5120 and gb[2] == gb[0] + 10240
        x += f"\ns_add_u32 s{s_a}, s{s_m0w}, {(gb[0]-16384) & 0xffffffff}"
        if gb[3] != gb[0] + 15360:
            x += f"\ns_cmp_eq_u32 s{s_g}, 3\ns_cselect_b32 s{s_a}, {gb[3]}, s{s_a}"
        x += f"\ns_mov_b32 m0, s{s_a}\ns_add_u32 s{s_a}, s{s_a}, 4096"
        o.append(x)
        for ii in range(4):
            o.append(f"buffer_load_dwordx4 v{gq[ii]}, {srd(SW)}, s{s_wo} offen offset:{1024*ii} lds")
        o.append(f"s_mov_b32 m0, s{s_a}\ns_nop 0\nbuffer_load_dwordx4 v{gq[4]}, {srd(SW)}, s{s_wo} offen lds")
        lseq.extend([("R", R)] * 5)
        return o
    def issue_item(i):
        if i < 10: issue_stage(i)
        elif i < 15:
            for x in round_ins(i - 10): a(x)
    def lwait(key):
        return len(lseq) - 1 - max(i for i, x in enumerate(lseq) if x == key)
    stamp(a, 11)
    issue_stage(0)
    stamp(a, 12)
    epoch_load()
    a(f"s_lshl_b32 s{s_b}, s{s_g}, 12")
    x_addrs(a, xa2, s_b)
    a(f"v_and_b32 v{T[0]}, 15, v{lane}")
    a(f"v_lshlrev_b32 v{T[0]}, 2, v{T[0]}")
    a(f"v_add_u32 v{T[0]}, {RFLAG}, v{T[0]}")
    a(f"v_mov_b32 v{T[1]}, 0")
    a(f"ds_write_b32 v{T[0]}, v{T[1]}")
    for i in range(1, G.pro): issue_stage(i)
    stamp(a, 13)
    epoch_fin()
    a(f"s_waitcnt vmcnt({lwait(('st',0))})")
    a("s_barrier")
    stamp(a, 1)
    for i in range(G.pro, G.la): issue_stage(i)
    xoff = 0
    for st in range(10):
        sl = (st & 3) * SLOT
        want = 0 if sl < 2 * SLOT else 2 * SLOT
        if want != xoff:
            for r in xa2:
                a(f"v_add_u32 v{r}, {want-xoff}, v{r}" if want > xoff else f"v_subrev_u32 v{r}, {xoff-want}, v{r}")
            xoff = want
        for ks in range(2):
            for ii in range(2):
                a(f"ds_read_b128 {v(XF+16*st+8*ks+4*ii,4)}, v{xa2[ks]} offset:{sl-xoff+2048*ii}")
        if st == 0:
            a(f"s_movk_i32 s{s_c}, 3840")
            for i in range(5):
                grp_src(a, gq[i], rows[i], rows[i] + 1, s_c)
                if i & 3: a(f"v_subrev_u32 v{gq[i]}, {1024*i}, v{gq[i]}")
            a(f"s_lshl1_add_u32 s{s_st}, s{s_vo}, s{s_g}")
            a(f"s_mul_i32 s{s_st}, s{s_st}, {32*3840}")
            a(f"s_mul_i32 s{s_a}, s{s_n}, 160")
            a(f"s_add_u32 s{s_st}, s{s_st}, s{s_a}")
        if st == 1: tr_addrs(a, wa2, True, True, None, 0)
        if st == 2:
            att_addrs()
        if st == 4 and G.warm:
            a("s_mov_b64 exec, 0")
            for c in range(3):
                a(f"s_cmp_eq_u32 s{s_g}, {c}")
                a(f"s_cbranch_scc1 Lpad_{c}_0")
            a("s_branch Lpad_3_0")
            a(".PADRET")
            a("s_mov_b64 exec, -1")
        key = ("st", st + 1) if st < 9 else ("R", 0)
        a(f"s_waitcnt vmcnt({lwait(key)}) lgkmcnt(0)")
        a("s_barrier")
        if st < 9: issue_item(st + G.la)
    stamp(a, 2)
    pre = {}
    nxt = G.la - 1
    if G.p2prio: a(f"s_setprio {G.p2prio}")
    ins_at = {}
    for R in range(nxt, 5):
        g0 = G.dst * (R - nxt) + G.dsh
        if G.dst >= 3:
            ins_at[g0] = (R, 0, 3); ins_at[g0 + 1] = (R, 3, 5); ins_at[g0 + 2] = (R, 5, 6)
        else:
            ins_at[g0] = (R, 0, 4); ins_at[g0 + 1] = (R, 4, 6)
    cache = {}
    fw, fr, fo, fd = 4, 5, 6, 7
    spins = []
    for g in range(20):
        pre[("x", g)] = []
        R1 = g // 4 + 1
        if g == 1:
            pre[("h", g)] = [f"s_lshl2_add_u32 s{s_c}, s{s_g}, {RFLAG}", f"v_mov_b32 v{fw}, s{s_c}", f"v_and_b32 v{fr}, 3, v{lane}",
                             f"v_lshlrev_b32 v{fr}, 2, v{fr}", f"v_add_u32 v{fr}, {RFLAG}, v{fr}", f"v_mov_b32 v{fo}, 1"]
        if g % 4 == 1 and g < 16:
            assert lseq.count(("R", R1)) == 5
            pre[("x", g)] += [f"s_waitcnt vmcnt({lwait(('R', R1))})\nds_write_b32 v{fw}, v{fo} offset:{16*(R1-1)}"]
        if g % 4 == 2 and g < 16:
            pre[("x", g)] += [f"ds_read_b32 v{fd}, v{fr} offset:{16*(R1-1)}"]
        if g % 4 == 3 and g < 16:
            Ls, Lb = a.label("rs"), a.label("rb")
            spins.append((Ls, Lb, R1))
            pre[("h", g)] = ["s_waitcnt lgkmcnt(8)", f"v_cmp_ne_u32 vcc, 1, v{fd}", f"s_cbranch_vccnz {Ls}", f"{Lb}:"]
        if g in ins_at:
            R, lo, hi = ins_at[g]
            if R not in cache:
                cache[R] = round_ins(R)
                del lseq[-5:]
            pre[("x", g)] += cache[R][lo:hi]
            lseq.extend([("R", R)] * sum(x.count("buffer_load") for x in cache[R][lo:hi]))
    qa, qb, md = 0, 1, 2
    half = [f"v_lshrrev_b32 v{qa}, 4, v{lane}", f"v_mul_u32_u24 v{qa}, 5120, v{qa}", f"s_mul_i32 s{s_b}, s{s_g}, 1280",
            f"s_add_u32 s{s_b}, s{s_b}, {QAREA}", f"v_add_u32 v{qa}, s{s_b}, v{qa}"]
    pre[("x", 16)] = half
    pre[("x", 17)] = [f"v_and_b32 v{md}, 15, v{lane}", f"v_lshl_add_u32 v{qb}, v{md}, 3, v{qa}", f"v_lshl_add_u32 v{qa}, v{md}, 4, v{qa}",
                      f"s_mov_b32 s{s_a}, {QSCALE:#x}\ns_mov_b32 s{s_b}, {QSCALE:#x}"]
    small_gemm(a, XF, ACC2, W2, wa2, gbase, pre)
    stamp(a, 3)
    a("s_nop 4")
    assert s_a % 2 == 0 and s_b == s_a + 1
    for ii in range(2):
        r = ACC2 + 20 * ii
        pad_hop(a, 0)
        for e in range(10):
            a(f"v_pk_mul_f32 {v(r+2*e,2)}, {v(r+2*e,2)}, s[{s_a}:{s_b}]")
        for e in range(10):
            a(f"v_cvt_pk_bf16_f32 v{r+e}, v{r+2*e}, v{r+2*e+1}")
        a(f"ds_write_b128 v{qa}, {v(r,4)} offset:{256*ii}")
        a(f"ds_write_b128 v{qa}, {v(r+4,4)} offset:{256*ii+512}")
        a(f"ds_write_b64 v{qb}, {v(r+8,2)} offset:{128*ii+1024}")
    a("s_waitcnt lgkmcnt(0)")
    a(f"v_mov_b32 v{gfd}, {MODE_LDS}")
    a("s_barrier")
    a(f"ds_read_b32 v{gfd}, v{gfd}")
    a("s_setprio 0")
    stamp(a, 4)
    pad_hop(a, 1)
    kv_first(True)
    pad_hop(a, 1)
    zero_acc()
    wo_scalars()
    a("s_waitcnt lgkmcnt(0)")
    a(f"v_readfirstlane_b32 s{s_loc}, v{gfd}")
    a("s_nop 1")
    a(f"s_and_b32 s{s_loc}, s{s_loc}, 1")
    a(f"s_lshl_b32 s{s_st}, s{s_loc}, 2")

    a(f"{Latt}:")
    setT(247)
    a(f"s_mul_i32 s{s_b}, s{s_g}, 5120")
    a(f"s_add_u32 s{s_b}, s{s_b}, {QAREA}")
    a(f"s_mul_i32 s{s_a}, s{s_kh}, 2560")
    a(f"s_add_u32 s{s_c}, s{s_b}, s{s_a}")
    a(f"s_sub_u32 s{s_b}, s{s_b}, s{s_a}")
    a(f"s_add_u32 s{s_b}, s{s_b}, 2560")
    a(f"v_add_u32 v{T[0]}, s{s_b}, v{ka}")
    a(f"v_add_u32 v{T[2]}, s{s_c}, v{ka}")
    a(f"v_and_b32 v{T[3]}, 31, v{lane}")
    a(f"v_lshl_add_u32 v{T[1]}, v{T[3]}, 3, s{s_b}")
    a(f"v_lshl_add_u32 v{T[3]}, v{T[3]}, 3, s{s_c}")
    for q in range(4):
        a(f"v_mov_b64 {v(Q3[0][q],2)}, 0")
        a(f"v_mov_b64 {v(Q3[1][q],2)}, 0")
    for q in range(4):
        a(f"ds_read_b128 {v(Q1[q],4)}, v{T[q&2]} offset:{1280*(q&1)}")
    for h in range(2):
        a(f"s_mov_b32 exec_lo, {-1 if h == 0 else 0}")
        a(f"s_mov_b32 exec_hi, {0 if h == 0 else -1}")
        for q in range(4):
            a(f"ds_read_b64 {v(Q3[h][q],2)}, v{T[1+(q&2)]} offset:{1280*(q&1)+1024}")
    a("s_mov_b64 exec, -1")
    pad_hop(a, 1)
    a(f"s_mov_b32 s{s_it}, 0")
    make_srd(a, SO, 32, None, 0)
    for r in (224, 226, 228, 232, 234, 236): a(f"v_mov_b64 {v(r,2)}, 0")

    def qk1(sb, q, t): return f"v_mfma_f32_32x32x16_bf16 {v(S[sb],16)}, {v(K1[t],4)}, {v(Q1[q],4)}, 0"
    def qk2(sb, q, t): return f"v_mfma_f32_32x32x8_bf16 {v(S[sb],16)}, {v(K3[t>>1],2)}, {v(Q3[t&1][q],2)}, {v(S[sb],16)}"
    def pv(pb, q, t, h): return f"v_mfma_f32_32x32x16_bf16 {v(O[q],16)}, {v(V[t]+4*h,4)}, {v(P[pb]+4*h,4)}, {v(O[q],16)}"
    def ex(q, r): return f"v_exp_f32 v{S[q]+r}, v{S[q]+r}"
    def cv(q, r): return f"v_cvt_pk_bf16_f32 v{P[q]+r//2}, v{S[q]+r}, v{S[q]+r+1}"
    wo_dma = [f"s_min_u32 s{s_c}, s{s_m0w}, 0x20000", f"s_add_u32 m0, s{s_c}, {WOBASE}", f"s_add_u32 s{s_m0w}, s{s_m0w}, 5120",
              f"buffer_load_dwordx4 v{gwo}, {srd(SW)}, s{s_wo} offen lds", f"s_add_u32 s{s_wo}, s{s_wo}, {32*1280}"]
    plan = {}
    for tt in range(4):
        pb = (tt - 1) % 4
        plan[(tt, 1)] = ([ld_v(pb)], [("V", pb)] * 2)
        if G.v3 and pb == 3: plan[(tt, 1)] = ([ld_v(pb, 22), f"s_mov_b64 s[22:23], s[{s_vm}:{s_vm+1}]"], [("V", pb)] * 2)
        if tt & 1:
            plan[(tt, 3)] = ([ld_k1(tt), ld_k3(tt >> 1)], [("K1", tt), ("K3", tt >> 1)])
        else:
            plan[(tt, 3)] = ([ld_k1(tt)], [("K1", tt)])
            plan[(tt, 2)] = (adv_pair(), [])
        if tt > 0:
            plan[(tt, 0)] = (wo_dma, [("WO",)])
    order = [(tt, q) for tt in range(4) for q in range(4)]
    names = []; pos = {}
    for rep in range(2):
        for key in order:
            if rep == 1: pos[key] = len(names)
            names += plan.get(key, ([], []))[1]
    def need(tt):
        nt = (tt + 1) % 4
        return [("K1", nt), ("V", nt), ("K3", nt >> 1)]
    n0 = list(first); waits = {}
    for key in order:
        if key[1] == 3:
            p = pos[key]
            w1 = p - 1 - max(max(i for i in range(p) if names[i] == k) for k in need(key[0]))
            w2 = len(n0) - 1 - max(max(i for i in range(len(n0)) if n0[i] == k) for k in need(key[0]))
            waits[key[0]] = min(w1, w2)
        n0 += plan.get(key, ([], []))[1]
    a(f"s_waitcnt vmcnt({len(first)-4}) lgkmcnt(0)")
    stamp(a, 5)
    a(qk1(0, 0, 0)); a(qk2(0, 0, 0))
    a("s_setprio 3")
    a("s_nop 7")
    a("s_nop 3")
    L = a.label("al")
    a(".p2align 6")
    a(f"{L}:")
    hooks = {G.hst: (0, a.label("hA"), a.label("hAb")), G.hchk: (0, a.label("hK"), a.label("hKb")), G.hpub: (0, a.label("hP"), a.label("hPb")),
             G.hsam: (3, a.label("hB"), a.label("hBb")), (0, 2): (4, a.label("hC"), a.label("hCb")),
             (1, 1): (None, a.label("hL"), a.label("hLb"))}
    own, oth, oa1, oa2, pf, tw = 253, 254, 225, 226, 227, 231
    wa4 = [220, 221, 222, 223, 224]; oc = [232, 233, 234, 235, 236]; k2 = 228
    LhW, LhWb = a.label("hW"), a.label("hWb")
    F = [O[2], O[3]]; Rv = [O[0], O[1]]
    cum = [sum(G.lens[:i]) for i in range(4)]
    step = 0
    for tt in range(4):
        for q in range(4):
            c = q & 1; o = 1 - c
            nq, nt = (q + 1, tt) if q < 3 else (0, (tt + 1) % 4)
            pq, pt = (q - 1, tt) if q > 0 else (3, (tt - 1) % 4)
            extra = list(plan.get((tt, q), ([], []))[0])
            if q & 1: pad_hop(a, 1)
            if (tt, q) in hooks:
                bit, lo, lb = hooks[(tt, q)]
                a(f"s_bitcmp1_b32 s{s_st}, {bit}" if bit is not None else f"s_cmp_eq_u32 s{s_it}, {G.iters-1}")
                a(f"s_cbranch_scc1 {lo}")
                a(f"{lb}:")
            if (tt, q) == (3, 3) and G.early:
                a(f"s_cbranch_scc0 {LhW}")
                a(f"{LhWb}:")
            if q == 3: a(f"s_waitcnt vmcnt({waits[tt]})")
            if (tt, q) == (2, 1): extra += [f"s_lshl_b32 s{s_st}, s{s_st}, 1"]
            if (tt, q) == (3, 2): extra += [f"s_add_u32 s{s_it}, s{s_it}, 1", f"s_cmp_lt_u32 s{s_it}, {G.iters}"]
            ms = [qk1(o, nq, nt), qk2(o, nq, nt), pv(o, pq, pt, 0), pv(o, pq, pt, 1)]
            for j in range(4):
                a(ms[j])
                if j: a(cv(c, 4 * j - 2))
                for e in range(3):
                    a(ex(c, 4 * j + e))
                    if extra: a(extra.pop(0))
                if j < 3:
                    a(cv(c, 4 * j)); a(ex(c, 4 * j + 3))
                else:
                    a(ex(c, 15)); a(cv(c, 12))
            n = (step + 1) % sum(G.lens)
            if n in cum: a(f"s_setprio {3 - cum.index(n)}")
            a(cv(c, 14))
            step += 1
    a(f"s_cbranch_scc1 {L}")
    a("s_nop 0")
    a(pv(1, 3, 3, 0)); a(pv(1, 3, 3, 1))
    a("s_setprio 0")
    Lslow = a.label("slow"); Lst = a.label("store")
    def send():
        for i in range(2):
            for gq_ in range(3):
                a(f"ds_write_b128 v{own}, {v(O[i]+4*gq_,4)} offset:{(i*3+gq_)*1024}")
    stamp(a, 6)
    if not G.early: send()
    a("s_waitcnt vmcnt(0) lgkmcnt(0)")
    a("s_barrier")
    for i in range(2):
        for gq_ in (2, 0, 1):
            a(f"ds_read_b128 {v(Rv[i]+4*gq_,4)}, v{oth} offset:{(i*3+gq_)*1024}")
    a(f"s_mov_b32 s{s_a}, 0x2b800000")
    a(f"s_mov_b32 s{s_b}, 0x5d800000")
    for i in range(2):
        a(f"s_waitcnt lgkmcnt({3-3*i})")
        for r in (8, 10, 0, 2, 4, 6):
            a(f"v_pk_add_f32 {v(F[i]+r,2)}, {v(F[i]+r,2)}, {v(Rv[i]+r,2)}")
    def bcast_l():
        for i in range(2):
            a(f"v_mov_b32 v{F[i]+12}, v{F[i]+8}")
            a(f"v_mov_b32 v{F[i]+13}, v{F[i]+8}")
        a("s_nop 1")
        for i in range(2):
            a(f"v_permlane32_swap_b32 v{F[i]+13}, v{F[i]+12}")
    bcast_l()
    for r in range(0, 12, 2):
        for q in range(2):
            if r == 0: a(f"v_pk_mul_f32 {v(F[q]+14,2)}, {v(F[q],2)}, 0 op_sel_hi:[1,0]")
            else: a(f"v_pk_fma_f32 {v(F[q]+14,2)}, {v(F[q]+r,2)}, 0, {v(F[q]+14,2)} op_sel_hi:[1,0,1]")
    a(f"v_min_f32 v{T[0]}, v{F[0]+12}, v{F[1]+12}")
    a(f"v_max_f32 v{T[1]}, v{F[0]+12}, v{F[1]+12}")
    a(f"v_cmp_o_f32 vcc, v{F[0]+14}, v{F[0]+15}")
    a(f"v_cmp_o_f32 s[16:17], v{F[1]+14}, v{F[1]+15}")
    a(f"v_cmp_le_f32 s[18:19], s{s_a}, v{T[0]}")
    a(f"v_cmp_ge_f32 s[22:23], s{s_b}, v{T[1]}")
    a(f"s_and_b64 vcc, vcc, s[16:17]")
    a(f"s_and_b64 s[18:19], s[18:19], s[22:23]")
    a(f"s_and_b64 vcc, vcc, s[18:19]")
    a("s_cmp_eq_u64 vcc, -1")
    a(f"s_cbranch_scc0 {Lslow}")
    a(f"{Lst}:")
    a(f"v_rcp_f32 v{F[0]+12}, v{F[0]+12}")
    a(f"v_rcp_f32 v{F[1]+12}, v{F[1]+12}")
    a(f"s_mov_b32 s{s_b}, {2*20480}")
    Log = a.label("og"); Loj = a.label("oj"); Lo2 = a.label("o2"); Lo3 = a.label("o3")
    a(f"s_cmp_eq_u32 s{s_loc}, 0")
    a(f"s_cbranch_scc1 {Log}")
    for fl in (G.olst, "sc1"):
        for q in range(2):
            for r in range(0, 12, 2):
                a(f"v_pk_mul_f32 {v(F[q]+r,2)}, {v(F[q]+r,2)}, {v(F[q]+12,2)} op_sel_hi:[1,0]")
            for e in range(6):
                a(f"v_cvt_pk_bf16_f32 v{F[q]+e}, v{F[q]+2*e}, v{F[q]+2*e+1}")
            so = "0" if q == 0 else f"s{s_b}"
            a(f"buffer_store_dwordx4 {v(F[q],4)}, v{oa1}, {srd(SO)}, {so} offen {fl}")
            a(f"buffer_store_dwordx2 {v(F[q]+4,2)}, v{oa2}, {srd(SO)}, {so} offen {fl}")
        if fl != "sc1":
            a(f"s_branch {Loj}")
            a(f"{Log}:")
    a(f"{Loj}:")
    NW4 = 6; NX = 7
    W4 = [56 + 20 * i for i in range(NW4)]; A4 = 176
    Lfin = a.label("fin"); Lsk = a.label("sk")
    cur = [0]
    def rd4(h, j, t):
        o = ""
        if h == 12 and j == 0 and t == 0:
            o = "".join(f"v_add_u32 v{wa4[k]}, {12*5120}, v{wa4[k]}\n" for k in range(5)); cur[0] = 12 * 5120
        return o + f"ds_read_b64_tr_b16 {v(W4[h%NW4]+4*j+2*t,2)}, v{wa4[j]} offset:{5120*h-cur[0]+1280*t}"
    a(f"s_cmp_lg_u32 s{s_kh}, 0")
    a(f"s_cbranch_scc1 {Lsk}")
    for h in range(1, 4):
        for j in range(5):
            a(rd4(h, j, 0)); a(rd4(h, j, 1))
    a(f"{Lsk}:")
    a(f"s_cmp_eq_u32 s{s_loc}, 0")
    a("s_waitcnt vmcnt(0)")
    a(f"s_cbranch_scc1 {Lo2}")
    flag_store(a, s_vo, True)
    a(f"s_branch {Lo3}")
    a(f"{Lo2}:")
    flag_store(a, s_vo, False)
    a(f"{Lo3}:")
    stamp(a, 7); stamp(a, 8); stamp(a, 9)
    a(f"s_cmp_lg_u32 s{s_kh}, 0")
    a(f"s_cbranch_scc1 {Lfin}")
    for h in (0, 4, 5):
        for j in range(5):
            a(rd4(h, j, 0)); a(rd4(h, j, 1))
    a(f"s_lshl2_add_u32 s{s_a}, s{s_m}, s{s_g}")
    a(f"s_mul_i32 s{s_a}, s{s_a}, {32*2560}")
    a(f"s_mul_i32 s{s_b}, s{s_blk}, 1280")
    a(f"s_add_u32 s{s_a}, s{s_a}, s{s_b}")
    a(f"s_mul_i32 s{s_b}, s{s_n}, 160")
    a(f"s_add_u32 s{s_a}, s{s_a}, s{s_b}")
    make_srd(a, SKV, 28, f"s{s_a}", 31 * 2560 + 160)
    poll(a, pf, f"s{s_xo}", T[0])
    stamp(a, 8)
    assert G.oa < NX
    def xf(g, ii): return 8 * (g % NX) + 4 * ii
    def ld_o(g, ii):
        o = f"s_movk_i32 s{s_a}, {4096*(g//4)}\n" if (g % 4 == 0 and ii == 0) else ""
        return o + f"buffer_load_dwordx4 {v(xf(g,ii),4)}, v{[ka, k2][ii]}, {srd(SX)}, s{s_a} offen offset:{1024*(g%4)} sc1"
    for g in range(G.oa):
        a(ld_o(g, 0)); a(ld_o(g, 1))
    allr = [(h, j, t) for h in range(NW4, 20) for j in range(5) for t in range(2)]
    issued = 0
    for g in range(20):
        lg = 0 if g == 0 else (14 if g < NW4 else issued - 10 * (g - NW4 + 1))
        assert lg >= 0
        a(f"s_waitcnt vmcnt({2*(min(20, g + G.oa) - g - 1)}) lgkmcnt({min(lg, 14)})")
        todo = allr[issued:issued + G.rpg] if g >= 1 else []
        todo = [x for x in todo if x[0] - NW4 < g]
        issued += len(todo)
        ex_ = [rd4(*x) for x in todo]
        if g + G.oa < 20:
            ex_.insert(0, ld_o(g + G.oa, 0)); ex_.insert(min(5, len(ex_)), ld_o(g + G.oa, 1))
        for j in range(5):
            for ii in range(2):
                d = v(A4 + 4 * (5 * ii + j), 4)
                a(f"v_mfma_f32_16x16x32_bf16 {d}, {v(W4[g%NW4]+4*j,4)}, {v(xf(g,ii),4)}, {d if g else 0}")
                if ex_: a(ex_.pop(0))
        for x in ex_: a(x)
    stamp(a, 9)
    for j in range(5):
        if j == 4: a("s_nop 1")
        for ii in range(2):
            r = A4 + 4 * (5 * ii + j)
            a(f"v_cvt_pk_bf16_f32 v{r}, v{r}, v{r+1}")
            a(f"v_cvt_pk_bf16_f32 v{r+1}, v{r+2}, v{r+3}")
            a(f"ds_write_b64 v{tw}, {v(r,2)} offset:{8*j+2560*ii}")
    a("s_waitcnt lgkmcnt(0)")
    for i in range(5): a(f"ds_read_b128 {v(4*i,4)}, v{oth} offset:{1024*i}")
    for i in range(5):
        a(f"s_waitcnt lgkmcnt({4-i})")
        a(f"buffer_store_dwordx4 {v(4*i,4)}, v{oc[i]}, {srd(SKV)}, 0 offen {G.ost}")
    a(f"s_or_b32 s{s_a}, s{s_m}, s{s_n}")
    a(f"s_or_b32 s{s_a}, s{s_a}, s{s_wave}")
    a(f"s_cbranch_scc1 {Lfin}")
    a(f"s_lshl_b32 s{s_b}, s{s_blk}, 7")
    a(f"s_add_u32 s{s_b}, s{s_b}, {EOFF}")
    flag_store(a, s_b, False)
    a(f"{Lfin}:")
    dump_stamps(a, 10)
    a(f"{Lend}:")
    a("s_endpgm")

    a(f"{Lcons}:")
    setT(247)
    ACC = 0
    X = [[80 + 16 * b + 4 * i for i in range(4)] for b in range(2)]
    W = [[112 + 20 * b + 4 * j for j in range(5)] for b in range(2)]
    xa = [152, 153]; wa = [154, 155, 156, 157, 158]; xt, xv = 159, 160
    s_wm, s_wn = s_xo, s_wo
    a("s_getpc_b64 s[4:5]")
    a(f"Lpc_{name}:")
    a(f"s_sub_u32 s4, s4, Lpc_{name}-{name}")
    a("s_subb_u32 s5, s5, 0")
    a(f"s_mov_b32 s6, Lcode_end-{name}")
    a("s_mov_b32 s7, 0x00020000")
    a("v_lshlrev_b32 v1, 7, v0")
    a(f"buffer_load_dword v{xt}, v1, s[4:7], 0 offen")
    a(f"s_and_b32 s{s_wm}, s{s_wave}, 1")
    a(f"s_lshr_b32 s{s_wn}, s{s_wave}, 1")
    a(f"s_lshl_b32 s{s_b}, s{s_wm}, 13")
    x_addrs(a, xa, s_b)
    for r in range(0, 80, 2): a(f"v_mov_b64 {v(ACC+r,2)}, 0")
    common_ptrs()
    epoch_load()
    att_addrs()
    a(f"s_and_b32 s{s_a}, s{s_n}, 3")
    a(f"s_lshl2_add_u32 s{s_a}, s{s_blk}, s{s_a}")
    a(f"s_lshl1_add_u32 s{s_a}, s{s_a}, s{s_wn}")
    a(f"s_mul_i32 s{s_a}, s{s_a}, {4*HS}")
    a(f"s_lshl1_add_u32 s{s_b}, s{s_m}, s{s_wm}")
    a(f"s_mul_i32 s{s_b}, s{s_b}, {PS}")
    a(f"s_add_u32 s{s_a}, s{s_a}, s{s_b}")
    make_srd(a, SO, 32, f"s{s_a}", 3 * HS + PS)
    a(f"s_lshl3_add_u32 s{s_a}, s{s_blk}, s{s_n}")
    a(f"s_lshl1_add_u32 s{s_a}, s{s_a}, s{s_wn}")
    a(f"s_lshl4_add_u32 s{s_a}, s{s_a}, s{s_m}")
    a(f"s_lshl1_add_u32 s{s_vo}, s{s_a}, s{s_wm}")
    a(f"s_lshr_b32 s{s_k}, s{s_vo}, 3")
    a(f"s_lshl_b32 s{s_k}, s{s_k}, 7")
    a(f"s_and_b32 s{s_a}, s{s_vo}, 7")
    a(f"s_lshl2_add_u32 s{s_k}, s{s_a}, s{s_k}")
    a(f"s_add_u32 s{s_k}, s{s_k}, {FLOFF}")
    a(f"s_and_b32 s{s_vo}, s2, 7")
    a(f"s_lshl_b32 s{s_vo}, s{s_vo}, 7")
    a(f"s_add_u32 s{s_vo}, s{s_vo}, {GFOFF}")
    epoch_fin()
    a(f"s_getreg_b32 s{s_loc}, hwreg(HW_REG_XCC_ID)")
    a(f"s_and_b32 s{s_loc}, s{s_loc}, 15")
    a(f"s_add_u32 s{s_loc}, s{s_loc}, s{s_tag}")
    a(f"s_and_b32 s{s_a}, s2, 7")
    a(f"s_lshl_b32 s{s_m0w}, s{s_a}, 12")
    a(f"s_add_u32 s{s_m0w}, s{s_m0w}, {XOFF}")
    a(f"s_lshr_b32 s{s_a}, s2, 3")
    a(f"s_lshl_b32 s{s_a}, s{s_a}, 7")
    a(f"s_add_u32 s{s_b}, s{s_a}, s{s_m0w}")
    Lnp = a.label("nopub")
    a(f"s_cmp_lg_u32 s{s_wave}, 0")
    a(f"s_cbranch_scc1 {Lnp}")
    flag_regs(a, s_loc)
    flag_store(a, s_b, False)
    a(f"{Lnp}:")
    a(f"v_and_b32 v{xv}, 31, v{lane}")
    a(f"v_lshlrev_b32 v{xv}, 7, v{xv}")
    qv, fv = 161, 162
    a(f"v_min_u32 v{T[0]}, {G.nkv}, v{lane}")
    a(f"s_and_b32 s{s_a}, s{s_m}, 3")
    a(f"s_mul_i32 s{s_a}, s{s_a}, {(G.nkv+1)*128}")
    a(f"v_lshl_add_u32 v{qv}, v{T[0]}, 7, s{s_a}")
    a(f"s_lshl4_add_u32 s{s_st}, s{s_blk}, s{s_n}")
    a(f"s_lshr_b32 s{s_a}, s{s_m}, 2")
    a(f"s_lshl2_add_u32 s{s_st}, s{s_st}, s{s_a}")
    a(f"s_lshl_b32 s{s_st}, s{s_st}, 7")
    a(f"s_add_u32 s{s_st}, s{s_st}, {FLOFF}")
    a(f"v_and_b32 v{T[0]}, 7, v{lane}")
    a(f"v_lshrrev_b32 v{T[1]}, 5, v{lane}")
    a(f"v_lshlrev_b32 v{T[0]}, 2, v{T[0]}")
    a(f"v_lshl_add_u32 v{fv}, v{T[1]}, 12, v{T[0]}")
    if G.tKV:
        a(f"buffer_load_dword v{xt}, v{qv}, {srd(SKV)}, s{s_ko} offen sc1")
        a(f"buffer_load_dword v{xt}, v{fv}, {srd(SF)}, s{s_st} offen sc1")
    a(f"s_mov_b32 s{s_it}, 0")
    a(f"s_mov_b32 s{s_m0x}, {(-3*SLOT) & 0xffffffff}")
    a(f"s_cmp_ge_u32 s{s_n}, 4")
    a(f"s_cbranch_scc1 {Lv}")

    def p1_reads(ks, b):
        out = [f"ds_read_b128 {v(X[b][i],4)}, v{xa[ks]} offset:{2048*i}" for i in range(4)]
        for j in range(5):
            for t in range(2):
                out.append(f"ds_read_b64_tr_b16 {v(W[b][j]+2*t,2)}, v{wa[j]} offset:{ks*10240+1280*t}")
        return out
    st_code = {}
    Lcj = a.label("cj")
    def consumer(ktype):
        tr_addrs(a, wa, ktype, False, s_wn, 16384)
        if ktype:
            a(f"v_lshrrev_b32 v{T[0]}, 4, v{lane}")
            a(f"s_mov_b32 s{s_a}, {HS}")
            a(f"v_mul_lo_u32 v{T[0]}, v{T[0]}, s{s_a}")
            a(f"v_and_b32 v{T[1]}, 7, v{lane}")
            a(f"v_and_b32 v{T[2]}, 8, v{lane}")
            a(f"v_lshl_add_u32 v{T[1]}, v{T[2]}, 1, v{T[1]}")
            a(f"v_lshl_add_u32 v{sa[0]}, v{T[1]}, 4, v{T[0]}")
            a(f"v_lshl_add_u32 v{sa[1]}, v{T[1]}, 3, v{T[0]}")
        else:
            a(f"v_lshrrev_b32 v{T[0]}, 4, v{lane}")
            a(f"v_mul_u32_u24 v{T[0]}, 320, v{T[0]}")
            a(f"v_and_b32 v{T[1]}, 15, v{lane}")
            a(f"s_mov_b32 s{s_a}, {HS-320}")
            for j in range(5):
                a(f"v_add_u32 v{T[2]}, {16*j}, v{T[1]}")
                a(f"v_mul_u32_u24 v{T[3]}, 3277, v{T[2]}")
                a(f"v_lshrrev_b32 v{T[3]}, 16, v{T[3]}")
                a(f"v_lshl_add_u32 v{T[2]}, v{T[2]}, 4, v{T[0]}")
                a(f"v_mad_u32_u24 v{sa[j]}, v{T[3]}, s{s_a}, v{T[2]}")
        def mf(b):
            out = []
            for j in range(5):
                for i in range(4):
                    d = v(ACC + 4 * (5 * i + j), 4)
                    A, B = (W[b][j], X[b][i]) if ktype else (X[b][i], W[b][j])
                    out.append(f"v_mfma_f32_16x16x32_bf16 {d}, {v(A,4)}, {v(B,4)}, {d}")
            return out
        Lp = a.label("p1"); Ll = a.label("p1l")
        a("s_barrier")
        stamp(a, 1)
        for x in p1_reads(0, 0): a(x)
        a(f"{Lp}:")
        a("s_waitcnt lgkmcnt(8)")
        e = p1_reads(1, 1) + [f"s_add_u32 s{s_it}, s{s_it}, 1", f"s_and_b32 s{s_a}, s{s_it}, 3",
                              f"s_cselect_b32 s{s_a}, {SLOT}, s{s_m0x}", f"s_cmp_eq_u32 s{s_it}, 10"]
        for k, x in enumerate(mf(0)):
            if k == 4: a("s_waitcnt lgkmcnt(4)")
            a(x)
            if e: a(e.pop(0))
        a("s_waitcnt lgkmcnt(8)")
        m1 = mf(1)
        adds = [f"v_add_u32 v{r}, s{s_a}, v{r}" for r in xa + wa]
        for k in range(4):
            a(m1[k])
            for x in adds[2 * k:2 * k + 2]: a(x)
        a("s_waitcnt lgkmcnt(0)")
        a("s_barrier")
        a(f"s_cbranch_scc1 {Ll}")
        e = p1_reads(0, 0)
        for x in m1[4:]:
            a(x)
            if e: a(e.pop(0))
        a(f"s_cmp_lg_u32 s{s_it}, {G.xit}")
        a(f"s_cbranch_scc1 {Lp}")
        a(f"buffer_load_dword v{xt}, v{xv}, {srd(SF)}, s{s_m0w} offen sc1")
        a(f"s_branch {Lp}")
        a(f"{Ll}:")
        for x in m1[4:]: a(x)
        Lt = a.label("xt"); Ltd = a.label("xtd")
        a(f"s_mov_b32 s{s_c}, {SPIN}")
        a(f"{Lt}:")
        a("s_waitcnt vmcnt(0)")
        a(f"v_subrev_u32 v{T[0]}, s{s_tag}, v{xt}")
        a(f"v_cmp_lt_u32 vcc, 15, v{T[0]}")
        a(f"s_cbranch_vccz {Ltd}")
        a(f"s_sub_u32 s{s_c}, s{s_c}, 1")
        a(f"s_cbranch_scc1 {Ltd}")
        a(f"s_sleep {G.sleep}")
        a(f"buffer_load_dword v{xt}, v{xv}, {srd(SF)}, s{s_m0w} offen sc1")
        a(f"s_branch {Lt}")
        a(f"{Ltd}:")
        a(f"v_cmp_ne_u32 vcc, s{s_loc}, v{xt}")
        a("s_cmp_eq_u64 vcc, 0")
        a(f"s_cselect_b32 s{s_loc}, {1 if G.local else 0}, 0")
        stamp(a, 2)
        def stores(fl, so, cvt):
            if ktype:
                for i in range(4):
                    r = KVD + 10 * i
                    if cvt:
                        for e in range(10): a(f"v_cvt_pk_bf16_f32 v{r+e}, v{ACC+20*i+2*e}, v{ACC+20*i+2*e+1}")
                    o = (i >> 1) * 1024 + (i & 1) * 128
                    a(f"buffer_store_dwordx4 {v(r,4)}, v{sa[0]}, {srd(SO)}, {so} offen offset:{o} {fl}")
                    a(f"buffer_store_dwordx4 {v(r+4,4)}, v{sa[0]}, {srd(SO)}, {so} offen offset:{o+512} {fl}")
                    a(f"buffer_store_dwordx2 {v(r+8,2)}, v{sa[1]}, {srd(SO)}, {so} offen offset:{2048+(i>>1)*256+(i&1)*64} {fl}")
            else:
                for j in range(5):
                    for i2 in range(2):
                        r = KVD + 8 * j + 4 * i2
                        if cvt:
                            r0 = ACC + 4 * (5 * (2 * i2) + j); r1 = ACC + 4 * (5 * (2 * i2 + 1) + j)
                            a(f"v_cvt_pk_bf16_f32 v{r}, v{r0}, v{r0+1}")
                            a(f"v_cvt_pk_bf16_f32 v{r+1}, v{r0+2}, v{r0+3}")
                            a(f"v_cvt_pk_bf16_f32 v{r+2}, v{r1}, v{r1+1}")
                            a(f"v_cvt_pk_bf16_f32 v{r+3}, v{r1+2}, v{r1+3}")
                        a(f"buffer_store_dwordx4 {v(r,4)}, v{sa[j]}, {srd(SO)}, {so} offen offset:{2560+1280*i2} {fl}")
        st_code[ktype] = stores
        Lg = a.label("glob")
        a(f"s_cmp_eq_u32 s{s_loc}, 0")
        a(f"s_cbranch_scc1 {Lg}")
        if not (G.xs & 1): stores(G.lst, "0", True)
        a(f"s_branch {Lcj}")
        a(f"{Lg}:")
        stores("sc1", "0", True)
        if ktype: a(f"s_branch {Lcj}")
    consumer(True)
    a(f"{Lv}:")
    consumer(False)
    a(f"{Lcj}:")
    pad_hop(a, 2)
    a(f"v_mov_b32 v{T[0]}, {MODE_LDS}")
    a(f"v_mov_b32 v{T[1]}, s{s_loc}")
    a(f"ds_write_b32 v{T[0]}, v{T[1]}")
    flag_regs(a)
    def att_init():
        pad_value()
        for b in range(4): pad(b)
        zero_acc()
        wo_scalars()
    Lg2 = a.label("g2")
    a(f"s_cmp_eq_u32 s{s_loc}, 0")
    a("s_waitcnt lgkmcnt(0)")
    a(f"s_cbranch_scc1 {Lg2}")
    pad_hop(a, 2)
    a(f"v_mov_b32 v{T[0]}, v{fv}")
    att_init()
    a("s_waitcnt vmcnt(0)")
    flag_store(a, s_k, True)
    stamp(a, 3)
    poll(a, T[0], f"s{s_st}", T[1])
    stamp(a, 4)
    kv_first(False)
    if G.tP:
        a(f"v_min_u32 v{T[0]}, 39, v{lane}")
        a(f"v_lshlrev_b32 v{T[0]}, 7, v{T[0]}")
        a(f"s_sub_u32 s{s_a}, s{s_ko}, {PS}")
        a(f"s_add_u32 s{s_b}, s{s_ko}, {PS}")
        a(f"buffer_load_dword v{gfd}, v{T[0]}, {srd(SKV)}, s{s_a} offen sc1")
        a(f"buffer_load_dword v{gfd}, v{T[0]}, {srd(SKV)}, s{s_b} offen sc1")
    a(f"s_lshr_b32 s{s_a}, s2, 3")
    a(f"s_or_b32 s{s_a}, s{s_a}, s{s_wave}")
    a(f"s_cselect_b32 s{s_st}, 4, 5")
    a("s_barrier")
    a(f"s_branch {Latt}")
    def group_wait(part=None, n=0):
        L = a.label("gp"); Ld = a.label("gpd"); Lc = a.label("gpc")
        if part == 2:
            a(f"s_mov_b32 s{s_c}, {SPIN}")
            a(f"s_waitcnt vmcnt({n})")
            a(f"s_branch {Lc}")
        if part != 2:
            a(f"s_lshl_b32 s{s_b}, s{s_blk}, 6")
            a(f"s_lshr_b32 s{s_a}, s{s_m}, 2")
            a(f"s_add_u32 s{s_b}, s{s_b}, s{s_a}")
            a(f"s_lshl_b32 s{s_b}, s{s_b}, 7")
            a(f"s_add_u32 s{s_b}, s{s_b}, {FLOFF}")
            a(f"v_lshrrev_b32 v{T[0]}, 2, v{lane}")
            a(f"v_and_b32 v{T[1]}, 3, v{lane}")
            a(f"v_lshlrev_b32 v{T[1]}, 3, v{T[1]}")
            a(f"v_lshl_add_u32 v{T[0]}, v{T[0]}, 9, v{T[1]}")
            a(f"s_mov_b32 s{s_c}, {SPIN}")
        a(f"{L}:")
        a(f"buffer_load_dwordx2 {v(T[1],2)}, v{T[0]}, {srd(SF)}, s{s_b} offen sc1")
        if part == 1: return
        a("s_waitcnt vmcnt(0)")
        a(f"{Lc}:")
        a(f"v_cmp_ne_u32 vcc, s{s_tag}, v{T[1]}")
        a(f"v_cmp_ne_u32 s[16:17], s{s_tag}, v{T[2]}")
        a("s_or_b64 vcc, vcc, s[16:17]")
        a(f"s_cbranch_scc0 {Ld}")
        a(f"s_sub_u32 s{s_c}, s{s_c}, 1")
        a(f"s_cbranch_scc1 {Ld}")
        a(f"s_sleep {G.sleep}")
        a(f"s_branch {L}")
        a(f"{Ld}:")
    a(f"{Lg2}:")
    att_init()
    a("s_waitcnt vmcnt(0)")
    a("s_mov_b64 exec, 1")
    a(f"buffer_store_dword v{T[5]}, v{T[4]}, {srd(SF)}, s{s_k} offen sc1")
    a("s_mov_b64 exec, -1")
    stamp(a, 3)
    Lne = a.label("ne")
    a(f"s_lshr_b32 s{s_a}, s2, 3")
    a(f"s_or_b32 s{s_a}, s{s_a}, s{s_wave}")
    a(f"s_cbranch_scc1 {Lne}")
    group_wait()
    flag_store(a, s_vo, False)
    a(f"{Lne}:")
    poll(a, gfv, f"s{s_fg}", T[1])
    stamp(a, 4)
    kv_first(False)
    a(f"s_mov_b32 s{s_st}, 0")
    a("s_barrier")
    a(f"s_branch {Latt}")

    for Ls, Lb, R1 in spins:
        a(f"{Ls}:")
        a(f"ds_read_b32 v{fd}, v{fr} offset:{16*(R1-1)}")
        a("s_waitcnt lgkmcnt(0)")
        a(f"v_cmp_ne_u32 vcc, 1, v{fd}")
        a(f"s_cbranch_vccnz {Ls}")
        a(f"s_branch {Lb}")
    a(f"{hooks[G.hst][1]}:")
    stamp(a, 11)
    group_wait(1)
    a(f"s_branch {hooks[G.hst][2]}")
    a(f"{hooks[G.hchk][1]}:")
    group_wait(2, pos[G.hchk] - pos[G.hst])
    stamp(a, 12)
    a("buffer_wbl2 sc1")
    a(f"s_branch {hooks[G.hchk][2]}")
    a(f"{hooks[G.hpub][1]}:")
    a("s_waitcnt vmcnt(0)")
    a(f"s_bitset0_b32 s{s_st}, 0")
    flag_regs(a)
    flag_store(a, s_vo, False)
    stamp(a, 13)
    a(f"s_branch {hooks[G.hpub][2]}")
    a(f"{hooks[(1,1)][1]}:")
    if G.kill: a(f"s_mov_b32 s{SKV+2}, 0")
    a(f"s_mul_i32 s{s_a}, s{s_wave}, 6144")
    a(f"v_add_u32 v{own}, s{s_a}, v{ka}")
    a(f"s_xor_b32 s{s_a}, s{s_wave}, 4")
    a(f"s_mul_i32 s{s_a}, s{s_a}, 6144")
    a(f"v_add_u32 v{oth}, s{s_a}, v{ka}")
    a(f"s_lshl4_add_u32 s{s_xo}, s{s_blk}, s{s_m}")
    a(f"s_lshl1_add_u32 s{s_a}, s{s_xo}, s{s_kh}")
    a(f"s_mul_i32 s{s_a}, s{s_a}, {4*20480}")
    a(f"s_add_u32 s{s_a}, s{s_a}, {OBASE}")
    make_srd(a, SO, 32, f"s{s_a}", 4 * 20480)
    a(f"s_lshl2_add_u32 s{s_vo}, s{s_n}, s{s_g}")
    a(f"s_mul_i32 s{s_b}, s{s_vo}, 5")
    a(f"s_add_u32 s{s_b}, s{s_b}, 1")
    a(f"s_lshr_b32 s{s_b}, s{s_b}, 1")
    a(f"s_lshl_b32 s{s_b}, s{s_b}, 8")
    a(f"s_movk_i32 s{s_a}, 512")
    a(f"s_and_b32 s{s_c}, s{s_g}, 1")
    a(f"s_cselect_b32 s{s_c}, {(-256+8) & 0xffffffff}, s{s_a}")
    a(f"s_add_u32 s{s_c}, s{s_c}, s{s_b}")
    a(f"v_bfe_u32 v{T[2]}, v{lane}, 4, 1")
    a(f"v_mul_u32_u24 v{T[2]}, 20480, v{T[2]}")
    a(f"v_and_b32 v{T[3]}, 15, v{lane}")
    a(f"v_lshl_add_u32 v{T[2]}, v{T[3]}, 4, v{T[2]}")
    a(f"v_lshrrev_b32 v{T[4]}, 5, v{lane}")
    a(f"v_lshl_add_u32 v{T[3]}, v{T[4]}, 20, v{T[2]}")
    a(f"v_lshl_add_u32 v{T[2]}, v{T[4]}, 8, v{T[2]}")
    a(f"v_add_u32 v{oa1}, s{s_b}, v{T[2]}")
    a(f"v_add_u32 v{oa2}, s{s_c}, v{T[3]}")
    a(f"s_cmp_eq_u32 s{s_loc}, 0")
    a(f"s_cselect_b32 s{s_k}, {FSH}, 2")
    a(f"s_mov_b32 s{s_a}, {F2LOFF}")
    a(f"s_cselect_b32 s{s_a}, {F2OFF}, s{s_a}")
    a(f"s_lshl_b32 s{s_xo}, s{s_xo}, 6")
    a(f"s_lshl_b32 s{s_xo}, s{s_xo}, s{s_k}")
    a(f"s_add_u32 s{s_xo}, s{s_xo}, s{s_a}")
    a(f"s_lshl_b32 s{s_a}, s{s_kh}, 5")
    a(f"s_add_u32 s{s_vo}, s{s_vo}, s{s_a}")
    a(f"s_lshl_b32 s{s_vo}, s{s_vo}, s{s_k}")
    a(f"s_add_u32 s{s_vo}, s{s_vo}, s{s_xo}")
    flag_regs(a)
    if G.tO:
        a(f"s_mov_b32 s{s_b}, {2*20480}")
        for so in ("0", f"s{s_b}"):
            a(f"buffer_load_dword v{gfd}, v{oa1}, {srd(SO)}, {so} offen sc1")
            a(f"buffer_load_dword v{gfd}, v{oa2}, {srd(SO)}, {so} offen sc1")
    a(f"s_cmp_lg_u32 s{s_kh}, 0")
    a(f"s_cbranch_scc1 {hooks[(1,1)][2]}")
    tr_addrs(a, wa4, True, True, None, WOBASE)
    a(f"s_lshl4_add_u32 s{s_a}, s{s_blk}, s{s_m}")
    a(f"s_lshl2_add_u32 s{s_a}, s{s_a}, s{s_g}")
    a(f"s_mul_i32 s{s_a}, s{s_a}, {2*20480}")
    a(f"s_add_u32 s{s_a}, s{s_a}, {OBASE}")
    make_srd(a, SX, 32, f"s{s_a}", 2 * 20480)
    a(f"v_add_u32 v{k2}, 20480, v{ka}")
    a(f"s_lshr_b32 s{s_a}, s{s_g}, 1")
    a(f"s_lshl_b32 s{s_a}, s{s_a}, 5")
    a(f"s_lshl_b32 s{s_a}, s{s_a}, s{s_k}")
    a(f"s_add_u32 s{s_xo}, s{s_xo}, s{s_a}")
    a(f"v_and_b32 v{pf}, 31, v{lane}")
    a(f"v_lshlrev_b32 v{pf}, s{s_k}, v{pf}")
    a(f"v_and_b32 v{T[0]}, 15, v{lane}")
    a(f"v_lshrrev_b32 v{T[1]}, 4, v{lane}")
    a(f"v_mul_u32_u24 v{T[0]}, 160, v{T[0]}")
    a(f"v_mad_u32_u24 v{T[0]}, v{T[1]}, 40, v{T[0]}")
    a(f"v_sub_u32 v{T[1]}, v{oth}, v{ka}")
    a(f"v_add_u32 v{tw}, v{T[0]}, v{T[1]}")
    a(f"s_movk_i32 s{s_a}, {2560-160}")
    for i in range(5):
        a(f"v_add_u32 v{oc[i]}, {64*i}, v{lane}")
        a(f"v_mul_u32_u24 v{T[0]}, 6554, v{oc[i]}")
        a(f"v_lshrrev_b32 v{T[0]}, 16, v{T[0]}")
        a(f"v_lshlrev_b32 v{oc[i]}, 4, v{oc[i]}")
        a(f"v_mad_u32_u24 v{oc[i]}, v{T[0]}, s{s_a}, v{oc[i]}")
    if G.tO: a(f"buffer_load_dword v{gfd}, v{pf}, {srd(SF)}, s{s_xo} offen sc1")
    a(f"s_branch {hooks[(1,1)][2]}")
    if G.early:
        a(f"{LhW}:")
        a("s_nop 3")
        send()
        a(f"s_branch {LhWb}")
    a(f"{hooks[G.hsam][1]}:")
    a(f"buffer_load_dword v{gfd}, v{gfv}, {srd(SF)}, s{s_fg} offen sc1")
    a(f"s_mov_b32 s{s_st}, 16")
    a(f"s_branch {hooks[G.hsam][2]}")
    a(f"{hooks[(0,2)][1]}:")
    nafter = (pos[(0, 2)] - pos[G.hsam]) % (len(names) // 2)
    if not G.rst: stamp(a, 14)
    a(f"s_waitcnt vmcnt({nafter})")
    stamp(a, 15)
    a(f"s_mov_b32 s{s_st}, 0")
    a(f"v_cmp_ne_u32 vcc, s{s_tag}, v{gfd}")
    a(f"s_cbranch_vccz {hooks[(0,2)][2]}")
    poll(a, gfv, f"s{s_fg}", gfd)
    stamp(a, 15)
    a(f"s_branch {hooks[(0,2)][2]}")

    a(f"{Lslow}:")
    vmx = gfd
    a(f"s_mov_b32 s{SKV+2}, {HS}")
    for q in (2, 3):
        L1 = a.label("s1"); L2 = a.label("s2")
        a(f"v_mov_b32 v{vmx}, 0xff800000")
        a(f"s_mov_b32 s{s_ko}, 0")
        a(f"{L1}:")
        a(ld_k1(0)); a(ld_k1(1)); a(ld_k3(0))
        a("s_waitcnt vmcnt(0)")
        for t in range(2):
            a(qk1(0, q, t)); a(qk2(0, q, t))
            a("s_nop 15")
            for r in range(0, 16, 2):
                a(f"v_max3_f32 v{vmx}, v{S[0]+r}, v{S[0]+r+1}, v{vmx}")
        a(f"s_add_u32 s{s_ko}, s{s_ko}, {PS}")
        a(f"s_cmp_lt_u32 s{s_ko}, {HS}")
        a(f"s_cbranch_scc1 {L1}")
        a(f"v_mov_b32 v{T[0]}, v{vmx}")
        a("s_nop 1")
        a(f"v_permlane32_swap_b32 v{T[0]}, v{vmx}")
        a("s_nop 1")
        a(f"v_max_f32 v{vmx}, v{vmx}, v{T[0]}")
        for r in range(0, 16, 2):
            a(f"v_mov_b64 {v(O[q]+r,2)}, 0")
        a(f"s_mov_b32 s{s_ko}, 0")
        a(f"{L2}:")
        a(ld_k1(0)); a(ld_k1(1)); a(ld_k3(0)); a(ld_v(0)); a(ld_v(1))
        a("s_waitcnt vmcnt(0)")
        for t in range(2):
            a(qk1(0, q, t)); a(qk2(0, q, t))
            a("s_nop 15")
            for r in range(16):
                a(f"v_sub_f32 v{S[0]+r}, v{S[0]+r}, v{vmx}")
            for r in range(16):
                a(ex(0, r))
            a("s_nop 0")
            for r in range(0, 16, 2):
                a(cv(0, r))
            a("s_nop 1")
            a(pv(0, q, t, 0)); a(pv(0, q, t, 1))
        a(f"s_add_u32 s{s_ko}, s{s_ko}, {PS}")
        a(f"s_cmp_lt_u32 s{s_ko}, {HS}")
        a(f"s_cbranch_scc1 {L2}")
    a("s_nop 15")
    bcast_l()
    a("s_nop 1")
    a(f"s_branch {Lst}")
    a("Lcode_end:")
    return name

def build():
    a = Asm()
    PADS[:] = [0, 0, 0, 0]
    name = gen(a)
    if G.warm:
        i = a.lines.index(".PADRET")
        a.lines[i:i+1] = [f"Lpad_{c}_{PADS[c]}:" for c in range(4)]
    out = HEADER + "; @launch grid=(256,1,1) block=(512,1,1) lds=163840\n"
    out += '.amdgcn_target "amdgcn-amd-amdhsa--gfx950"\n.text\n' + a.text()
    out += '.section .rodata,"a"\n.p2align 6\n' + kernel_desc(name, 256, 100 if G.diag else 64)
    return out

if __name__ == "__main__":
    path = sys.argv[1] if len(sys.argv) > 1 else f"cdna_kernels/{NAME}.s"
    G.diag = "diag" in sys.argv
    for x in sys.argv[2:]:
        if "=" in x:
            k, val = x.split("=", 1)
            assert hasattr(G, k), k
            setattr(G, k, eval(val))
    open(path, "w").write(build())
    print("wrote", path)
```

```python
import sys
sys.path.insert(0, "gen")
from asmlib import *

NAME = "concat_heads__mha_block__softmax_full_mha__prompt"
HS = 163840
PS = 5120
KVL = 0x1400000
OBASE = 0xA00000
FBASE = 0x1000000
FLOFF = 0x40000
F2LOFF = 0x60000
XOFF = 0x70000
F3OFF = 0x68000
GFOFF = 0x78000
F2OFF = 0x80000
EOFF = 0x180000
DBGBASE = 0x2000000
QSCALE = 0x3ea52b5c
SLOT = 36864
SPARE = 4 * SLOT
QAREA = SLOT
WOBASE = 61440
MODE_LDS = 163836
RFLAG = 163712
SPIN = 400000
FSH = 7

HEADER = """; Kernarg layout for this problem (72 bytes, ptrs only, base s[0:1]):
"""

SX, SW, SKV, SF, SO = 4, 8, 12, 36, 40
(s_blk, s_m, s_n, s_wave, s_tag, s_k, s_a, s_b, s_c, s_it, s_xo, s_wo, s_m0x, s_m0w, s_kh, s_ko, s_vo, s_g) = range(44, 62)
s_vm = 62
s_st, s_loc, s_fg = 3, 34, 35
lane = 255
T = [0] * 6

class G:
    diag = False; dbg = None; amp = None
    lens = [10, 3, 2, 1]
    rot = True
    pro = 2; la = 3; nb1 = 2
    local = True
    sleep = 2
    iters = 8
    hst = (0, 1); hsam = (0, 0)
    oa = 4
    kill = True
    itst = False
    tP = False
    hchk = (1, 0)
    hpub = (2, 1)
    rpg = 8
    early = True
    roll = 3
    xit = 2
    nkv = 39
    tO = True
    tKV = False
    xs = 0
    p2prio = 1
    dsh = 0
    dst = 3
    qpf = 0
    rst = 0
    rmul = 3
    rn = 1
    lwb = False
    ost = ''
    oin = True
    olst = ''
    ewb = None
    warm = False
    lst = ''
    v3 = True
    nowb = False
    wod = 3

PADS = [0, 0, 0, 0]
def pad_hop(a, c):
    if not G.warm: return
    a(f"Lpad_{c}_{PADS[c]}:")
    PADS[c] += 1
    a(f"s_cbranch_execz Lpad_{c}_{PADS[c]}")

def setT(base): T[:] = list(range(base, base + 6))
def srd(d): return f"s[{d}:{d+3}]"

def stamp(a, i):
    if not G.diag: return
    if G.itst and i >= 11: return
    a("s_memtime s[96:97]")
    a("s_memrealtime s[98:99]")
    a("s_waitcnt lgkmcnt(0)")
    a(f"s_mov_b32 s{64+2*i}, s96")
    a(f"s_mov_b32 s{65+2*i}, s98")

def dump_stamps(a, n):
    if not G.diag: return
    a("s_waitcnt vmcnt(0)")
    stamp(a, n)
    a(f"s_lshl_b32 s{s_a}, s2, 3")
    a(f"s_add_u32 s{s_a}, s{s_a}, s{s_wave}")
    a(f"s_lshl_b32 s{s_a}, s{s_a}, 7")
    a(f"s_add_u32 s{s_a}, s{s_a}, {DBGBASE}")
    make_srd(a, SX, 32, f"s{s_a}", 128)
    a(f"v_mov_b32 v{T[0]}, 0")
    for i in range(32):
        a(f"v_mov_b32 v{T[1]}, s{64+i}")
        a(f"buffer_store_dword v{T[1]}, v{T[0]}, s[{SX}:{SX+3}], 0 offen offset:{4*i}")
    if G.lwb:
        L1 = a.label("lwb"); L2 = a.label("lwb2")
        a(f"s_lshr_b32 s{s_a}, s2, 3")
        a(f"s_or_b32 s{s_a}, s{s_a}, s{s_wave}")
        a(f"s_cbranch_scc1 {L2}")
        a(f"{L1}:")
        a("s_memrealtime s[98:99]")
        a("s_waitcnt lgkmcnt(0)")
        a(f"s_sub_u32 s{s_b}, s98, s{65+2*n}")
        a(f"s_cmp_lt_u32 s{s_b}, 400")
        a(f"s_cbranch_scc1 {L1}")
        a("buffer_wbl2 sc1")
        a("s_waitcnt vmcnt(0)")
        a(f"{L2}:")
    if G.dbg is not None:
        Ls = a.label("nodbg")
        a(f"s_lshl_b32 s{s_a}, s2, 3")
        a(f"s_add_u32 s{s_a}, s{s_a}, s{s_wave}")
        a(f"s_cmp_lg_u32 s{s_a}, {G.dbg}")
        a(f"s_cbranch_scc1 {Ls}")
        make_srd(a, SX, 30, None, 256)
        for i in range(1, 14):
            a(f"s_sub_u32 s{s_a}, s{65+2*i}, s65")
            a(f"v_mov_b32 v{T[1]}, s{s_a}")
            a(f"buffer_store_dword v{T[1]}, v{T[0]}, s[{SX}:{SX+3}], 0 offen offset:{4*i}")
        if G.amp is not None:
            Lw = a.label("amp")
            a(f"s_sub_u32 s{s_a}, s{65+2*G.amp}, s65")
            a(f"s_mul_i32 s{s_a}, s{s_a}, 4")
            a(f"s_add_u32 s{s_a}, s{s_a}, 1000")
            a(f"{Lw}:")
            a("s_memrealtime s[98:99]")
            a("s_waitcnt lgkmcnt(0)")
            a(f"s_sub_u32 s{s_b}, s98, s{65+2*n}")
            a(f"s_cmp_lt_u32 s{s_b}, s{s_a}")
            a(f"s_cbranch_scc1 {Lw}")
        a(f"{Ls}:")

def make_srd(a, d, base, off, nbytes):
    if off is None:
        a(f"s_mov_b64 s[{d}:{d+1}], s[{base}:{base+1}]")
    else:
        a(f"s_add_u32 s{d}, s{base}, {off}")
        a(f"s_addc_u32 s{d+1}, s{base+1}, 0")
    a(f"s_mov_b32 s{d+2}, {nbytes}")
    a(f"s_mov_b32 s{d+3}, 0x00020000")

def img_pos(a, pos, row, c):
    a(f"v_mul_u32_u24 v{row}, 3277, v{pos}")
    a(f"v_lshrrev_b32 v{row}, 16, v{row}")
    a(f"v_mad_i32_i24 v{c}, v{row}, -16, v{pos}")
    a(f"v_mad_i32_i24 v{c}, v{row}, -4, v{c}")
    a(f"v_lshrrev_b32 v{T[5]}, 3, v{row}")
    a(f"v_mad_i32_i24 v{c}, v{T[5]}, -2, v{c}")
    a(f"v_add_u32 v{T[5]}, 20, v{c}")
    a(f"v_min_u32 v{c}, v{c}, v{T[5]}")

def grp_src(a, dst, row, c, ld_sreg):
    a(f"v_cmp_lt_u32 vcc, 9, v{c}")
    a(f"v_add_u32 v{T[5]}, 16, v{row}")
    a(f"v_subrev_u32 v{T[4]}, 10, v{c}")
    a(f"v_cndmask_b32 v{row}, v{row}, v{T[5]}, vcc")
    a(f"v_cndmask_b32 v{c}, v{c}, v{T[4]}, vcc")
    a(f"v_lshlrev_b32 v{c}, 4, v{c}")
    a(f"v_mad_u32_u24 v{dst}, v{row}, s{ld_sreg}, v{c}")

def tr_addrs(a, wa, perm, grp, colhalf_sreg, base):
    a(f"v_bfe_u32 v{T[0]}, v{lane}, 2, 2")
    a(f"v_lshrrev_b32 v{T[1]}, 4, v{lane}")
    a(f"v_and_b32 v{T[2]}, 1, v{T[1]}")
    a(f"v_lshl_add_u32 v{T[0]}, v{T[2] if grp else T[1]}, 3, v{T[0]}")
    a(f"v_mul_u32_u24 v{T[0]}, 320, v{T[0]}")
    if base: a(f"v_add_u32 v{T[0]}, {base}, v{T[0]}")
    a(f"v_lshlrev_b32 v{T[2]}, 5, v{T[2]}")
    if grp:
        a(f"v_lshrrev_b32 v{T[1]}, 1, v{T[1]}")
        a(f"v_mul_u32_u24 v{T[1]}, 160, v{T[1]}")
        a(f"v_add_u32 v{T[2]}, v{T[2]}, v{T[1]}")
    else:
        a(f"s_mul_i32 s{s_a}, s{colhalf_sreg}, 160")
        a(f"v_add_u32 v{T[2]}, s{s_a}, v{T[2]}")
    a(f"v_and_b32 v{T[1]}, 3, v{lane}")
    a(f"v_mad_u32_u24 v{T[2]}, v{T[1]}, {40 if perm else 8}, v{T[2]}")
    for j in range(5):
        a(f"v_add_u32 v{T[1]}, {8*j if perm else 32*j}, v{T[2]}")
        a(f"v_subrev_u32 v{T[3]}, 320, v{T[1]}")
        a(f"v_min_u32 v{T[1]}, v{T[1]}, v{T[3]}")
        a(f"v_add_u32 v{wa[j]}, v{T[1]}, v{T[0]}")

def x_addrs(a, xa, rowbase_sreg):
    a(f"v_and_b32 v{T[0]}, 15, v{lane}")
    a(f"v_lshrrev_b32 v{T[1]}, 1, v{T[0]}")
    a(f"v_lshrrev_b32 v{T[2]}, 4, v{lane}")
    a(f"v_xor_b32 v{T[1]}, v{T[1]}, v{T[2]}")
    a(f"v_lshl_add_u32 v{T[0]}, v{T[0]}, 7, s{rowbase_sreg}")
    a(f"v_lshl_add_u32 v{xa[0]}, v{T[1]}, 4, v{T[0]}")
    a(f"v_xor_b32 v{xa[1]}, 64, v{xa[0]}")

def poll(a, voff, soff, tmp):
    L = a.label("poll"); Ld = a.label("polld")
    a(f"s_mov_b32 s{s_c}, {SPIN}")
    a(f"{L}:")
    a(f"buffer_load_dword v{tmp}, v{voff}, {srd(SF)}, {soff} offen sc1")
    a("s_waitcnt vmcnt(0)")
    a(f"v_cmp_ne_u32 vcc, s{s_tag}, v{tmp}")
    a(f"s_cbranch_vccz {Ld}")
    a(f"s_sub_u32 s{s_c}, s{s_c}, 1")
    a(f"s_cbranch_scc1 {Ld}")
    a(f"s_sleep {G.sleep}")
    a(f"s_branch {L}")
    a(f"{Ld}:")

def flag_regs(a, val=None):
    a(f"v_lshlrev_b32 v{T[4]}, 2, v{lane}")
    a(f"v_mov_b32 v{T[5]}, s{s_tag if val is None else val}")
def flag_store(a, off_sreg, local=False):
    if local:
        a("s_mov_b64 exec, 1")
    else:
        a("s_mov_b32 exec_hi, 0")
    a(f"buffer_store_dword v{T[5]}, v{T[4]}, {srd(SF)}, s{off_sreg} offen {'' if local else 'sc1'}")
    a("s_mov_b64 exec, -1")

def small_gemm(a, BF, ACC, W, wa, gbase, pre, cur0=0, vmw=None, chain=0):
    n = len(gbase)
    cur = [cur0]
    def shift(g):
        out = []
        if not (cur[0] <= gbase[g] and gbase[g] + 1280 - cur[0] <= 65535):
            want = (gbase[g] // 57344) * 57344
            d = want - cur[0]
            out = [(f"v_add_u32 v{wa[j]}, {d}, v{wa[j]}" if d > 0 else f"v_subrev_u32 v{wa[j]}, {-d}, v{wa[j]}") for j in range(5)]
            cur[0] = want
        return out
    def rd(g, j, t): return f"ds_read_b64_tr_b16 {v(W[g&1]+4*j+2*t,2)}, v{wa[j]} offset:{gbase[g]-cur[0]+1280*t}"
    for x in shift(0): a(x)
    for j in range(5):
        a(rd(0, j, 0)); a(rd(0, j, 1))
    for g in range(n):
        last = g == n - 1
        if g % 2 == 0: pad_hop(a, chain)
        for x in pre.get(("h", g), []): a(x)
        if not last:
            for x in shift(g + 1): a(x)
        ex = list(pre.get(("x", g), []))
        for j in range(5):
            if j == 0: a(f"s_waitcnt {('vmcnt(%d) ' % vmw(g)) if vmw else ''}lgkmcnt(6)")
            if G.roll == 2 or last:
                if j == 2: a(f"s_waitcnt lgkmcnt({0 if last else 4})")
            else:
                if j == 2: a("s_waitcnt lgkmcnt(6)")
                if j == 4: a("s_waitcnt lgkmcnt(8)")
            for ii in range(2):
                d = v(ACC + 4 * (5 * ii + j), 4)
                a(f"v_mfma_f32_16x16x32_bf16 {d}, {v(W[g&1]+4*j,4)}, {v(BF+8*g+4*ii,4)}, {d if g else 0}")
                if not last: a(rd(g + 1, j, ii))
            if ex: a(ex.pop(0))
        for x in ex: a(x)

def gen(a):
    name = NAME + "_kernel"
    kernel_header(a, name)
    Lend = a.label("end"); Lcons = a.label("cons"); Lv = a.label("vtype"); Latt = a.label("att")
    a("s_cmp_ge_u32 s2, 256")
    a(f"s_cbranch_scc1 {Lend}")
    stamp(a, 0)
    a("s_load_dwordx16 s[16:31], s[0:1], 0")
    a("s_load_dwordx2 s[32:33], s[0:1], 64")
    a("s_mov_b64 exec, -1")
    a(f"v_lshrrev_b32 v1, 6, v0")
    a(f"v_and_b32 v{lane}, 63, v0")
    a(f"v_readfirstlane_b32 s{s_wave}, v1")
    a(f"s_and_b32 s{s_a}, s2, 7")
    a(f"s_lshr_b32 s{s_b}, s2, 3")
    a(f"s_lshr_b32 s{s_blk}, s{s_a}, 2")
    a(f"s_and_b32 s{s_a}, s{s_a}, 3")
    a(f"s_lshr_b32 s{s_c}, s{s_b}, 3")
    a(f"s_lshl2_add_u32 s{s_m}, s{s_a}, s{s_c}")
    a(f"s_and_b32 s{s_n}, s{s_b}, 7")
    if G.rot:
        if G.rot == 2:
            a(f"s_add_u32 s{s_k}, s{s_c}, s{s_n}")
            a(f"s_and_b32 s{s_k}, s{s_k}, 1")
            a(f"s_mul_i32 s{s_k}, s{s_k}, 5")
        elif G.rot == 5:
            a(f"s_mul_i32 s{s_k}, s{s_c}, 5")
            a(f"s_lshr_b32 s{s_k}, s{s_k}, 1")
            a(f"s_add_u32 s{s_k}, s{s_k}, s{s_a}")
            a(f"s_lshr_b32 s{s_a}, s{s_n}, 2")
            a(f"s_add_u32 s{s_k}, s{s_k}, s{s_a}")
            a(f"s_add_u32 s{s_k}, s{s_k}, s{s_n}")
        elif G.rot == 6:
            a(f"s_mul_i32 s{s_k}, s{s_c}, 5")
            a(f"s_lshr_b32 s{s_k}, s{s_k}, 1")
            a(f"s_lshr_b32 s{s_a}, s{s_n}, 2")
            a(f"s_add_u32 s{s_k}, s{s_k}, s{s_a}")
            a(f"s_add_u32 s{s_k}, s{s_k}, s{s_n}")
        elif G.rot == 4:
            a(f"s_add_u32 s{s_k}, s{s_c}, s{s_n}")
            a(f"s_and_b32 s{s_k}, s{s_k}, 3")
            a(f"s_mul_i32 s{s_k}, s{s_k}, 5")
            a(f"s_lshr_b32 s{s_k}, s{s_k}, 1")
        else:
            a(f"s_mul_i32 s{s_k}, s{s_c}, 3")
            a(f"s_add_u32 s{s_k}, s{s_k}, s{s_n}")
            a(f"s_add_u32 s{s_k}, s{s_k}, s{s_a}")
        a(f"s_cmp_ge_u32 s{s_k}, 10")
        a(f"s_cselect_b32 s{s_a}, 10, 0")
        a(f"s_sub_u32 s{s_k}, s{s_k}, s{s_a}")
    else:
        a(f"s_mov_b32 s{s_k}, 0")
    a(f"s_and_b32 s{s_g}, s{s_wave}, 3")
    a(f"s_lshr_b32 s{s_kh}, s{s_wave}, 2")
    a(f"s_cbranch_scc0 {Lcons}")

    def common_ptrs():
        a("s_waitcnt lgkmcnt(0)")
        a(f"s_cmp_eq_u32 s{s_blk}, 0")
        a("s_cselect_b64 s[16:17], s[16:17], s[22:23]")
        a("s_cselect_b64 s[18:19], s[18:19], s[24:25]")
        a("s_cselect_b64 s[20:21], s[20:21], s[26:27]")
    def epoch_load():
        a(f"s_lshl_b32 s{s_a}, s{s_blk}, 7")
        a(f"s_add_u32 s{s_a}, s{s_a}, {FBASE+EOFF}")
        a(f"s_load_dword s{s_tag}, s[32:33], s{s_a}")
        make_srd(a, SF, 32, FBASE, EOFF + 0x1000)
    def epoch_fin():
        a("s_waitcnt lgkmcnt(0)")
        a(f"s_mul_i32 s{s_tag}, s{s_tag}, 0x9E3779B1")
        a(f"s_add_u32 s{s_tag}, s{s_tag}, 0x7F4A7C15")

    O = [0, 16, 32, 48]; S = [64, 80]; P = [96, 104]
    K1 = [112, 116, 120, 124]; K3 = [128, 130]; V = [132, 140, 148, 156]
    Q1 = [164, 168, 172, 176]; Q3 = [[180, 182, 184, 186], [188, 190, 192, 194]]
    KVD = 80; sa = [163, 164, 165, 166, 167]
    ka, k3a, va, gwo, gfv, gfd = 240, 241, 242, 243, 244, 245

    def att_addrs():
        a(f"s_lshl3_add_u32 s{s_a}, s{s_blk}, s{s_n}")
        a(f"s_lshl2_add_u32 s{s_a}, s{s_a}, s{s_g}")
        a(f"s_mul_i32 s{s_a}, s{s_a}, {HS}")
        make_srd(a, SKV, 32, f"s{s_a}", HS)
        a(f"v_lshlrev_b32 v{ka}, 4, v{lane}")
        a(f"v_lshlrev_b32 v{k3a}, 3, v{lane}")
        a(f"v_and_b32 v{T[0]}, 31, v{lane}")
        a(f"v_lshrrev_b32 v{T[1]}, 1, v{T[0]}")
        a(f"v_xor_b32 v{T[1]}, v{T[1]}, v{T[0]}")
        a(f"v_and_b32 v{T[1]}, 4, v{T[1]}")
        a(f"v_mul_u32_u24 v{T[1]}, 3, v{T[1]}")
        a(f"v_xor_b32 v{T[1]}, v{T[1]}, v{T[0]}")
        a(f"s_and_b32 s{s_a}, s{s_g}, 1")
        a(f"s_lshl_b32 s{s_a}, s{s_a}, 2")
        a(f"v_add_u32 v{T[1]}, s{s_a}, v{T[1]}")
        a(f"v_subrev_u32 v{T[2]}, 20, v{T[1]}")
        a(f"v_min_u32 v{T[1]}, v{T[1]}, v{T[2]}")
        a(f"v_lshrrev_b32 v{T[2]}, 5, v{lane}")
        a(f"v_mul_u32_u24 v{T[3]}, 320, v{T[2]}")
        a(f"v_lshl_add_u32 v{va}, v{T[1]}, 4, v{T[3]}")
        a(f"v_add_u32 v{va}, 2560, v{va}")
        a(f"s_and_b32 s{s_ko}, s{s_m}, 12")
        a(f"s_lshl1_add_u32 s{s_ko}, s{s_ko}, s{s_kh}")
        a(f"s_mul_i32 s{s_ko}, s{s_ko}, {PS}")
        a(f"s_mov_b32 s{s_vm}, 0x000fffff")
        a(f"s_mov_b32 s{s_vm+1}, 0x000fffff")
        a(f"s_lshl_b32 s{s_fg}, s{s_blk}, 9")
        a(f"s_add_u32 s{s_fg}, s{s_fg}, {GFOFF}")
        a(f"v_and_b32 v{gfv}, 3, v{lane}")
        a(f"v_lshlrev_b32 v{gfv}, 7, v{gfv}")
        a(f"s_min_u32 s{s_a}, s{s_wave}, 4")
        a(f"s_lshl_b32 s{s_b}, s{s_a}, 6")
        a(f"v_add_u32 v{T[0]}, s{s_b}, v{lane}")
        img_pos(a, T[0], T[1], T[2])
        a(f"s_movk_i32 s{s_c}, 1280")
        grp_src(a, gwo, T[1], T[2], s_c)
    def wo_scalars():
        make_srd(a, SW, 20, None, 640 * 1280)
        a(f"s_cmp_gt_u32 s{s_wave}, 4")
        a(f"s_cselect_b32 s{s_c}, {24*5120}, 0")
        a(f"s_lshl_b32 s{s_m0w}, s{s_wave}, 10")
        if G.wod: a(f"s_sub_u32 s{s_m0w}, s{s_m0w}, {G.wod*5120}")
        a(f"s_add_u32 s{s_m0w}, s{s_m0w}, s{s_c}")
        a(f"s_mul_i32 s{s_wo}, s{s_n}, 160")
        a(f"s_lshl3_add_u32 s{s_wo}, s{s_c}, s{s_wo}")
        if G.wod: a(f"s_sub_u32 s{s_wo}, s{s_wo}, {G.wod*32*1280}")
    def ld_k1(b): return f"buffer_load_dwordx4 {v(K1[b],4)}, v{ka}, {srd(SKV)}, s{s_ko} offen offset:{1024*(b&1)} sc1"
    def ld_k3(p): return f"buffer_load_dwordx2 {v(K3[p],2)}, v{k3a}, {srd(SKV)}, s{s_ko} offen offset:2048 sc1"
    def ld_v(b, m=s_vm):
        return (f"s_mov_b64 exec, s[{m}:{m+1}]\n"
                f"buffer_load_dwordx4 {v(V[b],4)}, v{va}, {srd(SKV)}, s{s_ko} offen offset:{1280*(b&1)} sc1\n"
                f"buffer_load_dwordx4 {v(V[b]+4,4)}, v{va}, {srd(SKV)}, s{s_ko} offen offset:{1280*(b&1)+640} sc1\n"
                f"s_mov_b64 exec, -1")
    def adv_pair():
        return [f"s_add_u32 s{s_ko}, s{s_ko}, {2*PS}", f"s_cmp_ge_u32 s{s_ko}, {HS}",
                f"s_cselect_b32 s{s_c}, {HS}, 0", f"s_sub_u32 s{s_ko}, s{s_ko}, s{s_c}"]
    def pad_value():
        a(f"v_and_b32 v{S[0]}, 31, v{lane}")
        a(f"v_cmp_eq_u32 vcc, 20, v{S[0]}")
        a(f"v_mov_b32 v{S[0]+1}, 0x3f803f80")
        a(f"v_mov_b64 {v(P[1],2)}, 0")
        a(f"v_cndmask_b32 v{S[0]}, 0, v{S[0]+1}, vcc")
        a(f"v_mov_b32 v{S[0]+1}, v{S[0]}")
    def pad(b):
        for r in range(0, 8, 2): a(f"v_mov_b64 {v(V[b]+r,2)}, {v(S[0],2)}")
    def zero_acc():
        for q in range(4): a(f"v_mfma_f32_32x32x8_bf16 {v(O[q],16)}, {v(P[1],2)}, {v(P[1],2)}, 0")
        for r in range(2, 8, 2): a(f"v_mov_b64 {v(P[1]+r,2)}, 0")
    own, oth, oa1, oa2, pf, tw = 253, 254, 225, 226, 227, 231
    wa4 = [220, 221, 222, 223, 224]; oc = [232, 233, 234, 235, 236]; ob = [216, 217, 218, 219, 228]; rb = [229, 230, 237, 238, 239]
    qa1, qa3 = 247, 248
    def q_prep():
        a(f"s_mul_i32 s{s_b}, s{s_g}, 5120")
        a(f"s_add_u32 s{s_b}, s{s_b}, {QAREA}")
        a(f"v_add_u32 v{qa1}, s{s_b}, v{ka}")
        a(f"v_and_b32 v{qa3}, 31, v{lane}")
        a(f"v_lshl_add_u32 v{qa3}, v{qa3}, 3, s{s_b}")
        for q in range(4):
            a(f"v_mov_b64 {v(Q3[0][q],2)}, 0")
            a(f"v_mov_b64 {v(Q3[1][q],2)}, 0")
    def q_reads(kh):
        qt = [r if kh else r ^ 2 for r in range(4)]
        a(f"ds_read_b128 {v(Q1[0],4)}, v{qa1} offset:{1280*qt[0]}")
        for h in range(2):
            a(f"s_mov_b32 exec_lo, {-1 if h == 0 else 0}")
            a(f"s_mov_b32 exec_hi, {0 if h == 0 else -1}")
            for q in range(4):
                a(f"ds_read_b64 {v(Q3[h][q],2)}, v{qa3} offset:{1280*qt[q]+1024}")
        a("s_mov_b64 exec, -1")
        for q in range(1, 4):
            a(f"ds_read_b128 {v(Q1[q],4)}, v{qa1} offset:{1280*qt[q]}")
    def o_base(dst, rows_sreg, nbytes):
        a(f"s_add_u32 s{dst}, s32, {OBASE}")
        a(f"s_addc_u32 s{dst+1}, s33, 0")
        if G.oin:
            a(f"s_cmp_eq_u32 s{s_loc}, 0")
            a(f"s_cselect_b64 s[{dst}:{dst+1}], s[{dst}:{dst+1}], s[28:29]")
        a(f"s_mul_i32 s{s_a}, s{rows_sreg}, 2560")
        a(f"s_mul_i32 s{s_b}, s{s_blk}, 1280")
        a(f"s_add_u32 s{s_a}, s{s_a}, s{s_b}")
        make_srd(a, dst, dst, f"s{s_a}", nbytes)
    first = [("K1", 0), ("K3", 0), ("V", 0), ("V", 0), ("K1", 1), ("V", 1), ("V", 1), ("K1", 2), ("V", 2), ("V", 2), ("K1", 3), ("K3", 1)]
    if G.v3: first += [("V", 3)] * 2
    def kv_first(with_pad):
        a(ld_k1(0)); a(ld_k3(0))
        if with_pad: pad_value(); pad(0)
        a(ld_v(0)); a(ld_k1(1))
        if with_pad: pad(1)
        a(ld_v(1))
        for x in adv_pair(): a(x)
        a(ld_k1(2))
        if with_pad: pad(2)
        a(ld_v(2)); a(ld_k1(3)); a(ld_k3(1))
        if with_pad: pad(3)
        if G.v3:
            a(ld_v(3))
            a("s_mov_b64 s[22:23], 0")

    XF = 0; ACC2 = 160; W2 = [200, 220]
    gx = [160, 161, 162, 163]; gw = [164, 165, 166, 167, 168]; gq = [251, 252, 253, 254, 245]
    wa2 = [246, 247, 248, 249, 250]; xa2 = [210, 211]
    setT(200)
    a(f"v_lshrrev_b32 v{T[0]}, 4, v{lane}")
    a(f"v_xor_b32 v{T[0]}, v{T[0]}, v{lane}")
    a(f"v_and_b32 v{T[0]}, 7, v{T[0]}")
    a(f"v_lshrrev_b32 v{T[1]}, 3, v{lane}")
    a(f"v_mul_u32_u24 v{T[1]}, 1280, v{T[1]}")
    a(f"v_lshl_add_u32 v{gx[0]}, v{T[0]}, 4, v{T[1]}")
    a(f"v_xor_b32 v{gx[1]}, 64, v{gx[0]}")
    a(f"v_add_u32 v{gx[1]}, 9216, v{gx[1]}")
    a(f"v_add_u32 v{gx[2]}, 18432, v{gx[0]}")
    a(f"v_add_u32 v{gx[3]}, 18432, v{gx[1]}")
    a(f"s_movk_i32 s{s_c}, 3840")
    rows = [212 + 2 * i for i in range(5)]
    for i in range(5):
        if i: a(f"v_add_u32 v{T[0]}, {64*i}, v{lane}")
        img_pos(a, T[0] if i else lane, rows[i], rows[i] + 1)
        a(f"v_lshlrev_b32 v{T[3]}, 4, v{rows[i]+1}")
        a(f"v_mad_u32_u24 v{gw[i]}, v{rows[i]}, s{s_c}, v{T[3]}")
        if i & 3: a(f"v_subrev_u32 v{gw[i]}, {1024*i}, v{gw[i]}")
    a(f"s_lshl_b32 s{s_m0x}, s{s_g}, 12")
    a(f"s_mul_i32 s{s_m0w}, s{s_g}, 5120")
    a(f"s_add_u32 s{s_m0w}, s{s_m0w}, 16384")
    a(f"s_lshl2_add_u32 s{s_a}, s{s_m}, s{s_g}")
    a(f"s_mul_i32 s{s_a}, s{s_a}, {32*1280}")
    a(f"s_mul_i32 s{s_fg}, s{s_n}, 320")
    a(f"s_mul_i32 s{s_b}, s{s_g}, {16*3840}")
    a(f"s_add_u32 s{s_fg}, s{s_fg}, s{s_b}")
    a(f"s_add_u32 s{s_loc}, s{s_fg}, 1280")
    a(f"s_mov_b32 s{s_vo}, s{s_k}")
    common_ptrs()
    make_srd(a, SX, 16, f"s{s_a}", 32 * 1280)
    make_srd(a, SW, 18, None, 640 * 3840)
    lseq = []
    def issue_stage(i):
        sl = (i & 3) * SLOT
        a(f"s_add_u32 m0, s{s_m0x}, {sl}")
        a(f"s_lshl_b32 s{s_xo}, s{s_k}, 7")
        for ii in range(4):
            a(f"buffer_load_dwordx4 v{gx[ii]}, {srd(SX)}, s{s_xo} offen offset:{1024*ii} lds")
        a(f"s_mul_i32 s{s_wo}, s{s_k}, {64*3840}")
        a(f"s_add_u32 m0, s{s_m0w}, {sl}")
        a(f"s_add_u32 s{s_wo}, s{s_wo}, s{s_loc}")
        for ii in range(4):
            a(f"buffer_load_dwordx4 v{gw[ii]}, {srd(SW)}, s{s_wo} offen offset:{1024*ii} lds")
        a(f"s_add_u32 m0, s{s_m0w}, {sl+4096}")
        a(f"s_add_u32 s{s_k}, s{s_k}, 1")
        a(f"buffer_load_dwordx4 v{gw[4]}, {srd(SW)}, s{s_wo} offen lds")
        if G.rot:
            a(f"s_cmp_eq_u32 s{s_k}, 10")
            a(f"s_cselect_b32 s{s_k}, 0, s{s_k}")
        lseq.extend([("st", i)] * 9)
    gbase = [2 * SLOT + g * 5120 for g in range(7)] + [SPARE] + [3 * SLOT + g * 5120 for g in range(7)] + [SPARE + 5120] + [g * 5120 for g in range(4)]
    def round_ins(R):
        o = []
        x = f"s_add_u32 s{s_wo}, s{s_st}, {R*4*32*3840}"
        if G.rot:
            x += f"\ns_cmp_ge_u32 s{s_wo}, {640*3840}\ns_cselect_b32 s{s_b}, {640*3840}, 0\ns_sub_u32 s{s_wo}, s{s_wo}, s{s_b}"
        gb = gbase[4 * R:4 * R + 4]
        assert gb[1] == gb[0] + 5120 and gb[2] == gb[0] + 10240
        x += f"\ns_add_u32 s{s_a}, s{s_m0w}, {(gb[0]-16384) & 0xffffffff}"
        if gb[3] != gb[0] + 15360:
            x += f"\ns_cmp_eq_u32 s{s_g}, 3\ns_cselect_b32 s{s_a}, {gb[3]}, s{s_a}"
        x += f"\ns_mov_b32 m0, s{s_a}\ns_add_u32 s{s_a}, s{s_a}, 4096"
        o.append(x)
        for ii in range(4):
            o.append(f"buffer_load_dwordx4 v{gq[ii]}, {srd(SW)}, s{s_wo} offen offset:{1024*ii} lds")
        o.append(f"s_mov_b32 m0, s{s_a}\ns_nop 0\nbuffer_load_dwordx4 v{gq[4]}, {srd(SW)}, s{s_wo} offen lds")
        lseq.extend([("R", R)] * 5)
        return o
    def issue_item(i):
        if i < 10: issue_stage(i)
        elif i < 15:
            for x in round_ins(i - 10): a(x)
    def lwait(key):
        return len(lseq) - 1 - max(i for i, x in enumerate(lseq) if x == key)
    stamp(a, 11)
    issue_stage(0)
    stamp(a, 12)
    epoch_load()
    a(f"s_lshl_b32 s{s_b}, s{s_g}, 12")
    x_addrs(a, xa2, s_b)
    a(f"v_and_b32 v{T[0]}, 15, v{lane}")
    a(f"v_lshlrev_b32 v{T[0]}, 2, v{T[0]}")
    a(f"v_add_u32 v{T[0]}, {RFLAG}, v{T[0]}")
    a(f"v_mov_b32 v{T[1]}, 0")
    a(f"ds_write_b32 v{T[0]}, v{T[1]}")
    for i in range(1, G.pro): issue_stage(i)
    stamp(a, 13)
    epoch_fin()
    a(f"s_waitcnt vmcnt({lwait(('st',0))})")
    a("s_barrier")
    stamp(a, 1)
    for i in range(G.pro, G.la): issue_stage(i)
    xoff = 0
    for st in range(10):
        sl = (st & 3) * SLOT
        want = 0 if sl < 2 * SLOT else 2 * SLOT
        if want != xoff:
            for r in xa2:
                a(f"v_add_u32 v{r}, {want-xoff}, v{r}" if want > xoff else f"v_subrev_u32 v{r}, {xoff-want}, v{r}")
            xoff = want
        for ks in range(2):
            for ii in range(2):
                a(f"ds_read_b128 {v(XF+16*st+8*ks+4*ii,4)}, v{xa2[ks]} offset:{sl-xoff+2048*ii}")
        if st == 0:
            a(f"s_movk_i32 s{s_c}, 3840")
            for i in range(5):
                grp_src(a, gq[i], rows[i], rows[i] + 1, s_c)
                if i & 3: a(f"v_subrev_u32 v{gq[i]}, {1024*i}, v{gq[i]}")
            a(f"s_lshl1_add_u32 s{s_st}, s{s_vo}, s{s_g}")
            a(f"s_mul_i32 s{s_st}, s{s_st}, {32*3840}")
            a(f"s_mul_i32 s{s_a}, s{s_n}, 160")
            a(f"s_add_u32 s{s_st}, s{s_st}, s{s_a}")
        if st == 1: tr_addrs(a, wa2, True, True, None, 0)
        if st == 2:
            att_addrs()
        if st == 4 and G.warm:
            a("s_mov_b64 exec, 0")
            for c in range(3):
                a(f"s_cmp_eq_u32 s{s_g}, {c}")
                a(f"s_cbranch_scc1 Lpad_{c}_0")
            a("s_branch Lpad_3_0")
            a(".PADRET")
            a("s_mov_b64 exec, -1")
        key = ("st", st + 1) if st < 9 else ("R", 0)
        a(f"s_waitcnt vmcnt({lwait(key)}) lgkmcnt(0)")
        a("s_barrier")
        if st < 9: issue_item(st + G.la)
    stamp(a, 2)
    pre = {}
    nxt = G.la - 1
    if G.p2prio: a(f"s_setprio {G.p2prio}")
    ins_at = {}
    for R in range(nxt, 5):
        g0 = G.dst * (R - nxt) + G.dsh
        if G.dst >= 3:
            ins_at[g0] = (R, 0, 3); ins_at[g0 + 1] = (R, 3, 5); ins_at[g0 + 2] = (R, 5, 6)
        else:
            ins_at[g0] = (R, 0, 4); ins_at[g0 + 1] = (R, 4, 6)
    cache = {}
    fw, fr, fo, fd = 4, 5, 6, 7
    spins = []
    for g in range(20):
        pre[("x", g)] = []
        R1 = g // 4 + 1
        if g == 1:
            pre[("h", g)] = [f"s_lshl2_add_u32 s{s_c}, s{s_g}, {RFLAG}", f"v_mov_b32 v{fw}, s{s_c}", f"v_and_b32 v{fr}, 3, v{lane}",
                             f"v_lshlrev_b32 v{fr}, 2, v{fr}", f"v_add_u32 v{fr}, {RFLAG}, v{fr}", f"v_mov_b32 v{fo}, 1"]
        if g % 4 == 1 and g < 16:
            assert lseq.count(("R", R1)) == 5
            pre[("x", g)] += [f"s_waitcnt vmcnt({lwait(('R', R1))})\nds_write_b32 v{fw}, v{fo} offset:{16*(R1-1)}"]
        if g % 4 == 2 and g < 16:
            pre[("x", g)] += [f"ds_read_b32 v{fd}, v{fr} offset:{16*(R1-1)}"]
        if g % 4 == 3 and g < 16:
            Ls, Lb = a.label("rs"), a.label("rb")
            spins.append((Ls, Lb, R1))
            pre[("h", g)] = ["s_waitcnt lgkmcnt(8)", f"v_cmp_ne_u32 vcc, 1, v{fd}", f"s_cbranch_vccnz {Ls}", f"{Lb}:"]
        if g in ins_at:
            R, lo, hi = ins_at[g]
            if R not in cache:
                cache[R] = round_ins(R)
                del lseq[-5:]
            pre[("x", g)] += cache[R][lo:hi]
            lseq.extend([("R", R)] * sum(x.count("buffer_load") for x in cache[R][lo:hi]))
    qa, qb, md = 0, 1, 2
    half = [f"v_lshrrev_b32 v{qa}, 4, v{lane}", f"v_mul_u32_u24 v{qa}, 5120, v{qa}", f"s_mul_i32 s{s_b}, s{s_g}, 1280",
            f"s_add_u32 s{s_b}, s{s_b}, {QAREA}", f"v_add_u32 v{qa}, s{s_b}, v{qa}"]
    pre[("x", 16)] = half
    pre[("x", 17)] = [f"v_and_b32 v{md}, 15, v{lane}", f"v_lshl_add_u32 v{qb}, v{md}, 3, v{qa}", f"v_lshl_add_u32 v{qa}, v{md}, 4, v{qa}",
                      f"s_mov_b32 s{s_a}, {QSCALE:#x}\ns_mov_b32 s{s_b}, {QSCALE:#x}"]
    small_gemm(a, XF, ACC2, W2, wa2, gbase, pre)
    stamp(a, 3)
    a("s_nop 4")
    assert s_a % 2 == 0 and s_b == s_a + 1
    for ii in range(2):
        r = ACC2 + 20 * ii
        pad_hop(a, 0)
        for e in range(10):
            a(f"v_pk_mul_f32 {v(r+2*e,2)}, {v(r+2*e,2)}, s[{s_a}:{s_b}]")
        for e in range(10):
            a(f"v_cvt_pk_bf16_f32 v{r+e}, v{r+2*e}, v{r+2*e+1}")
        a(f"ds_write_b128 v{qa}, {v(r,4)} offset:{256*ii}")
        a(f"ds_write_b128 v{qa}, {v(r+4,4)} offset:{256*ii+512}")
        a(f"ds_write_b64 v{qb}, {v(r+8,2)} offset:{128*ii+1024}")
    a("s_waitcnt lgkmcnt(0)")
    a(f"v_mov_b32 v{gfd}, {MODE_LDS}")
    a("s_barrier")
    a(f"ds_read_b32 v{gfd}, v{gfd}")
    a("s_setprio 0")
    stamp(a, 4)
    pad_hop(a, 1)
    kv_first(True)
    pad_hop(a, 1)
    q_prep()
    q_reads(1)
    zero_acc()
    wo_scalars()
    make_srd(a, SO, 32, None, 0)
    a("s_waitcnt lgkmcnt(12)")
    a(f"v_readfirstlane_b32 s{s_loc}, v{gfd}")
    a("s_nop 1")
    a(f"s_and_b32 s{s_loc}, s{s_loc}, 1")
    a(f"s_lshl_b32 s{s_st}, s{s_loc}, 2")

    a(f"{Latt}:")
    setT(247)
    a(f"s_mov_b32 s{s_it}, 0")

    def qk1(sb, q, t): return f"v_mfma_f32_32x32x16_bf16 {v(S[sb],16)}, {v(K1[t],4)}, {v(Q1[q],4)}, 0"
    def qk2(sb, q, t): return f"v_mfma_f32_32x32x8_bf16 {v(S[sb],16)}, {v(K3[t>>1],2)}, {v(Q3[t&1][q],2)}, {v(S[sb],16)}"
    def pv(pb, q, t, h): return f"v_mfma_f32_32x32x16_bf16 {v(O[q],16)}, {v(V[t]+4*h,4)}, {v(P[pb]+4*h,4)}, {v(O[q],16)}"
    def ex(q, r): return f"v_exp_f32 v{S[q]+r}, v{S[q]+r}"
    def cv(q, r): return f"v_cvt_pk_bf16_f32 v{P[q]+r//2}, v{S[q]+r}, v{S[q]+r+1}"
    wo_dma = [f"s_min_u32 s{s_c}, s{s_m0w}, 0x20000", f"s_add_u32 m0, s{s_c}, {WOBASE}", f"s_add_u32 s{s_m0w}, s{s_m0w}, 5120",
              f"buffer_load_dwordx4 v{gwo}, {srd(SW)}, s{s_wo} offen lds", f"s_add_u32 s{s_wo}, s{s_wo}, {32*1280}"]
    plan = {}
    for tt in range(4):
        pb = (tt - 1) % 4
        plan[(tt, 1)] = ([ld_v(pb)], [("V", pb)] * 2)
        if G.v3 and pb == 3: plan[(tt, 1)] = ([ld_v(pb, 22), f"s_mov_b64 s[22:23], s[{s_vm}:{s_vm+1}]"], [("V", pb)] * 2)
        if tt & 1:
            plan[(tt, 3)] = ([ld_k1(tt), ld_k3(tt >> 1)], [("K1", tt), ("K3", tt >> 1)])
        else:
            plan[(tt, 3)] = ([ld_k1(tt)], [("K1", tt)])
            plan[(tt, 2)] = (adv_pair(), [])
        if tt > 0:
            plan[(tt, 0)] = (wo_dma, [("WO",)])
    order = [(tt, q) for tt in range(4) for q in range(4)]
    names = []; pos = {}
    for rep in range(2):
        for key in order:
            if rep == 1: pos[key] = len(names)
            names += plan.get(key, ([], []))[1]
    def need(tt):
        nt = (tt + 1) % 4
        return [("K1", nt), ("V", nt), ("K3", nt >> 1)]
    n0 = list(first); waits = {}
    for key in order:
        if key[1] == 3:
            p = pos[key]
            w1 = p - 1 - max(max(i for i in range(p) if names[i] == k) for k in need(key[0]))
            w2 = len(n0) - 1 - max(max(i for i in range(len(n0)) if n0[i] == k) for k in need(key[0]))
            waits[key[0]] = min(w1, w2)
        n0 += plan.get(key, ([], []))[1]
    a(f"s_waitcnt vmcnt({len(first)-4}) lgkmcnt(0)")
    stamp(a, 5)
    a(qk1(0, 0, 0)); a(qk2(0, 0, 0))
    a("s_setprio 3")
    a("s_nop 7")
    a("s_nop 3")
    L = a.label("al")
    a(".p2align 6")
    a(f"{L}:")
    hooks = {G.hst: (0, a.label("hA"), a.label("hAb")), G.hchk: (0, a.label("hK"), a.label("hKb")), G.hpub: (0, a.label("hP"), a.label("hPb")),
             G.hsam: (3, a.label("hB"), a.label("hBb")), (0, 2): (4, a.label("hC"), a.label("hCb")),
             (1, 1): (None, a.label("hL"), a.label("hLb"))}
    LhW, LhWb = a.label("hW"), a.label("hWb")
    F = [O[2], O[3]]; Rv = [O[0], O[1]]
    cum = [sum(G.lens[:i]) for i in range(4)]
    step = 0
    for tt in range(4):
        for q in range(4):
            c = q & 1; o = 1 - c
            nq, nt = (q + 1, tt) if q < 3 else (0, (tt + 1) % 4)
            pq, pt = (q - 1, tt) if q > 0 else (3, (tt - 1) % 4)
            extra = list(plan.get((tt, q), ([], []))[0])
            if q & 1: pad_hop(a, 1)
            if (tt, q) in hooks:
                bit, lo, lb = hooks[(tt, q)]
                a(f"s_bitcmp1_b32 s{s_st}, {bit}" if bit is not None else f"s_cmp_eq_u32 s{s_it}, {G.iters-1}")
                a(f"s_cbranch_scc1 {lo}")
                a(f"{lb}:")
            if (tt, q) == (3, 3) and G.early:
                a(f"s_cbranch_scc0 {LhW}")
                a(f"{LhWb}:")
            if q == 3: a(f"s_waitcnt vmcnt({waits[tt]})")
            if (tt, q) == (2, 1): extra += [f"s_lshl_b32 s{s_st}, s{s_st}, 1"]
            if (tt, q) == (3, 2): extra += [f"s_add_u32 s{s_it}, s{s_it}, 1", f"s_cmp_lt_u32 s{s_it}, {G.iters}"]
            ms = [qk1(o, nq, nt), qk2(o, nq, nt), pv(o, pq, pt, 0), pv(o, pq, pt, 1)]
            for j in range(4):
                a(ms[j])
                if j: a(cv(c, 4 * j - 2))
                for e in range(3):
                    a(ex(c, 4 * j + e))
                    if extra: a(extra.pop(0))
                if j < 3:
                    a(cv(c, 4 * j)); a(ex(c, 4 * j + 3))
                else:
                    a(ex(c, 15)); a(cv(c, 12))
            n = (step + 1) % sum(G.lens)
            if n in cum: a(f"s_setprio {3 - cum.index(n)}")
            a(cv(c, 14))
            step += 1
    if G.itst:
        a("s_memtime s[96:97]")
        for r in range(86, 95): a(f"s_mov_b32 s{r}, s{r+1}")
        a("s_waitcnt lgkmcnt(0)")
        a("s_mov_b32 s95, s96")
    a(f"s_cbranch_scc1 {L}")
    a("s_nop 0")
    a(pv(1, 3, 3, 0)); a(pv(1, 3, 3, 1))
    a("s_setprio 0")
    Lslow = a.label("slow"); Lst = a.label("store")
    def send():
        for i in range(2):
            for gq_ in range(3):
                a(f"ds_write_b128 v{own}, {v(O[i]+4*gq_,4)} offset:{(i*3+gq_)*1024}")
    stamp(a, 6)
    if not G.early: send()
    a("s_waitcnt vmcnt(0) lgkmcnt(0)")
    a("s_barrier")
    for i in range(2):
        for gq_ in (2, 0, 1):
            a(f"ds_read_b128 {v(Rv[i]+4*gq_,4)}, v{oth} offset:{(i*3+gq_)*1024}")
    for i in range(2):
        a(f"s_waitcnt lgkmcnt({3-3*i})")
        for r in (8, 10, 0, 2, 4, 6):
            a(f"v_pk_add_f32 {v(F[i]+r,2)}, {v(F[i]+r,2)}, {v(Rv[i]+r,2)}")
    a(f"s_mov_b32 s{s_c}, 0")
    a(f"{Lst}:")
    for i in range(2):
        a(f"v_mov_b32 v{F[i]+12}, v{F[i]+8}")
        a(f"v_mov_b32 v{F[i]+13}, v{F[i]+8}")
    a(f"s_mov_b32 s{s_b}, {32*2560}")
    a(f"s_cmp_eq_u32 s{s_loc}, 0")
    for i in range(2):
        a(f"v_permlane32_swap_b32 v{F[i]+13}, v{F[i]+12}")
    a("s_nop 0")
    a(f"v_rcp_f32 v{F[0]+14}, v{F[0]+12}")
    a(f"v_rcp_f32 v{F[1]+14}, v{F[1]+12}")
    Log = a.label("og"); Loj = a.label("oj"); Lo2 = a.label("o2"); Lo3 = a.label("o3"); Lok = a.label("ok")
    a(f"s_cbranch_scc1 {Log}")
    for fl in (G.olst, "sc1"):
        for q in range(2):
            for r in range(0, 12, 2):
                a(f"v_pk_mul_f32 {v(F[q]+r,2)}, {v(F[q]+r,2)}, {v(F[q]+14,2)} op_sel_hi:[1,0]")
            for e in range(6):
                a(f"v_cvt_pk_bf16_f32 v{Rv[q]+e}, v{F[q]+2*e}, v{F[q]+2*e+1}")
            so = "0" if q == 0 else f"s{s_b}"
            a(f"buffer_store_dwordx4 {v(Rv[q],4)}, v{oa1}, {srd(SO)}, {so} offen {fl}")
            a(f"buffer_store_dwordx2 {v(Rv[q]+4,2)}, v{oa2}, {srd(SO)}, {so} offen {fl}")
        if fl != "sc1":
            a(f"s_branch {Loj}")
            a(f"{Log}:")
    a(f"{Loj}:")
    a(f"s_cmp_lg_u32 s{s_c}, 0")
    a(f"s_cbranch_scc1 {Lok}")
    a(f"s_mov_b32 s{s_a}, 0x2b800000")
    a(f"s_mov_b32 s{s_b}, 0x5d800000")
    for r in range(0, 12, 2):
        for q in range(2):
            if r == 0: a(f"v_pk_mul_f32 {v(F[q]+14,2)}, {v(F[q],2)}, 0 op_sel_hi:[1,0]")
            else: a(f"v_pk_fma_f32 {v(F[q]+14,2)}, {v(F[q]+r,2)}, 0, {v(F[q]+14,2)} op_sel_hi:[1,0,1]")
    a(f"v_min_f32 v{T[0]}, v{F[0]+12}, v{F[1]+12}")
    a(f"v_max_f32 v{T[1]}, v{F[0]+12}, v{F[1]+12}")
    a(f"v_cmp_o_f32 vcc, v{F[0]+14}, v{F[0]+15}")
    a(f"v_cmp_o_f32 s[16:17], v{F[1]+14}, v{F[1]+15}")
    a(f"v_cmp_le_f32 s[18:19], s{s_a}, v{T[0]}")
    a(f"v_cmp_ge_f32 s[22:23], s{s_b}, v{T[1]}")
    a(f"s_and_b64 vcc, vcc, s[16:17]")
    a(f"s_and_b64 s[18:19], s[18:19], s[22:23]")
    a(f"s_and_b64 vcc, vcc, s[18:19]")
    a("s_cmp_eq_u64 vcc, -1")
    a(f"s_cbranch_scc0 {Lslow}")
    a(f"{Lok}:")
    NW4 = 6; NX = 7
    W4 = [56 + 20 * i for i in range(NW4)]; A4 = 176
    Lfin = a.label("fin"); Lsk = a.label("sk")
    cur = [0]
    def rd4(h, j, t):
        o = ""
        if h == 12 and j == 0 and t == 0:
            o = "".join(f"v_add_u32 v{wa4[k]}, {12*5120}, v{wa4[k]}\n" for k in range(5)); cur[0] = 12 * 5120
        return o + f"ds_read_b64_tr_b16 {v(W4[h%NW4]+4*j+2*t,2)}, v{wa4[j]} offset:{5120*h-cur[0]+1280*t}"
    a(f"s_cmp_lg_u32 s{s_kh}, 0")
    a(f"s_cbranch_scc1 {Lsk}")
    for h in range(1, 4):
        for j in range(5):
            a(rd4(h, j, 0)); a(rd4(h, j, 1))
    a(f"{Lsk}:")
    a(f"s_cmp_eq_u32 s{s_loc}, 0")
    a("s_waitcnt vmcnt(0)")
    a(f"s_cbranch_scc1 {Lo2}")
    flag_store(a, s_vo, True)
    a(f"s_branch {Lo3}")
    a(f"{Lo2}:")
    flag_store(a, s_vo, False)
    a(f"{Lo3}:")
    stamp(a, 7); stamp(a, 8); stamp(a, 9)
    a(f"s_cmp_lg_u32 s{s_kh}, 0")
    a(f"s_cbranch_scc1 {Lfin}")
    for h in (0, 4, 5):
        for j in range(5):
            a(rd4(h, j, 0)); a(rd4(h, j, 1))
    a(f"s_lshl2_add_u32 s{s_a}, s{s_m}, s{s_g}")
    a(f"s_mul_i32 s{s_a}, s{s_a}, {32*2560}")
    a(f"s_mul_i32 s{s_b}, s{s_blk}, 1280")
    a(f"s_add_u32 s{s_a}, s{s_a}, s{s_b}")
    a(f"s_mul_i32 s{s_b}, s{s_n}, 160")
    a(f"s_add_u32 s{s_a}, s{s_a}, s{s_b}")
    make_srd(a, SKV, 28, f"s{s_a}", 31 * 2560 + 160)
    poll(a, pf, f"s{s_xo}", T[0])
    stamp(a, 8)
    assert G.oa < NX
    def xf(g, ii): return 8 * (g % NX) + 4 * ii
    def ld_o(g, ii):
        o = f"s_mov_b32 s{s_a}, {10240*(g//5)}\ns_mov_b32 s{s_b}, {10240*(g//5)+16*2560}\n" if (g % 5 == 0 and ii == 0) else ""
        return o + f"buffer_load_dwordx4 {v(xf(g,ii),4)}, v{ob[g%5]}, {srd(SX)}, s{[s_a, s_b][ii]} offen sc1"
    for g in range(G.oa):
        a(ld_o(g, 0)); a(ld_o(g, 1))
    allr = [(h, j, t) for h in range(NW4, 20) for j in range(5) for t in range(2)]
    issued = 0
    for g in range(20):
        lg = 0 if g == 0 else (14 if g < NW4 else issued - 10 * (g - NW4 + 1))
        assert lg >= 0
        vm = 2 * (min(20, g + G.oa) - g - 1)
        if G.oin and g == 18: vm = 0
        if G.oin and g == 19: vm = 63
        a(f"s_waitcnt vmcnt({vm}) lgkmcnt({min(lg, 14)})")
        if G.oin and g == 18:
            a(f"s_lshl2_add_u32 s{s_a}, s{s_n}, s{s_m0x}")
            flag_store(a, s_a, True)
        todo = allr[issued:issued + G.rpg] if g >= 1 else []
        todo = [x for x in todo if x[0] - NW4 < g]
        issued += len(todo)
        ex_ = [rd4(*x) for x in todo]
        if g + G.oa < 20:
            ex_.insert(0, ld_o(g + G.oa, 0)); ex_.insert(min(5, len(ex_)), ld_o(g + G.oa, 1))
        for j in range(5):
            for ii in range(2):
                d = v(A4 + 4 * (5 * ii + j), 4)
                a(f"v_mfma_f32_16x16x32_bf16 {d}, {v(W4[g%NW4]+4*j,4)}, {v(xf(g,ii),4)}, {d if g else 0}")
                if ex_: a(ex_.pop(0))
        for x in ex_: a(x)
    stamp(a, 9)
    if G.oin:
        a(f"v_and_b32 v{pf}, 28, v{T[4]}")
        a(f"buffer_load_dword v{T[0]}, v{pf}, {srd(SF)}, s{s_m0x} offen sc1")
    for j in range(5):
        if j == 4: a("s_nop 1")
        for ii in range(2):
            r = A4 + 4 * (5 * ii + j)
            a(f"v_cvt_pk_bf16_f32 v{r}, v{r}, v{r+1}")
            a(f"v_cvt_pk_bf16_f32 v{r+1}, v{r+2}, v{r+3}")
            a(f"ds_write_b64 v{tw}, {v(r,2)} offset:{8*j+16*176*ii}")
    a("s_waitcnt lgkmcnt(0)")
    for i in range(5): a(f"ds_read_b128 {v(4*i,4)}, v{rb[i]}")
    if G.oin:
        Lgo = a.label("go")
        a(f"s_cmp_eq_u32 s{s_loc}, 0")
        a(f"s_cbranch_scc1 {Lgo}")
        a("s_waitcnt vmcnt(0)")
        a(f"v_cmp_ne_u32 vcc, s{s_tag}, v{T[0]}")
        a(f"s_cbranch_vccz {Lgo}")
        poll(a, pf, f"s{s_m0x}", T[0])
        a(f"{Lgo}:")
    for i in range(5):
        a(f"s_waitcnt lgkmcnt({4-i})")
        a(f"buffer_store_dwordx4 {v(4*i,4)}, v{oc[i]}, {srd(SKV)}, 0 offen {G.ost}")
    a(f"s_or_b32 s{s_a}, s{s_m}, s{s_n}")
    a(f"s_or_b32 s{s_a}, s{s_a}, s{s_wave}")
    a(f"s_cbranch_scc1 {Lfin}")
    a(f"s_lshl_b32 s{s_b}, s{s_blk}, 7")
    a(f"s_add_u32 s{s_b}, s{s_b}, {EOFF}")
    flag_store(a, s_b, False)
    a(f"{Lfin}:")
    dump_stamps(a, 10)
    a(f"{Lend}:")
    a("s_endpgm")

    a(f"{Lcons}:")
    setT(247)
    ACC = 0
    X = [[80 + 16 * b + 4 * i for i in range(4)] for b in range(2)]
    W = [[112 + 20 * b + 4 * j for j in range(5)] for b in range(2)]
    xa = [152, 153]; wa = [154, 155, 156, 157, 158]; xt, xv = 159, 160
    s_wm, s_wn = s_xo, s_wo
    a("s_getpc_b64 s[4:5]")
    a(f"Lpc_{name}:")
    a(f"s_sub_u32 s4, s4, Lpc_{name}-{name}")
    a("s_subb_u32 s5, s5, 0")
    a(f"s_mov_b32 s6, Lcode_end-{name}")
    a("s_mov_b32 s7, 0x00020000")
    a("v_lshlrev_b32 v1, 7, v0")
    a(f"buffer_load_dword v{xt}, v1, s[4:7], 0 offen")
    a(f"s_and_b32 s{s_wm}, s{s_wave}, 1")
    a(f"s_lshr_b32 s{s_wn}, s{s_wave}, 1")
    a(f"s_lshl_b32 s{s_b}, s{s_wm}, 13")
    x_addrs(a, xa, s_b)
    for r in range(0, 80, 2): a(f"v_mov_b64 {v(ACC+r,2)}, 0")
    common_ptrs()
    epoch_load()
    att_addrs()
    a(f"s_and_b32 s{s_a}, s{s_n}, 3")
    a(f"s_lshl2_add_u32 s{s_a}, s{s_blk}, s{s_a}")
    a(f"s_lshl1_add_u32 s{s_a}, s{s_a}, s{s_wn}")
    a(f"s_mul_i32 s{s_a}, s{s_a}, {4*HS}")
    a(f"s_lshl1_add_u32 s{s_b}, s{s_m}, s{s_wm}")
    a(f"s_mul_i32 s{s_b}, s{s_b}, {PS}")
    a(f"s_add_u32 s{s_a}, s{s_a}, s{s_b}")
    make_srd(a, SO, 32, f"s{s_a}", 3 * HS + PS)
    a(f"s_lshl3_add_u32 s{s_a}, s{s_blk}, s{s_n}")
    a(f"s_lshl1_add_u32 s{s_a}, s{s_a}, s{s_wn}")
    a(f"s_lshl4_add_u32 s{s_a}, s{s_a}, s{s_m}")
    a(f"s_lshl1_add_u32 s{s_vo}, s{s_a}, s{s_wm}")
    a(f"s_lshr_b32 s{s_k}, s{s_vo}, 3")
    a(f"s_lshl_b32 s{s_k}, s{s_k}, 7")
    a(f"s_and_b32 s{s_a}, s{s_vo}, 7")
    a(f"s_lshl2_add_u32 s{s_k}, s{s_a}, s{s_k}")
    a(f"s_add_u32 s{s_k}, s{s_k}, {FLOFF}")
    a(f"s_and_b32 s{s_vo}, s2, 7")
    a(f"s_lshl_b32 s{s_vo}, s{s_vo}, 7")
    a(f"s_add_u32 s{s_vo}, s{s_vo}, {GFOFF}")
    epoch_fin()
    a(f"s_getreg_b32 s{s_loc}, hwreg(HW_REG_XCC_ID)")
    a(f"s_and_b32 s{s_loc}, s{s_loc}, 15")
    a(f"s_add_u32 s{s_loc}, s{s_loc}, s{s_tag}")
    a(f"s_and_b32 s{s_a}, s2, 7")
    a(f"s_lshl_b32 s{s_m0w}, s{s_a}, 12")
    a(f"s_add_u32 s{s_m0w}, s{s_m0w}, {XOFF}")
    a(f"s_lshr_b32 s{s_a}, s2, 3")
    a(f"s_lshl_b32 s{s_a}, s{s_a}, 7")
    a(f"s_add_u32 s{s_b}, s{s_a}, s{s_m0w}")
    Lnp = a.label("nopub")
    a(f"s_cmp_lg_u32 s{s_wave}, 0")
    a(f"s_cbranch_scc1 {Lnp}")
    flag_regs(a, s_loc)
    flag_store(a, s_b, False)
    a(f"{Lnp}:")
    a(f"v_and_b32 v{xv}, 31, v{lane}")
    a(f"v_lshlrev_b32 v{xv}, 7, v{xv}")
    qv, fv = 161, 246
    a(f"v_min_u32 v{T[0]}, {G.nkv}, v{lane}")
    a(f"s_and_b32 s{s_a}, s{s_m}, 3")
    a(f"s_mul_i32 s{s_a}, s{s_a}, {(G.nkv+1)*128}")
    a(f"v_lshl_add_u32 v{qv}, v{T[0]}, 7, s{s_a}")
    a(f"s_lshl4_add_u32 s{s_st}, s{s_blk}, s{s_n}")
    a(f"s_lshr_b32 s{s_a}, s{s_m}, 2")
    a(f"s_lshl2_add_u32 s{s_st}, s{s_st}, s{s_a}")
    a(f"s_lshl_b32 s{s_st}, s{s_st}, 7")
    a(f"s_add_u32 s{s_st}, s{s_st}, {FLOFF}")
    a(f"v_and_b32 v{T[0]}, 7, v{lane}")
    a(f"v_lshrrev_b32 v{T[1]}, 5, v{lane}")
    a(f"v_lshlrev_b32 v{T[0]}, 2, v{T[0]}")
    a(f"v_lshl_add_u32 v{fv}, v{T[1]}, 12, v{T[0]}")
    if G.tKV:
        a(f"buffer_load_dword v{xt}, v{qv}, {srd(SKV)}, s{s_ko} offen sc1")
        a(f"buffer_load_dword v{xt}, v{fv}, {srd(SF)}, s{s_st} offen sc1")
    tr_addrs(a, wa4, True, True, None, WOBASE)
    a(f"v_and_b32 v{T[0]}, 15, v{lane}")
    a(f"v_lshrrev_b32 v{T[1]}, 4, v{lane}")
    a(f"s_movk_i32 s{s_a}, 1280")
    for b in range(5):
        a(f"v_add_u32 v{T[2]}, {4*b}, v{T[1]}")
        a(f"v_mul_u32_u24 v{T[3]}, 205, v{T[2]}")
        a(f"v_lshrrev_b32 v{T[3]}, 10, v{T[3]}")
        a(f"v_lshlrev_b32 v{T[2]}, 8, v{T[2]}")
        a(f"v_mad_u32_u24 v{T[2]}, v{T[3]}, s{s_a}, v{T[2]}")
        a(f"v_lshl_add_u32 v{ob[b]}, v{T[0]}, 4, v{T[2]}")
    a(f"s_xor_b32 s{s_b}, s{s_wave}, 4")
    a(f"s_mul_i32 s{s_b}, s{s_b}, 6144")
    a(f"v_mul_u32_u24 v{T[0]}, 176, v{T[0]}")
    a(f"v_mad_u32_u24 v{T[0]}, v{T[1]}, 40, v{T[0]}")
    a(f"v_add_u32 v{tw}, s{s_b}, v{T[0]}")
    a(f"s_movk_i32 s{s_a}, {2560-160}")
    for i in range(5):
        a(f"v_add_u32 v{T[0]}, {64*i}, v{lane}")
        a(f"v_mul_u32_u24 v{T[1]}, 6554, v{T[0]}")
        a(f"v_lshrrev_b32 v{T[1]}, 16, v{T[1]}")
        a(f"v_lshlrev_b32 v{T[0]}, 4, v{T[0]}")
        a(f"v_mad_u32_u24 v{oc[i]}, v{T[1]}, s{s_a}, v{T[0]}")
        a(f"v_lshl_add_u32 v{T[0]}, v{T[1]}, 4, v{T[0]}")
        a(f"v_add_u32 v{rb[i]}, s{s_b}, v{T[0]}")
    a(f"v_mov_b64 v[226:227], 0")
    a(f"v_mov_b32 v{oa1}, 0")
    a(f"s_mov_b32 s{s_it}, 0")
    a(f"s_mov_b32 s{s_m0x}, {(-3*SLOT) & 0xffffffff}")
    a(f"s_cmp_ge_u32 s{s_n}, 4")
    a(f"s_cbranch_scc1 {Lv}")

    def p1_reads(ks, b):
        out = [f"ds_read_b128 {v(X[b][i],4)}, v{xa[ks]} offset:{2048*i}" for i in range(4)]
        for j in range(5):
            for t in range(2):
                out.append(f"ds_read_b64_tr_b16 {v(W[b][j]+2*t,2)}, v{wa[j]} offset:{ks*10240+1280*t}")
        return out
    st_code = {}
    Lcj = a.label("cj")
    def consumer(ktype):
        tr_addrs(a, wa, ktype, False, s_wn, 16384)
        if ktype:
            a(f"v_lshrrev_b32 v{T[0]}, 4, v{lane}")
            a(f"s_mov_b32 s{s_a}, {HS}")
            a(f"v_mul_lo_u32 v{T[0]}, v{T[0]}, s{s_a}")
            a(f"v_and_b32 v{T[1]}, 7, v{lane}")
            a(f"v_and_b32 v{T[2]}, 8, v{lane}")
            a(f"v_lshl_add_u32 v{T[1]}, v{T[2]}, 1, v{T[1]}")
            a(f"v_lshl_add_u32 v{sa[0]}, v{T[1]}, 4, v{T[0]}")
            a(f"v_lshl_add_u32 v{sa[1]}, v{T[1]}, 3, v{T[0]}")
        else:
            a(f"v_lshrrev_b32 v{T[0]}, 4, v{lane}")
            a(f"v_mul_u32_u24 v{T[0]}, 320, v{T[0]}")
            a(f"v_and_b32 v{T[1]}, 15, v{lane}")
            a(f"s_mov_b32 s{s_a}, {HS-320}")
            for j in range(5):
                a(f"v_add_u32 v{T[2]}, {16*j}, v{T[1]}")
                a(f"v_mul_u32_u24 v{T[3]}, 3277, v{T[2]}")
                a(f"v_lshrrev_b32 v{T[3]}, 16, v{T[3]}")
                a(f"v_lshl_add_u32 v{T[2]}, v{T[2]}, 4, v{T[0]}")
                a(f"v_mad_u32_u24 v{sa[j]}, v{T[3]}, s{s_a}, v{T[2]}")
        def mf(b):
            out = []
            for j in range(5):
                for i in range(4):
                    d = v(ACC + 4 * (5 * i + j), 4)
                    A, B = (W[b][j], X[b][i]) if ktype else (X[b][i], W[b][j])
                    out.append(f"v_mfma_f32_16x16x32_bf16 {d}, {v(A,4)}, {v(B,4)}, {d}")
            return out
        Lp = a.label("p1"); Ll = a.label("p1l")
        a("s_barrier")
        stamp(a, 1)
        for x in p1_reads(0, 0): a(x)
        a(f"{Lp}:")
        a("s_waitcnt lgkmcnt(8)")
        e = p1_reads(1, 1) + [f"s_add_u32 s{s_it}, s{s_it}, 1", f"s_and_b32 s{s_a}, s{s_it}, 3",
                              f"s_cselect_b32 s{s_a}, {SLOT}, s{s_m0x}", f"s_cmp_eq_u32 s{s_it}, 10"]
        for k, x in enumerate(mf(0)):
            if k == 4: a("s_waitcnt lgkmcnt(4)")
            a(x)
            if e: a(e.pop(0))
        a("s_waitcnt lgkmcnt(8)")
        m1 = mf(1)
        adds = [f"v_add_u32 v{r}, s{s_a}, v{r}" for r in xa + wa]
        for k in range(4):
            a(m1[k])
            for x in adds[2 * k:2 * k + 2]: a(x)
        a("s_waitcnt lgkmcnt(0)")
        a("s_barrier")
        a(f"s_cbranch_scc1 {Ll}")
        e = p1_reads(0, 0)
        for x in m1[4:]:
            a(x)
            if e: a(e.pop(0))
        a(f"s_cmp_lg_u32 s{s_it}, {G.xit}")
        a(f"s_cbranch_scc1 {Lp}")
        a(f"buffer_load_dword v{xt}, v{xv}, {srd(SF)}, s{s_m0w} offen sc1")
        a(f"s_branch {Lp}")
        a(f"{Ll}:")
        for x in m1[4:]: a(x)
        Lt = a.label("xt"); Ltd = a.label("xtd")
        a(f"s_mov_b32 s{s_c}, {SPIN}")
        a(f"{Lt}:")
        a("s_waitcnt vmcnt(0)")
        a(f"v_subrev_u32 v{T[0]}, s{s_tag}, v{xt}")
        a(f"v_cmp_lt_u32 vcc, 15, v{T[0]}")
        a(f"s_cbranch_vccz {Ltd}")
        a(f"s_sub_u32 s{s_c}, s{s_c}, 1")
        a(f"s_cbranch_scc1 {Ltd}")
        a(f"s_sleep {G.sleep}")
        a(f"buffer_load_dword v{xt}, v{xv}, {srd(SF)}, s{s_m0w} offen sc1")
        a(f"s_branch {Lt}")
        a(f"{Ltd}:")
        a(f"v_cmp_ne_u32 vcc, s{s_loc}, v{xt}")
        a("s_cmp_eq_u64 vcc, 0")
        a(f"s_cselect_b32 s{s_loc}, {1 if G.local else 0}, 0")
        stamp(a, 2)
        def stores(fl, so, cvt):
            if ktype:
                for i in range(4):
                    r = KVD + 10 * i
                    if cvt:
                        for e in range(10): a(f"v_cvt_pk_bf16_f32 v{r+e}, v{ACC+20*i+2*e}, v{ACC+20*i+2*e+1}")
                    o = (i >> 1) * 1024 + (i & 1) * 128
                    a(f"buffer_store_dwordx4 {v(r,4)}, v{sa[0]}, {srd(SO)}, {so} offen offset:{o} {fl}")
                    a(f"buffer_store_dwordx4 {v(r+4,4)}, v{sa[0]}, {srd(SO)}, {so} offen offset:{o+512} {fl}")
                    a(f"buffer_store_dwordx2 {v(r+8,2)}, v{sa[1]}, {srd(SO)}, {so} offen offset:{2048+(i>>1)*256+(i&1)*64} {fl}")
            else:
                for j in range(5):
                    for i2 in range(2):
                        r = KVD + 8 * j + 4 * i2
                        if cvt:
                            r0 = ACC + 4 * (5 * (2 * i2) + j); r1 = ACC + 4 * (5 * (2 * i2 + 1) + j)
                            a(f"v_cvt_pk_bf16_f32 v{r}, v{r0}, v{r0+1}")
                            a(f"v_cvt_pk_bf16_f32 v{r+1}, v{r0+2}, v{r0+3}")
                            a(f"v_cvt_pk_bf16_f32 v{r+2}, v{r1}, v{r1+1}")
                            a(f"v_cvt_pk_bf16_f32 v{r+3}, v{r1+2}, v{r1+3}")
                        a(f"buffer_store_dwordx4 {v(r,4)}, v{sa[j]}, {srd(SO)}, {so} offen offset:{2560+1280*i2} {fl}")
        st_code[ktype] = stores
        Lg = a.label("glob")
        a(f"s_cmp_eq_u32 s{s_loc}, 0")
        a(f"s_cbranch_scc1 {Lg}")
        if not (G.xs & 1): stores(G.lst, "0", True)
        a(f"s_branch {Lcj}")
        a(f"{Lg}:")
        stores("sc1", "0", True)
        if ktype: a(f"s_branch {Lcj}")
    consumer(True)
    a(f"{Lv}:")
    consumer(False)
    a(f"{Lcj}:")
    pad_hop(a, 2)
    a(f"v_mov_b32 v{T[0]}, {MODE_LDS}")
    a(f"v_mov_b32 v{T[1]}, s{s_loc}")
    a(f"ds_write_b32 v{T[0]}, v{T[1]}")
    flag_regs(a)
    def att_init():
        pad_value()
        for b in range(4): pad(b)
        zero_acc()
        wo_scalars()
        a(f"s_lshl2_add_u32 s{s_c}, s{s_m}, s{s_g}")
        a(f"s_lshl_b32 s{s_c}, s{s_c}, 5")
        o_base(SX, s_c, 31 * 2560 + 1280)
    Lg2 = a.label("g2")
    a(f"s_cmp_eq_u32 s{s_loc}, 0")
    a("s_waitcnt lgkmcnt(0)")
    a(f"s_cbranch_scc1 {Lg2}")
    pad_hop(a, 2)
    att_init()
    a("s_waitcnt vmcnt(0)")
    flag_store(a, s_k, True)
    stamp(a, 3)
    poll(a, 246, f"s{s_st}", T[1])
    stamp(a, 4)
    kv_first(False)
    if G.tP:
        a(f"v_min_u32 v{T[0]}, 39, v{lane}")
        a(f"v_lshlrev_b32 v{T[0]}, 7, v{T[0]}")
        a(f"s_sub_u32 s{s_a}, s{s_ko}, {PS}")
        a(f"s_add_u32 s{s_b}, s{s_ko}, {PS}")
        a(f"buffer_load_dword v{gfd}, v{T[0]}, {srd(SKV)}, s{s_a} offen sc1")
        a(f"buffer_load_dword v{gfd}, v{T[0]}, {srd(SKV)}, s{s_b} offen sc1")
    a(f"s_lshr_b32 s{s_a}, s2, 3")
    a(f"s_or_b32 s{s_a}, s{s_a}, s{s_wave}")
    a(f"s_cselect_b32 s{s_st}, 4, 5")
    q_prep()
    a("s_barrier")
    q_reads(0)
    a(f"s_branch {Latt}")
    def group_wait(part=None, n=0):
        L = a.label("gp"); Ld = a.label("gpd"); Lc = a.label("gpc")
        if part == 2:
            a(f"s_mov_b32 s{s_c}, {SPIN}")
            a(f"s_waitcnt vmcnt({n})")
            a(f"s_branch {Lc}")
        if part != 2:
            a(f"s_lshl_b32 s{s_b}, s{s_blk}, 6")
            a(f"s_lshr_b32 s{s_a}, s{s_m}, 2")
            a(f"s_add_u32 s{s_b}, s{s_b}, s{s_a}")
            a(f"s_lshl_b32 s{s_b}, s{s_b}, 7")
            a(f"s_add_u32 s{s_b}, s{s_b}, {FLOFF}")
            a(f"v_lshrrev_b32 v{T[0]}, 2, v{lane}")
            a(f"v_and_b32 v{T[1]}, 3, v{lane}")
            a(f"v_lshlrev_b32 v{T[1]}, 3, v{T[1]}")
            a(f"v_lshl_add_u32 v{T[0]}, v{T[0]}, 9, v{T[1]}")
            a(f"s_mov_b32 s{s_c}, {SPIN}")
        a(f"{L}:")
        a(f"buffer_load_dwordx2 {v(T[1],2)}, v{T[0]}, {srd(SF)}, s{s_b} offen sc1")
        if part == 1: return
        a("s_waitcnt vmcnt(0)")
        a(f"{Lc}:")
        a(f"v_cmp_ne_u32 vcc, s{s_tag}, v{T[1]}")
        a(f"v_cmp_ne_u32 s[16:17], s{s_tag}, v{T[2]}")
        a("s_or_b64 vcc, vcc, s[16:17]")
        a(f"s_cbranch_scc0 {Ld}")
        a(f"s_sub_u32 s{s_c}, s{s_c}, 1")
        a(f"s_cbranch_scc1 {Ld}")
        a(f"s_sleep {G.sleep}")
        a(f"s_branch {L}")
        a(f"{Ld}:")
    a(f"{Lg2}:")
    att_init()
    a("s_waitcnt vmcnt(0)")
    a("s_mov_b64 exec, 1")
    a(f"buffer_store_dword v{T[5]}, v{T[4]}, {srd(SF)}, s{s_k} offen sc1")
    a("s_mov_b64 exec, -1")
    stamp(a, 3)
    Lne = a.label("ne")
    a(f"s_lshr_b32 s{s_a}, s2, 3")
    a(f"s_or_b32 s{s_a}, s{s_a}, s{s_wave}")
    a(f"s_cbranch_scc1 {Lne}")
    group_wait()
    flag_store(a, s_vo, False)
    a(f"{Lne}:")
    poll(a, gfv, f"s{s_fg}", T[1])
    stamp(a, 4)
    kv_first(False)
    a(f"s_mov_b32 s{s_st}, 0")
    q_prep()
    a("s_barrier")
    q_reads(0)
    a(f"s_branch {Latt}")

    for Ls, Lb, R1 in spins:
        a(f"{Ls}:")
        a(f"ds_read_b32 v{fd}, v{fr} offset:{16*(R1-1)}")
        a("s_waitcnt lgkmcnt(0)")
        a(f"v_cmp_ne_u32 vcc, 1, v{fd}")
        a(f"s_cbranch_vccnz {Ls}")
        a(f"s_branch {Lb}")
    a(f"{hooks[G.hst][1]}:")
    stamp(a, 11)
    group_wait(1)
    a(f"s_branch {hooks[G.hst][2]}")
    a(f"{hooks[G.hchk][1]}:")
    group_wait(2, pos[G.hchk] - pos[G.hst])
    stamp(a, 12)
    a("buffer_wbl2 sc1")
    a(f"s_branch {hooks[G.hchk][2]}")
    a(f"{hooks[G.hpub][1]}:")
    a("s_waitcnt vmcnt(0)")
    a(f"s_bitset0_b32 s{s_st}, 0")
    flag_regs(a)
    flag_store(a, s_vo, False)
    stamp(a, 13)
    a(f"s_branch {hooks[G.hpub][2]}")
    a(f"{hooks[(1,1)][1]}:")
    if G.kill: a(f"s_mov_b32 s{SKV+2}, 0")
    a(f"s_mul_i32 s{s_a}, s{s_wave}, 6144")
    a(f"v_add_u32 v{own}, s{s_a}, v{ka}")
    a(f"s_xor_b32 s{s_a}, s{s_wave}, 4")
    a(f"s_mul_i32 s{s_a}, s{s_a}, 6144")
    a(f"v_add_u32 v{oth}, s{s_a}, v{ka}")
    a(f"s_lshl4_add_u32 s{s_xo}, s{s_blk}, s{s_m}")
    a(f"s_lshl1_add_u32 s{s_c}, s{s_m}, s{s_kh}")
    a(f"s_lshl_b32 s{s_c}, s{s_c}, 6")
    o_base(SO, s_c, 63 * 2560 + 1280)
    a(f"s_lshl2_add_u32 s{s_vo}, s{s_n}, s{s_g}")
    a(f"s_mul_i32 s{s_b}, s{s_vo}, 5")
    a(f"s_add_u32 s{s_b}, s{s_b}, 1")
    a(f"s_lshr_b32 s{s_b}, s{s_b}, 1")
    def funit(dst, u):
        a(f"s_mul_i32 s{dst}, s{u}, 205")
        a(f"s_lshr_b32 s{dst}, s{dst}, 10")
        a(f"s_mul_i32 s{dst}, s{dst}, 5")
        a(f"s_add_u32 s{dst}, s{dst}, s{u}")
        a(f"s_lshl_b32 s{dst}, s{dst}, 8")
    funit(16, s_b)
    a(f"s_add_u32 s{s_a}, s{s_b}, 1")
    funit(17, s_a)
    a(f"s_and_b32 s19, s{s_g}, 1")
    a(f"s_cselect_b32 s{s_a}, -1, 2")
    a(f"s_add_u32 s{s_a}, s{s_a}, s{s_b}")
    funit(18, s_a)
    a(f"s_lshl3_add_u32 s18, s19, s18")
    a(f"s_sub_u32 s17, s17, s16")
    a(f"v_bfe_u32 v{T[2]}, v{lane}, 4, 1")
    a(f"v_mul_u32_u24 v{T[2]}, {16*2560}, v{T[2]}")
    a(f"v_and_b32 v{T[3]}, 15, v{lane}")
    a(f"v_lshl_add_u32 v{T[2]}, v{T[3]}, 4, v{T[2]}")
    a(f"v_lshrrev_b32 v{T[4]}, 5, v{lane}")
    a(f"v_lshl_add_u32 v{T[3]}, v{T[4]}, 20, v{T[2]}")
    a(f"v_mad_u32_u24 v{T[2]}, v{T[4]}, s17, v{T[2]}")
    a(f"v_add_u32 v{oa1}, s16, v{T[2]}")
    a(f"v_add_u32 v{oa2}, s18, v{T[3]}")
    a(f"s_cmp_eq_u32 s{s_loc}, 0")
    a(f"s_cselect_b32 s{s_k}, {FSH}, 2")
    a(f"s_mov_b32 s{s_a}, {F2LOFF}")
    a(f"s_cselect_b32 s{s_a}, {F2OFF}, s{s_a}")
    a(f"s_lshl_b32 s{s_xo}, s{s_xo}, 6")
    a(f"s_lshl_b32 s{s_xo}, s{s_xo}, s{s_k}")
    a(f"s_add_u32 s{s_xo}, s{s_xo}, s{s_a}")
    a(f"s_lshl_b32 s{s_a}, s{s_kh}, 5")
    a(f"s_add_u32 s{s_vo}, s{s_vo}, s{s_a}")
    a(f"s_lshl_b32 s{s_vo}, s{s_vo}, s{s_k}")
    a(f"s_add_u32 s{s_vo}, s{s_vo}, s{s_xo}")
    flag_regs(a)
    if G.tO:
        a(f"s_mov_b32 s{s_b}, {32*2560}")
        for so in ("0", f"s{s_b}"):
            a(f"buffer_load_dword v{gfd}, v{oa1}, {srd(SO)}, {so} offen sc1")
            a(f"buffer_load_dword v{gfd}, v{oa2}, {srd(SO)}, {so} offen sc1")
    a(f"s_lshr_b32 s{s_a}, s{s_g}, 1")
    a(f"s_lshl_b32 s{s_a}, s{s_a}, 5")
    a(f"s_lshl_b32 s{s_a}, s{s_a}, s{s_k}")
    a(f"s_add_u32 s{s_xo}, s{s_xo}, s{s_a}")
    a(f"v_and_b32 v{pf}, 31, v{lane}")
    a(f"v_lshlrev_b32 v{pf}, s{s_k}, v{pf}")
    a(f"buffer_load_dword v{gfd}, v{pf}, {srd(SF)}, s{s_xo} offen sc1")
    a(f"s_lshl4_add_u32 s{s_m0x}, s{s_blk}, s{s_m}")
    a(f"s_lshl2_add_u32 s{s_m0x}, s{s_m0x}, s{s_g}")
    a(f"s_lshl_b32 s{s_m0x}, s{s_m0x}, 5")
    a(f"s_add_u32 s{s_m0x}, s{s_m0x}, {F3OFF}")
    a(f"buffer_load_dword v{gfd}, off, {srd(SF)}, s{s_m0x} sc1")
    a(f"s_branch {hooks[(1,1)][2]}")
    if G.early:
        a(f"{LhW}:")
        a("s_nop 3")
        send()
        a(f"s_branch {LhWb}")
    a(f"{hooks[G.hsam][1]}:")
    a(f"buffer_load_dword v{gfd}, v{gfv}, {srd(SF)}, s{s_fg} offen sc1")
    a(f"s_mov_b32 s{s_st}, 16")
    a(f"s_branch {hooks[G.hsam][2]}")
    a(f"{hooks[(0,2)][1]}:")
    nafter = (pos[(0, 2)] - pos[G.hsam]) % (len(names) // 2)
    if not G.rst: stamp(a, 14)
    a(f"s_waitcnt vmcnt({nafter})")
    stamp(a, 15)
    a(f"s_mov_b32 s{s_st}, 0")
    a(f"v_cmp_ne_u32 vcc, s{s_tag}, v{gfd}")
    a(f"s_cbranch_vccz {hooks[(0,2)][2]}")
    poll(a, gfv, f"s{s_fg}", gfd)
    stamp(a, 15)
    a(f"s_branch {hooks[(0,2)][2]}")

    a(f"{Lslow}:")
    vmx = gfd
    a(f"s_mov_b32 s{SKV+2}, {HS}")
    for q in (2, 3):
        L1 = a.label("s1"); L2 = a.label("s2")
        a(f"v_mov_b32 v{vmx}, 0xff800000")
        a(f"s_mov_b32 s{s_ko}, 0")
        a(f"{L1}:")
        a(ld_k1(0)); a(ld_k1(1)); a(ld_k3(0))
        a("s_waitcnt vmcnt(0)")
        for t in range(2):
            a(qk1(0, q, t)); a(qk2(0, q, t))
            a("s_nop 15")
            for r in range(0, 16, 2):
                a(f"v_max3_f32 v{vmx}, v{S[0]+r}, v{S[0]+r+1}, v{vmx}")
        a(f"s_add_u32 s{s_ko}, s{s_ko}, {PS}")
        a(f"s_cmp_lt_u32 s{s_ko}, {HS}")
        a(f"s_cbranch_scc1 {L1}")
        a(f"v_mov_b32 v{T[0]}, v{vmx}")
        a("s_nop 1")
        a(f"v_permlane32_swap_b32 v{T[0]}, v{vmx}")
        a("s_nop 1")
        a(f"v_max_f32 v{vmx}, v{vmx}, v{T[0]}")
        for r in range(0, 16, 2):
            a(f"v_mov_b64 {v(O[q]+r,2)}, 0")
        a(f"s_mov_b32 s{s_ko}, 0")
        a(f"{L2}:")
        a(ld_k1(0)); a(ld_k1(1)); a(ld_k3(0)); a(ld_v(0)); a(ld_v(1))
        a("s_waitcnt vmcnt(0)")
        for t in range(2):
            a(qk1(0, q, t)); a(qk2(0, q, t))
            a("s_nop 15")
            for r in range(16):
                a(f"v_sub_f32 v{S[0]+r}, v{S[0]+r}, v{vmx}")
            for r in range(16):
                a(ex(0, r))
            a("s_nop 0")
            for r in range(0, 16, 2):
                a(cv(0, r))
            a("s_nop 1")
            a(pv(0, q, t, 0)); a(pv(0, q, t, 1))
        a(f"s_add_u32 s{s_ko}, s{s_ko}, {PS}")
        a(f"s_cmp_lt_u32 s{s_ko}, {HS}")
        a(f"s_cbranch_scc1 {L2}")
    a("s_nop 15")
    a(f"s_mov_b32 s{s_c}, 1")
    a(f"s_branch {Lst}")
    a("Lcode_end:")
    return name

def build():
    a = Asm()
    PADS[:] = [0, 0, 0, 0]
    name = gen(a)
    if G.warm:
        i = a.lines.index(".PADRET")
        a.lines[i:i+1] = [f"Lpad_{c}_{PADS[c]}:" for c in range(4)]
    out = HEADER + "; @launch grid=(256,1,1) block=(512,1,1) lds=163840\n"
    out += '.amdgcn_target "amdgcn-amd-amdhsa--gfx950"\n.text\n' + a.text()
    out += '.section .rodata,"a"\n.p2align 6\n' + kernel_desc(name, 256, 100 if G.diag else 64)
    return out

if __name__ == "__main__":
    path = sys.argv[1] if len(sys.argv) > 1 else f"cdna_kernels/{NAME}.s"
    G.diag = "diag" in sys.argv
    for x in sys.argv[2:]:
        if "=" in x:
            k, val = x.split("=", 1)
            assert hasattr(G, k), k
            setattr(G, k, eval(val))
    open(path, "w").write(build())
    print("wrote", path)
```

```python
import sys
sys.path.insert(0, "gen")
from asmlib import *

NAME = "concat_heads__mha_block__softmax_full_mha__prompt"
HS = 163840
PS = 5120
KVL = 0x1400000
OBASE = 0xA00000
FBASE = 0x1000000
FLOFF = 0x40000
F2LOFF = 0x60000
XOFF = 0x70000
F3OFF = 0x68000
GFOFF = 0x78000
F2OFF = 0x80000
EOFF = 0x180000
DBGBASE = 0x2000000
QSCALE = 0x3ea52b5c
SLOT = 36864
SPARE = 4 * SLOT
QAREA = SLOT
WOBASE = 61440
MODE_LDS = 163836
RFLAG = 163712
SPIN = 400000
FSH = 7

HEADER = """; Kernarg layout for this problem (72 bytes, ptrs only, base s[0:1]):
"""

SX, SW, SKV, SF, SO = 4, 8, 12, 36, 40
(s_blk, s_m, s_n, s_wave, s_tag, s_k, s_a, s_b, s_c, s_it, s_xo, s_wo, s_m0x, s_m0w, s_kh, s_ko, s_vo, s_g) = range(44, 62)
s_vm = 62
s_st, s_loc, s_fg = 3, 34, 35
lane = 255
T = [0] * 6

class G:
    diag = False; dbg = None; amp = None
    lens = [10, 3, 2, 1]
    rot = True
    pro = 2; la = 3; nb1 = 2
    local = True
    sleep = 2
    iters = 8
    hst = (0, 1); hsam = (0, 0)
    oa = 4
    kill = True
    nowo = False
    xpos = 2
    pwb = None
    nohook = False
    cpf = 1
    fast0 = True
    kst = False
    itst = False
    tP = False
    hchk = (2, 1)
    hpub = (3, 0)
    hl = (2, 0)
    rpg = 8
    early = True
    roll = 3
    xit = 8
    nkv = 39
    tO = True
    tKV = False
    xs = 0
    p2prio = 1
    dsh = 0
    dst = 3
    qpf = 0
    rst = 0
    rmul = 3
    rn = 1
    lwb = False
    ost = ''
    oin = True
    olst = ''
    ewb = None
    warm = False
    lst = ''
    v3 = False
    nowb = False
    wod = 3

PADS = [0, 0, 0, 0]
def pad_hop(a, c):
    if not G.warm: return
    a(f"Lpad_{c}_{PADS[c]}:")
    PADS[c] += 1
    a(f"s_cbranch_execz Lpad_{c}_{PADS[c]}")

def setT(base): T[:] = list(range(base, base + 6))
def srd(d): return f"s[{d}:{d+3}]"

def stamp(a, i):
    if not G.diag: return
    if G.itst and i >= 11: return
    a("s_memtime s[96:97]")
    a("s_memrealtime s[98:99]")
    a("s_waitcnt lgkmcnt(0)")
    a(f"s_mov_b32 s{64+2*i}, s96")
    a(f"s_mov_b32 s{65+2*i}, s98")

def dump_stamps(a, n):
    if not G.diag: return
    a("s_waitcnt vmcnt(0)")
    stamp(a, n)
    a(f"s_lshl_b32 s{s_a}, s2, 3")
    a(f"s_add_u32 s{s_a}, s{s_a}, s{s_wave}")
    a(f"s_lshl_b32 s{s_a}, s{s_a}, 7")
    a(f"s_add_u32 s{s_a}, s{s_a}, {DBGBASE}")
    make_srd(a, SX, 32, f"s{s_a}", 128)
    a(f"v_mov_b32 v{T[0]}, 0")
    for i in range(32):
        a(f"v_mov_b32 v{T[1]}, s{64+i}")
        a(f"buffer_store_dword v{T[1]}, v{T[0]}, s[{SX}:{SX+3}], 0 offen offset:{4*i}")
    if G.lwb:
        L1 = a.label("lwb"); L2 = a.label("lwb2")
        a(f"s_lshr_b32 s{s_a}, s2, 3")
        a(f"s_or_b32 s{s_a}, s{s_a}, s{s_wave}")
        a(f"s_cbranch_scc1 {L2}")
        a(f"{L1}:")
        a("s_memrealtime s[98:99]")
        a("s_waitcnt lgkmcnt(0)")
        a(f"s_sub_u32 s{s_b}, s98, s{65+2*n}")
        a(f"s_cmp_lt_u32 s{s_b}, 400")
        a(f"s_cbranch_scc1 {L1}")
        a("buffer_wbl2 sc1")
        a("s_waitcnt vmcnt(0)")
        a(f"{L2}:")
    if G.dbg is not None:
        Ls = a.label("nodbg")
        a(f"s_lshl_b32 s{s_a}, s2, 3")
        a(f"s_add_u32 s{s_a}, s{s_a}, s{s_wave}")
        a(f"s_cmp_lg_u32 s{s_a}, {G.dbg}")
        a(f"s_cbranch_scc1 {Ls}")
        make_srd(a, SX, 30, None, 256)
        for i in range(1, 14):
            a(f"s_sub_u32 s{s_a}, s{65+2*i}, s65")
            a(f"v_mov_b32 v{T[1]}, s{s_a}")
            a(f"buffer_store_dword v{T[1]}, v{T[0]}, s[{SX}:{SX+3}], 0 offen offset:{4*i}")
        if G.amp is not None:
            Lw = a.label("amp")
            a(f"s_sub_u32 s{s_a}, s{65+2*G.amp}, s65")
            a(f"s_mul_i32 s{s_a}, s{s_a}, 4")
            a(f"s_add_u32 s{s_a}, s{s_a}, 1000")
            a(f"{Lw}:")
            a("s_memrealtime s[98:99]")
            a("s_waitcnt lgkmcnt(0)")
            a(f"s_sub_u32 s{s_b}, s98, s{65+2*n}")
            a(f"s_cmp_lt_u32 s{s_b}, s{s_a}")
            a(f"s_cbranch_scc1 {Lw}")
        a(f"{Ls}:")

def make_srd(a, d, base, off, nbytes):
    if off is None:
        a(f"s_mov_b64 s[{d}:{d+1}], s[{base}:{base+1}]")
    else:
        a(f"s_add_u32 s{d}, s{base}, {off}")
        a(f"s_addc_u32 s{d+1}, s{base+1}, 0")
    a(f"s_mov_b32 s{d+2}, {nbytes}")
    a(f"s_mov_b32 s{d+3}, 0x00020000")

def img_pos(a, pos, row, c):
    a(f"v_mul_u32_u24 v{row}, 3277, v{pos}")
    a(f"v_lshrrev_b32 v{row}, 16, v{row}")
    a(f"v_mad_i32_i24 v{c}, v{row}, -16, v{pos}")
    a(f"v_mad_i32_i24 v{c}, v{row}, -4, v{c}")
    a(f"v_lshrrev_b32 v{T[5]}, 3, v{row}")
    a(f"v_mad_i32_i24 v{c}, v{T[5]}, -2, v{c}")
    a(f"v_add_u32 v{T[5]}, 20, v{c}")
    a(f"v_min_u32 v{c}, v{c}, v{T[5]}")

def grp_src(a, dst, row, c, ld_sreg):
    a(f"v_cmp_lt_u32 vcc, 9, v{c}")
    a(f"v_add_u32 v{T[5]}, 16, v{row}")
    a(f"v_subrev_u32 v{T[4]}, 10, v{c}")
    a(f"v_cndmask_b32 v{row}, v{row}, v{T[5]}, vcc")
    a(f"v_cndmask_b32 v{c}, v{c}, v{T[4]}, vcc")
    a(f"v_lshlrev_b32 v{c}, 4, v{c}")
    a(f"v_mad_u32_u24 v{dst}, v{row}, s{ld_sreg}, v{c}")

def tr_addrs(a, wa, perm, grp, colhalf_sreg, base):
    a(f"v_bfe_u32 v{T[0]}, v{lane}, 2, 2")
    a(f"v_lshrrev_b32 v{T[1]}, 4, v{lane}")
    a(f"v_and_b32 v{T[2]}, 1, v{T[1]}")
    a(f"v_lshl_add_u32 v{T[0]}, v{T[2] if grp else T[1]}, 3, v{T[0]}")
    a(f"v_mul_u32_u24 v{T[0]}, 320, v{T[0]}")
    if base: a(f"v_add_u32 v{T[0]}, {base}, v{T[0]}")
    a(f"v_lshlrev_b32 v{T[2]}, 5, v{T[2]}")
    if grp:
        a(f"v_lshrrev_b32 v{T[1]}, 1, v{T[1]}")
        a(f"v_mul_u32_u24 v{T[1]}, 160, v{T[1]}")
        a(f"v_add_u32 v{T[2]}, v{T[2]}, v{T[1]}")
    else:
        a(f"s_mul_i32 s{s_a}, s{colhalf_sreg}, 160")
        a(f"v_add_u32 v{T[2]}, s{s_a}, v{T[2]}")
    a(f"v_and_b32 v{T[1]}, 3, v{lane}")
    a(f"v_mad_u32_u24 v{T[2]}, v{T[1]}, {40 if perm else 8}, v{T[2]}")
    for j in range(5):
        a(f"v_add_u32 v{T[1]}, {8*j if perm else 32*j}, v{T[2]}")
        a(f"v_subrev_u32 v{T[3]}, 320, v{T[1]}")
        a(f"v_min_u32 v{T[1]}, v{T[1]}, v{T[3]}")
        a(f"v_add_u32 v{wa[j]}, v{T[1]}, v{T[0]}")

def x_addrs(a, xa, rowbase_sreg):
    a(f"v_and_b32 v{T[0]}, 15, v{lane}")
    a(f"v_lshrrev_b32 v{T[1]}, 1, v{T[0]}")
    a(f"v_lshrrev_b32 v{T[2]}, 4, v{lane}")
    a(f"v_xor_b32 v{T[1]}, v{T[1]}, v{T[2]}")
    a(f"v_lshl_add_u32 v{T[0]}, v{T[0]}, 7, s{rowbase_sreg}")
    a(f"v_lshl_add_u32 v{xa[0]}, v{T[1]}, 4, v{T[0]}")
    a(f"v_xor_b32 v{xa[1]}, 64, v{xa[0]}")

def poll(a, voff, soff, tmp):
    L = a.label("poll"); Ld = a.label("polld")
    a(f"s_mov_b32 s{s_c}, {SPIN}")
    a(f"{L}:")
    a(f"buffer_load_dword v{tmp}, v{voff}, {srd(SF)}, {soff} offen sc1")
    a("s_waitcnt vmcnt(0)")
    a(f"v_cmp_ne_u32 vcc, s{s_tag}, v{tmp}")
    a(f"s_cbranch_vccz {Ld}")
    a(f"s_sub_u32 s{s_c}, s{s_c}, 1")
    a(f"s_cbranch_scc1 {Ld}")
    a(f"s_sleep {G.sleep}")
    a(f"s_branch {L}")
    a(f"{Ld}:")

def flag_regs(a, val=None):
    a(f"v_lshlrev_b32 v{T[4]}, 2, v{lane}")
    a(f"v_mov_b32 v{T[5]}, s{s_tag if val is None else val}")
def flag_store(a, off_sreg, local=False):
    if local:
        a("s_mov_b64 exec, 1")
    else:
        a("s_mov_b32 exec_hi, 0")
    a(f"buffer_store_dword v{T[5]}, v{T[4]}, {srd(SF)}, s{off_sreg} offen {'' if local else 'sc1'}")
    a("s_mov_b64 exec, -1")

def small_gemm(a, BF, ACC, W, wa, gbase, pre, cur0=0, vmw=None, chain=0):
    n = len(gbase)
    cur = [cur0]
    def shift(g):
        out = []
        if not (cur[0] <= gbase[g] and gbase[g] + 1280 - cur[0] <= 65535):
            want = (gbase[g] // 57344) * 57344
            d = want - cur[0]
            out = [(f"v_add_u32 v{wa[j]}, {d}, v{wa[j]}" if d > 0 else f"v_subrev_u32 v{wa[j]}, {-d}, v{wa[j]}") for j in range(5)]
            cur[0] = want
        return out
    def rd(g, j, t): return f"ds_read_b64_tr_b16 {v(W[g&1]+4*j+2*t,2)}, v{wa[j]} offset:{gbase[g]-cur[0]+1280*t}"
    for x in shift(0): a(x)
    for j in range(5):
        a(rd(0, j, 0)); a(rd(0, j, 1))
    for g in range(n):
        last = g == n - 1
        if g % 2 == 0: pad_hop(a, chain)
        for x in pre.get(("h", g), []): a(x)
        if not last:
            for x in shift(g + 1): a(x)
        ex = list(pre.get(("x", g), []))
        for j in range(5):
            if j == 0: a(f"s_waitcnt {('vmcnt(%d) ' % vmw(g)) if vmw else ''}lgkmcnt(6)")
            if G.roll == 2 or last:
                if j == 2: a(f"s_waitcnt lgkmcnt({0 if last else 4})")
            else:
                if j == 2: a("s_waitcnt lgkmcnt(6)")
                if j == 4: a("s_waitcnt lgkmcnt(8)")
            for ii in range(2):
                d = v(ACC + 4 * (5 * ii + j), 4)
                a(f"v_mfma_f32_16x16x32_bf16 {d}, {v(W[g&1]+4*j,4)}, {v(BF+8*g+4*ii,4)}, {d if g else 0}")
                if not last: a(rd(g + 1, j, ii))
            if ex: a(ex.pop(0))
        for x in ex: a(x)

def gen(a):
    name = NAME + "_kernel"
    kernel_header(a, name)
    Lend = a.label("end"); Lcons = a.label("cons"); Lv = a.label("vtype"); Latt = a.label("att")
    stamp(a, 0)
    a("s_load_dwordx16 s[16:31], s[0:1], 0")
    a("s_load_dwordx2 s[32:33], s[0:1], 64")
    a("s_cmp_ge_u32 s2, 256")
    a(f"s_cbranch_scc1 {Lend}")
    a("s_getpc_b64 s[4:5]")
    a(f"Lpc_{name}:")
    a(f"s_mov_b32 s6, Lcode_end-Lpc_{name}")
    a("s_mov_b32 s7, 0x00020000")
    if G.cpf == 0:
        a("v_lshlrev_b32 v1, 7, v0")
        a(f"buffer_load_dword v159, v1, s[4:7], 0 offen")
    else:
        a("v_and_b32 v1, 7, v0")
        a("s_and_b32 s3, s2, 0xf8")
        a("v_or_b32 v1, s3, v1")
        a("v_lshlrev_b32 v1, 7, v1")
        a(f"buffer_load_dword v159, v1, s[4:7], 0 offen")
    a("s_mov_b64 exec, -1")
    a(f"v_lshrrev_b32 v1, 6, v0")
    a(f"v_and_b32 v{lane}, 63, v0")
    a(f"v_readfirstlane_b32 s{s_wave}, v1")
    a(f"s_and_b32 s{s_a}, s2, 7")
    a(f"s_lshr_b32 s{s_b}, s2, 3")
    a(f"s_lshr_b32 s{s_blk}, s{s_a}, 2")
    a(f"s_and_b32 s{s_a}, s{s_a}, 3")
    a(f"s_lshr_b32 s{s_c}, s{s_b}, 3")
    a(f"s_lshl2_add_u32 s{s_m}, s{s_a}, s{s_c}")
    a(f"s_and_b32 s{s_n}, s{s_b}, 7")
    if G.rot:
        if G.rot == 2:
            a(f"s_add_u32 s{s_k}, s{s_c}, s{s_n}")
            a(f"s_and_b32 s{s_k}, s{s_k}, 1")
            a(f"s_mul_i32 s{s_k}, s{s_k}, 5")
        elif G.rot == 5:
            a(f"s_mul_i32 s{s_k}, s{s_c}, 5")
            a(f"s_lshr_b32 s{s_k}, s{s_k}, 1")
            a(f"s_add_u32 s{s_k}, s{s_k}, s{s_a}")
            a(f"s_lshr_b32 s{s_a}, s{s_n}, 2")
            a(f"s_add_u32 s{s_k}, s{s_k}, s{s_a}")
            a(f"s_add_u32 s{s_k}, s{s_k}, s{s_n}")
        elif G.rot == 6:
            a(f"s_mul_i32 s{s_k}, s{s_c}, 5")
            a(f"s_lshr_b32 s{s_k}, s{s_k}, 1")
            a(f"s_lshr_b32 s{s_a}, s{s_n}, 2")
            a(f"s_add_u32 s{s_k}, s{s_k}, s{s_a}")
            a(f"s_add_u32 s{s_k}, s{s_k}, s{s_n}")
        elif G.rot == 4:
            a(f"s_add_u32 s{s_k}, s{s_c}, s{s_n}")
            a(f"s_and_b32 s{s_k}, s{s_k}, 3")
            a(f"s_mul_i32 s{s_k}, s{s_k}, 5")
            a(f"s_lshr_b32 s{s_k}, s{s_k}, 1")
        else:
            a(f"s_mul_i32 s{s_k}, s{s_c}, 3")
            a(f"s_add_u32 s{s_k}, s{s_k}, s{s_n}")
            a(f"s_add_u32 s{s_k}, s{s_k}, s{s_a}")
        a(f"s_cmp_ge_u32 s{s_k}, 10")
        a(f"s_cselect_b32 s{s_a}, 10, 0")
        a(f"s_sub_u32 s{s_k}, s{s_k}, s{s_a}")
    else:
        a(f"s_mov_b32 s{s_k}, 0")
    a(f"s_and_b32 s{s_g}, s{s_wave}, 3")
    a(f"s_lshr_b32 s{s_kh}, s{s_wave}, 2")
    a(f"s_cbranch_scc0 {Lcons}")

    def common_ptrs():
        a("s_waitcnt lgkmcnt(0)")
        a(f"s_cmp_eq_u32 s{s_blk}, 0")
        a("s_cselect_b64 s[16:17], s[16:17], s[22:23]")
        a("s_cselect_b64 s[18:19], s[18:19], s[24:25]")
        a("s_cselect_b64 s[20:21], s[20:21], s[26:27]")
    def epoch_load():
        a(f"s_lshl_b32 s{s_a}, s{s_blk}, 7")
        a(f"s_add_u32 s{s_a}, s{s_a}, {FBASE+EOFF}")
        a(f"s_load_dword s{s_tag}, s[32:33], s{s_a}")
        make_srd(a, SF, 32, FBASE, EOFF + 0x1000)
    def epoch_fin():
        a("s_waitcnt lgkmcnt(0)")
        a(f"s_mul_i32 s{s_tag}, s{s_tag}, 0x9E3779B1")
        a(f"s_add_u32 s{s_tag}, s{s_tag}, 0x7F4A7C15")

    O = [0, 16, 32, 48]; S = [64, 80]; P = [96, 104]
    K1 = [112, 116, 120, 124]; K3 = [128, 130]; V = [132, 140, 148, 156]
    Q1 = [164, 168, 172, 176]; Q3 = [[180, 182, 184, 186], [188, 190, 192, 194]]
    KVD = 80; sa = [163, 164, 165, 166, 167]
    ka, k3a, va, gwo, gfv, gfd = 240, 241, 242, 243, 244, 245

    def att_addrs():
        a(f"s_lshl3_add_u32 s{s_a}, s{s_blk}, s{s_n}")
        a(f"s_lshl2_add_u32 s{s_a}, s{s_a}, s{s_g}")
        a(f"s_mul_i32 s{s_a}, s{s_a}, {HS}")
        make_srd(a, SKV, 32, f"s{s_a}", HS)
        a(f"v_lshlrev_b32 v{ka}, 4, v{lane}")
        a(f"v_lshlrev_b32 v{k3a}, 3, v{lane}")
        a(f"v_and_b32 v{T[0]}, 31, v{lane}")
        a(f"v_lshrrev_b32 v{T[1]}, 1, v{T[0]}")
        a(f"v_xor_b32 v{T[1]}, v{T[1]}, v{T[0]}")
        a(f"v_and_b32 v{T[1]}, 4, v{T[1]}")
        a(f"v_mul_u32_u24 v{T[1]}, 3, v{T[1]}")
        a(f"v_xor_b32 v{T[1]}, v{T[1]}, v{T[0]}")
        a(f"s_and_b32 s{s_a}, s{s_g}, 1")
        a(f"s_lshl_b32 s{s_a}, s{s_a}, 2")
        a(f"v_add_u32 v{T[1]}, s{s_a}, v{T[1]}")
        a(f"v_subrev_u32 v{T[2]}, 20, v{T[1]}")
        a(f"v_min_u32 v{T[1]}, v{T[1]}, v{T[2]}")
        a(f"v_lshrrev_b32 v{T[2]}, 5, v{lane}")
        a(f"v_mul_u32_u24 v{T[3]}, 320, v{T[2]}")
        a(f"v_lshl_add_u32 v{va}, v{T[1]}, 4, v{T[3]}")
        a(f"v_add_u32 v{va}, 2560, v{va}")
        a(f"s_and_b32 s{s_ko}, s{s_m}, 12")
        a(f"s_lshl1_add_u32 s{s_ko}, s{s_ko}, s{s_kh}")
        a(f"s_mul_i32 s{s_ko}, s{s_ko}, {PS}")
        a(f"s_mov_b32 s{s_vm}, 0x000fffff")
        a(f"s_mov_b32 s{s_vm+1}, 0x000fffff")
        a(f"s_lshl_b32 s{s_fg}, s{s_blk}, 9")
        a(f"s_add_u32 s{s_fg}, s{s_fg}, {GFOFF}")
        a(f"v_and_b32 v{gfv}, 3, v{lane}")
        a(f"v_lshlrev_b32 v{gfv}, 7, v{gfv}")
        a(f"s_min_u32 s{s_a}, s{s_wave}, 4")
        a(f"s_lshl_b32 s{s_b}, s{s_a}, 6")
        a(f"v_add_u32 v{T[0]}, s{s_b}, v{lane}")
        img_pos(a, T[0], T[1], T[2])
        a(f"s_movk_i32 s{s_c}, 1280")
        grp_src(a, gwo, T[1], T[2], s_c)
    def wo_scalars():
        make_srd(a, SW, 20, None, 640 * 1280)
        a(f"s_cmp_gt_u32 s{s_wave}, 4")
        a(f"s_cselect_b32 s{s_c}, {24*5120}, 0")
        a(f"s_lshl_b32 s{s_m0w}, s{s_wave}, 10")
        if G.wod: a(f"s_sub_u32 s{s_m0w}, s{s_m0w}, {G.wod*5120}")
        a(f"s_add_u32 s{s_m0w}, s{s_m0w}, s{s_c}")
        a(f"s_mul_i32 s{s_wo}, s{s_n}, 160")
        a(f"s_lshl3_add_u32 s{s_wo}, s{s_c}, s{s_wo}")
        if G.wod: a(f"s_sub_u32 s{s_wo}, s{s_wo}, {G.wod*32*1280}")
    def ld_k1(b): return f"buffer_load_dwordx4 {v(K1[b],4)}, v{ka}, {srd(SKV)}, s{s_ko} offen offset:{1024*(b&1)} sc1"
    def ld_k3(p): return f"buffer_load_dwordx2 {v(K3[p],2)}, v{k3a}, {srd(SKV)}, s{s_ko} offen offset:2048 sc1"
    def ld_v(b, m=s_vm):
        return (f"s_mov_b64 exec, s[{m}:{m+1}]\n"
                f"buffer_load_dwordx4 {v(V[b],4)}, v{va}, {srd(SKV)}, s{s_ko} offen offset:{1280*(b&1)} sc1\n"
                f"buffer_load_dwordx4 {v(V[b]+4,4)}, v{va}, {srd(SKV)}, s{s_ko} offen offset:{1280*(b&1)+640} sc1\n"
                f"s_mov_b64 exec, -1")
    def adv_pair():
        return [f"s_add_u32 s{s_ko}, s{s_ko}, {2*PS}", f"s_cmp_ge_u32 s{s_ko}, {HS}",
                f"s_cselect_b32 s{s_c}, {HS}, 0", f"s_sub_u32 s{s_ko}, s{s_ko}, s{s_c}"]
    def pad_value():
        a(f"v_and_b32 v{S[0]}, 31, v{lane}")
        a(f"v_cmp_eq_u32 vcc, 20, v{S[0]}")
        a(f"v_mov_b32 v{S[0]+1}, 0x3f803f80")
        a(f"v_mov_b64 {v(P[1],2)}, 0")
        a(f"v_cndmask_b32 v{S[0]}, 0, v{S[0]+1}, vcc")
        a(f"v_mov_b32 v{S[0]+1}, v{S[0]}")
    def pad(b):
        for r in range(0, 8, 2): a(f"v_mov_b64 {v(V[b]+r,2)}, {v(S[0],2)}")
    def zero_acc():
        for q in range(4): a(f"v_mfma_f32_32x32x8_bf16 {v(O[q],16)}, {v(P[1],2)}, {v(P[1],2)}, 0")
        for r in range(2, 8, 2): a(f"v_mov_b64 {v(P[1]+r,2)}, 0")
    own, oth, oa1, oa2, pf, tw = 253, 254, 225, 226, 227, 231
    wa4 = [220, 221, 222, 223, 224]; oc = [232, 233, 234, 235, 236]; ob = [216, 217, 218, 219, 228]; rb = [229, 230, 237, 238, 239]
    qa1, qa3 = 247, 248
    def q_prep():
        a(f"s_mul_i32 s{s_b}, s{s_g}, 5120")
        a(f"s_add_u32 s{s_b}, s{s_b}, {QAREA}")
        a(f"v_add_u32 v{qa1}, s{s_b}, v{ka}")
        a(f"v_and_b32 v{qa3}, 31, v{lane}")
        a(f"v_lshl_add_u32 v{qa3}, v{qa3}, 3, s{s_b}")
        for q in range(4):
            a(f"v_mov_b64 {v(Q3[0][q],2)}, 0")
            a(f"v_mov_b64 {v(Q3[1][q],2)}, 0")
    def q_reads(kh):
        qt = [r if kh else r ^ 2 for r in range(4)]
        a(f"ds_read_b128 {v(Q1[0],4)}, v{qa1} offset:{1280*qt[0]}")
        for h in range(2):
            a(f"s_mov_b32 exec_lo, {-1 if h == 0 else 0}")
            a(f"s_mov_b32 exec_hi, {0 if h == 0 else -1}")
            for q in range(4):
                a(f"ds_read_b64 {v(Q3[h][q],2)}, v{qa3} offset:{1280*qt[q]+1024}")
        a("s_mov_b64 exec, -1")
        for q in range(1, 4):
            a(f"ds_read_b128 {v(Q1[q],4)}, v{qa1} offset:{1280*qt[q]}")
    def o_base(dst, rows_sreg, nbytes):
        a(f"s_add_u32 s{dst}, s32, {OBASE}")
        a(f"s_addc_u32 s{dst+1}, s33, 0")
        if G.oin:
            a(f"s_cmp_eq_u32 s{s_loc}, 0")
            a(f"s_cselect_b64 s[{dst}:{dst+1}], s[{dst}:{dst+1}], s[28:29]")
        a(f"s_mul_i32 s{s_a}, s{rows_sreg}, 2560")
        a(f"s_mul_i32 s{s_b}, s{s_blk}, 1280")
        a(f"s_add_u32 s{s_a}, s{s_a}, s{s_b}")
        make_srd(a, dst, dst, f"s{s_a}", nbytes)
    first = [("K1", 0), ("K3", 0), ("V", 0), ("V", 0), ("K1", 1), ("V", 1), ("V", 1), ("K1", 2), ("V", 2), ("V", 2), ("K1", 3), ("K3", 1)]
    if G.v3: first += [("V", 3)] * 2
    def kv_first(with_pad):
        a(ld_k1(0)); a(ld_k3(0))
        if with_pad: pad_value(); pad(0)
        a(ld_v(0)); a(ld_k1(1))
        if with_pad: pad(1)
        a(ld_v(1))
        for x in adv_pair(): a(x)
        a(ld_k1(2))
        if with_pad: pad(2)
        a(ld_v(2)); a(ld_k1(3)); a(ld_k3(1))
        if with_pad: pad(3)
        if G.v3:
            a(ld_v(3))
            a("s_mov_b64 s[22:23], 0")

    XF = 0; ACC2 = 160; W2 = [200, 220]
    gx = [160, 161, 162, 163]; gw = [164, 165, 166, 167, 168]; gq = [251, 252, 253, 254, 245]
    wa2 = [246, 247, 248, 249, 250]; xa2 = [210, 211]
    setT(200)
    if G.fast0: a("s_setprio 3")
    a(f"v_lshrrev_b32 v{T[0]}, 4, v{lane}")
    a(f"v_xor_b32 v{T[0]}, v{T[0]}, v{lane}")
    a(f"v_and_b32 v{T[0]}, 7, v{T[0]}")
    a(f"v_lshrrev_b32 v{T[1]}, 3, v{lane}")
    a(f"v_mul_u32_u24 v{T[1]}, 1280, v{T[1]}")
    a(f"v_lshl_add_u32 v{gx[0]}, v{T[0]}, 4, v{T[1]}")
    a(f"v_xor_b32 v{gx[1]}, 64, v{gx[0]}")
    a(f"v_add_u32 v{gx[1]}, 9216, v{gx[1]}")
    a(f"v_add_u32 v{gx[2]}, 18432, v{gx[0]}")
    a(f"v_add_u32 v{gx[3]}, 18432, v{gx[1]}")
    rows = [212 + 2 * i for i in range(5)]
    def w_setup():
        a(f"s_movk_i32 s{s_c}, 3277")
        a(f"s_movk_i32 s{s_b}, 3520")
        a(f"v_lshlrev_b32 v{T[0]}, 4, v{lane}")
        a(f"v_mul_u32_u24 v{T[1]}, s{s_c}, v{lane}")
        for i in range(5):
            if i: a(f"v_add_u32 v{T[1]}, {64*3277}, v{T[1]}")
            a(f"v_lshrrev_b32 v{T[2]}, 16, v{T[1]}")
            a(f"v_mad_u32_u24 v{gw[i]}, v{T[2]}, s{s_b}, v{T[0]}")
            if i >= 2:
                a(f"v_subrev_u32 v{T[3]}, {2*3277}, v{T[1]}")
                a(f"v_lshrrev_b32 v{T[3]}, 16, v{T[3]}")
                a(f"v_sub_u32 v{T[3]}, v{T[2]}, v{T[3]}")
                a(f"v_mad_u32_u24 v{T[3]}, v{T[3]}, 10, -1")
                if i == 2:
                    a(f"v_lshrrev_b32 v{T[2]}, 3, v{T[2]}")
                    a(f"v_mul_i32_i24 v{T[3]}, v{T[3]}, v{T[2]}")
                a(f"v_lshl_add_u32 v{gw[i]}, v{T[3]}, 5, v{gw[i]}")
        a(f"v_add_u32 v{gw[4]}, 4096, v{gw[4]}")
    if not G.fast0: w_setup()
    a(f"s_lshl_b32 s{s_m0x}, s{s_g}, 12")
    a(f"s_mul_i32 s{s_m0w}, s{s_g}, 5120")
    a(f"s_add_u32 s{s_m0w}, s{s_m0w}, 16384")
    a(f"s_lshl2_add_u32 s{s_a}, s{s_m}, s{s_g}")
    a(f"s_mul_i32 s{s_a}, s{s_a}, {32*1280}")
    a(f"s_mul_i32 s{s_fg}, s{s_n}, 320")
    a(f"s_mul_i32 s{s_b}, s{s_g}, {16*3840}")
    a(f"s_add_u32 s{s_fg}, s{s_fg}, s{s_b}")
    a(f"s_add_u32 s{s_loc}, s{s_fg}, 1280")
    a(f"s_mov_b32 s{s_vo}, s{s_k}")
    if G.kst:
        a("s_getreg_b32 s98, hwreg(HW_REG_SHADER_CYCLES)") if False else None
        a("s_memrealtime s[92:93]")
    common_ptrs()
    if G.kst: a("s_mov_b32 s93, s92")
    make_srd(a, SX, 16, f"s{s_a}", 32 * 1280)
    make_srd(a, SW, 18, None, 640 * 3840)
    lseq = []
    def issue_stage(i):
        sl = (i & 3) * SLOT
        a(f"s_add_u32 m0, s{s_m0x}, {sl}")
        a(f"s_lshl_b32 s{s_xo}, s{s_k}, 7")
        for ii in range(4):
            a(f"buffer_load_dwordx4 v{gx[ii]}, {srd(SX)}, s{s_xo} offen offset:{1024*ii} lds")
        if i == 0 and G.fast0: w_setup()
        a(f"s_mul_i32 s{s_wo}, s{s_k}, {64*3840}")
        a(f"s_add_u32 m0, s{s_m0w}, {sl}")
        a(f"s_add_u32 s{s_wo}, s{s_wo}, s{s_loc}")
        for ii in range(4):
            a(f"buffer_load_dwordx4 v{gw[ii]}, {srd(SW)}, s{s_wo} offen offset:{1024*ii} lds")
        a(f"s_add_u32 m0, s{s_m0w}, {sl+4096}")
        a(f"s_add_u32 s{s_k}, s{s_k}, 1")
        a(f"buffer_load_dwordx4 v{gw[4]}, {srd(SW)}, s{s_wo} offen lds")
        if G.rot:
            a(f"s_cmp_eq_u32 s{s_k}, 10")
            a(f"s_cselect_b32 s{s_k}, 0, s{s_k}")
        lseq.extend([("st", i)] * 9)
    gbase = [2 * SLOT + g * 5120 for g in range(7)] + [SPARE] + [3 * SLOT + g * 5120 for g in range(7)] + [SPARE + 5120] + [g * 5120 for g in range(4)]
    def round_ins(R):
        o = []
        x = f"s_add_u32 s{s_wo}, s{s_st}, {R*4*32*3840}"
        if G.rot:
            x += f"\ns_cmp_ge_u32 s{s_wo}, {640*3840}\ns_cselect_b32 s{s_b}, {640*3840}, 0\ns_sub_u32 s{s_wo}, s{s_wo}, s{s_b}"
        gb = gbase[4 * R:4 * R + 4]
        assert gb[1] == gb[0] + 5120 and gb[2] == gb[0] + 10240
        x += f"\ns_add_u32 s{s_a}, s{s_m0w}, {(gb[0]-16384) & 0xffffffff}"
        if gb[3] != gb[0] + 15360:
            x += f"\ns_cmp_eq_u32 s{s_g}, 3\ns_cselect_b32 s{s_a}, {gb[3]}, s{s_a}"
        x += f"\ns_mov_b32 m0, s{s_a}\ns_add_u32 s{s_a}, s{s_a}, 4096"
        o.append(x)
        for ii in range(4):
            o.append(f"buffer_load_dwordx4 v{gq[ii]}, {srd(SW)}, s{s_wo} offen offset:{1024*ii} lds")
        o.append(f"s_mov_b32 m0, s{s_a}\ns_nop 0\nbuffer_load_dwordx4 v{gq[4]}, {srd(SW)}, s{s_wo} offen lds")
        lseq.extend([("R", R)] * 5)
        return o
    def issue_item(i):
        if i < 10: issue_stage(i)
        elif i < 15:
            for x in round_ins(i - 10): a(x)
    def lwait(key):
        return len(lseq) - 1 - max(i for i, x in enumerate(lseq) if x == key)
    stamp(a, 11)
    issue_stage(0)
    stamp(a, 12)
    epoch_load()
    a(f"s_lshl_b32 s{s_b}, s{s_g}, 12")
    x_addrs(a, xa2, s_b)
    a(f"v_and_b32 v{T[0]}, 15, v{lane}")
    a(f"v_lshlrev_b32 v{T[0]}, 2, v{T[0]}")
    a(f"v_add_u32 v{T[0]}, {RFLAG}, v{T[0]}")
    a(f"v_mov_b32 v{T[1]}, 0")
    a(f"ds_write_b32 v{T[0]}, v{T[1]}")
    for i in range(1, G.pro): issue_stage(i)
    stamp(a, 13)
    if G.fast0: a("s_setprio 0")
    epoch_fin()
    a(f"s_waitcnt vmcnt({lwait(('st',0))})")
    a("s_barrier")
    stamp(a, 1)
    for i in range(G.pro, G.la): issue_stage(i)
    xoff = 0
    for st in range(10):
        sl = (st & 3) * SLOT
        want = 0 if sl < 2 * SLOT else 2 * SLOT
        if want != xoff:
            for r in xa2:
                a(f"v_add_u32 v{r}, {want-xoff}, v{r}" if want > xoff else f"v_subrev_u32 v{r}, {xoff-want}, v{r}")
            xoff = want
        for ks in range(2):
            for ii in range(2):
                a(f"ds_read_b128 {v(XF+16*st+8*ks+4*ii,4)}, v{xa2[ks]} offset:{sl-xoff+2048*ii}")
        if st == 0:
            a(f"s_movk_i32 s{s_c}, 3840")
            for i in range(5):
                if i: a(f"v_add_u32 v{T[0]}, {64*i}, v{lane}")
                img_pos(a, T[0] if i else lane, rows[i], rows[i] + 1)
                grp_src(a, gq[i], rows[i], rows[i] + 1, s_c)
                if i & 3: a(f"v_subrev_u32 v{gq[i]}, {1024*i}, v{gq[i]}")
            a(f"s_lshl1_add_u32 s{s_st}, s{s_vo}, s{s_g}")
            a(f"s_mul_i32 s{s_st}, s{s_st}, {32*3840}")
            a(f"s_mul_i32 s{s_a}, s{s_n}, 160")
            a(f"s_add_u32 s{s_st}, s{s_st}, s{s_a}")
        if st == 1: tr_addrs(a, wa2, True, True, None, 0)
        if st == 2:
            att_addrs()
        if st == 4 and G.warm:
            a("s_mov_b64 exec, 0")
            for c in range(3):
                a(f"s_cmp_eq_u32 s{s_g}, {c}")
                a(f"s_cbranch_scc1 Lpad_{c}_0")
            a("s_branch Lpad_3_0")
            a(".PADRET")
            a("s_mov_b64 exec, -1")
        key = ("st", st + 1) if st < 9 else ("R", 0)
        a(f"s_waitcnt vmcnt({lwait(key)}) lgkmcnt(0)")
        a("s_barrier")
        if st < 9: issue_item(st + G.la)
    stamp(a, 2)
    pre = {}
    nxt = G.la - 1
    if G.p2prio: a(f"s_setprio {G.p2prio}")
    ins_at = {}
    for R in range(nxt, 5):
        g0 = G.dst * (R - nxt) + G.dsh
        if G.dst >= 3:
            ins_at[g0] = (R, 0, 3); ins_at[g0 + 1] = (R, 3, 5); ins_at[g0 + 2] = (R, 5, 6)
        else:
            ins_at[g0] = (R, 0, 4); ins_at[g0 + 1] = (R, 4, 6)
    cache = {}
    fw, fr, fo, fd = 4, 5, 6, 7
    spins = []
    for g in range(20):
        pre[("x", g)] = []
        R1 = g // 4 + 1
        if g == 1:
            pre[("h", g)] = [f"s_lshl2_add_u32 s{s_c}, s{s_g}, {RFLAG}", f"v_mov_b32 v{fw}, s{s_c}", f"v_and_b32 v{fr}, 3, v{lane}",
                             f"v_lshlrev_b32 v{fr}, 2, v{fr}", f"v_add_u32 v{fr}, {RFLAG}, v{fr}", f"v_mov_b32 v{fo}, 1"]
        if g % 4 == 1 and g < 16:
            assert lseq.count(("R", R1)) == 5
            pre[("x", g)] += [f"s_waitcnt vmcnt({lwait(('R', R1))})\nds_write_b32 v{fw}, v{fo} offset:{16*(R1-1)}"]
        if g % 4 == 2 and g < 16:
            pre[("x", g)] += [f"ds_read_b32 v{fd}, v{fr} offset:{16*(R1-1)}"]
        if g % 4 == 3 and g < 16:
            Ls, Lb = a.label("rs"), a.label("rb")
            spins.append((Ls, Lb, R1))
            pre[("h", g)] = ["s_waitcnt lgkmcnt(8)", f"v_cmp_ne_u32 vcc, 1, v{fd}", f"s_cbranch_vccnz {Ls}", f"{Lb}:"]
        if g in ins_at:
            R, lo, hi = ins_at[g]
            if R not in cache:
                cache[R] = round_ins(R)
                del lseq[-5:]
            pre[("x", g)] += cache[R][lo:hi]
            lseq.extend([("R", R)] * sum(x.count("buffer_load") for x in cache[R][lo:hi]))
    qa, qb, md = 0, 1, 2
    half = [f"v_lshrrev_b32 v{qa}, 4, v{lane}", f"v_mul_u32_u24 v{qa}, 5120, v{qa}", f"s_mul_i32 s{s_b}, s{s_g}, 1280",
            f"s_add_u32 s{s_b}, s{s_b}, {QAREA}", f"v_add_u32 v{qa}, s{s_b}, v{qa}"]
    pre[("x", 16)] = half
    pre[("x", 17)] = [f"v_and_b32 v{md}, 15, v{lane}", f"v_lshl_add_u32 v{qb}, v{md}, 3, v{qa}", f"v_lshl_add_u32 v{qa}, v{md}, 4, v{qa}",
                      f"s_mov_b32 s{s_a}, {QSCALE:#x}\ns_mov_b32 s{s_b}, {QSCALE:#x}"]
    if G.pwb is not None:
        Lwb = a.label("pwb")
        pre[("x", G.pwb)].append(f"s_lshr_b32 s{s_c}, s2, 3\ns_or_b32 s{s_c}, s{s_c}, s{s_g}\ns_cbranch_scc1 {Lwb}\nbuffer_wbl2 sc1\n{Lwb}:")
    small_gemm(a, XF, ACC2, W2, wa2, gbase, pre)
    stamp(a, 3)
    a("s_nop 4")
    assert s_a % 2 == 0 and s_b == s_a + 1
    for ii in range(2):
        r = ACC2 + 20 * ii
        pad_hop(a, 0)
        for e in range(10):
            a(f"v_pk_mul_f32 {v(r+2*e,2)}, {v(r+2*e,2)}, s[{s_a}:{s_b}]")
        for e in range(10):
            a(f"v_cvt_pk_bf16_f32 v{r+e}, v{r+2*e}, v{r+2*e+1}")
        a(f"ds_write_b128 v{qa}, {v(r,4)} offset:{256*ii}")
        a(f"ds_write_b128 v{qa}, {v(r+4,4)} offset:{256*ii+512}")
        a(f"ds_write_b64 v{qb}, {v(r+8,2)} offset:{128*ii+1024}")
    a("s_waitcnt lgkmcnt(0)")
    a(f"v_mov_b32 v{gfd}, {MODE_LDS}")
    a("s_barrier")
    a(f"ds_read_b32 v{gfd}, v{gfd}")
    a("s_setprio 0")
    stamp(a, 4)
    pad_hop(a, 1)
    kv_first(True)
    pad_hop(a, 1)
    q_prep()
    q_reads(1)
    zero_acc()
    wo_scalars()
    make_srd(a, SO, 32, None, 0)
    a("s_waitcnt lgkmcnt(12)")
    a(f"v_readfirstlane_b32 s{s_loc}, v{gfd}")
    a("s_nop 1")
    a(f"s_and_b32 s{s_loc}, s{s_loc}, 1")
    a(f"s_lshl_b32 s{s_st}, s{s_loc}, 2")

    a(f"{Latt}:")
    setT(247)
    a(f"s_mov_b32 s{s_it}, 0")

    def qk1(sb, q, t): return f"v_mfma_f32_32x32x16_bf16 {v(S[sb],16)}, {v(K1[t],4)}, {v(Q1[q],4)}, 0"
    def qk2(sb, q, t): return f"v_mfma_f32_32x32x8_bf16 {v(S[sb],16)}, {v(K3[t>>1],2)}, {v(Q3[t&1][q],2)}, {v(S[sb],16)}"
    def pv(pb, q, t, h): return f"v_mfma_f32_32x32x16_bf16 {v(O[q],16)}, {v(V[t]+4*h,4)}, {v(P[pb]+4*h,4)}, {v(O[q],16)}"
    def ex(q, r): return f"v_exp_f32 v{S[q]+r}, v{S[q]+r}"
    def cv(q, r): return f"v_cvt_pk_bf16_f32 v{P[q]+r//2}, v{S[q]+r}, v{S[q]+r+1}"
    wo_dma = [f"s_min_u32 s{s_c}, s{s_m0w}, 0x20000", f"s_add_u32 m0, s{s_c}, {WOBASE}", f"s_add_u32 s{s_m0w}, s{s_m0w}, 5120",
              f"buffer_load_dwordx4 v{gwo}, {srd(SW)}, s{s_wo} offen lds", f"s_add_u32 s{s_wo}, s{s_wo}, {32*1280}"]
    plan = {}
    for tt in range(4):
        pb = (tt - 1) % 4
        plan[(tt, 1)] = ([ld_v(pb)], [("V", pb)] * 2)
        if G.v3 and pb == 3: plan[(tt, 1)] = ([ld_v(pb, 22), f"s_mov_b64 s[22:23], s[{s_vm}:{s_vm+1}]"], [("V", pb)] * 2)
        if tt & 1:
            plan[(tt, 3)] = ([ld_k1(tt), ld_k3(tt >> 1)], [("K1", tt), ("K3", tt >> 1)])
        else:
            plan[(tt, 3)] = ([ld_k1(tt)], [("K1", tt)])
            plan[(tt, 2)] = (adv_pair(), [])
        if tt > 0 and not G.nowo:
            plan[(tt, 0)] = (wo_dma, [("WO",)])
    order = [(tt, q) for tt in range(4) for q in range(4)]
    names = []; pos = {}
    for rep in range(2):
        for key in order:
            if rep == 1: pos[key] = len(names)
            names += plan.get(key, ([], []))[1]
    def need(tt):
        nt = (tt + 1) % 4
        return [("K1", nt), ("V", nt), ("K3", nt >> 1)]
    n0 = list(first); waits = {}
    for key in order:
        if key[1] == 3:
            p = pos[key]
            w1 = p - 1 - max(max(i for i in range(p) if names[i] == k) for k in need(key[0]))
            w2 = len(n0) - 1 - max(max(i for i in range(len(n0)) if n0[i] == k) for k in need(key[0]))
            waits[key[0]] = min(w1, w2)
        n0 += plan.get(key, ([], []))[1]
    a(f"s_waitcnt vmcnt({len(first)-4}) lgkmcnt(0)")
    stamp(a, 5)
    a(qk1(0, 0, 0)); a(qk2(0, 0, 0))
    a("s_setprio 3")
    a("s_nop 7")
    a("s_nop 3")
    L = a.label("al")
    a(".p2align 6")
    a(f"{L}:")
    hooks = {G.hst: (0, a.label("hA"), a.label("hAb")), G.hchk: (0, a.label("hK"), a.label("hKb")), G.hpub: (0, a.label("hP"), a.label("hPb")),
             G.hsam: (3, a.label("hB"), a.label("hBb")), (0, 2): (4, a.label("hC"), a.label("hCb")),
             G.hl: (None, a.label("hL"), a.label("hLb"))}
    LhW, LhWb = a.label("hW"), a.label("hWb")
    F = [O[2], O[3]]; Rv = [O[0], O[1]]
    cum = [sum(G.lens[:i]) for i in range(4)]
    step = 0
    for tt in range(4):
        for q in range(4):
            c = q & 1; o = 1 - c
            nq, nt = (q + 1, tt) if q < 3 else (0, (tt + 1) % 4)
            pq, pt = (q - 1, tt) if q > 0 else (3, (tt - 1) % 4)
            extra = list(plan.get((tt, q), ([], []))[0])
            if q & 1: pad_hop(a, 1)
            if (tt, q) in hooks:
                bit, lo, lb = hooks[(tt, q)]
                a(f"s_bitcmp1_b32 s{s_st}, {bit}" if bit is not None else f"s_cmp_eq_u32 s{s_it}, {G.iters-1}")
                a(f"s_cbranch_scc1 {lo}")
                a(f"{lb}:")
            if (tt, q) == (3, 3) and G.early:
                a(f"s_cbranch_scc0 {LhW}")
                a(f"{LhWb}:")
            if q == 3: a(f"s_waitcnt vmcnt({waits[tt]})")
            if (tt, q) == (3, 1): extra += [f"s_lshl_b32 s{s_st}, s{s_st}, 1"]
            if (tt, q) == (3, 2): extra += [f"s_add_u32 s{s_it}, s{s_it}, 1", f"s_cmp_lt_u32 s{s_it}, {G.iters}"]
            ms = [qk1(o, nq, nt), qk2(o, nq, nt), pv(o, pq, pt, 0), pv(o, pq, pt, 1)]
            for j in range(4):
                a(ms[j])
                if j: a(cv(c, 4 * j - 2))
                for e in range(3):
                    a(ex(c, 4 * j + e))
                    if extra and (G.xpos == 0 or (G.xpos == 1 and e == 1) or (G.xpos == 2 and e != 0) or (G.xpos == 3 and e == 0) or j == 3): a(extra.pop(0))
                if j < 3:
                    a(cv(c, 4 * j)); a(ex(c, 4 * j + 3))
                else:
                    a(ex(c, 15)); a(cv(c, 12))
            n = (step + 1) % sum(G.lens)
            if n in cum: a(f"s_setprio {3 - cum.index(n)}")
            a(cv(c, 14))
            step += 1
    if G.itst:
        a("s_memtime s[96:97]")
        for r in range(86, 95): a(f"s_mov_b32 s{r}, s{r+1}")
        a("s_waitcnt lgkmcnt(0)")
        a("s_mov_b32 s95, s96")
    a(f"s_cbranch_scc1 {L}")
    a("s_nop 0")
    a(pv(1, 3, 3, 0)); a(pv(1, 3, 3, 1))
    a("s_setprio 0")
    Lslow = a.label("slow"); Lst = a.label("store")
    def send():
        for i in range(2):
            for gq_ in range(3):
                a(f"ds_write_b128 v{own}, {v(O[i]+4*gq_,4)} offset:{(i*3+gq_)*1024}")
    stamp(a, 6)
    if not G.early: send()
    a("s_waitcnt vmcnt(0) lgkmcnt(0)")
    a("s_barrier")
    for i in range(2):
        for gq_ in (2, 0, 1):
            a(f"ds_read_b128 {v(Rv[i]+4*gq_,4)}, v{oth} offset:{(i*3+gq_)*1024}")
    for i in range(2):
        a(f"s_waitcnt lgkmcnt({3-3*i})")
        for r in (8, 10, 0, 2, 4, 6):
            a(f"v_pk_add_f32 {v(F[i]+r,2)}, {v(F[i]+r,2)}, {v(Rv[i]+r,2)}")
    a(f"s_mov_b32 s{s_c}, 0")
    a(f"{Lst}:")
    for i in range(2):
        a(f"v_mov_b32 v{F[i]+12}, v{F[i]+8}")
        a(f"v_mov_b32 v{F[i]+13}, v{F[i]+8}")
    a(f"s_mov_b32 s{s_b}, {32*2560}")
    a(f"s_cmp_eq_u32 s{s_loc}, 0")
    for i in range(2):
        a(f"v_permlane32_swap_b32 v{F[i]+13}, v{F[i]+12}")
    a("s_nop 0")
    a(f"v_rcp_f32 v{F[0]+14}, v{F[0]+12}")
    a(f"v_rcp_f32 v{F[1]+14}, v{F[1]+12}")
    Log = a.label("og"); Loj = a.label("oj"); Lo2 = a.label("o2"); Lo3 = a.label("o3"); Lok = a.label("ok")
    a(f"s_cbranch_scc1 {Log}")
    for fl in (G.olst, "sc1"):
        for q in range(2):
            for r in range(0, 12, 2):
                a(f"v_pk_mul_f32 {v(F[q]+r,2)}, {v(F[q]+r,2)}, {v(F[q]+14,2)} op_sel_hi:[1,0]")
            for e in range(6):
                a(f"v_cvt_pk_bf16_f32 v{Rv[q]+e}, v{F[q]+2*e}, v{F[q]+2*e+1}")
            so = "0" if q == 0 else f"s{s_b}"
            a(f"buffer_store_dwordx4 {v(Rv[q],4)}, v{oa1}, {srd(SO)}, {so} offen {fl}")
            a(f"buffer_store_dwordx2 {v(Rv[q]+4,2)}, v{oa2}, {srd(SO)}, {so} offen {fl}")
        if fl != "sc1":
            a(f"s_branch {Loj}")
            a(f"{Log}:")
    a(f"{Loj}:")
    a(f"s_cmp_lg_u32 s{s_c}, 0")
    a(f"s_cbranch_scc1 {Lok}")
    a(f"s_mov_b32 s{s_a}, 0x2b800000")
    a(f"s_mov_b32 s{s_b}, 0x5d800000")
    for r in range(0, 12, 2):
        for q in range(2):
            if r == 0: a(f"v_pk_mul_f32 {v(F[q]+14,2)}, {v(F[q],2)}, 0 op_sel_hi:[1,0]")
            else: a(f"v_pk_fma_f32 {v(F[q]+14,2)}, {v(F[q]+r,2)}, 0, {v(F[q]+14,2)} op_sel_hi:[1,0,1]")
    a(f"v_min_f32 v{T[0]}, v{F[0]+12}, v{F[1]+12}")
    a(f"v_max_f32 v{T[1]}, v{F[0]+12}, v{F[1]+12}")
    a(f"v_cmp_o_f32 vcc, v{F[0]+14}, v{F[0]+15}")
    a(f"v_cmp_o_f32 s[16:17], v{F[1]+14}, v{F[1]+15}")
    a(f"v_cmp_le_f32 s[18:19], s{s_a}, v{T[0]}")
    a(f"v_cmp_ge_f32 s[22:23], s{s_b}, v{T[1]}")
    a(f"s_and_b64 vcc, vcc, s[16:17]")
    a(f"s_and_b64 s[18:19], s[18:19], s[22:23]")
    a(f"s_and_b64 vcc, vcc, s[18:19]")
    a("s_cmp_eq_u64 vcc, -1")
    a(f"s_cbranch_scc0 {Lslow}")
    a(f"{Lok}:")
    NW4 = 6; NX = 7
    W4 = [56 + 20 * i for i in range(NW4)]; A4 = 176
    Lfin = a.label("fin"); Lsk = a.label("sk")
    cur = [0]
    def rd4(h, j, t):
        o = ""
        if h == 12 and j == 0 and t == 0:
            o = "".join(f"v_add_u32 v{wa4[k]}, {12*5120}, v{wa4[k]}\n" for k in range(5)); cur[0] = 12 * 5120
        return o + f"ds_read_b64_tr_b16 {v(W4[h%NW4]+4*j+2*t,2)}, v{wa4[j]} offset:{5120*h-cur[0]+1280*t}"
    a(f"s_cmp_lg_u32 s{s_kh}, 0")
    a(f"s_cbranch_scc1 {Lsk}")
    for h in range(1, 4):
        for j in range(5):
            a(rd4(h, j, 0)); a(rd4(h, j, 1))
    a(f"{Lsk}:")
    a(f"s_cmp_eq_u32 s{s_loc}, 0")
    a("s_waitcnt vmcnt(0)")
    a(f"s_cbranch_scc1 {Lo2}")
    flag_store(a, s_vo, True)
    a(f"s_branch {Lo3}")
    a(f"{Lo2}:")
    flag_store(a, s_vo, False)
    a(f"{Lo3}:")
    stamp(a, 7); stamp(a, 8); stamp(a, 9)
    a(f"s_cmp_lg_u32 s{s_kh}, 0")
    a(f"s_cbranch_scc1 {Lfin}")
    for h in (0, 4, 5):
        for j in range(5):
            a(rd4(h, j, 0)); a(rd4(h, j, 1))
    a(f"s_lshl2_add_u32 s{s_a}, s{s_m}, s{s_g}")
    a(f"s_mul_i32 s{s_a}, s{s_a}, {32*2560}")
    a(f"s_mul_i32 s{s_b}, s{s_blk}, 1280")
    a(f"s_add_u32 s{s_a}, s{s_a}, s{s_b}")
    a(f"s_mul_i32 s{s_b}, s{s_n}, 160")
    a(f"s_add_u32 s{s_a}, s{s_a}, s{s_b}")
    make_srd(a, SKV, 28, f"s{s_a}", 31 * 2560 + 160)
    poll(a, pf, f"s{s_xo}", T[0])
    stamp(a, 8)
    assert G.oa < NX
    def xf(g, ii): return 8 * (g % NX) + 4 * ii
    def ld_o(g, ii):
        o = f"s_mov_b32 s{s_a}, {10240*(g//5)}\ns_mov_b32 s{s_b}, {10240*(g//5)+16*2560}\n" if (g % 5 == 0 and ii == 0) else ""
        return o + f"buffer_load_dwordx4 {v(xf(g,ii),4)}, v{ob[g%5]}, {srd(SX)}, s{[s_a, s_b][ii]} offen sc1"
    for g in range(G.oa):
        a(ld_o(g, 0)); a(ld_o(g, 1))
    allr = [(h, j, t) for h in range(NW4, 20) for j in range(5) for t in range(2)]
    issued = 0
    for g in range(20):
        lg = 0 if g == 0 else (14 if g < NW4 else issued - 10 * (g - NW4 + 1))
        assert lg >= 0
        vm = 2 * (min(20, g + G.oa) - g - 1)
        if G.oin and g == 18: vm = 0
        if G.oin and g == 19: vm = 63
        a(f"s_waitcnt vmcnt({vm}) lgkmcnt({min(lg, 14)})")
        if G.oin and g == 18:
            a(f"s_lshl2_add_u32 s{s_a}, s{s_n}, s{s_m0x}")
            flag_store(a, s_a, True)
        todo = allr[issued:issued + G.rpg] if g >= 1 else []
        todo = [x for x in todo if x[0] - NW4 < g]
        issued += len(todo)
        ex_ = [rd4(*x) for x in todo]
        if g + G.oa < 20:
            ex_.insert(0, ld_o(g + G.oa, 0)); ex_.insert(min(5, len(ex_)), ld_o(g + G.oa, 1))
        for j in range(5):
            for ii in range(2):
                d = v(A4 + 4 * (5 * ii + j), 4)
                a(f"v_mfma_f32_16x16x32_bf16 {d}, {v(W4[g%NW4]+4*j,4)}, {v(xf(g,ii),4)}, {d if g else 0}")
                if ex_: a(ex_.pop(0))
        for x in ex_: a(x)
    stamp(a, 9)
    if G.oin:
        a(f"v_and_b32 v{pf}, 28, v{T[4]}")
        a(f"buffer_load_dword v{T[0]}, v{pf}, {srd(SF)}, s{s_m0x} offen sc1")
    for j in range(5):
        if j == 4: a("s_nop 1")
        for ii in range(2):
            r = A4 + 4 * (5 * ii + j)
            a(f"v_cvt_pk_bf16_f32 v{r}, v{r}, v{r+1}")
            a(f"v_cvt_pk_bf16_f32 v{r+1}, v{r+2}, v{r+3}")
            a(f"ds_write_b64 v{tw}, {v(r,2)} offset:{8*j+16*176*ii}")
    a("s_waitcnt lgkmcnt(0)")
    for i in range(5): a(f"ds_read_b128 {v(4*i,4)}, v{rb[i]}")
    if G.oin:
        Lgo = a.label("go")
        a(f"s_cmp_eq_u32 s{s_loc}, 0")
        a(f"s_cbranch_scc1 {Lgo}")
        a("s_waitcnt vmcnt(0)")
        a(f"v_cmp_ne_u32 vcc, s{s_tag}, v{T[0]}")
        a(f"s_cbranch_vccz {Lgo}")
        poll(a, pf, f"s{s_m0x}", T[0])
        a(f"{Lgo}:")
    for i in range(5):
        a(f"s_waitcnt lgkmcnt({4-i})")
        a(f"buffer_store_dwordx4 {v(4*i,4)}, v{oc[i]}, {srd(SKV)}, 0 offen {G.ost}")
    a(f"s_or_b32 s{s_a}, s{s_m}, s{s_n}")
    a(f"s_or_b32 s{s_a}, s{s_a}, s{s_wave}")
    a(f"s_cbranch_scc1 {Lfin}")
    a(f"s_lshl_b32 s{s_b}, s{s_blk}, 7")
    a(f"s_add_u32 s{s_b}, s{s_b}, {EOFF}")
    flag_store(a, s_b, False)
    a(f"{Lfin}:")
    dump_stamps(a, 10)
    a(f"{Lend}:")
    a("s_endpgm")

    a(f"{Lcons}:")
    setT(247)
    ACC = 0
    X = [[80 + 16 * b + 4 * i for i in range(4)] for b in range(2)]
    W = [[112 + 20 * b + 4 * j for j in range(5)] for b in range(2)]
    xa = [152, 153]; wa = [154, 155, 156, 157, 158]; xt, xv = 159, 160
    s_wm, s_wn = s_xo, s_wo
    a(f"s_and_b32 s{s_wm}, s{s_wave}, 1")
    a(f"s_lshr_b32 s{s_wn}, s{s_wave}, 1")
    a(f"s_lshl_b32 s{s_b}, s{s_wm}, 13")
    x_addrs(a, xa, s_b)
    for r in range(0, 80, 2): a(f"v_mov_b64 {v(ACC+r,2)}, 0")
    common_ptrs()
    epoch_load()
    att_addrs()
    a(f"s_and_b32 s{s_a}, s{s_n}, 3")
    a(f"s_lshl2_add_u32 s{s_a}, s{s_blk}, s{s_a}")
    a(f"s_lshl1_add_u32 s{s_a}, s{s_a}, s{s_wn}")
    a(f"s_mul_i32 s{s_a}, s{s_a}, {4*HS}")
    a(f"s_lshl1_add_u32 s{s_b}, s{s_m}, s{s_wm}")
    a(f"s_mul_i32 s{s_b}, s{s_b}, {PS}")
    a(f"s_add_u32 s{s_a}, s{s_a}, s{s_b}")
    make_srd(a, SO, 32, f"s{s_a}", 3 * HS + PS)
    a(f"s_lshl3_add_u32 s{s_a}, s{s_blk}, s{s_n}")
    a(f"s_lshl1_add_u32 s{s_a}, s{s_a}, s{s_wn}")
    a(f"s_lshl4_add_u32 s{s_a}, s{s_a}, s{s_m}")
    a(f"s_lshl1_add_u32 s{s_vo}, s{s_a}, s{s_wm}")
    a(f"s_lshr_b32 s{s_k}, s{s_vo}, 3")
    a(f"s_lshl_b32 s{s_k}, s{s_k}, 7")
    a(f"s_and_b32 s{s_a}, s{s_vo}, 7")
    a(f"s_lshl2_add_u32 s{s_k}, s{s_a}, s{s_k}")
    a(f"s_add_u32 s{s_k}, s{s_k}, {FLOFF}")
    a(f"s_and_b32 s{s_vo}, s2, 7")
    a(f"s_lshl_b32 s{s_vo}, s{s_vo}, 7")
    a(f"s_add_u32 s{s_vo}, s{s_vo}, {GFOFF}")
    epoch_fin()
    a(f"s_getreg_b32 s{s_loc}, hwreg(HW_REG_XCC_ID)")
    a(f"s_and_b32 s{s_loc}, s{s_loc}, 15")
    a(f"s_add_u32 s{s_loc}, s{s_loc}, s{s_tag}")
    a(f"s_and_b32 s{s_a}, s2, 7")
    a(f"s_lshl_b32 s{s_m0w}, s{s_a}, 12")
    a(f"s_add_u32 s{s_m0w}, s{s_m0w}, {XOFF}")
    a(f"s_lshr_b32 s{s_a}, s2, 3")
    a(f"s_lshl_b32 s{s_a}, s{s_a}, 7")
    a(f"s_add_u32 s24, s{s_a}, s{s_m0w}")
    a(f"s_cmp_eq_u32 s{s_wave}, 0")
    a(f"s_cselect_b32 s25, 1, 99")
    a(f"v_and_b32 v{xv}, 31, v{lane}")
    a(f"v_lshlrev_b32 v{xv}, 7, v{xv}")
    qv, fv = 161, 246
    a(f"v_min_u32 v{T[0]}, {G.nkv}, v{lane}")
    a(f"s_and_b32 s{s_a}, s{s_m}, 3")
    a(f"s_mul_i32 s{s_a}, s{s_a}, {(G.nkv+1)*128}")
    a(f"v_lshl_add_u32 v{qv}, v{T[0]}, 7, s{s_a}")
    a(f"s_lshl4_add_u32 s{s_st}, s{s_blk}, s{s_n}")
    a(f"s_lshr_b32 s{s_a}, s{s_m}, 2")
    a(f"s_lshl2_add_u32 s{s_st}, s{s_st}, s{s_a}")
    a(f"s_lshl_b32 s{s_st}, s{s_st}, 7")
    a(f"s_add_u32 s{s_st}, s{s_st}, {FLOFF}")
    a(f"v_and_b32 v{T[0]}, 7, v{lane}")
    a(f"v_lshrrev_b32 v{T[1]}, 5, v{lane}")
    a(f"v_lshlrev_b32 v{T[0]}, 2, v{T[0]}")
    a(f"v_lshl_add_u32 v{fv}, v{T[1]}, 12, v{T[0]}")
    if G.tKV == 1: a(f"buffer_load_dword v{xt}, v{qv}, {srd(SKV)}, s{s_ko} offen sc1")
    tr_addrs(a, wa4, True, True, None, WOBASE)
    a(f"v_and_b32 v{T[0]}, 15, v{lane}")
    a(f"v_lshrrev_b32 v{T[1]}, 4, v{lane}")
    a(f"s_movk_i32 s{s_a}, 1280")
    for b in range(5):
        a(f"v_add_u32 v{T[2]}, {4*b}, v{T[1]}")
        a(f"v_mul_u32_u24 v{T[3]}, 205, v{T[2]}")
        a(f"v_lshrrev_b32 v{T[3]}, 10, v{T[3]}")
        a(f"v_lshlrev_b32 v{T[2]}, 8, v{T[2]}")
        a(f"v_mad_u32_u24 v{T[2]}, v{T[3]}, s{s_a}, v{T[2]}")
        a(f"v_lshl_add_u32 v{ob[b]}, v{T[0]}, 4, v{T[2]}")
    a(f"s_xor_b32 s{s_b}, s{s_wave}, 4")
    a(f"s_mul_i32 s{s_b}, s{s_b}, 6144")
    a(f"v_mul_u32_u24 v{T[0]}, 176, v{T[0]}")
    a(f"v_mad_u32_u24 v{T[0]}, v{T[1]}, 40, v{T[0]}")
    a(f"v_add_u32 v{tw}, s{s_b}, v{T[0]}")
    a(f"s_movk_i32 s{s_a}, {2560-160}")
    for i in range(5):
        a(f"v_add_u32 v{T[0]}, {64*i}, v{lane}")
        a(f"v_mul_u32_u24 v{T[1]}, 6554, v{T[0]}")
        a(f"v_lshrrev_b32 v{T[1]}, 16, v{T[1]}")
        a(f"v_lshlrev_b32 v{T[0]}, 4, v{T[0]}")
        a(f"v_mad_u32_u24 v{oc[i]}, v{T[1]}, s{s_a}, v{T[0]}")
        a(f"v_lshl_add_u32 v{T[0]}, v{T[1]}, 4, v{T[0]}")
        a(f"v_add_u32 v{rb[i]}, s{s_b}, v{T[0]}")
    a(f"v_mov_b64 v[226:227], 0")
    a(f"v_mov_b32 v{oa1}, 0")
    a(f"s_mov_b32 s{s_it}, 0")
    a(f"s_mov_b32 s{s_m0x}, {(-3*SLOT) & 0xffffffff}")
    a(f"s_cmp_ge_u32 s{s_n}, 4")
    a(f"s_cbranch_scc1 {Lv}")

    def p1_reads(ks, b):
        out = [f"ds_read_b128 {v(X[b][i],4)}, v{xa[ks]} offset:{2048*i}" for i in range(4)]
        for j in range(5):
            for t in range(2):
                out.append(f"ds_read_b64_tr_b16 {v(W[b][j]+2*t,2)}, v{wa[j]} offset:{ks*10240+1280*t}")
        return out
    st_code = {}
    Lcj = a.label("cj")
    def consumer(ktype):
        tr_addrs(a, wa, ktype, False, s_wn, 16384)
        if ktype:
            a(f"v_lshrrev_b32 v{T[0]}, 4, v{lane}")
            a(f"s_mov_b32 s{s_a}, {HS}")
            a(f"v_mul_lo_u32 v{T[0]}, v{T[0]}, s{s_a}")
            a(f"v_and_b32 v{T[1]}, 7, v{lane}")
            a(f"v_and_b32 v{T[2]}, 8, v{lane}")
            a(f"v_lshl_add_u32 v{T[1]}, v{T[2]}, 1, v{T[1]}")
            a(f"v_lshl_add_u32 v{sa[0]}, v{T[1]}, 4, v{T[0]}")
            a(f"v_lshl_add_u32 v{sa[1]}, v{T[1]}, 3, v{T[0]}")
        else:
            a(f"v_lshrrev_b32 v{T[0]}, 4, v{lane}")
            a(f"v_mul_u32_u24 v{T[0]}, 320, v{T[0]}")
            a(f"v_and_b32 v{T[1]}, 15, v{lane}")
            a(f"s_mov_b32 s{s_a}, {HS-320}")
            for j in range(5):
                a(f"v_add_u32 v{T[2]}, {16*j}, v{T[1]}")
                a(f"v_mul_u32_u24 v{T[3]}, 3277, v{T[2]}")
                a(f"v_lshrrev_b32 v{T[3]}, 16, v{T[3]}")
                a(f"v_lshl_add_u32 v{T[2]}, v{T[2]}, 4, v{T[0]}")
                a(f"v_mad_u32_u24 v{sa[j]}, v{T[3]}, s{s_a}, v{T[2]}")
        def mf(b):
            out = []
            for j in range(5):
                for i in range(4):
                    d = v(ACC + 4 * (5 * i + j), 4)
                    A, B = (W[b][j], X[b][i]) if ktype else (X[b][i], W[b][j])
                    out.append(f"v_mfma_f32_16x16x32_bf16 {d}, {v(A,4)}, {v(B,4)}, {d}")
            return out
        Lp = a.label("p1"); Ll = a.label("p1l")
        if G.kst: stamp(a, 14)
        a("s_barrier")
        stamp(a, 1)
        for x in p1_reads(0, 0): a(x)
        a(f"{Lp}:")
        a("s_waitcnt lgkmcnt(8)")
        e = p1_reads(1, 1) + [f"s_add_u32 s{s_it}, s{s_it}, 1", f"s_and_b32 s{s_a}, s{s_it}, 3",
                              f"s_cselect_b32 s{s_a}, {SLOT}, s{s_m0x}", f"s_cmp_eq_u32 s{s_it}, 10"]
        for k, x in enumerate(mf(0)):
            if k == 4: a("s_waitcnt lgkmcnt(4)")
            a(x)
            if e: a(e.pop(0))
        a("s_waitcnt lgkmcnt(8)")
        m1 = mf(1)
        adds = [f"v_add_u32 v{r}, s{s_a}, v{r}" for r in xa + wa]
        for k in range(4):
            a(m1[k])
            for x in adds[2 * k:2 * k + 2]: a(x)
        a("s_waitcnt lgkmcnt(0)")
        a("s_barrier")
        a(f"s_cbranch_scc1 {Ll}")
        e = p1_reads(0, 0)
        for x in m1[4:]:
            a(x)
            if e: a(e.pop(0))
        Lq = a.label("p1q")
        a(f"s_cmp_lg_u32 s{s_it}, s25")
        a(f"s_cbranch_scc1 {Lq}")
        flag_regs(a, s_loc)
        flag_store(a, 24, False)
        a(f"{Lq}:")
        a(f"s_cmp_lg_u32 s{s_it}, {G.xit}")
        a(f"s_cbranch_scc1 {Lp}")
        if G.tKV == 2: a(f"buffer_load_dword v{xt}, v{fv}, {srd(SF)}, s{s_st} offen sc1")
        a(f"buffer_load_dword v{xt}, v{xv}, {srd(SF)}, s{s_m0w} offen sc1")
        a(f"s_branch {Lp}")
        a(f"{Ll}:")
        for x in m1[4:]: a(x)
        Lt = a.label("xt"); Ltd = a.label("xtd")
        a(f"s_mov_b32 s{s_c}, {SPIN}")
        a(f"{Lt}:")
        a("s_waitcnt vmcnt(0)")
        a(f"v_subrev_u32 v{T[0]}, s{s_tag}, v{xt}")
        a(f"v_cmp_lt_u32 vcc, 15, v{T[0]}")
        a(f"s_cbranch_vccz {Ltd}")
        a(f"s_sub_u32 s{s_c}, s{s_c}, 1")
        a(f"s_cbranch_scc1 {Ltd}")
        a(f"s_sleep {G.sleep}")
        a(f"buffer_load_dword v{xt}, v{xv}, {srd(SF)}, s{s_m0w} offen sc1")
        a(f"s_branch {Lt}")
        a(f"{Ltd}:")
        a(f"v_cmp_ne_u32 vcc, s{s_loc}, v{xt}")
        a("s_cmp_eq_u64 vcc, 0")
        a(f"s_cselect_b32 s{s_loc}, {1 if G.local else 0}, 0")
        stamp(a, 2)
        def stores(fl, so, cvt):
            if ktype:
                for i in range(4):
                    r = KVD + 10 * i
                    if cvt:
                        for e in range(10): a(f"v_cvt_pk_bf16_f32 v{r+e}, v{ACC+20*i+2*e}, v{ACC+20*i+2*e+1}")
                    o = (i >> 1) * 1024 + (i & 1) * 128
                    a(f"buffer_store_dwordx4 {v(r,4)}, v{sa[0]}, {srd(SO)}, {so} offen offset:{o} {fl}")
                    a(f"buffer_store_dwordx4 {v(r+4,4)}, v{sa[0]}, {srd(SO)}, {so} offen offset:{o+512} {fl}")
                    a(f"buffer_store_dwordx2 {v(r+8,2)}, v{sa[1]}, {srd(SO)}, {so} offen offset:{2048+(i>>1)*256+(i&1)*64} {fl}")
            else:
                for j in range(5):
                    for i2 in range(2):
                        r = KVD + 8 * j + 4 * i2
                        if cvt:
                            r0 = ACC + 4 * (5 * (2 * i2) + j); r1 = ACC + 4 * (5 * (2 * i2 + 1) + j)
                            a(f"v_cvt_pk_bf16_f32 v{r}, v{r0}, v{r0+1}")
                            a(f"v_cvt_pk_bf16_f32 v{r+1}, v{r0+2}, v{r0+3}")
                            a(f"v_cvt_pk_bf16_f32 v{r+2}, v{r1}, v{r1+1}")
                            a(f"v_cvt_pk_bf16_f32 v{r+3}, v{r1+2}, v{r1+3}")
                        a(f"buffer_store_dwordx4 {v(r,4)}, v{sa[j]}, {srd(SO)}, {so} offen offset:{2560+1280*i2} {fl}")
        st_code[ktype] = stores
        Lg = a.label("glob")
        a(f"s_cmp_eq_u32 s{s_loc}, 0")
        a(f"s_cbranch_scc1 {Lg}")
        if not (G.xs & 1): stores(G.lst, "0", True)
        a(f"s_branch {Lcj}")
        a(f"{Lg}:")
        stores("sc1", "0", True)
        if ktype: a(f"s_branch {Lcj}")
    consumer(True)
    a(f"{Lv}:")
    consumer(False)
    a(f"{Lcj}:")
    pad_hop(a, 2)
    a(f"v_mov_b32 v{T[0]}, {MODE_LDS}")
    a(f"v_mov_b32 v{T[1]}, s{s_loc}")
    a(f"ds_write_b32 v{T[0]}, v{T[1]}")
    flag_regs(a)
    def att_init():
        pad_value()
        for b in range(4): pad(b)
        zero_acc()
        wo_scalars()
        a(f"s_lshl2_add_u32 s{s_c}, s{s_m}, s{s_g}")
        a(f"s_lshl_b32 s{s_c}, s{s_c}, 5")
        o_base(SX, s_c, 31 * 2560 + 1280)
    Lg2 = a.label("g2")
    a(f"s_cmp_eq_u32 s{s_loc}, 0")
    a("s_waitcnt lgkmcnt(0)")
    a(f"s_cbranch_scc1 {Lg2}")
    pad_hop(a, 2)
    att_init()
    a("s_waitcnt vmcnt(0)")
    flag_store(a, s_k, True)
    stamp(a, 3)
    poll(a, 246, f"s{s_st}", T[1])
    stamp(a, 4)
    kv_first(False)
    if G.tP:
        a(f"v_min_u32 v{T[0]}, 39, v{lane}")
        a(f"v_lshlrev_b32 v{T[0]}, 7, v{T[0]}")
        a(f"s_sub_u32 s{s_a}, s{s_ko}, {PS}")
        a(f"s_add_u32 s{s_b}, s{s_ko}, {PS}")
        a(f"buffer_load_dword v{gfd}, v{T[0]}, {srd(SKV)}, s{s_a} offen sc1")
        a(f"buffer_load_dword v{gfd}, v{T[0]}, {srd(SKV)}, s{s_b} offen sc1")
    a(f"s_lshr_b32 s{s_a}, s2, 3")
    a(f"s_or_b32 s{s_a}, s{s_a}, s{s_wave}")
    a(f"s_cselect_b32 s{s_st}, 4, 5")
    q_prep()
    a("s_barrier")
    q_reads(0)
    a(f"s_branch {Latt}")
    def group_wait(part=None, n=0):
        L = a.label("gp"); Ld = a.label("gpd"); Lc = a.label("gpc")
        if part == 2:
            a(f"s_mov_b32 s{s_c}, {SPIN}")
            a(f"s_waitcnt vmcnt({n})")
            a(f"s_branch {Lc}")
        if part != 2:
            a(f"s_lshl_b32 s{s_b}, s{s_blk}, 6")
            a(f"s_lshr_b32 s{s_a}, s{s_m}, 2")
            a(f"s_add_u32 s{s_b}, s{s_b}, s{s_a}")
            a(f"s_lshl_b32 s{s_b}, s{s_b}, 7")
            a(f"s_add_u32 s{s_b}, s{s_b}, {FLOFF}")
            a(f"v_lshrrev_b32 v{T[0]}, 2, v{lane}")
            a(f"v_and_b32 v{T[1]}, 3, v{lane}")
            a(f"v_lshlrev_b32 v{T[1]}, 3, v{T[1]}")
            a(f"v_lshl_add_u32 v{T[0]}, v{T[0]}, 9, v{T[1]}")
            a(f"s_mov_b32 s{s_c}, {SPIN}")
        a(f"{L}:")
        a(f"buffer_load_dwordx2 {v(T[1],2)}, v{T[0]}, {srd(SF)}, s{s_b} offen sc1")
        if part == 1: return
        a("s_waitcnt vmcnt(0)")
        a(f"{Lc}:")
        a(f"v_cmp_ne_u32 vcc, s{s_tag}, v{T[1]}")
        a(f"v_cmp_ne_u32 s[16:17], s{s_tag}, v{T[2]}")
        a("s_or_b64 vcc, vcc, s[16:17]")
        a(f"s_cbranch_scc0 {Ld}")
        a(f"s_sub_u32 s{s_c}, s{s_c}, 1")
        a(f"s_cbranch_scc1 {Ld}")
        a(f"s_sleep {G.sleep}")
        a(f"s_branch {L}")
        a(f"{Ld}:")
    a(f"{Lg2}:")
    att_init()
    a("s_waitcnt vmcnt(0)")
    a("s_mov_b64 exec, 1")
    a(f"buffer_store_dword v{T[5]}, v{T[4]}, {srd(SF)}, s{s_k} offen sc1")
    a("s_mov_b64 exec, -1")
    stamp(a, 3)
    Lne = a.label("ne")
    a(f"s_lshr_b32 s{s_a}, s2, 3")
    a(f"s_or_b32 s{s_a}, s{s_a}, s{s_wave}")
    a(f"s_cbranch_scc1 {Lne}")
    group_wait()
    flag_store(a, s_vo, False)
    a(f"{Lne}:")
    poll(a, gfv, f"s{s_fg}", T[1])
    stamp(a, 4)
    kv_first(False)
    a(f"s_mov_b32 s{s_st}, 0")
    q_prep()
    a("s_barrier")
    q_reads(0)
    a(f"s_branch {Latt}")

    for Ls, Lb, R1 in spins:
        a(f"{Ls}:")
        a(f"ds_read_b32 v{fd}, v{fr} offset:{16*(R1-1)}")
        a("s_waitcnt lgkmcnt(0)")
        a(f"v_cmp_ne_u32 vcc, 1, v{fd}")
        a(f"s_cbranch_vccnz {Ls}")
        a(f"s_branch {Lb}")
    a(f"{hooks[G.hst][1]}:")
    stamp(a, 11)
    group_wait(1)
    a(f"s_branch {hooks[G.hst][2]}")
    a(f"{hooks[G.hchk][1]}:")
    group_wait(2, pos[G.hchk] - pos[G.hst])
    stamp(a, 12)
    a("buffer_wbl2 sc1")
    a(f"s_branch {hooks[G.hchk][2]}")
    a(f"{hooks[G.hpub][1]}:")
    a("s_waitcnt vmcnt(0)")
    a(f"s_bitset0_b32 s{s_st}, 0")
    flag_regs(a)
    flag_store(a, s_vo, False)
    stamp(a, 13)
    a(f"s_branch {hooks[G.hpub][2]}")
    a(f"{hooks[G.hl][1]}:")
    if G.kill: a(f"s_mov_b32 s{SKV+2}, 0")
    a(f"s_mul_i32 s{s_a}, s{s_wave}, 6144")
    a(f"v_add_u32 v{own}, s{s_a}, v{ka}")
    a(f"s_xor_b32 s{s_a}, s{s_wave}, 4")
    a(f"s_mul_i32 s{s_a}, s{s_a}, 6144")
    a(f"v_add_u32 v{oth}, s{s_a}, v{ka}")
    a(f"s_lshl4_add_u32 s{s_xo}, s{s_blk}, s{s_m}")
    a(f"s_lshl1_add_u32 s{s_c}, s{s_m}, s{s_kh}")
    a(f"s_lshl_b32 s{s_c}, s{s_c}, 6")
    o_base(SO, s_c, 63 * 2560 + 1280)
    a(f"s_lshl2_add_u32 s{s_vo}, s{s_n}, s{s_g}")
    a(f"s_mul_i32 s{s_b}, s{s_vo}, 5")
    a(f"s_add_u32 s{s_b}, s{s_b}, 1")
    a(f"s_lshr_b32 s{s_b}, s{s_b}, 1")
    def funit(dst, u):
        a(f"s_mul_i32 s{dst}, s{u}, 205")
        a(f"s_lshr_b32 s{dst}, s{dst}, 10")
        a(f"s_mul_i32 s{dst}, s{dst}, 5")
        a(f"s_add_u32 s{dst}, s{dst}, s{u}")
        a(f"s_lshl_b32 s{dst}, s{dst}, 8")
    funit(16, s_b)
    a(f"s_add_u32 s{s_a}, s{s_b}, 1")
    funit(17, s_a)
    a(f"s_and_b32 s19, s{s_g}, 1")
    a(f"s_cselect_b32 s{s_a}, -1, 2")
    a(f"s_add_u32 s{s_a}, s{s_a}, s{s_b}")
    funit(18, s_a)
    a(f"s_lshl3_add_u32 s18, s19, s18")
    a(f"s_sub_u32 s17, s17, s16")
    a(f"v_bfe_u32 v{T[2]}, v{lane}, 4, 1")
    a(f"v_mul_u32_u24 v{T[2]}, {16*2560}, v{T[2]}")
    a(f"v_and_b32 v{T[3]}, 15, v{lane}")
    a(f"v_lshl_add_u32 v{T[2]}, v{T[3]}, 4, v{T[2]}")
    a(f"v_lshrrev_b32 v{T[4]}, 5, v{lane}")
    a(f"v_lshl_add_u32 v{T[3]}, v{T[4]}, 20, v{T[2]}")
    a(f"v_mad_u32_u24 v{T[2]}, v{T[4]}, s17, v{T[2]}")
    a(f"v_add_u32 v{oa1}, s16, v{T[2]}")
    a(f"v_add_u32 v{oa2}, s18, v{T[3]}")
    a(f"s_cmp_eq_u32 s{s_loc}, 0")
    a(f"s_cselect_b32 s{s_k}, {FSH}, 2")
    a(f"s_mov_b32 s{s_a}, {F2LOFF}")
    a(f"s_cselect_b32 s{s_a}, {F2OFF}, s{s_a}")
    a(f"s_lshl_b32 s{s_xo}, s{s_xo}, 6")
    a(f"s_lshl_b32 s{s_xo}, s{s_xo}, s{s_k}")
    a(f"s_add_u32 s{s_xo}, s{s_xo}, s{s_a}")
    a(f"s_lshl_b32 s{s_a}, s{s_kh}, 5")
    a(f"s_add_u32 s{s_vo}, s{s_vo}, s{s_a}")
    a(f"s_lshl_b32 s{s_vo}, s{s_vo}, s{s_k}")
    a(f"s_add_u32 s{s_vo}, s{s_vo}, s{s_xo}")
    flag_regs(a)
    if G.tO:
        a(f"s_mov_b32 s{s_b}, {32*2560}")
        for so in ("0", f"s{s_b}"):
            a(f"buffer_load_dword v{gfd}, v{oa1}, {srd(SO)}, {so} offen sc1")
            a(f"buffer_load_dword v{gfd}, v{oa2}, {srd(SO)}, {so} offen sc1")
    a(f"s_lshr_b32 s{s_a}, s{s_g}, 1")
    a(f"s_lshl_b32 s{s_a}, s{s_a}, 5")
    a(f"s_lshl_b32 s{s_a}, s{s_a}, s{s_k}")
    a(f"s_add_u32 s{s_xo}, s{s_xo}, s{s_a}")
    a(f"v_and_b32 v{pf}, 31, v{lane}")
    a(f"v_lshlrev_b32 v{pf}, s{s_k}, v{pf}")
    a(f"buffer_load_dword v{gfd}, v{pf}, {srd(SF)}, s{s_xo} offen sc1")
    a(f"s_lshl4_add_u32 s{s_m0x}, s{s_blk}, s{s_m}")
    a(f"s_lshl2_add_u32 s{s_m0x}, s{s_m0x}, s{s_g}")
    a(f"s_lshl_b32 s{s_m0x}, s{s_m0x}, 5")
    a(f"s_add_u32 s{s_m0x}, s{s_m0x}, {F3OFF}")
    a(f"buffer_load_dword v{gfd}, off, {srd(SF)}, s{s_m0x} sc1")
    a(f"s_branch {hooks[G.hl][2]}")
    if G.early:
        a(f"{LhW}:")
        a("s_nop 3")
        send()
        a(f"s_branch {LhWb}")
    a(f"{hooks[G.hsam][1]}:")
    a(f"buffer_load_dword v{gfd}, v{gfv}, {srd(SF)}, s{s_fg} offen sc1")
    a(f"s_mov_b32 s{s_st}, 16")
    a(f"s_branch {hooks[G.hsam][2]}")
    a(f"{hooks[(0,2)][1]}:")
    nafter = (pos[(0, 2)] - pos[G.hsam]) % (len(names) // 2)
    if not G.rst and not G.kst: stamp(a, 14)
    a(f"s_waitcnt vmcnt({nafter})")
    stamp(a, 15)
    a(f"s_mov_b32 s{s_st}, 0")
    a(f"v_cmp_ne_u32 vcc, s{s_tag}, v{gfd}")
    a(f"s_cbranch_vccz {hooks[(0,2)][2]}")
    poll(a, gfv, f"s{s_fg}", gfd)
    stamp(a, 15)
    a(f"s_branch {hooks[(0,2)][2]}")

    a(f"{Lslow}:")
    vmx = gfd
    a(f"s_mov_b32 s{SKV+2}, {HS}")
    for q in (2, 3):
        L1 = a.label("s1"); L2 = a.label("s2")
        a(f"v_mov_b32 v{vmx}, 0xff800000")
        a(f"s_mov_b32 s{s_ko}, 0")
        a(f"{L1}:")
        a(ld_k1(0)); a(ld_k1(1)); a(ld_k3(0))
        a("s_waitcnt vmcnt(0)")
        for t in range(2):
            a(qk1(0, q, t)); a(qk2(0, q, t))
            a("s_nop 15")
            for r in range(0, 16, 2):
                a(f"v_max3_f32 v{vmx}, v{S[0]+r}, v{S[0]+r+1}, v{vmx}")
        a(f"s_add_u32 s{s_ko}, s{s_ko}, {PS}")
        a(f"s_cmp_lt_u32 s{s_ko}, {HS}")
        a(f"s_cbranch_scc1 {L1}")
        a(f"v_mov_b32 v{T[0]}, v{vmx}")
        a("s_nop 1")
        a(f"v_permlane32_swap_b32 v{T[0]}, v{vmx}")
        a("s_nop 1")
        a(f"v_max_f32 v{vmx}, v{vmx}, v{T[0]}")
        for r in range(0, 16, 2):
            a(f"v_mov_b64 {v(O[q]+r,2)}, 0")
        a(f"s_mov_b32 s{s_ko}, 0")
        a(f"{L2}:")
        a(ld_k1(0)); a(ld_k1(1)); a(ld_k3(0)); a(ld_v(0)); a(ld_v(1))
        a("s_waitcnt vmcnt(0)")
        for t in range(2):
            a(qk1(0, q, t)); a(qk2(0, q, t))
            a("s_nop 15")
            for r in range(16):
                a(f"v_sub_f32 v{S[0]+r}, v{S[0]+r}, v{vmx}")
            for r in range(16):
                a(ex(0, r))
            a("s_nop 0")
            for r in range(0, 16, 2):
                a(cv(0, r))
            a("s_nop 1")
            a(pv(0, q, t, 0)); a(pv(0, q, t, 1))
        a(f"s_add_u32 s{s_ko}, s{s_ko}, {PS}")
        a(f"s_cmp_lt_u32 s{s_ko}, {HS}")
        a(f"s_cbranch_scc1 {L2}")
    a("s_nop 15")
    a(f"s_mov_b32 s{s_c}, 1")
    a(f"s_branch {Lst}")
    a("Lcode_end:")
    return name

def build():
    a = Asm()
    PADS[:] = [0, 0, 0, 0]
    name = gen(a)
    if G.warm:
        i = a.lines.index(".PADRET")
        a.lines[i:i+1] = [f"Lpad_{c}_{PADS[c]}:" for c in range(4)]
    out = HEADER + "; @launch grid=(256,1,1) block=(512,1,1) lds=163840\n"
    out += '.amdgcn_target "amdgcn-amd-amdhsa--gfx950"\n.text\n' + a.text()
    out += '.section .rodata,"a"\n.p2align 6\n' + kernel_desc(name, 256, 100 if G.diag else 64)
    return out

if __name__ == "__main__":
    path = sys.argv[1] if len(sys.argv) > 1 else f"cdna_kernels/{NAME}.s"
    G.diag = "diag" in sys.argv
    for x in sys.argv[2:]:
        if "=" in x:
            k, val = x.split("=", 1)
            assert hasattr(G, k), k
            setattr(G, k, eval(val))
    open(path, "w").write(build())
    print("wrote", path)
```

```python
import sys
sys.path.insert(0, "gen")
from asmlib import *

NAME = "concat_heads__mha_block__softmax_full_mha__prompt"
HS = 163840
PS = 5120
KVL = 0x1400000
OBASE = 0xA00000
FBASE = 0x1000000
FLOFF = 0x40000
F2LOFF = 0x60000
XOFF = 0x70000
F3OFF = 0x68000
GFOFF = 0x78000
F2OFF = 0x80000
EOFF = 0x180000
DBGBASE = 0x2000000
QSCALE = 0x3ea52b5c
SLOT = 36864
SPARE = 4 * SLOT
QAREA = SLOT
WOBASE = 61440
MODE_LDS = 163836
RFLAG = 163712
SPIN = 400000
FSH = 7

HEADER = """; Kernarg layout for this problem (72 bytes, ptrs only, base s[0:1]):
"""

SX, SW, SKV, SF, SO = 4, 8, 12, 36, 40
(s_blk, s_m, s_n, s_wave, s_tag, s_k, s_a, s_b, s_c, s_it, s_xo, s_wo, s_m0x, s_m0w, s_kh, s_ko, s_vo, s_g) = range(44, 62)
s_vm = 62
s_st, s_loc, s_fg = 3, 34, 35
lane = 255
T = [0] * 6

class G:
    diag = False; dbg = None; amp = None
    lens = [10, 3, 2, 1]
    rot = True
    pro = 2; la = 3; nb1 = 2
    local = True
    sleep = 2
    iters = 8
    hst = (0, 1); hsam = (0, 0)
    oa = 4
    kill = True
    nowo = False
    xpos = 2
    pwb = None
    nohook = False
    cpf = 1
    fast0 = True
    kst = False
    itst = False
    tP = False
    hchk = (2, 1)
    hpub = (3, 0)
    hl = (2, 0)
    rpg = 8
    early = True
    roll = 3
    xit = 8
    nkv = 39
    tO = True
    tKV = 2
    tpg = 0
    xs = 0
    p2prio = 1
    dsh = 0
    dst = 3
    qpf = 0
    rst = 0
    rmul = 3
    rn = 1
    lwb = False
    ost = ''
    oin = True
    olst = ''
    ewb = None
    warm = False
    lst = ''
    v3 = False
    nowb = False
    wod = 3

PADS = [0, 0, 0, 0]
def pad_hop(a, c):
    if not G.warm: return
    a(f"Lpad_{c}_{PADS[c]}:")
    PADS[c] += 1
    a(f"s_cbranch_execz Lpad_{c}_{PADS[c]}")

def setT(base): T[:] = list(range(base, base + 6))
def srd(d): return f"s[{d}:{d+3}]"

def stamp(a, i):
    if not G.diag: return
    if G.itst and i >= 11: return
    a("s_memtime s[96:97]")
    a("s_memrealtime s[98:99]")
    a("s_waitcnt lgkmcnt(0)")
    a(f"s_mov_b32 s{64+2*i}, s96")
    a(f"s_mov_b32 s{65+2*i}, s98")

def dump_stamps(a, n):
    if not G.diag: return
    a("s_waitcnt vmcnt(0)")
    stamp(a, n)
    a(f"s_lshl_b32 s{s_a}, s2, 3")
    a(f"s_add_u32 s{s_a}, s{s_a}, s{s_wave}")
    a(f"s_lshl_b32 s{s_a}, s{s_a}, 7")
    a(f"s_add_u32 s{s_a}, s{s_a}, {DBGBASE}")
    make_srd(a, SX, 32, f"s{s_a}", 128)
    a(f"v_mov_b32 v{T[0]}, 0")
    for i in range(32):
        a(f"v_mov_b32 v{T[1]}, s{64+i}")
        a(f"buffer_store_dword v{T[1]}, v{T[0]}, s[{SX}:{SX+3}], 0 offen offset:{4*i}")
    if G.lwb:
        L1 = a.label("lwb"); L2 = a.label("lwb2")
        a(f"s_lshr_b32 s{s_a}, s2, 3")
        a(f"s_or_b32 s{s_a}, s{s_a}, s{s_wave}")
        a(f"s_cbranch_scc1 {L2}")
        a(f"{L1}:")
        a("s_memrealtime s[98:99]")
        a("s_waitcnt lgkmcnt(0)")
        a(f"s_sub_u32 s{s_b}, s98, s{65+2*n}")
        a(f"s_cmp_lt_u32 s{s_b}, 400")
        a(f"s_cbranch_scc1 {L1}")
        a("buffer_wbl2 sc1")
        a("s_waitcnt vmcnt(0)")
        a(f"{L2}:")
    if G.dbg is not None:
        Ls = a.label("nodbg")
        a(f"s_lshl_b32 s{s_a}, s2, 3")
        a(f"s_add_u32 s{s_a}, s{s_a}, s{s_wave}")
        a(f"s_cmp_lg_u32 s{s_a}, {G.dbg}")
        a(f"s_cbranch_scc1 {Ls}")
        make_srd(a, SX, 30, None, 256)
        for i in range(1, 14):
            a(f"s_sub_u32 s{s_a}, s{65+2*i}, s65")
            a(f"v_mov_b32 v{T[1]}, s{s_a}")
            a(f"buffer_store_dword v{T[1]}, v{T[0]}, s[{SX}:{SX+3}], 0 offen offset:{4*i}")
        if G.amp is not None:
            Lw = a.label("amp")
            a(f"s_sub_u32 s{s_a}, s{65+2*G.amp}, s65")
            a(f"s_mul_i32 s{s_a}, s{s_a}, 4")
            a(f"s_add_u32 s{s_a}, s{s_a}, 1000")
            a(f"{Lw}:")
            a("s_memrealtime s[98:99]")
            a("s_waitcnt lgkmcnt(0)")
            a(f"s_sub_u32 s{s_b}, s98, s{65+2*n}")
            a(f"s_cmp_lt_u32 s{s_b}, s{s_a}")
            a(f"s_cbranch_scc1 {Lw}")
        a(f"{Ls}:")

def make_srd(a, d, base, off, nbytes):
    if off is None:
        a(f"s_mov_b64 s[{d}:{d+1}], s[{base}:{base+1}]")
    else:
        a(f"s_add_u32 s{d}, s{base}, {off}")
        a(f"s_addc_u32 s{d+1}, s{base+1}, 0")
    a(f"s_mov_b32 s{d+2}, {nbytes}")
    a(f"s_mov_b32 s{d+3}, 0x00020000")

def img_pos(a, pos, row, c):
    a(f"v_mul_u32_u24 v{row}, 3277, v{pos}")
    a(f"v_lshrrev_b32 v{row}, 16, v{row}")
    a(f"v_mad_i32_i24 v{c}, v{row}, -16, v{pos}")
    a(f"v_mad_i32_i24 v{c}, v{row}, -4, v{c}")
    a(f"v_lshrrev_b32 v{T[5]}, 3, v{row}")
    a(f"v_mad_i32_i24 v{c}, v{T[5]}, -2, v{c}")
    a(f"v_add_u32 v{T[5]}, 20, v{c}")
    a(f"v_min_u32 v{c}, v{c}, v{T[5]}")

def grp_src(a, dst, row, c, ld_sreg):
    a(f"v_cmp_lt_u32 vcc, 9, v{c}")
    a(f"v_add_u32 v{T[5]}, 16, v{row}")
    a(f"v_subrev_u32 v{T[4]}, 10, v{c}")
    a(f"v_cndmask_b32 v{row}, v{row}, v{T[5]}, vcc")
    a(f"v_cndmask_b32 v{c}, v{c}, v{T[4]}, vcc")
    a(f"v_lshlrev_b32 v{c}, 4, v{c}")
    a(f"v_mad_u32_u24 v{dst}, v{row}, s{ld_sreg}, v{c}")

def tr_addrs(a, wa, perm, grp, colhalf_sreg, base):
    a(f"v_bfe_u32 v{T[0]}, v{lane}, 2, 2")
    a(f"v_lshrrev_b32 v{T[1]}, 4, v{lane}")
    a(f"v_and_b32 v{T[2]}, 1, v{T[1]}")
    a(f"v_lshl_add_u32 v{T[0]}, v{T[2] if grp else T[1]}, 3, v{T[0]}")
    a(f"v_mul_u32_u24 v{T[0]}, 320, v{T[0]}")
    if base: a(f"v_add_u32 v{T[0]}, {base}, v{T[0]}")
    a(f"v_lshlrev_b32 v{T[2]}, 5, v{T[2]}")
    if grp:
        a(f"v_lshrrev_b32 v{T[1]}, 1, v{T[1]}")
        a(f"v_mul_u32_u24 v{T[1]}, 160, v{T[1]}")
        a(f"v_add_u32 v{T[2]}, v{T[2]}, v{T[1]}")
    else:
        a(f"s_mul_i32 s{s_a}, s{colhalf_sreg}, 160")
        a(f"v_add_u32 v{T[2]}, s{s_a}, v{T[2]}")
    a(f"v_and_b32 v{T[1]}, 3, v{lane}")
    a(f"v_mad_u32_u24 v{T[2]}, v{T[1]}, {40 if perm else 8}, v{T[2]}")
    for j in range(5):
        a(f"v_add_u32 v{T[1]}, {8*j if perm else 32*j}, v{T[2]}")
        a(f"v_subrev_u32 v{T[3]}, 320, v{T[1]}")
        a(f"v_min_u32 v{T[1]}, v{T[1]}, v{T[3]}")
        a(f"v_add_u32 v{wa[j]}, v{T[1]}, v{T[0]}")

def x_addrs(a, xa, rowbase_sreg):
    a(f"v_and_b32 v{T[0]}, 15, v{lane}")
    a(f"v_lshrrev_b32 v{T[1]}, 1, v{T[0]}")
    a(f"v_lshrrev_b32 v{T[2]}, 4, v{lane}")
    a(f"v_xor_b32 v{T[1]}, v{T[1]}, v{T[2]}")
    a(f"v_lshl_add_u32 v{T[0]}, v{T[0]}, 7, s{rowbase_sreg}")
    a(f"v_lshl_add_u32 v{xa[0]}, v{T[1]}, 4, v{T[0]}")
    a(f"v_xor_b32 v{xa[1]}, 64, v{xa[0]}")

def poll(a, voff, soff, tmp):
    L = a.label("poll"); Ld = a.label("polld")
    a(f"s_mov_b32 s{s_c}, {SPIN}")
    a(f"{L}:")
    a(f"buffer_load_dword v{tmp}, v{voff}, {srd(SF)}, {soff} offen sc1")
    a("s_waitcnt vmcnt(0)")
    a(f"v_cmp_ne_u32 vcc, s{s_tag}, v{tmp}")
    a(f"s_cbranch_vccz {Ld}")
    a(f"s_sub_u32 s{s_c}, s{s_c}, 1")
    a(f"s_cbranch_scc1 {Ld}")
    a(f"s_sleep {G.sleep}")
    a(f"s_branch {L}")
    a(f"{Ld}:")

def flag_regs(a, val=None):
    a(f"v_lshlrev_b32 v{T[4]}, 2, v{lane}")
    a(f"v_mov_b32 v{T[5]}, s{s_tag if val is None else val}")
def flag_store(a, off_sreg, local=False):
    if local:
        a("s_mov_b64 exec, 1")
    else:
        a("s_mov_b32 exec_hi, 0")
    a(f"buffer_store_dword v{T[5]}, v{T[4]}, {srd(SF)}, s{off_sreg} offen {'' if local else 'sc1'}")
    a("s_mov_b64 exec, -1")

def small_gemm(a, BF, ACC, W, wa, gbase, pre, cur0=0, vmw=None, chain=0):
    n = len(gbase)
    cur = [cur0]
    def shift(g):
        out = []
        if not (cur[0] <= gbase[g] and gbase[g] + 1280 - cur[0] <= 65535):
            want = (gbase[g] // 57344) * 57344
            d = want - cur[0]
            out = [(f"v_add_u32 v{wa[j]}, {d}, v{wa[j]}" if d > 0 else f"v_subrev_u32 v{wa[j]}, {-d}, v{wa[j]}") for j in range(5)]
            cur[0] = want
        return out
    def rd(g, j, t): return f"ds_read_b64_tr_b16 {v(W[g&1]+4*j+2*t,2)}, v{wa[j]} offset:{gbase[g]-cur[0]+1280*t}"
    for x in shift(0): a(x)
    for j in range(5):
        a(rd(0, j, 0)); a(rd(0, j, 1))
    for g in range(n):
        last = g == n - 1
        if g % 2 == 0: pad_hop(a, chain)
        for x in pre.get(("h", g), []): a(x)
        if not last:
            for x in shift(g + 1): a(x)
        ex = list(pre.get(("x", g), []))
        for j in range(5):
            if j == 0: a(f"s_waitcnt {('vmcnt(%d) ' % vmw(g)) if vmw else ''}lgkmcnt(6)")
            if G.roll == 2 or last:
                if j == 2: a(f"s_waitcnt lgkmcnt({0 if last else 4})")
            else:
                if j == 2: a("s_waitcnt lgkmcnt(6)")
                if j == 4: a("s_waitcnt lgkmcnt(8)")
            for ii in range(2):
                d = v(ACC + 4 * (5 * ii + j), 4)
                a(f"v_mfma_f32_16x16x32_bf16 {d}, {v(W[g&1]+4*j,4)}, {v(BF+8*g+4*ii,4)}, {d if g else 0}")
                if not last: a(rd(g + 1, j, ii))
            if ex: a(ex.pop(0))
        for x in ex: a(x)

def gen(a):
    name = NAME + "_kernel"
    kernel_header(a, name)
    Lend = a.label("end"); Lcons = a.label("cons"); Lv = a.label("vtype"); Latt = a.label("att")
    stamp(a, 0)
    a("s_load_dwordx16 s[16:31], s[0:1], 0")
    a("s_load_dwordx2 s[32:33], s[0:1], 64")
    a("s_cmp_ge_u32 s2, 256")
    a(f"s_cbranch_scc1 {Lend}")
    a("s_getpc_b64 s[4:5]")
    a(f"Lpc_{name}:")
    a(f"s_mov_b32 s6, Lcode_end-Lpc_{name}")
    a("s_mov_b32 s7, 0x00020000")
    if G.cpf == 0:
        a("v_lshlrev_b32 v1, 7, v0")
        a(f"buffer_load_dword v159, v1, s[4:7], 0 offen")
    else:
        a("v_and_b32 v1, 7, v0")
        a("s_and_b32 s3, s2, 0xf8")
        a("v_or_b32 v1, s3, v1")
        a("v_lshlrev_b32 v1, 7, v1")
        a(f"buffer_load_dword v159, v1, s[4:7], 0 offen")
    a("s_mov_b64 exec, -1")
    a(f"v_lshrrev_b32 v1, 6, v0")
    a(f"v_and_b32 v{lane}, 63, v0")
    a(f"v_readfirstlane_b32 s{s_wave}, v1")
    a(f"s_and_b32 s{s_a}, s2, 7")
    a(f"s_lshr_b32 s{s_b}, s2, 3")
    a(f"s_lshr_b32 s{s_blk}, s{s_a}, 2")
    a(f"s_and_b32 s{s_a}, s{s_a}, 3")
    a(f"s_lshr_b32 s{s_c}, s{s_b}, 3")
    a(f"s_lshl2_add_u32 s{s_m}, s{s_a}, s{s_c}")
    a(f"s_and_b32 s{s_n}, s{s_b}, 7")
    if G.rot:
        if G.rot == 2:
            a(f"s_add_u32 s{s_k}, s{s_c}, s{s_n}")
            a(f"s_and_b32 s{s_k}, s{s_k}, 1")
            a(f"s_mul_i32 s{s_k}, s{s_k}, 5")
        elif G.rot == 5:
            a(f"s_mul_i32 s{s_k}, s{s_c}, 5")
            a(f"s_lshr_b32 s{s_k}, s{s_k}, 1")
            a(f"s_add_u32 s{s_k}, s{s_k}, s{s_a}")
            a(f"s_lshr_b32 s{s_a}, s{s_n}, 2")
            a(f"s_add_u32 s{s_k}, s{s_k}, s{s_a}")
            a(f"s_add_u32 s{s_k}, s{s_k}, s{s_n}")
        elif G.rot == 6:
            a(f"s_mul_i32 s{s_k}, s{s_c}, 5")
            a(f"s_lshr_b32 s{s_k}, s{s_k}, 1")
            a(f"s_lshr_b32 s{s_a}, s{s_n}, 2")
            a(f"s_add_u32 s{s_k}, s{s_k}, s{s_a}")
            a(f"s_add_u32 s{s_k}, s{s_k}, s{s_n}")
        elif G.rot == 4:
            a(f"s_add_u32 s{s_k}, s{s_c}, s{s_n}")
            a(f"s_and_b32 s{s_k}, s{s_k}, 3")
            a(f"s_mul_i32 s{s_k}, s{s_k}, 5")
            a(f"s_lshr_b32 s{s_k}, s{s_k}, 1")
        else:
            a(f"s_mul_i32 s{s_k}, s{s_c}, 3")
            a(f"s_add_u32 s{s_k}, s{s_k}, s{s_n}")
            a(f"s_add_u32 s{s_k}, s{s_k}, s{s_a}")
        a(f"s_cmp_ge_u32 s{s_k}, 10")
        a(f"s_cselect_b32 s{s_a}, 10, 0")
        a(f"s_sub_u32 s{s_k}, s{s_k}, s{s_a}")
    else:
        a(f"s_mov_b32 s{s_k}, 0")
    a(f"s_and_b32 s{s_g}, s{s_wave}, 3")
    a(f"s_lshr_b32 s{s_kh}, s{s_wave}, 2")
    a(f"s_cbranch_scc0 {Lcons}")

    def common_ptrs():
        a("s_waitcnt lgkmcnt(0)")
        a(f"s_cmp_eq_u32 s{s_blk}, 0")
        a("s_cselect_b64 s[16:17], s[16:17], s[22:23]")
        a("s_cselect_b64 s[18:19], s[18:19], s[24:25]")
        a("s_cselect_b64 s[20:21], s[20:21], s[26:27]")
    def epoch_load():
        a(f"s_lshl_b32 s{s_a}, s{s_blk}, 7")
        a(f"s_add_u32 s{s_a}, s{s_a}, {FBASE+EOFF}")
        a(f"s_load_dword s{s_tag}, s[32:33], s{s_a}")
        make_srd(a, SF, 32, FBASE, EOFF + 0x1000)
    def epoch_fin():
        a("s_waitcnt lgkmcnt(0)")
        a(f"s_mul_i32 s{s_tag}, s{s_tag}, 0x9E3779B1")
        a(f"s_add_u32 s{s_tag}, s{s_tag}, 0x7F4A7C15")

    O = [0, 16, 32, 48]; S = [64, 80]; P = [96, 104]
    K1 = [112, 116, 120, 124]; K3 = [128, 130]; V = [132, 140, 148, 156]
    Q1 = [164, 168, 172, 176]; Q3 = [[180, 182, 184, 186], [188, 190, 192, 194]]
    KVD = 80; sa = [163, 164, 165, 166, 167]
    ka, k3a, va, gwo, gfv, gfd = 240, 241, 242, 243, 244, 245

    def att_addrs():
        a(f"s_lshl3_add_u32 s{s_a}, s{s_blk}, s{s_n}")
        a(f"s_lshl2_add_u32 s{s_a}, s{s_a}, s{s_g}")
        a(f"s_mul_i32 s{s_a}, s{s_a}, {HS}")
        make_srd(a, SKV, 32, f"s{s_a}", HS)
        a(f"v_lshlrev_b32 v{ka}, 4, v{lane}")
        a(f"v_lshlrev_b32 v{k3a}, 3, v{lane}")
        a(f"v_and_b32 v{T[0]}, 31, v{lane}")
        a(f"v_lshrrev_b32 v{T[1]}, 1, v{T[0]}")
        a(f"v_xor_b32 v{T[1]}, v{T[1]}, v{T[0]}")
        a(f"v_and_b32 v{T[1]}, 4, v{T[1]}")
        a(f"v_mul_u32_u24 v{T[1]}, 3, v{T[1]}")
        a(f"v_xor_b32 v{T[1]}, v{T[1]}, v{T[0]}")
        a(f"s_and_b32 s{s_a}, s{s_g}, 1")
        a(f"s_lshl_b32 s{s_a}, s{s_a}, 2")
        a(f"v_add_u32 v{T[1]}, s{s_a}, v{T[1]}")
        a(f"v_subrev_u32 v{T[2]}, 20, v{T[1]}")
        a(f"v_min_u32 v{T[1]}, v{T[1]}, v{T[2]}")
        a(f"v_lshrrev_b32 v{T[2]}, 5, v{lane}")
        a(f"v_mul_u32_u24 v{T[3]}, 320, v{T[2]}")
        a(f"v_lshl_add_u32 v{va}, v{T[1]}, 4, v{T[3]}")
        a(f"v_add_u32 v{va}, 2560, v{va}")
        a(f"s_and_b32 s{s_ko}, s{s_m}, 12")
        a(f"s_lshl1_add_u32 s{s_ko}, s{s_ko}, s{s_kh}")
        a(f"s_mul_i32 s{s_ko}, s{s_ko}, {PS}")
        a(f"s_mov_b32 s{s_vm}, 0x000fffff")
        a(f"s_mov_b32 s{s_vm+1}, 0x000fffff")
        a(f"s_lshl_b32 s{s_fg}, s{s_blk}, 9")
        a(f"s_add_u32 s{s_fg}, s{s_fg}, {GFOFF}")
        a(f"v_and_b32 v{gfv}, 3, v{lane}")
        a(f"v_lshlrev_b32 v{gfv}, 7, v{gfv}")
        a(f"s_min_u32 s{s_a}, s{s_wave}, 4")
        a(f"s_lshl_b32 s{s_b}, s{s_a}, 6")
        a(f"v_add_u32 v{T[0]}, s{s_b}, v{lane}")
        img_pos(a, T[0], T[1], T[2])
        a(f"s_movk_i32 s{s_c}, 1280")
        grp_src(a, gwo, T[1], T[2], s_c)
    def wo_scalars():
        make_srd(a, SW, 20, None, 640 * 1280)
        a(f"s_cmp_gt_u32 s{s_wave}, 4")
        a(f"s_cselect_b32 s{s_c}, {24*5120}, 0")
        a(f"s_lshl_b32 s{s_m0w}, s{s_wave}, 10")
        if G.wod: a(f"s_sub_u32 s{s_m0w}, s{s_m0w}, {G.wod*5120}")
        a(f"s_add_u32 s{s_m0w}, s{s_m0w}, s{s_c}")
        a(f"s_mul_i32 s{s_wo}, s{s_n}, 160")
        a(f"s_lshl3_add_u32 s{s_wo}, s{s_c}, s{s_wo}")
        if G.wod: a(f"s_sub_u32 s{s_wo}, s{s_wo}, {G.wod*32*1280}")
    def ld_k1(b): return f"buffer_load_dwordx4 {v(K1[b],4)}, v{ka}, {srd(SKV)}, s{s_ko} offen offset:{1024*(b&1)} sc1"
    def ld_k3(p): return f"buffer_load_dwordx2 {v(K3[p],2)}, v{k3a}, {srd(SKV)}, s{s_ko} offen offset:2048 sc1"
    def ld_v(b, m=s_vm):
        return (f"s_mov_b64 exec, s[{m}:{m+1}]\n"
                f"buffer_load_dwordx4 {v(V[b],4)}, v{va}, {srd(SKV)}, s{s_ko} offen offset:{1280*(b&1)} sc1\n"
                f"buffer_load_dwordx4 {v(V[b]+4,4)}, v{va}, {srd(SKV)}, s{s_ko} offen offset:{1280*(b&1)+640} sc1\n"
                f"s_mov_b64 exec, -1")
    def adv_pair():
        return [f"s_add_u32 s{s_ko}, s{s_ko}, {2*PS}", f"s_cmp_ge_u32 s{s_ko}, {HS}",
                f"s_cselect_b32 s{s_c}, {HS}, 0", f"s_sub_u32 s{s_ko}, s{s_ko}, s{s_c}"]
    def pad_value():
        a(f"v_and_b32 v{S[0]}, 31, v{lane}")
        a(f"v_cmp_eq_u32 vcc, 20, v{S[0]}")
        a(f"v_mov_b32 v{S[0]+1}, 0x3f803f80")
        a(f"v_mov_b64 {v(P[1],2)}, 0")
        a(f"v_cndmask_b32 v{S[0]}, 0, v{S[0]+1}, vcc")
        a(f"v_mov_b32 v{S[0]+1}, v{S[0]}")
    def pad(b):
        for r in range(0, 8, 2): a(f"v_mov_b64 {v(V[b]+r,2)}, {v(S[0],2)}")
    def zero_acc():
        for q in range(4): a(f"v_mfma_f32_32x32x8_bf16 {v(O[q],16)}, {v(P[1],2)}, {v(P[1],2)}, 0")
        for r in range(2, 8, 2): a(f"v_mov_b64 {v(P[1]+r,2)}, 0")
    own, oth, oa1, oa2, pf, tw = 253, 254, 225, 226, 227, 231
    wa4 = [220, 221, 222, 223, 224]; oc = [232, 233, 234, 235, 236]; ob = [216, 217, 218, 219, 228]; rb = [229, 230, 237, 238, 239]
    qa1, qa3 = 247, 248
    def q_prep():
        a(f"s_mul_i32 s{s_b}, s{s_g}, 5120")
        a(f"s_add_u32 s{s_b}, s{s_b}, {QAREA}")
        a(f"v_add_u32 v{qa1}, s{s_b}, v{ka}")
        a(f"v_and_b32 v{qa3}, 31, v{lane}")
        a(f"v_lshl_add_u32 v{qa3}, v{qa3}, 3, s{s_b}")
        for q in range(4):
            a(f"v_mov_b64 {v(Q3[0][q],2)}, 0")
            a(f"v_mov_b64 {v(Q3[1][q],2)}, 0")
    def q_reads(kh):
        qt = [r if kh else r ^ 2 for r in range(4)]
        a(f"ds_read_b128 {v(Q1[0],4)}, v{qa1} offset:{1280*qt[0]}")
        for h in range(2):
            a(f"s_mov_b32 exec_lo, {-1 if h == 0 else 0}")
            a(f"s_mov_b32 exec_hi, {0 if h == 0 else -1}")
            for q in range(4):
                a(f"ds_read_b64 {v(Q3[h][q],2)}, v{qa3} offset:{1280*qt[q]+1024}")
        a("s_mov_b64 exec, -1")
        for q in range(1, 4):
            a(f"ds_read_b128 {v(Q1[q],4)}, v{qa1} offset:{1280*qt[q]}")
    def o_base(dst, rows_sreg, nbytes):
        a(f"s_add_u32 s{dst}, s32, {OBASE}")
        a(f"s_addc_u32 s{dst+1}, s33, 0")
        if G.oin:
            a(f"s_cmp_eq_u32 s{s_loc}, 0")
            a(f"s_cselect_b64 s[{dst}:{dst+1}], s[{dst}:{dst+1}], s[28:29]")
        a(f"s_mul_i32 s{s_a}, s{rows_sreg}, 2560")
        a(f"s_mul_i32 s{s_b}, s{s_blk}, 1280")
        a(f"s_add_u32 s{s_a}, s{s_a}, s{s_b}")
        make_srd(a, dst, dst, f"s{s_a}", nbytes)
    first = [("K1", 0), ("K3", 0), ("V", 0), ("V", 0), ("K1", 1), ("V", 1), ("V", 1), ("K1", 2), ("V", 2), ("V", 2), ("K1", 3), ("K3", 1)]
    if G.v3: first += [("V", 3)] * 2
    def kv_first(with_pad):
        a(ld_k1(0)); a(ld_k3(0))
        if with_pad: pad_value(); pad(0)
        a(ld_v(0)); a(ld_k1(1))
        if with_pad: pad(1)
        a(ld_v(1))
        for x in adv_pair(): a(x)
        a(ld_k1(2))
        if with_pad: pad(2)
        a(ld_v(2)); a(ld_k1(3)); a(ld_k3(1))
        if with_pad: pad(3)
        if G.v3:
            a(ld_v(3))
            a("s_mov_b64 s[22:23], 0")

    XF = 0; ACC2 = 160; W2 = [200, 220]
    gx = [160, 161, 162, 163]; gw = [164, 165, 166, 167, 168]; gq = [251, 252, 253, 254, 245]
    wa2 = [246, 247, 248, 249, 250]; xa2 = [210, 211]
    setT(200)
    if G.fast0: a("s_setprio 3")
    a(f"v_lshrrev_b32 v{T[0]}, 4, v{lane}")
    a(f"v_xor_b32 v{T[0]}, v{T[0]}, v{lane}")
    a(f"v_and_b32 v{T[0]}, 7, v{T[0]}")
    a(f"v_lshrrev_b32 v{T[1]}, 3, v{lane}")
    a(f"v_mul_u32_u24 v{T[1]}, 1280, v{T[1]}")
    a(f"v_lshl_add_u32 v{gx[0]}, v{T[0]}, 4, v{T[1]}")
    a(f"v_xor_b32 v{gx[1]}, 64, v{gx[0]}")
    a(f"v_add_u32 v{gx[1]}, 9216, v{gx[1]}")
    a(f"v_add_u32 v{gx[2]}, 18432, v{gx[0]}")
    a(f"v_add_u32 v{gx[3]}, 18432, v{gx[1]}")
    rows = [212 + 2 * i for i in range(5)]
    def w_setup():
        a(f"s_movk_i32 s{s_c}, 3277")
        a(f"s_movk_i32 s{s_b}, 3520")
        a(f"v_lshlrev_b32 v{T[0]}, 4, v{lane}")
        a(f"v_mul_u32_u24 v{T[1]}, s{s_c}, v{lane}")
        for i in range(5):
            if i: a(f"v_add_u32 v{T[1]}, {64*3277}, v{T[1]}")
            a(f"v_lshrrev_b32 v{T[2]}, 16, v{T[1]}")
            a(f"v_mad_u32_u24 v{gw[i]}, v{T[2]}, s{s_b}, v{T[0]}")
            if i >= 2:
                a(f"v_subrev_u32 v{T[3]}, {2*3277}, v{T[1]}")
                a(f"v_lshrrev_b32 v{T[3]}, 16, v{T[3]}")
                a(f"v_sub_u32 v{T[3]}, v{T[2]}, v{T[3]}")
                a(f"v_mad_u32_u24 v{T[3]}, v{T[3]}, 10, -1")
                if i == 2:
                    a(f"v_lshrrev_b32 v{T[2]}, 3, v{T[2]}")
                    a(f"v_mul_i32_i24 v{T[3]}, v{T[3]}, v{T[2]}")
                a(f"v_lshl_add_u32 v{gw[i]}, v{T[3]}, 5, v{gw[i]}")
        a(f"v_add_u32 v{gw[4]}, 4096, v{gw[4]}")
    if not G.fast0: w_setup()
    a(f"s_lshl_b32 s{s_m0x}, s{s_g}, 12")
    a(f"s_mul_i32 s{s_m0w}, s{s_g}, 5120")
    a(f"s_add_u32 s{s_m0w}, s{s_m0w}, 16384")
    a(f"s_lshl2_add_u32 s{s_a}, s{s_m}, s{s_g}")
    a(f"s_mul_i32 s{s_a}, s{s_a}, {32*1280}")
    a(f"s_mul_i32 s{s_fg}, s{s_n}, 320")
    a(f"s_mul_i32 s{s_b}, s{s_g}, {16*3840}")
    a(f"s_add_u32 s{s_fg}, s{s_fg}, s{s_b}")
    a(f"s_add_u32 s{s_loc}, s{s_fg}, 1280")
    a(f"s_mov_b32 s{s_vo}, s{s_k}")
    if G.kst:
        a("s_getreg_b32 s98, hwreg(HW_REG_SHADER_CYCLES)") if False else None
        a("s_memrealtime s[92:93]")
    common_ptrs()
    if G.kst: a("s_mov_b32 s93, s92")
    make_srd(a, SX, 16, f"s{s_a}", 32 * 1280)
    make_srd(a, SW, 18, None, 640 * 3840)
    lseq = []
    def issue_stage(i):
        sl = (i & 3) * SLOT
        a(f"s_add_u32 m0, s{s_m0x}, {sl}")
        a(f"s_lshl_b32 s{s_xo}, s{s_k}, 7")
        for ii in range(4):
            a(f"buffer_load_dwordx4 v{gx[ii]}, {srd(SX)}, s{s_xo} offen offset:{1024*ii} lds")
        if i == 0 and G.fast0: w_setup()
        a(f"s_mul_i32 s{s_wo}, s{s_k}, {64*3840}")
        a(f"s_add_u32 m0, s{s_m0w}, {sl}")
        a(f"s_add_u32 s{s_wo}, s{s_wo}, s{s_loc}")
        for ii in range(4):
            a(f"buffer_load_dwordx4 v{gw[ii]}, {srd(SW)}, s{s_wo} offen offset:{1024*ii} lds")
        a(f"s_add_u32 m0, s{s_m0w}, {sl+4096}")
        a(f"s_add_u32 s{s_k}, s{s_k}, 1")
        a(f"buffer_load_dwordx4 v{gw[4]}, {srd(SW)}, s{s_wo} offen lds")
        if G.rot:
            a(f"s_cmp_eq_u32 s{s_k}, 10")
            a(f"s_cselect_b32 s{s_k}, 0, s{s_k}")
        lseq.extend([("st", i)] * 9)
    gbase = [2 * SLOT + g * 5120 for g in range(7)] + [SPARE] + [3 * SLOT + g * 5120 for g in range(7)] + [SPARE + 5120] + [g * 5120 for g in range(4)]
    def round_ins(R):
        o = []
        x = f"s_add_u32 s{s_wo}, s{s_st}, {R*4*32*3840}"
        if G.rot:
            x += f"\ns_cmp_ge_u32 s{s_wo}, {640*3840}\ns_cselect_b32 s{s_b}, {640*3840}, 0\ns_sub_u32 s{s_wo}, s{s_wo}, s{s_b}"
        gb = gbase[4 * R:4 * R + 4]
        assert gb[1] == gb[0] + 5120 and gb[2] == gb[0] + 10240
        x += f"\ns_add_u32 s{s_a}, s{s_m0w}, {(gb[0]-16384) & 0xffffffff}"
        if gb[3] != gb[0] + 15360:
            x += f"\ns_cmp_eq_u32 s{s_g}, 3\ns_cselect_b32 s{s_a}, {gb[3]}, s{s_a}"
        x += f"\ns_mov_b32 m0, s{s_a}\ns_add_u32 s{s_a}, s{s_a}, 4096"
        o.append(x)
        for ii in range(4):
            o.append(f"buffer_load_dwordx4 v{gq[ii]}, {srd(SW)}, s{s_wo} offen offset:{1024*ii} lds")
        o.append(f"s_mov_b32 m0, s{s_a}\ns_nop 0\nbuffer_load_dwordx4 v{gq[4]}, {srd(SW)}, s{s_wo} offen lds")
        lseq.extend([("R", R)] * 5)
        return o
    def issue_item(i):
        if i < 10: issue_stage(i)
        elif i < 15:
            for x in round_ins(i - 10): a(x)
    def lwait(key):
        return len(lseq) - 1 - max(i for i, x in enumerate(lseq) if x == key)
    stamp(a, 11)
    issue_stage(0)
    stamp(a, 12)
    epoch_load()
    a(f"s_lshl_b32 s{s_b}, s{s_g}, 12")
    x_addrs(a, xa2, s_b)
    a(f"v_and_b32 v{T[0]}, 15, v{lane}")
    a(f"v_lshlrev_b32 v{T[0]}, 2, v{T[0]}")
    a(f"v_add_u32 v{T[0]}, {RFLAG}, v{T[0]}")
    a(f"v_mov_b32 v{T[1]}, 0")
    a(f"ds_write_b32 v{T[0]}, v{T[1]}")
    for i in range(1, G.pro): issue_stage(i)
    stamp(a, 13)
    if G.fast0: a("s_setprio 0")
    epoch_fin()
    a(f"s_waitcnt vmcnt({lwait(('st',0))})")
    a("s_barrier")
    stamp(a, 1)
    for i in range(G.pro, G.la): issue_stage(i)
    xoff = 0
    for st in range(10):
        sl = (st & 3) * SLOT
        want = 0 if sl < 2 * SLOT else 2 * SLOT
        if want != xoff:
            for r in xa2:
                a(f"v_add_u32 v{r}, {want-xoff}, v{r}" if want > xoff else f"v_subrev_u32 v{r}, {xoff-want}, v{r}")
            xoff = want
        for ks in range(2):
            for ii in range(2):
                a(f"ds_read_b128 {v(XF+16*st+8*ks+4*ii,4)}, v{xa2[ks]} offset:{sl-xoff+2048*ii}")
        if st == 0:
            a(f"s_movk_i32 s{s_c}, 3840")
            for i in range(5):
                if i: a(f"v_add_u32 v{T[0]}, {64*i}, v{lane}")
                img_pos(a, T[0] if i else lane, rows[i], rows[i] + 1)
                grp_src(a, gq[i], rows[i], rows[i] + 1, s_c)
                if i & 3: a(f"v_subrev_u32 v{gq[i]}, {1024*i}, v{gq[i]}")
            a(f"s_lshl1_add_u32 s{s_st}, s{s_vo}, s{s_g}")
            a(f"s_mul_i32 s{s_st}, s{s_st}, {32*3840}")
            a(f"s_mul_i32 s{s_a}, s{s_n}, 160")
            a(f"s_add_u32 s{s_st}, s{s_st}, s{s_a}")
        if st == 1: tr_addrs(a, wa2, True, True, None, 0)
        if st == 2:
            att_addrs()
        if st == 4 and G.warm:
            a("s_mov_b64 exec, 0")
            for c in range(3):
                a(f"s_cmp_eq_u32 s{s_g}, {c}")
                a(f"s_cbranch_scc1 Lpad_{c}_0")
            a("s_branch Lpad_3_0")
            a(".PADRET")
            a("s_mov_b64 exec, -1")
        key = ("st", st + 1) if st < 9 else ("R", 0)
        a(f"s_waitcnt vmcnt({lwait(key)}) lgkmcnt(0)")
        a("s_barrier")
        if st < 9: issue_item(st + G.la)
    stamp(a, 2)
    pre = {}
    nxt = G.la - 1
    if G.p2prio: a(f"s_setprio {G.p2prio}")
    ins_at = {}
    for R in range(nxt, 5):
        g0 = G.dst * (R - nxt) + G.dsh
        if G.dst >= 3:
            ins_at[g0] = (R, 0, 3); ins_at[g0 + 1] = (R, 3, 5); ins_at[g0 + 2] = (R, 5, 6)
        else:
            ins_at[g0] = (R, 0, 4); ins_at[g0 + 1] = (R, 4, 6)
    cache = {}
    fw, fr, fo, fd = 4, 5, 6, 7
    spins = []
    for g in range(20):
        pre[("x", g)] = []
        R1 = g // 4 + 1
        if g == 1:
            pre[("h", g)] = [f"s_lshl2_add_u32 s{s_c}, s{s_g}, {RFLAG}", f"v_mov_b32 v{fw}, s{s_c}", f"v_and_b32 v{fr}, 3, v{lane}",
                             f"v_lshlrev_b32 v{fr}, 2, v{fr}", f"v_add_u32 v{fr}, {RFLAG}, v{fr}", f"v_mov_b32 v{fo}, 1"]
        if g % 4 == 1 and g < 16:
            assert lseq.count(("R", R1)) == 5
            pre[("x", g)] += [f"s_waitcnt vmcnt({lwait(('R', R1))})\nds_write_b32 v{fw}, v{fo} offset:{16*(R1-1)}"]
        if g % 4 == 2 and g < 16:
            pre[("x", g)] += [f"ds_read_b32 v{fd}, v{fr} offset:{16*(R1-1)}"]
        if g % 4 == 3 and g < 16:
            Ls, Lb = a.label("rs"), a.label("rb")
            spins.append((Ls, Lb, R1))
            pre[("h", g)] = ["s_waitcnt lgkmcnt(8)", f"v_cmp_ne_u32 vcc, 1, v{fd}", f"s_cbranch_vccnz {Ls}", f"{Lb}:"]
        if g in ins_at:
            R, lo, hi = ins_at[g]
            if R not in cache:
                cache[R] = round_ins(R)
                del lseq[-5:]
            pre[("x", g)] += cache[R][lo:hi]
            lseq.extend([("R", R)] * sum(x.count("buffer_load") for x in cache[R][lo:hi]))
    qa, qb, md = 0, 1, 2
    half = [f"v_lshrrev_b32 v{qa}, 4, v{lane}", f"v_mul_u32_u24 v{qa}, 5120, v{qa}", f"s_mul_i32 s{s_b}, s{s_g}, 1280",
            f"s_add_u32 s{s_b}, s{s_b}, {QAREA}", f"v_add_u32 v{qa}, s{s_b}, v{qa}"]
    pre[("x", 16)] = half
    pre[("x", 17)] = [f"v_and_b32 v{md}, 15, v{lane}", f"v_lshl_add_u32 v{qb}, v{md}, 3, v{qa}", f"v_lshl_add_u32 v{qa}, v{md}, 4, v{qa}",
                      f"s_mov_b32 s{s_a}, {QSCALE:#x}\ns_mov_b32 s{s_b}, {QSCALE:#x}"]
    if G.pwb is not None:
        Lwb = a.label("pwb")
        pre[("x", G.pwb)].append(f"s_lshr_b32 s{s_c}, s2, 3\ns_or_b32 s{s_c}, s{s_c}, s{s_g}\ns_cbranch_scc1 {Lwb}\nbuffer_wbl2 sc1\n{Lwb}:")
    small_gemm(a, XF, ACC2, W2, wa2, gbase, pre)
    stamp(a, 3)
    a("s_nop 4")
    assert s_a % 2 == 0 and s_b == s_a + 1
    for ii in range(2):
        r = ACC2 + 20 * ii
        pad_hop(a, 0)
        for e in range(10):
            a(f"v_pk_mul_f32 {v(r+2*e,2)}, {v(r+2*e,2)}, s[{s_a}:{s_b}]")
        for e in range(10):
            a(f"v_cvt_pk_bf16_f32 v{r+e}, v{r+2*e}, v{r+2*e+1}")
        a(f"ds_write_b128 v{qa}, {v(r,4)} offset:{256*ii}")
        a(f"ds_write_b128 v{qa}, {v(r+4,4)} offset:{256*ii+512}")
        a(f"ds_write_b64 v{qb}, {v(r+8,2)} offset:{128*ii+1024}")
    a("s_waitcnt lgkmcnt(0)")
    a(f"v_mov_b32 v{gfd}, {MODE_LDS}")
    a("s_barrier")
    a(f"ds_read_b32 v{gfd}, v{gfd}")
    a("s_setprio 0")
    stamp(a, 4)
    pad_hop(a, 1)
    kv_first(True)
    pad_hop(a, 1)
    q_prep()
    q_reads(1)
    zero_acc()
    wo_scalars()
    make_srd(a, SO, 32, None, 0)
    a("s_waitcnt lgkmcnt(12)")
    a(f"v_readfirstlane_b32 s{s_loc}, v{gfd}")
    a("s_nop 1")
    a(f"s_and_b32 s{s_loc}, s{s_loc}, 1")
    a(f"s_lshl_b32 s{s_st}, s{s_loc}, 2")

    a(f"{Latt}:")
    setT(247)
    a(f"s_mov_b32 s{s_it}, 0")

    def qk1(sb, q, t): return f"v_mfma_f32_32x32x16_bf16 {v(S[sb],16)}, {v(K1[t],4)}, {v(Q1[q],4)}, 0"
    def qk2(sb, q, t): return f"v_mfma_f32_32x32x8_bf16 {v(S[sb],16)}, {v(K3[t>>1],2)}, {v(Q3[t&1][q],2)}, {v(S[sb],16)}"
    def pv(pb, q, t, h): return f"v_mfma_f32_32x32x16_bf16 {v(O[q],16)}, {v(V[t]+4*h,4)}, {v(P[pb]+4*h,4)}, {v(O[q],16)}"
    def ex(q, r): return f"v_exp_f32 v{S[q]+r}, v{S[q]+r}"
    def cv(q, r): return f"v_cvt_pk_bf16_f32 v{P[q]+r//2}, v{S[q]+r}, v{S[q]+r+1}"
    wo_dma = [f"s_min_u32 s{s_c}, s{s_m0w}, 0x20000", f"s_add_u32 m0, s{s_c}, {WOBASE}", f"s_add_u32 s{s_m0w}, s{s_m0w}, 5120",
              f"buffer_load_dwordx4 v{gwo}, {srd(SW)}, s{s_wo} offen lds", f"s_add_u32 s{s_wo}, s{s_wo}, {32*1280}"]
    plan = {}
    for tt in range(4):
        pb = (tt - 1) % 4
        plan[(tt, 1)] = ([ld_v(pb)], [("V", pb)] * 2)
        if G.v3 and pb == 3: plan[(tt, 1)] = ([ld_v(pb, 22), f"s_mov_b64 s[22:23], s[{s_vm}:{s_vm+1}]"], [("V", pb)] * 2)
        if tt & 1:
            plan[(tt, 3)] = ([ld_k1(tt), ld_k3(tt >> 1)], [("K1", tt), ("K3", tt >> 1)])
        else:
            plan[(tt, 3)] = ([ld_k1(tt)], [("K1", tt)])
            plan[(tt, 2)] = (adv_pair(), [])
        if tt > 0 and not G.nowo:
            plan[(tt, 0)] = (wo_dma, [("WO",)])
    order = [(tt, q) for tt in range(4) for q in range(4)]
    names = []; pos = {}
    for rep in range(2):
        for key in order:
            if rep == 1: pos[key] = len(names)
            names += plan.get(key, ([], []))[1]
    def need(tt):
        nt = (tt + 1) % 4
        return [("K1", nt), ("V", nt), ("K3", nt >> 1)]
    n0 = list(first); waits = {}
    for key in order:
        if key[1] == 3:
            p = pos[key]
            w1 = p - 1 - max(max(i for i in range(p) if names[i] == k) for k in need(key[0]))
            w2 = len(n0) - 1 - max(max(i for i in range(len(n0)) if n0[i] == k) for k in need(key[0]))
            waits[key[0]] = min(w1, w2)
        n0 += plan.get(key, ([], []))[1]
    a(f"s_waitcnt vmcnt({len(first)-4}) lgkmcnt(0)")
    stamp(a, 5)
    a(qk1(0, 0, 0)); a(qk2(0, 0, 0))
    a("s_setprio 3")
    a("s_nop 7")
    a("s_nop 3")
    L = a.label("al")
    a(".p2align 6")
    a(f"{L}:")
    hooks = {G.hst: (0, a.label("hA"), a.label("hAb")), G.hchk: (0, a.label("hK"), a.label("hKb")), G.hpub: (0, a.label("hP"), a.label("hPb")),
             G.hsam: (3, a.label("hB"), a.label("hBb")), (0, 2): (4, a.label("hC"), a.label("hCb")),
             G.hl: (None, a.label("hL"), a.label("hLb"))}
    LhW, LhWb = a.label("hW"), a.label("hWb")
    F = [O[2], O[3]]; Rv = [O[0], O[1]]
    cum = [sum(G.lens[:i]) for i in range(4)]
    step = 0
    for tt in range(4):
        for q in range(4):
            c = q & 1; o = 1 - c
            nq, nt = (q + 1, tt) if q < 3 else (0, (tt + 1) % 4)
            pq, pt = (q - 1, tt) if q > 0 else (3, (tt - 1) % 4)
            extra = list(plan.get((tt, q), ([], []))[0])
            if q & 1: pad_hop(a, 1)
            if (tt, q) in hooks:
                bit, lo, lb = hooks[(tt, q)]
                a(f"s_bitcmp1_b32 s{s_st}, {bit}" if bit is not None else f"s_cmp_eq_u32 s{s_it}, {G.iters-1}")
                a(f"s_cbranch_scc1 {lo}")
                a(f"{lb}:")
            if (tt, q) == (3, 3) and G.early:
                a(f"s_cbranch_scc0 {LhW}")
                a(f"{LhWb}:")
            if q == 3: a(f"s_waitcnt vmcnt({waits[tt]})")
            if (tt, q) == (3, 1): extra += [f"s_lshl_b32 s{s_st}, s{s_st}, 1"]
            if (tt, q) == (3, 2): extra += [f"s_add_u32 s{s_it}, s{s_it}, 1", f"s_cmp_lt_u32 s{s_it}, {G.iters}"]
            ms = [qk1(o, nq, nt), qk2(o, nq, nt), pv(o, pq, pt, 0), pv(o, pq, pt, 1)]
            for j in range(4):
                a(ms[j])
                if j: a(cv(c, 4 * j - 2))
                for e in range(3):
                    a(ex(c, 4 * j + e))
                    if extra and (G.xpos == 0 or (G.xpos == 1 and e == 1) or (G.xpos == 2 and e != 0) or (G.xpos == 3 and e == 0) or j == 3): a(extra.pop(0))
                if j < 3:
                    a(cv(c, 4 * j)); a(ex(c, 4 * j + 3))
                else:
                    a(ex(c, 15)); a(cv(c, 12))
            n = (step + 1) % sum(G.lens)
            if n in cum: a(f"s_setprio {3 - cum.index(n)}")
            a(cv(c, 14))
            step += 1
    if G.itst:
        a("s_memtime s[96:97]")
        for r in range(86, 95): a(f"s_mov_b32 s{r}, s{r+1}")
        a("s_waitcnt lgkmcnt(0)")
        a("s_mov_b32 s95, s96")
    a(f"s_cbranch_scc1 {L}")
    a("s_nop 0")
    a(pv(1, 3, 3, 0)); a(pv(1, 3, 3, 1))
    a("s_setprio 0")
    Lslow = a.label("slow"); Lst = a.label("store")
    def send():
        for i in range(2):
            for gq_ in range(3):
                a(f"ds_write_b128 v{own}, {v(O[i]+4*gq_,4)} offset:{(i*3+gq_)*1024}")
    stamp(a, 6)
    if not G.early: send()
    a("s_waitcnt vmcnt(0) lgkmcnt(0)")
    a("s_barrier")
    for i in range(2):
        for gq_ in (2, 0, 1):
            a(f"ds_read_b128 {v(Rv[i]+4*gq_,4)}, v{oth} offset:{(i*3+gq_)*1024}")
    for i in range(2):
        a(f"s_waitcnt lgkmcnt({3-3*i})")
        for r in (8, 10, 0, 2, 4, 6):
            a(f"v_pk_add_f32 {v(F[i]+r,2)}, {v(F[i]+r,2)}, {v(Rv[i]+r,2)}")
    a(f"s_mov_b32 s{s_c}, 0")
    a(f"{Lst}:")
    for i in range(2):
        a(f"v_mov_b32 v{F[i]+12}, v{F[i]+8}")
        a(f"v_mov_b32 v{F[i]+13}, v{F[i]+8}")
    a(f"s_mov_b32 s{s_b}, {32*2560}")
    a(f"s_cmp_eq_u32 s{s_loc}, 0")
    for i in range(2):
        a(f"v_permlane32_swap_b32 v{F[i]+13}, v{F[i]+12}")
    a("s_nop 0")
    a(f"v_rcp_f32 v{F[0]+14}, v{F[0]+12}")
    a(f"v_rcp_f32 v{F[1]+14}, v{F[1]+12}")
    Log = a.label("og"); Loj = a.label("oj"); Lo2 = a.label("o2"); Lo3 = a.label("o3"); Lok = a.label("ok")
    a(f"s_cbranch_scc1 {Log}")
    for fl in (G.olst, "sc1"):
        for q in range(2):
            for r in range(0, 12, 2):
                a(f"v_pk_mul_f32 {v(F[q]+r,2)}, {v(F[q]+r,2)}, {v(F[q]+14,2)} op_sel_hi:[1,0]")
            for e in range(6):
                a(f"v_cvt_pk_bf16_f32 v{Rv[q]+e}, v{F[q]+2*e}, v{F[q]+2*e+1}")
            so = "0" if q == 0 else f"s{s_b}"
            a(f"buffer_store_dwordx4 {v(Rv[q],4)}, v{oa1}, {srd(SO)}, {so} offen {fl}")
            a(f"buffer_store_dwordx2 {v(Rv[q]+4,2)}, v{oa2}, {srd(SO)}, {so} offen {fl}")
        if fl != "sc1":
            a(f"s_branch {Loj}")
            a(f"{Log}:")
    a(f"{Loj}:")
    a(f"s_cmp_lg_u32 s{s_c}, 0")
    a(f"s_cbranch_scc1 {Lok}")
    a(f"s_mov_b32 s{s_a}, 0x2b800000")
    a(f"s_mov_b32 s{s_b}, 0x5d800000")
    for r in range(0, 12, 2):
        for q in range(2):
            if r == 0: a(f"v_pk_mul_f32 {v(F[q]+14,2)}, {v(F[q],2)}, 0 op_sel_hi:[1,0]")
            else: a(f"v_pk_fma_f32 {v(F[q]+14,2)}, {v(F[q]+r,2)}, 0, {v(F[q]+14,2)} op_sel_hi:[1,0,1]")
    a(f"v_min_f32 v{T[0]}, v{F[0]+12}, v{F[1]+12}")
    a(f"v_max_f32 v{T[1]}, v{F[0]+12}, v{F[1]+12}")
    a(f"v_cmp_o_f32 vcc, v{F[0]+14}, v{F[0]+15}")
    a(f"v_cmp_o_f32 s[16:17], v{F[1]+14}, v{F[1]+15}")
    a(f"v_cmp_le_f32 s[18:19], s{s_a}, v{T[0]}")
    a(f"v_cmp_ge_f32 s[22:23], s{s_b}, v{T[1]}")
    a(f"s_and_b64 vcc, vcc, s[16:17]")
    a(f"s_and_b64 s[18:19], s[18:19], s[22:23]")
    a(f"s_and_b64 vcc, vcc, s[18:19]")
    a("s_cmp_eq_u64 vcc, -1")
    a(f"s_cbranch_scc0 {Lslow}")
    a(f"{Lok}:")
    NW4 = 6; NX = 7
    W4 = [56 + 20 * i for i in range(NW4)]; A4 = 176
    Lfin = a.label("fin"); Lsk = a.label("sk")
    cur = [0]
    def rd4(h, j, t):
        o = ""
        if h == 12 and j == 0 and t == 0:
            o = "".join(f"v_add_u32 v{wa4[k]}, {12*5120}, v{wa4[k]}\n" for k in range(5)); cur[0] = 12 * 5120
        return o + f"ds_read_b64_tr_b16 {v(W4[h%NW4]+4*j+2*t,2)}, v{wa4[j]} offset:{5120*h-cur[0]+1280*t}"
    a(f"s_cmp_lg_u32 s{s_kh}, 0")
    a(f"s_cbranch_scc1 {Lsk}")
    for h in range(1, 4):
        for j in range(5):
            a(rd4(h, j, 0)); a(rd4(h, j, 1))
    a(f"{Lsk}:")
    a(f"s_cmp_eq_u32 s{s_loc}, 0")
    a("s_waitcnt vmcnt(0)")
    a(f"s_cbranch_scc1 {Lo2}")
    flag_store(a, s_vo, True)
    a(f"s_branch {Lo3}")
    a(f"{Lo2}:")
    flag_store(a, s_vo, False)
    a(f"{Lo3}:")
    stamp(a, 7); stamp(a, 8); stamp(a, 9)
    a(f"s_cmp_lg_u32 s{s_kh}, 0")
    a(f"s_cbranch_scc1 {Lfin}")
    for h in (0, 4, 5):
        for j in range(5):
            a(rd4(h, j, 0)); a(rd4(h, j, 1))
    a(f"s_lshl2_add_u32 s{s_a}, s{s_m}, s{s_g}")
    a(f"s_mul_i32 s{s_a}, s{s_a}, {32*2560}")
    a(f"s_mul_i32 s{s_b}, s{s_blk}, 1280")
    a(f"s_add_u32 s{s_a}, s{s_a}, s{s_b}")
    a(f"s_mul_i32 s{s_b}, s{s_n}, 160")
    a(f"s_add_u32 s{s_a}, s{s_a}, s{s_b}")
    make_srd(a, SKV, 28, f"s{s_a}", 31 * 2560 + 160)
    poll(a, pf, f"s{s_xo}", T[0])
    stamp(a, 8)
    assert G.oa < NX
    def xf(g, ii): return 8 * (g % NX) + 4 * ii
    def ld_o(g, ii):
        o = f"s_mov_b32 s{s_a}, {10240*(g//5)}\ns_mov_b32 s{s_b}, {10240*(g//5)+16*2560}\n" if (g % 5 == 0 and ii == 0) else ""
        return o + f"buffer_load_dwordx4 {v(xf(g,ii),4)}, v{ob[g%5]}, {srd(SX)}, s{[s_a, s_b][ii]} offen sc1"
    for g in range(G.oa):
        a(ld_o(g, 0)); a(ld_o(g, 1))
    allr = [(h, j, t) for h in range(NW4, 20) for j in range(5) for t in range(2)]
    issued = 0
    for g in range(20):
        lg = 0 if g == 0 else (14 if g < NW4 else issued - 10 * (g - NW4 + 1))
        assert lg >= 0
        vm = 2 * (min(20, g + G.oa) - g - 1)
        if G.oin and g == 18: vm = 0
        if G.oin and g == 19: vm = 63
        a(f"s_waitcnt vmcnt({vm}) lgkmcnt({min(lg, 14)})")
        if G.oin and g == 18:
            a(f"s_lshl2_add_u32 s{s_a}, s{s_n}, s{s_m0x}")
            flag_store(a, s_a, True)
        todo = allr[issued:issued + G.rpg] if g >= 1 else []
        todo = [x for x in todo if x[0] - NW4 < g]
        issued += len(todo)
        ex_ = [rd4(*x) for x in todo]
        if g + G.oa < 20:
            ex_.insert(0, ld_o(g + G.oa, 0)); ex_.insert(min(5, len(ex_)), ld_o(g + G.oa, 1))
        for j in range(5):
            for ii in range(2):
                d = v(A4 + 4 * (5 * ii + j), 4)
                a(f"v_mfma_f32_16x16x32_bf16 {d}, {v(W4[g%NW4]+4*j,4)}, {v(xf(g,ii),4)}, {d if g else 0}")
                if ex_: a(ex_.pop(0))
        for x in ex_: a(x)
    stamp(a, 9)
    if G.oin:
        a(f"v_and_b32 v{pf}, 28, v{T[4]}")
        a(f"buffer_load_dword v{T[0]}, v{pf}, {srd(SF)}, s{s_m0x} offen sc1")
    for j in range(5):
        if j == 4: a("s_nop 1")
        for ii in range(2):
            r = A4 + 4 * (5 * ii + j)
            a(f"v_cvt_pk_bf16_f32 v{r}, v{r}, v{r+1}")
            a(f"v_cvt_pk_bf16_f32 v{r+1}, v{r+2}, v{r+3}")
            a(f"ds_write_b64 v{tw}, {v(r,2)} offset:{8*j+16*176*ii}")
    a("s_waitcnt lgkmcnt(0)")
    for i in range(5): a(f"ds_read_b128 {v(4*i,4)}, v{rb[i]}")
    if G.oin:
        Lgo = a.label("go")
        a(f"s_cmp_eq_u32 s{s_loc}, 0")
        a(f"s_cbranch_scc1 {Lgo}")
        a("s_waitcnt vmcnt(0)")
        a(f"v_cmp_ne_u32 vcc, s{s_tag}, v{T[0]}")
        a(f"s_cbranch_vccz {Lgo}")
        poll(a, pf, f"s{s_m0x}", T[0])
        a(f"{Lgo}:")
    for i in range(5):
        a(f"s_waitcnt lgkmcnt({4-i})")
        a(f"buffer_store_dwordx4 {v(4*i,4)}, v{oc[i]}, {srd(SKV)}, 0 offen {G.ost}")
    a(f"s_or_b32 s{s_a}, s{s_m}, s{s_n}")
    a(f"s_or_b32 s{s_a}, s{s_a}, s{s_wave}")
    a(f"s_cbranch_scc1 {Lfin}")
    a(f"s_lshl_b32 s{s_b}, s{s_blk}, 7")
    a(f"s_add_u32 s{s_b}, s{s_b}, {EOFF}")
    flag_store(a, s_b, False)
    a(f"{Lfin}:")
    dump_stamps(a, 10)
    a(f"{Lend}:")
    a("s_endpgm")

    a(f"{Lcons}:")
    setT(247)
    ACC = 0
    X = [[80 + 16 * b + 4 * i for i in range(4)] for b in range(2)]
    W = [[112 + 20 * b + 4 * j for j in range(5)] for b in range(2)]
    xa = [152, 153]; wa = [154, 155, 156, 157, 158]; xt, xv = 159, 160
    s_wm, s_wn = s_xo, s_wo
    a(f"s_and_b32 s{s_wm}, s{s_wave}, 1")
    a(f"s_lshr_b32 s{s_wn}, s{s_wave}, 1")
    a(f"s_lshl_b32 s{s_b}, s{s_wm}, 13")
    x_addrs(a, xa, s_b)
    for r in range(0, 80, 2): a(f"v_mov_b64 {v(ACC+r,2)}, 0")
    common_ptrs()
    epoch_load()
    att_addrs()
    a(f"s_and_b32 s{s_a}, s{s_n}, 3")
    a(f"s_lshl2_add_u32 s{s_a}, s{s_blk}, s{s_a}")
    a(f"s_lshl1_add_u32 s{s_a}, s{s_a}, s{s_wn}")
    a(f"s_mul_i32 s{s_a}, s{s_a}, {4*HS}")
    a(f"s_lshl1_add_u32 s{s_b}, s{s_m}, s{s_wm}")
    a(f"s_mul_i32 s{s_b}, s{s_b}, {PS}")
    a(f"s_add_u32 s{s_a}, s{s_a}, s{s_b}")
    make_srd(a, SO, 32, f"s{s_a}", 3 * HS + PS)
    a(f"s_lshl3_add_u32 s{s_a}, s{s_blk}, s{s_n}")
    a(f"s_lshl1_add_u32 s{s_a}, s{s_a}, s{s_wn}")
    a(f"s_lshl4_add_u32 s{s_a}, s{s_a}, s{s_m}")
    a(f"s_lshl1_add_u32 s{s_vo}, s{s_a}, s{s_wm}")
    a(f"s_lshr_b32 s{s_k}, s{s_vo}, 3")
    a(f"s_lshl_b32 s{s_k}, s{s_k}, 7")
    a(f"s_and_b32 s{s_a}, s{s_vo}, 7")
    a(f"s_lshl2_add_u32 s{s_k}, s{s_a}, s{s_k}")
    a(f"s_add_u32 s{s_k}, s{s_k}, {FLOFF}")
    a(f"s_and_b32 s{s_vo}, s2, 7")
    a(f"s_lshl_b32 s{s_vo}, s{s_vo}, 7")
    a(f"s_add_u32 s{s_vo}, s{s_vo}, {GFOFF}")
    epoch_fin()
    a(f"s_getreg_b32 s{s_loc}, hwreg(HW_REG_XCC_ID)")
    a(f"s_and_b32 s{s_loc}, s{s_loc}, 15")
    a(f"s_add_u32 s{s_loc}, s{s_loc}, s{s_tag}")
    a(f"s_and_b32 s{s_a}, s2, 7")
    a(f"s_lshl_b32 s{s_m0w}, s{s_a}, 12")
    a(f"s_add_u32 s{s_m0w}, s{s_m0w}, {XOFF}")
    a(f"s_lshr_b32 s{s_a}, s2, 3")
    a(f"s_lshl_b32 s{s_a}, s{s_a}, 7")
    a(f"s_add_u32 s24, s{s_a}, s{s_m0w}")
    a(f"s_cmp_eq_u32 s{s_wave}, 0")
    a(f"s_cselect_b32 s25, 1, 99")
    a(f"v_and_b32 v{xv}, 31, v{lane}")
    a(f"v_lshlrev_b32 v{xv}, 7, v{xv}")
    qv, fv = 161, 246
    a(f"v_min_u32 v{T[0]}, {G.nkv}, v{lane}")
    a(f"s_and_b32 s{s_a}, s{s_m}, 3")
    a(f"s_mul_i32 s{s_a}, s{s_a}, {(G.nkv+1)*128}")
    a(f"v_lshl_add_u32 v{qv}, v{T[0]}, 7, s{s_a}")
    a(f"s_lshl4_add_u32 s{s_st}, s{s_blk}, s{s_n}")
    a(f"s_lshr_b32 s{s_a}, s{s_m}, 2")
    a(f"s_lshl2_add_u32 s{s_st}, s{s_st}, s{s_a}")
    a(f"s_lshl_b32 s{s_st}, s{s_st}, 7")
    a(f"s_add_u32 s{s_st}, s{s_st}, {FLOFF}")
    a(f"v_and_b32 v{T[0]}, 7, v{lane}")
    a(f"v_lshrrev_b32 v{T[1]}, 5, v{lane}")
    a(f"v_lshlrev_b32 v{T[0]}, 2, v{T[0]}")
    a(f"v_lshl_add_u32 v{fv}, v{T[1]}, 12, v{T[0]}")
    if G.tKV == 1: a(f"buffer_load_dword v{xt}, v{qv}, {srd(SKV)}, s{s_ko} offen sc1")
    tr_addrs(a, wa4, True, True, None, WOBASE)
    a(f"v_and_b32 v{T[0]}, 15, v{lane}")
    a(f"v_lshrrev_b32 v{T[1]}, 4, v{lane}")
    a(f"s_movk_i32 s{s_a}, 1280")
    for b in range(5):
        a(f"v_add_u32 v{T[2]}, {4*b}, v{T[1]}")
        a(f"v_mul_u32_u24 v{T[3]}, 205, v{T[2]}")
        a(f"v_lshrrev_b32 v{T[3]}, 10, v{T[3]}")
        a(f"v_lshlrev_b32 v{T[2]}, 8, v{T[2]}")
        a(f"v_mad_u32_u24 v{T[2]}, v{T[3]}, s{s_a}, v{T[2]}")
        a(f"v_lshl_add_u32 v{ob[b]}, v{T[0]}, 4, v{T[2]}")
    a(f"s_xor_b32 s{s_b}, s{s_wave}, 4")
    a(f"s_mul_i32 s{s_b}, s{s_b}, 6144")
    a(f"v_mul_u32_u24 v{T[0]}, 176, v{T[0]}")
    a(f"v_mad_u32_u24 v{T[0]}, v{T[1]}, 40, v{T[0]}")
    a(f"v_add_u32 v{tw}, s{s_b}, v{T[0]}")
    a(f"s_movk_i32 s{s_a}, {2560-160}")
    for i in range(5):
        a(f"v_add_u32 v{T[0]}, {64*i}, v{lane}")
        a(f"v_mul_u32_u24 v{T[1]}, 6554, v{T[0]}")
        a(f"v_lshrrev_b32 v{T[1]}, 16, v{T[1]}")
        a(f"v_lshlrev_b32 v{T[0]}, 4, v{T[0]}")
        a(f"v_mad_u32_u24 v{oc[i]}, v{T[1]}, s{s_a}, v{T[0]}")
        a(f"v_lshl_add_u32 v{T[0]}, v{T[1]}, 4, v{T[0]}")
        a(f"v_add_u32 v{rb[i]}, s{s_b}, v{T[0]}")
    pv1, pv2 = 168, 169
    a(f"v_and_b32 v{T[0]}, 3, v{lane}")
    a(f"s_mov_b32 s{s_a}, {HS}")
    a(f"v_mul_lo_u32 v{pv1}, v{T[0]}, s{s_a}")
    a(f"v_and_b32 v{T[0]}, 7, v{lane}")
    a(f"v_mul_u32_u24 v{pv2}, {HS//8}, v{T[0]}")
    def page_touch():
        a(f"buffer_load_dword v{xt}, v{pv1}, {srd(SO)}, 0 offen sc1")
        a(f"buffer_load_dword v{xt}, v{pv2}, {srd(SKV)}, 0 offen sc1")
    if G.tpg == 1: page_touch()
    if G.tKV == 3: a(f"buffer_load_dword v{xt}, v{fv}, {srd(SF)}, s{s_st} offen sc1")
    a(f"v_mov_b64 v[226:227], 0")
    a(f"v_mov_b32 v{oa1}, 0")
    a(f"s_mov_b32 s{s_it}, 0")
    a(f"s_mov_b32 s{s_m0x}, {(-3*SLOT) & 0xffffffff}")
    a(f"s_cmp_ge_u32 s{s_n}, 4")
    a(f"s_cbranch_scc1 {Lv}")

    def p1_reads(ks, b):
        out = [f"ds_read_b128 {v(X[b][i],4)}, v{xa[ks]} offset:{2048*i}" for i in range(4)]
        for j in range(5):
            for t in range(2):
                out.append(f"ds_read_b64_tr_b16 {v(W[b][j]+2*t,2)}, v{wa[j]} offset:{ks*10240+1280*t}")
        return out
    st_code = {}
    Lcj = a.label("cj")
    def consumer(ktype):
        tr_addrs(a, wa, ktype, False, s_wn, 16384)
        if ktype:
            a(f"v_lshrrev_b32 v{T[0]}, 4, v{lane}")
            a(f"s_mov_b32 s{s_a}, {HS}")
            a(f"v_mul_lo_u32 v{T[0]}, v{T[0]}, s{s_a}")
            a(f"v_and_b32 v{T[1]}, 7, v{lane}")
            a(f"v_and_b32 v{T[2]}, 8, v{lane}")
            a(f"v_lshl_add_u32 v{T[1]}, v{T[2]}, 1, v{T[1]}")
            a(f"v_lshl_add_u32 v{sa[0]}, v{T[1]}, 4, v{T[0]}")
            a(f"v_lshl_add_u32 v{sa[1]}, v{T[1]}, 3, v{T[0]}")
        else:
            a(f"v_lshrrev_b32 v{T[0]}, 4, v{lane}")
            a(f"v_mul_u32_u24 v{T[0]}, 320, v{T[0]}")
            a(f"v_and_b32 v{T[1]}, 15, v{lane}")
            a(f"s_mov_b32 s{s_a}, {HS-320}")
            for j in range(5):
                a(f"v_add_u32 v{T[2]}, {16*j}, v{T[1]}")
                a(f"v_mul_u32_u24 v{T[3]}, 3277, v{T[2]}")
                a(f"v_lshrrev_b32 v{T[3]}, 16, v{T[3]}")
                a(f"v_lshl_add_u32 v{T[2]}, v{T[2]}, 4, v{T[0]}")
                a(f"v_mad_u32_u24 v{sa[j]}, v{T[3]}, s{s_a}, v{T[2]}")
        def mf(b):
            out = []
            for j in range(5):
                for i in range(4):
                    d = v(ACC + 4 * (5 * i + j), 4)
                    A, B = (W[b][j], X[b][i]) if ktype else (X[b][i], W[b][j])
                    out.append(f"v_mfma_f32_16x16x32_bf16 {d}, {v(A,4)}, {v(B,4)}, {d}")
            return out
        Lp = a.label("p1"); Ll = a.label("p1l")
        if G.kst: stamp(a, 14)
        a("s_barrier")
        stamp(a, 1)
        for x in p1_reads(0, 0): a(x)
        a(f"{Lp}:")
        a("s_waitcnt lgkmcnt(8)")
        e = p1_reads(1, 1) + [f"s_add_u32 s{s_it}, s{s_it}, 1", f"s_and_b32 s{s_a}, s{s_it}, 3",
                              f"s_cselect_b32 s{s_a}, {SLOT}, s{s_m0x}", f"s_cmp_eq_u32 s{s_it}, 10"]
        for k, x in enumerate(mf(0)):
            if k == 4: a("s_waitcnt lgkmcnt(4)")
            a(x)
            if e: a(e.pop(0))
        a("s_waitcnt lgkmcnt(8)")
        m1 = mf(1)
        adds = [f"v_add_u32 v{r}, s{s_a}, v{r}" for r in xa + wa]
        for k in range(4):
            a(m1[k])
            for x in adds[2 * k:2 * k + 2]: a(x)
        a("s_waitcnt lgkmcnt(0)")
        a("s_barrier")
        a(f"s_cbranch_scc1 {Ll}")
        e = p1_reads(0, 0)
        for x in m1[4:]:
            a(x)
            if e: a(e.pop(0))
        Lq = a.label("p1q")
        a(f"s_cmp_lg_u32 s{s_it}, s25")
        a(f"s_cbranch_scc1 {Lq}")
        flag_regs(a, s_loc)
        flag_store(a, 24, False)
        a(f"{Lq}:")
        a(f"s_cmp_lg_u32 s{s_it}, {G.xit}")
        a(f"s_cbranch_scc1 {Lp}")
        if G.tpg == 2: page_touch()
        if G.tKV == 2: a(f"buffer_load_dword v{xt}, v{fv}, {srd(SF)}, s{s_st} offen sc1")
        a(f"buffer_load_dword v{xt}, v{xv}, {srd(SF)}, s{s_m0w} offen sc1")
        a(f"s_branch {Lp}")
        a(f"{Ll}:")
        for x in m1[4:]: a(x)
        Lt = a.label("xt"); Ltd = a.label("xtd")
        a(f"s_mov_b32 s{s_c}, {SPIN}")
        a(f"{Lt}:")
        a("s_waitcnt vmcnt(0)")
        a(f"v_subrev_u32 v{T[0]}, s{s_tag}, v{xt}")
        a(f"v_cmp_lt_u32 vcc, 15, v{T[0]}")
        a(f"s_cbranch_vccz {Ltd}")
        a(f"s_sub_u32 s{s_c}, s{s_c}, 1")
        a(f"s_cbranch_scc1 {Ltd}")
        a(f"s_sleep {G.sleep}")
        a(f"buffer_load_dword v{xt}, v{xv}, {srd(SF)}, s{s_m0w} offen sc1")
        a(f"s_branch {Lt}")
        a(f"{Ltd}:")
        a(f"v_cmp_ne_u32 vcc, s{s_loc}, v{xt}")
        a("s_cmp_eq_u64 vcc, 0")
        a(f"s_cselect_b32 s{s_loc}, {1 if G.local else 0}, 0")
        stamp(a, 2)
        def stores(fl, so, cvt):
            if ktype:
                for i in range(4):
                    r = KVD + 10 * i
                    if cvt:
                        for e in range(10): a(f"v_cvt_pk_bf16_f32 v{r+e}, v{ACC+20*i+2*e}, v{ACC+20*i+2*e+1}")
                    o = (i >> 1) * 1024 + (i & 1) * 128
                    a(f"buffer_store_dwordx4 {v(r,4)}, v{sa[0]}, {srd(SO)}, {so} offen offset:{o} {fl}")
                    a(f"buffer_store_dwordx4 {v(r+4,4)}, v{sa[0]}, {srd(SO)}, {so} offen offset:{o+512} {fl}")
                    a(f"buffer_store_dwordx2 {v(r+8,2)}, v{sa[1]}, {srd(SO)}, {so} offen offset:{2048+(i>>1)*256+(i&1)*64} {fl}")
            else:
                for j in range(5):
                    for i2 in range(2):
                        r = KVD + 8 * j + 4 * i2
                        if cvt:
                            r0 = ACC + 4 * (5 * (2 * i2) + j); r1 = ACC + 4 * (5 * (2 * i2 + 1) + j)
                            a(f"v_cvt_pk_bf16_f32 v{r}, v{r0}, v{r0+1}")
                            a(f"v_cvt_pk_bf16_f32 v{r+1}, v{r0+2}, v{r0+3}")
                            a(f"v_cvt_pk_bf16_f32 v{r+2}, v{r1}, v{r1+1}")
                            a(f"v_cvt_pk_bf16_f32 v{r+3}, v{r1+2}, v{r1+3}")
                        a(f"buffer_store_dwordx4 {v(r,4)}, v{sa[j]}, {srd(SO)}, {so} offen offset:{2560+1280*i2} {fl}")
        st_code[ktype] = stores
        Lg = a.label("glob")
        a(f"s_cmp_eq_u32 s{s_loc}, 0")
        a(f"s_cbranch_scc1 {Lg}")
        if not (G.xs & 1): stores(G.lst, "0", True)
        a(f"s_branch {Lcj}")
        a(f"{Lg}:")
        stores("sc1", "0", True)
        if ktype: a(f"s_branch {Lcj}")
    consumer(True)
    a(f"{Lv}:")
    consumer(False)
    a(f"{Lcj}:")
    pad_hop(a, 2)
    a(f"v_mov_b32 v{T[0]}, {MODE_LDS}")
    a(f"v_mov_b32 v{T[1]}, s{s_loc}")
    a(f"ds_write_b32 v{T[0]}, v{T[1]}")
    flag_regs(a)
    def att_init():
        pad_value()
        for b in range(4): pad(b)
        zero_acc()
        wo_scalars()
        a(f"s_lshl2_add_u32 s{s_c}, s{s_m}, s{s_g}")
        a(f"s_lshl_b32 s{s_c}, s{s_c}, 5")
        o_base(SX, s_c, 31 * 2560 + 1280)
    Lg2 = a.label("g2")
    a(f"s_cmp_eq_u32 s{s_loc}, 0")
    a("s_waitcnt lgkmcnt(0)")
    a(f"s_cbranch_scc1 {Lg2}")
    pad_hop(a, 2)
    att_init()
    a("s_waitcnt vmcnt(0)")
    flag_store(a, s_k, True)
    stamp(a, 3)
    poll(a, 246, f"s{s_st}", T[1])
    stamp(a, 4)
    kv_first(False)
    if G.tP:
        a(f"v_min_u32 v{T[0]}, 39, v{lane}")
        a(f"v_lshlrev_b32 v{T[0]}, 7, v{T[0]}")
        a(f"s_sub_u32 s{s_a}, s{s_ko}, {PS}")
        a(f"s_add_u32 s{s_b}, s{s_ko}, {PS}")
        a(f"buffer_load_dword v{gfd}, v{T[0]}, {srd(SKV)}, s{s_a} offen sc1")
        a(f"buffer_load_dword v{gfd}, v{T[0]}, {srd(SKV)}, s{s_b} offen sc1")
    a(f"s_lshr_b32 s{s_a}, s2, 3")
    a(f"s_or_b32 s{s_a}, s{s_a}, s{s_wave}")
    a(f"s_cselect_b32 s{s_st}, 4, 5")
    q_prep()
    a("s_barrier")
    q_reads(0)
    a(f"s_branch {Latt}")
    def group_wait(part=None, n=0):
        L = a.label("gp"); Ld = a.label("gpd"); Lc = a.label("gpc")
        if part == 2:
            a(f"s_mov_b32 s{s_c}, {SPIN}")
            a(f"s_waitcnt vmcnt({n})")
            a(f"s_branch {Lc}")
        if part != 2:
            a(f"s_lshl_b32 s{s_b}, s{s_blk}, 6")
            a(f"s_lshr_b32 s{s_a}, s{s_m}, 2")
            a(f"s_add_u32 s{s_b}, s{s_b}, s{s_a}")
            a(f"s_lshl_b32 s{s_b}, s{s_b}, 7")
            a(f"s_add_u32 s{s_b}, s{s_b}, {FLOFF}")
            a(f"v_lshrrev_b32 v{T[0]}, 2, v{lane}")
            a(f"v_and_b32 v{T[1]}, 3, v{lane}")
            a(f"v_lshlrev_b32 v{T[1]}, 3, v{T[1]}")
            a(f"v_lshl_add_u32 v{T[0]}, v{T[0]}, 9, v{T[1]}")
            a(f"s_mov_b32 s{s_c}, {SPIN}")
        a(f"{L}:")
        a(f"buffer_load_dwordx2 {v(T[1],2)}, v{T[0]}, {srd(SF)}, s{s_b} offen sc1")
        if part == 1: return
        a("s_waitcnt vmcnt(0)")
        a(f"{Lc}:")
        a(f"v_cmp_ne_u32 vcc, s{s_tag}, v{T[1]}")
        a(f"v_cmp_ne_u32 s[16:17], s{s_tag}, v{T[2]}")
        a("s_or_b64 vcc, vcc, s[16:17]")
        a(f"s_cbranch_scc0 {Ld}")
        a(f"s_sub_u32 s{s_c}, s{s_c}, 1")
        a(f"s_cbranch_scc1 {Ld}")
        a(f"s_sleep {G.sleep}")
        a(f"s_branch {L}")
        a(f"{Ld}:")
    a(f"{Lg2}:")
    att_init()
    a("s_waitcnt vmcnt(0)")
    a("s_mov_b64 exec, 1")
    a(f"buffer_store_dword v{T[5]}, v{T[4]}, {srd(SF)}, s{s_k} offen sc1")
    a("s_mov_b64 exec, -1")
    stamp(a, 3)
    Lne = a.label("ne")
    a(f"s_lshr_b32 s{s_a}, s2, 3")
    a(f"s_or_b32 s{s_a}, s{s_a}, s{s_wave}")
    a(f"s_cbranch_scc1 {Lne}")
    group_wait()
    flag_store(a, s_vo, False)
    a(f"{Lne}:")
    poll(a, gfv, f"s{s_fg}", T[1])
    stamp(a, 4)
    kv_first(False)
    a(f"s_mov_b32 s{s_st}, 0")
    q_prep()
    a("s_barrier")
    q_reads(0)
    a(f"s_branch {Latt}")

    for Ls, Lb, R1 in spins:
        a(f"{Ls}:")
        a(f"ds_read_b32 v{fd}, v{fr} offset:{16*(R1-1)}")
        a("s_waitcnt lgkmcnt(0)")
        a(f"v_cmp_ne_u32 vcc, 1, v{fd}")
        a(f"s_cbranch_vccnz {Ls}")
        a(f"s_branch {Lb}")
    a(f"{hooks[G.hst][1]}:")
    stamp(a, 11)
    group_wait(1)
    a(f"s_branch {hooks[G.hst][2]}")
    a(f"{hooks[G.hchk][1]}:")
    group_wait(2, pos[G.hchk] - pos[G.hst])
    stamp(a, 12)
    a("buffer_wbl2 sc1")
    a(f"s_branch {hooks[G.hchk][2]}")
    a(f"{hooks[G.hpub][1]}:")
    a("s_waitcnt vmcnt(0)")
    a(f"s_bitset0_b32 s{s_st}, 0")
    flag_regs(a)
    flag_store(a, s_vo, False)
    stamp(a, 13)
    a(f"s_branch {hooks[G.hpub][2]}")
    a(f"{hooks[G.hl][1]}:")
    if G.kill: a(f"s_mov_b32 s{SKV+2}, 0")
    a(f"s_mul_i32 s{s_a}, s{s_wave}, 6144")
    a(f"v_add_u32 v{own}, s{s_a}, v{ka}")
    a(f"s_xor_b32 s{s_a}, s{s_wave}, 4")
    a(f"s_mul_i32 s{s_a}, s{s_a}, 6144")
    a(f"v_add_u32 v{oth}, s{s_a}, v{ka}")
    a(f"s_lshl4_add_u32 s{s_xo}, s{s_blk}, s{s_m}")
    a(f"s_lshl1_add_u32 s{s_c}, s{s_m}, s{s_kh}")
    a(f"s_lshl_b32 s{s_c}, s{s_c}, 6")
    o_base(SO, s_c, 63 * 2560 + 1280)
    a(f"s_lshl2_add_u32 s{s_vo}, s{s_n}, s{s_g}")
    a(f"s_mul_i32 s{s_b}, s{s_vo}, 5")
    a(f"s_add_u32 s{s_b}, s{s_b}, 1")
    a(f"s_lshr_b32 s{s_b}, s{s_b}, 1")
    def funit(dst, u):
        a(f"s_mul_i32 s{dst}, s{u}, 205")
        a(f"s_lshr_b32 s{dst}, s{dst}, 10")
        a(f"s_mul_i32 s{dst}, s{dst}, 5")
        a(f"s_add_u32 s{dst}, s{dst}, s{u}")
        a(f"s_lshl_b32 s{dst}, s{dst}, 8")
    funit(16, s_b)
    a(f"s_add_u32 s{s_a}, s{s_b}, 1")
    funit(17, s_a)
    a(f"s_and_b32 s19, s{s_g}, 1")
    a(f"s_cselect_b32 s{s_a}, -1, 2")
    a(f"s_add_u32 s{s_a}, s{s_a}, s{s_b}")
    funit(18, s_a)
    a(f"s_lshl3_add_u32 s18, s19, s18")
    a(f"s_sub_u32 s17, s17, s16")
    a(f"v_bfe_u32 v{T[2]}, v{lane}, 4, 1")
    a(f"v_mul_u32_u24 v{T[2]}, {16*2560}, v{T[2]}")
    a(f"v_and_b32 v{T[3]}, 15, v{lane}")
    a(f"v_lshl_add_u32 v{T[2]}, v{T[3]}, 4, v{T[2]}")
    a(f"v_lshrrev_b32 v{T[4]}, 5, v{lane}")
    a(f"v_lshl_add_u32 v{T[3]}, v{T[4]}, 20, v{T[2]}")
    a(f"v_mad_u32_u24 v{T[2]}, v{T[4]}, s17, v{T[2]}")
    a(f"v_add_u32 v{oa1}, s16, v{T[2]}")
    a(f"v_add_u32 v{oa2}, s18, v{T[3]}")
    a(f"s_cmp_eq_u32 s{s_loc}, 0")
    a(f"s_cselect_b32 s{s_k}, {FSH}, 2")
    a(f"s_mov_b32 s{s_a}, {F2LOFF}")
    a(f"s_cselect_b32 s{s_a}, {F2OFF}, s{s_a}")
    a(f"s_lshl_b32 s{s_xo}, s{s_xo}, 6")
    a(f"s_lshl_b32 s{s_xo}, s{s_xo}, s{s_k}")
    a(f"s_add_u32 s{s_xo}, s{s_xo}, s{s_a}")
    a(f"s_lshl_b32 s{s_a}, s{s_kh}, 5")
    a(f"s_add_u32 s{s_vo}, s{s_vo}, s{s_a}")
    a(f"s_lshl_b32 s{s_vo}, s{s_vo}, s{s_k}")
    a(f"s_add_u32 s{s_vo}, s{s_vo}, s{s_xo}")
    flag_regs(a)
    if G.tO:
        a(f"s_mov_b32 s{s_b}, {32*2560}")
        for so in ("0", f"s{s_b}"):
            a(f"buffer_load_dword v{gfd}, v{oa1}, {srd(SO)}, {so} offen sc1")
            a(f"buffer_load_dword v{gfd}, v{oa2}, {srd(SO)}, {so} offen sc1")
    a(f"s_lshr_b32 s{s_a}, s{s_g}, 1")
    a(f"s_lshl_b32 s{s_a}, s{s_a}, 5")
    a(f"s_lshl_b32 s{s_a}, s{s_a}, s{s_k}")
    a(f"s_add_u32 s{s_xo}, s{s_xo}, s{s_a}")
    a(f"v_and_b32 v{pf}, 31, v{lane}")
    a(f"v_lshlrev_b32 v{pf}, s{s_k}, v{pf}")
    a(f"buffer_load_dword v{gfd}, v{pf}, {srd(SF)}, s{s_xo} offen sc1")
    a(f"s_lshl4_add_u32 s{s_m0x}, s{s_blk}, s{s_m}")
    a(f"s_lshl2_add_u32 s{s_m0x}, s{s_m0x}, s{s_g}")
    a(f"s_lshl_b32 s{s_m0x}, s{s_m0x}, 5")
    a(f"s_add_u32 s{s_m0x}, s{s_m0x}, {F3OFF}")
    a(f"buffer_load_dword v{gfd}, off, {srd(SF)}, s{s_m0x} sc1")
    a(f"s_branch {hooks[G.hl][2]}")
    if G.early:
        a(f"{LhW}:")
        a("s_nop 3")
        send()
        a(f"s_branch {LhWb}")
    a(f"{hooks[G.hsam][1]}:")
    a(f"buffer_load_dword v{gfd}, v{gfv}, {srd(SF)}, s{s_fg} offen sc1")
    a(f"s_mov_b32 s{s_st}, 16")
    a(f"s_branch {hooks[G.hsam][2]}")
    a(f"{hooks[(0,2)][1]}:")
    nafter = (pos[(0, 2)] - pos[G.hsam]) % (len(names) // 2)
    if not G.rst and not G.kst: stamp(a, 14)
    a(f"s_waitcnt vmcnt({nafter})")
    stamp(a, 15)
    a(f"s_mov_b32 s{s_st}, 0")
    a(f"v_cmp_ne_u32 vcc, s{s_tag}, v{gfd}")
    a(f"s_cbranch_vccz {hooks[(0,2)][2]}")
    poll(a, gfv, f"s{s_fg}", gfd)
    stamp(a, 15)
    a(f"s_branch {hooks[(0,2)][2]}")

    a(f"{Lslow}:")
    vmx = gfd
    a(f"s_mov_b32 s{SKV+2}, {HS}")
    for q in (2, 3):
        L1 = a.label("s1"); L2 = a.label("s2")
        a(f"v_mov_b32 v{vmx}, 0xff800000")
        a(f"s_mov_b32 s{s_ko}, 0")
        a(f"{L1}:")
        a(ld_k1(0)); a(ld_k1(1)); a(ld_k3(0))
        a("s_waitcnt vmcnt(0)")
        for t in range(2):
            a(qk1(0, q, t)); a(qk2(0, q, t))
            a("s_nop 15")
            for r in range(0, 16, 2):
                a(f"v_max3_f32 v{vmx}, v{S[0]+r}, v{S[0]+r+1}, v{vmx}")
        a(f"s_add_u32 s{s_ko}, s{s_ko}, {PS}")
        a(f"s_cmp_lt_u32 s{s_ko}, {HS}")
        a(f"s_cbranch_scc1 {L1}")
        a(f"v_mov_b32 v{T[0]}, v{vmx}")
        a("s_nop 1")
        a(f"v_permlane32_swap_b32 v{T[0]}, v{vmx}")
        a("s_nop 1")
        a(f"v_max_f32 v{vmx}, v{vmx}, v{T[0]}")
        for r in range(0, 16, 2):
            a(f"v_mov_b64 {v(O[q]+r,2)}, 0")
        a(f"s_mov_b32 s{s_ko}, 0")
        a(f"{L2}:")
        a(ld_k1(0)); a(ld_k1(1)); a(ld_k3(0)); a(ld_v(0)); a(ld_v(1))
        a("s_waitcnt vmcnt(0)")
        for t in range(2):
            a(qk1(0, q, t)); a(qk2(0, q, t))
            a("s_nop 15")
            for r in range(16):
                a(f"v_sub_f32 v{S[0]+r}, v{S[0]+r}, v{vmx}")
            for r in range(16):
                a(ex(0, r))
            a("s_nop 0")
            for r in range(0, 16, 2):
                a(cv(0, r))
            a("s_nop 1")
            a(pv(0, q, t, 0)); a(pv(0, q, t, 1))
        a(f"s_add_u32 s{s_ko}, s{s_ko}, {PS}")
        a(f"s_cmp_lt_u32 s{s_ko}, {HS}")
        a(f"s_cbranch_scc1 {L2}")
    a("s_nop 15")
    a(f"s_mov_b32 s{s_c}, 1")
    a(f"s_branch {Lst}")
    a("Lcode_end:")
    return name

def build():
    a = Asm()
    PADS[:] = [0, 0, 0, 0]
    name = gen(a)
    if G.warm:
        i = a.lines.index(".PADRET")
        a.lines[i:i+1] = [f"Lpad_{c}_{PADS[c]}:" for c in range(4)]
    out = HEADER + "; @launch grid=(256,1,1) block=(512,1,1) lds=163840\n"
    out += '.amdgcn_target "amdgcn-amd-amdhsa--gfx950"\n.text\n' + a.text()
    out += '.section .rodata,"a"\n.p2align 6\n' + kernel_desc(name, 256, 100 if G.diag else 64)
    return out

if __name__ == "__main__":
    path = sys.argv[1] if len(sys.argv) > 1 else f"cdna_kernels/{NAME}.s"
    G.diag = "diag" in sys.argv
    for x in sys.argv[2:]:
        if "=" in x:
            k, val = x.split("=", 1)
            assert hasattr(G, k), k
            setattr(G, k, eval(val))
    open(path, "w").write(build())
    print("wrote", path)
```

```python
import sys
sys.path.insert(0, "gen")
from asmlib import *

NAME = "concat_heads__mha_block__softmax_full_mha__prompt"
HS = 163840
PS = 5120
KVL = 0x1400000
OBASE = 0xA00000
FBASE = 0x1000000
FLOFF = 0x40000
F2LOFF = 0x60000
XOFF = 0x70000
F3OFF = 0x68000
GFOFF = 0x78000
F2OFF = 0x80000
EOFF = 0x180000
DBGBASE = 0x2000000
QSCALE = 0x3ea52b5c
SLOT = 36864
SPARE = 4 * SLOT
QAREA = SLOT
WOBASE = 61440
MODE_LDS = 163836
RFLAG = 163712
SPIN = 400000
FSH = 7

HEADER = """; Kernarg layout for this problem (72 bytes, ptrs only, base s[0:1]):
"""

SX, SW, SKV, SF, SO = 4, 8, 12, 36, 40
(s_blk, s_m, s_n, s_wave, s_tag, s_k, s_a, s_b, s_c, s_it, s_xo, s_wo, s_m0x, s_m0w, s_kh, s_ko, s_vo, s_g) = range(44, 62)
s_vm = 62
s_st, s_loc, s_fg = 3, 34, 35
lane = 255
T = [0] * 6

class G:
    diag = False; dbg = None; amp = None
    lens = [10, 3, 2, 1]
    rot = True
    pro = 2; la = 3; nb1 = 2
    local = True
    sleep = 2
    iters = 8
    hst = (0, 1); hsam = (0, 0)
    oa = 4
    kill = True
    defer = True
    el4 = False
    ip = False
    nowo = False
    xpos = 6
    sst = 0
    pwb = None
    nohook = False
    cpf = 1
    fast0 = True
    kst = False
    itst = False
    tP = False
    hchk = (2, 2)
    hpub = (3, 0)
    hl = (2, 0)
    rpg = 8
    early = True
    roll = 3
    xit = 8
    nkv = 39
    tO = True
    tKV = 2
    tpg = 0
    xs = 0
    p2prio = 1
    dsh = 0
    dst = 3
    qpf = 0
    rst = 0
    rmul = 3
    rn = 1
    lwb = False
    ost = ''
    oin = True
    olst = ''
    ewb = None
    warm = False
    lst = ''
    v3 = False
    nowb = False
    wod = 3

PADS = [0, 0, 0, 0]
def pad_hop(a, c):
    if not G.warm: return
    a(f"Lpad_{c}_{PADS[c]}:")
    PADS[c] += 1
    a(f"s_cbranch_execz Lpad_{c}_{PADS[c]}")

def setT(base): T[:] = list(range(base, base + 6))
def srd(d): return f"s[{d}:{d+3}]"

def stamp(a, i):
    if not G.diag: return
    if (G.itst or G.sst) and i >= 11: return
    a("s_memtime s[96:97]")
    a("s_memrealtime s[98:99]")
    a("s_waitcnt lgkmcnt(0)")
    a(f"s_mov_b32 s{64+2*i}, s96")
    a(f"s_mov_b32 s{65+2*i}, s98")

def dump_stamps(a, n):
    if not G.diag: return
    a("s_waitcnt vmcnt(0)")
    stamp(a, n)
    a(f"s_lshl_b32 s{s_a}, s2, 3")
    a(f"s_add_u32 s{s_a}, s{s_a}, s{s_wave}")
    a(f"s_lshl_b32 s{s_a}, s{s_a}, 7")
    a(f"s_add_u32 s{s_a}, s{s_a}, {DBGBASE}")
    make_srd(a, SX, 32, f"s{s_a}", 128)
    a(f"v_mov_b32 v{T[0]}, 0")
    for i in range(32):
        a(f"v_mov_b32 v{T[1]}, s{64+i}")
        a(f"buffer_store_dword v{T[1]}, v{T[0]}, s[{SX}:{SX+3}], 0 offen offset:{4*i}")
    if G.lwb:
        L1 = a.label("lwb"); L2 = a.label("lwb2")
        a(f"s_lshr_b32 s{s_a}, s2, 3")
        a(f"s_or_b32 s{s_a}, s{s_a}, s{s_wave}")
        a(f"s_cbranch_scc1 {L2}")
        a(f"{L1}:")
        a("s_memrealtime s[98:99]")
        a("s_waitcnt lgkmcnt(0)")
        a(f"s_sub_u32 s{s_b}, s98, s{65+2*n}")
        a(f"s_cmp_lt_u32 s{s_b}, 400")
        a(f"s_cbranch_scc1 {L1}")
        a("buffer_wbl2 sc1")
        a("s_waitcnt vmcnt(0)")
        a(f"{L2}:")
    if G.dbg is not None:
        Ls = a.label("nodbg")
        a(f"s_lshl_b32 s{s_a}, s2, 3")
        a(f"s_add_u32 s{s_a}, s{s_a}, s{s_wave}")
        a(f"s_cmp_lg_u32 s{s_a}, {G.dbg}")
        a(f"s_cbranch_scc1 {Ls}")
        make_srd(a, SX, 30, None, 256)
        for i in range(1, 14):
            a(f"s_sub_u32 s{s_a}, s{65+2*i}, s65")
            a(f"v_mov_b32 v{T[1]}, s{s_a}")
            a(f"buffer_store_dword v{T[1]}, v{T[0]}, s[{SX}:{SX+3}], 0 offen offset:{4*i}")
        if G.amp is not None:
            Lw = a.label("amp")
            a(f"s_sub_u32 s{s_a}, s{65+2*G.amp}, s65")
            a(f"s_mul_i32 s{s_a}, s{s_a}, 4")
            a(f"s_add_u32 s{s_a}, s{s_a}, 1000")
            a(f"{Lw}:")
            a("s_memrealtime s[98:99]")
            a("s_waitcnt lgkmcnt(0)")
            a(f"s_sub_u32 s{s_b}, s98, s{65+2*n}")
            a(f"s_cmp_lt_u32 s{s_b}, s{s_a}")
            a(f"s_cbranch_scc1 {Lw}")
        a(f"{Ls}:")

def make_srd(a, d, base, off, nbytes):
    if off is None:
        a(f"s_mov_b64 s[{d}:{d+1}], s[{base}:{base+1}]")
    else:
        a(f"s_add_u32 s{d}, s{base}, {off}")
        a(f"s_addc_u32 s{d+1}, s{base+1}, 0")
    a(f"s_mov_b32 s{d+2}, {nbytes}")
    a(f"s_mov_b32 s{d+3}, 0x00020000")

def img_pos(a, pos, row, c):
    a(f"v_mul_u32_u24 v{row}, 3277, v{pos}")
    a(f"v_lshrrev_b32 v{row}, 16, v{row}")
    a(f"v_mad_i32_i24 v{c}, v{row}, -16, v{pos}")
    a(f"v_mad_i32_i24 v{c}, v{row}, -4, v{c}")
    a(f"v_lshrrev_b32 v{T[5]}, 3, v{row}")
    a(f"v_mad_i32_i24 v{c}, v{T[5]}, -2, v{c}")
    a(f"v_add_u32 v{T[5]}, 20, v{c}")
    a(f"v_min_u32 v{c}, v{c}, v{T[5]}")

def grp_src(a, dst, row, c, ld_sreg):
    a(f"v_cmp_lt_u32 vcc, 9, v{c}")
    a(f"v_add_u32 v{T[5]}, 16, v{row}")
    a(f"v_subrev_u32 v{T[4]}, 10, v{c}")
    a(f"v_cndmask_b32 v{row}, v{row}, v{T[5]}, vcc")
    a(f"v_cndmask_b32 v{c}, v{c}, v{T[4]}, vcc")
    a(f"v_lshlrev_b32 v{c}, 4, v{c}")
    a(f"v_mad_u32_u24 v{dst}, v{row}, s{ld_sreg}, v{c}")

def tr_addrs(a, wa, perm, grp, colhalf_sreg, base):
    a(f"v_bfe_u32 v{T[0]}, v{lane}, 2, 2")
    a(f"v_lshrrev_b32 v{T[1]}, 4, v{lane}")
    a(f"v_and_b32 v{T[2]}, 1, v{T[1]}")
    a(f"v_lshl_add_u32 v{T[0]}, v{T[2] if grp else T[1]}, 3, v{T[0]}")
    a(f"v_mul_u32_u24 v{T[0]}, 320, v{T[0]}")
    if base: a(f"v_add_u32 v{T[0]}, {base}, v{T[0]}")
    a(f"v_lshlrev_b32 v{T[2]}, 5, v{T[2]}")
    if grp:
        a(f"v_lshrrev_b32 v{T[1]}, 1, v{T[1]}")
        a(f"v_mul_u32_u24 v{T[1]}, 160, v{T[1]}")
        a(f"v_add_u32 v{T[2]}, v{T[2]}, v{T[1]}")
    else:
        a(f"s_mul_i32 s{s_a}, s{colhalf_sreg}, 160")
        a(f"v_add_u32 v{T[2]}, s{s_a}, v{T[2]}")
    a(f"v_and_b32 v{T[1]}, 3, v{lane}")
    a(f"v_mad_u32_u24 v{T[2]}, v{T[1]}, {40 if perm else 8}, v{T[2]}")
    for j in range(5):
        a(f"v_add_u32 v{T[1]}, {8*j if perm else 32*j}, v{T[2]}")
        a(f"v_subrev_u32 v{T[3]}, 320, v{T[1]}")
        a(f"v_min_u32 v{T[1]}, v{T[1]}, v{T[3]}")
        a(f"v_add_u32 v{wa[j]}, v{T[1]}, v{T[0]}")

def x_addrs(a, xa, rowbase_sreg):
    a(f"v_and_b32 v{T[0]}, 15, v{lane}")
    a(f"v_lshrrev_b32 v{T[1]}, 1, v{T[0]}")
    a(f"v_lshrrev_b32 v{T[2]}, 4, v{lane}")
    a(f"v_xor_b32 v{T[1]}, v{T[1]}, v{T[2]}")
    a(f"v_lshl_add_u32 v{T[0]}, v{T[0]}, 7, s{rowbase_sreg}")
    a(f"v_lshl_add_u32 v{xa[0]}, v{T[1]}, 4, v{T[0]}")
    a(f"v_xor_b32 v{xa[1]}, 64, v{xa[0]}")

def poll(a, voff, soff, tmp):
    L = a.label("poll"); Ld = a.label("polld")
    a(f"s_mov_b32 s{s_c}, {SPIN}")
    a(f"{L}:")
    a(f"buffer_load_dword v{tmp}, v{voff}, {srd(SF)}, {soff} offen sc1")
    a("s_waitcnt vmcnt(0)")
    a(f"v_cmp_ne_u32 vcc, s{s_tag}, v{tmp}")
    a(f"s_cbranch_vccz {Ld}")
    a(f"s_sub_u32 s{s_c}, s{s_c}, 1")
    a(f"s_cbranch_scc1 {Ld}")
    a(f"s_sleep {G.sleep}")
    a(f"s_branch {L}")
    a(f"{Ld}:")

def flag_regs(a, val=None):
    a(f"v_lshlrev_b32 v{T[4]}, 2, v{lane}")
    a(f"v_mov_b32 v{T[5]}, s{s_tag if val is None else val}")
def flag_store(a, off_sreg, local=False):
    if local:
        a("s_mov_b64 exec, 1")
    else:
        a("s_mov_b32 exec_hi, 0")
    a(f"buffer_store_dword v{T[5]}, v{T[4]}, {srd(SF)}, s{off_sreg} offen {'' if local else 'sc1'}")
    a("s_mov_b64 exec, -1")

def small_gemm(a, BF, ACC, W, wa, gbase, pre, cur0=0, vmw=None, chain=0):
    n = len(gbase)
    cur = [cur0]
    def shift(g):
        out = []
        if not (cur[0] <= gbase[g] and gbase[g] + 1280 - cur[0] <= 65535):
            want = (gbase[g] // 57344) * 57344
            d = want - cur[0]
            out = [(f"v_add_u32 v{wa[j]}, {d}, v{wa[j]}" if d > 0 else f"v_subrev_u32 v{wa[j]}, {-d}, v{wa[j]}") for j in range(5)]
            cur[0] = want
        return out
    def rd(g, j, t): return f"ds_read_b64_tr_b16 {v(W[g&1]+4*j+2*t,2)}, v{wa[j]} offset:{gbase[g]-cur[0]+1280*t}"
    for x in shift(0): a(x)
    for j in range(5):
        a(rd(0, j, 0)); a(rd(0, j, 1))
    for g in range(n):
        last = g == n - 1
        if g % 2 == 0: pad_hop(a, chain)
        for x in pre.get(("h", g), []): a(x)
        if not last:
            for x in shift(g + 1): a(x)
        ex = list(pre.get(("x", g), []))
        for j in range(5):
            if j == 0: a(f"s_waitcnt {('vmcnt(%d) ' % vmw(g)) if vmw else ''}lgkmcnt(6)")
            if G.roll == 2 or last:
                if j == 2: a(f"s_waitcnt lgkmcnt({0 if last else 4})")
            else:
                if j == 2: a("s_waitcnt lgkmcnt(6)")
                if j == 4: a("s_waitcnt lgkmcnt(8)")
            for ii in range(2):
                d = v(ACC + 4 * (5 * ii + j), 4)
                a(f"v_mfma_f32_16x16x32_bf16 {d}, {v(W[g&1]+4*j,4)}, {v(BF+8*g+4*ii,4)}, {d if g else 0}")
                if not last: a(rd(g + 1, j, ii))
            if ex: a(ex.pop(0))
        for x in ex: a(x)

def gen(a):
    name = NAME + "_kernel"
    kernel_header(a, name)
    Lend = a.label("end"); Lcons = a.label("cons"); Lv = a.label("vtype"); Latt = a.label("att")
    stamp(a, 0)
    a("s_load_dwordx16 s[16:31], s[0:1], 0")
    a("s_load_dwordx2 s[32:33], s[0:1], 64")
    a("s_cmp_ge_u32 s2, 256")
    a(f"s_cbranch_scc1 {Lend}")
    a("s_getpc_b64 s[4:5]")
    a(f"Lpc_{name}:")
    a(f"s_mov_b32 s6, Lcode_end-Lpc_{name}")
    a("s_mov_b32 s7, 0x00020000")
    if G.cpf == 0:
        a("v_lshlrev_b32 v1, 7, v0")
        a(f"buffer_load_dword v159, v1, s[4:7], 0 offen")
    else:
        a("v_and_b32 v1, 7, v0")
        a("s_and_b32 s3, s2, 0xf8")
        a("v_or_b32 v1, s3, v1")
        a("v_lshlrev_b32 v1, 7, v1")
        a(f"buffer_load_dword v159, v1, s[4:7], 0 offen")
    a("s_mov_b64 exec, -1")
    a(f"v_lshrrev_b32 v1, 6, v0")
    a(f"v_and_b32 v{lane}, 63, v0")
    a(f"v_readfirstlane_b32 s{s_wave}, v1")
    a(f"s_and_b32 s{s_a}, s2, 7")
    a(f"s_lshr_b32 s{s_b}, s2, 3")
    a(f"s_lshr_b32 s{s_blk}, s{s_a}, 2")
    a(f"s_and_b32 s{s_a}, s{s_a}, 3")
    a(f"s_lshr_b32 s{s_c}, s{s_b}, 3")
    a(f"s_lshl2_add_u32 s{s_m}, s{s_a}, s{s_c}")
    a(f"s_and_b32 s{s_n}, s{s_b}, 7")
    if G.rot:
        if G.rot == 2:
            a(f"s_add_u32 s{s_k}, s{s_c}, s{s_n}")
            a(f"s_and_b32 s{s_k}, s{s_k}, 1")
            a(f"s_mul_i32 s{s_k}, s{s_k}, 5")
        elif G.rot == 5:
            a(f"s_mul_i32 s{s_k}, s{s_c}, 5")
            a(f"s_lshr_b32 s{s_k}, s{s_k}, 1")
            a(f"s_add_u32 s{s_k}, s{s_k}, s{s_a}")
            a(f"s_lshr_b32 s{s_a}, s{s_n}, 2")
            a(f"s_add_u32 s{s_k}, s{s_k}, s{s_a}")
            a(f"s_add_u32 s{s_k}, s{s_k}, s{s_n}")
        elif G.rot == 6:
            a(f"s_mul_i32 s{s_k}, s{s_c}, 5")
            a(f"s_lshr_b32 s{s_k}, s{s_k}, 1")
            a(f"s_lshr_b32 s{s_a}, s{s_n}, 2")
            a(f"s_add_u32 s{s_k}, s{s_k}, s{s_a}")
            a(f"s_add_u32 s{s_k}, s{s_k}, s{s_n}")
        elif G.rot == 4:
            a(f"s_add_u32 s{s_k}, s{s_c}, s{s_n}")
            a(f"s_and_b32 s{s_k}, s{s_k}, 3")
            a(f"s_mul_i32 s{s_k}, s{s_k}, 5")
            a(f"s_lshr_b32 s{s_k}, s{s_k}, 1")
        else:
            a(f"s_mul_i32 s{s_k}, s{s_c}, 3")
            a(f"s_add_u32 s{s_k}, s{s_k}, s{s_n}")
            a(f"s_add_u32 s{s_k}, s{s_k}, s{s_a}")
        a(f"s_cmp_ge_u32 s{s_k}, 10")
        a(f"s_cselect_b32 s{s_a}, 10, 0")
        a(f"s_sub_u32 s{s_k}, s{s_k}, s{s_a}")
    else:
        a(f"s_mov_b32 s{s_k}, 0")
    a(f"s_and_b32 s{s_g}, s{s_wave}, 3")
    a(f"s_lshr_b32 s{s_kh}, s{s_wave}, 2")
    a(f"s_cbranch_scc0 {Lcons}")

    def common_ptrs():
        a("s_waitcnt lgkmcnt(0)")
        a(f"s_cmp_eq_u32 s{s_blk}, 0")
        a("s_cselect_b64 s[16:17], s[16:17], s[22:23]")
        a("s_cselect_b64 s[18:19], s[18:19], s[24:25]")
        a("s_cselect_b64 s[20:21], s[20:21], s[26:27]")
    def epoch_load():
        a(f"s_lshl_b32 s{s_a}, s{s_blk}, 7")
        a(f"s_add_u32 s{s_a}, s{s_a}, {FBASE+EOFF}")
        a(f"s_load_dword s{s_tag}, s[32:33], s{s_a}")
        make_srd(a, SF, 32, FBASE, EOFF + 0x1000)
    def epoch_fin():
        a("s_waitcnt lgkmcnt(0)")
        a(f"s_mul_i32 s{s_tag}, s{s_tag}, 0x9E3779B1")
        a(f"s_add_u32 s{s_tag}, s{s_tag}, 0x7F4A7C15")

    O = [0, 16, 32, 48]; S = [64, 80]; P = [96, 104]
    K1 = [112, 116, 120, 124]; K3 = [128, 130]; V = [132, 140, 148, 156]
    Q1 = [164, 168, 172, 176]; Q3 = [[180, 182, 184, 186], [188, 190, 192, 194]]
    KVD = 80; sa = [163, 164, 165, 166, 167]
    ka, k3a, va, gwo, gfv, gfd = 240, 241, 242, 243, 244, 245

    def att_addrs():
        a(f"s_lshl3_add_u32 s{s_a}, s{s_blk}, s{s_n}")
        a(f"s_lshl2_add_u32 s{s_a}, s{s_a}, s{s_g}")
        a(f"s_mul_i32 s{s_a}, s{s_a}, {HS}")
        make_srd(a, SKV, 32, f"s{s_a}", HS)
        a(f"v_lshlrev_b32 v{ka}, 4, v{lane}")
        a(f"v_lshlrev_b32 v{k3a}, 3, v{lane}")
        a(f"v_and_b32 v{T[0]}, 31, v{lane}")
        a(f"v_lshrrev_b32 v{T[1]}, 1, v{T[0]}")
        a(f"v_xor_b32 v{T[1]}, v{T[1]}, v{T[0]}")
        a(f"v_and_b32 v{T[1]}, 4, v{T[1]}")
        a(f"v_mul_u32_u24 v{T[1]}, 3, v{T[1]}")
        a(f"v_xor_b32 v{T[1]}, v{T[1]}, v{T[0]}")
        a(f"s_and_b32 s{s_a}, s{s_g}, 1")
        a(f"s_lshl_b32 s{s_a}, s{s_a}, 2")
        a(f"v_add_u32 v{T[1]}, s{s_a}, v{T[1]}")
        a(f"v_subrev_u32 v{T[2]}, 20, v{T[1]}")
        a(f"v_min_u32 v{T[1]}, v{T[1]}, v{T[2]}")
        a(f"v_lshrrev_b32 v{T[2]}, 5, v{lane}")
        a(f"v_mul_u32_u24 v{T[3]}, 320, v{T[2]}")
        a(f"v_lshl_add_u32 v{va}, v{T[1]}, 4, v{T[3]}")
        a(f"v_add_u32 v{va}, 2560, v{va}")
        a(f"s_and_b32 s{s_ko}, s{s_m}, 12")
        a(f"s_lshl1_add_u32 s{s_ko}, s{s_ko}, s{s_kh}")
        a(f"s_mul_i32 s{s_ko}, s{s_ko}, {PS}")
        a(f"s_mov_b32 s{s_vm}, 0x000fffff")
        a(f"s_mov_b32 s{s_vm+1}, 0x000fffff")
        a(f"s_lshl_b32 s{s_fg}, s{s_blk}, 9")
        a(f"s_add_u32 s{s_fg}, s{s_fg}, {GFOFF}")
        a(f"v_and_b32 v{gfv}, 3, v{lane}")
        a(f"v_lshlrev_b32 v{gfv}, 7, v{gfv}")
        a(f"s_min_u32 s{s_a}, s{s_wave}, 4")
        a(f"s_lshl_b32 s{s_b}, s{s_a}, 6")
        a(f"v_add_u32 v{T[0]}, s{s_b}, v{lane}")
        img_pos(a, T[0], T[1], T[2])
        a(f"s_movk_i32 s{s_c}, 1280")
        grp_src(a, gwo, T[1], T[2], s_c)
    def wo_scalars():
        make_srd(a, SW, 20, None, 640 * 1280)
        a(f"s_cmp_gt_u32 s{s_wave}, 4")
        a(f"s_cselect_b32 s{s_c}, {24*5120}, 0")
        a(f"s_lshl_b32 s{s_m0w}, s{s_wave}, 10")
        if G.wod: a(f"s_sub_u32 s{s_m0w}, s{s_m0w}, {G.wod*5120}")
        a(f"s_add_u32 s{s_m0w}, s{s_m0w}, s{s_c}")
        a(f"s_mul_i32 s{s_wo}, s{s_n}, 160")
        a(f"s_lshl3_add_u32 s{s_wo}, s{s_c}, s{s_wo}")
        if G.wod: a(f"s_sub_u32 s{s_wo}, s{s_wo}, {G.wod*32*1280}")
    def ld_k1(b): return f"buffer_load_dwordx4 {v(K1[b],4)}, v{ka}, {srd(SKV)}, s{s_ko} offen offset:{1024*(b&1)} sc1"
    def ld_k3(p): return f"buffer_load_dwordx2 {v(K3[p],2)}, v{k3a}, {srd(SKV)}, s{s_ko} offen offset:2048 sc1"
    def ld_v(b, m=s_vm):
        return (f"s_mov_b64 exec, s[{m}:{m+1}]\n"
                f"buffer_load_dwordx4 {v(V[b],4)}, v{va}, {srd(SKV)}, s{s_ko} offen offset:{1280*(b&1)} sc1\n"
                f"buffer_load_dwordx4 {v(V[b]+4,4)}, v{va}, {srd(SKV)}, s{s_ko} offen offset:{1280*(b&1)+640} sc1\n"
                f"s_mov_b64 exec, -1")
    def adv_pair():
        return [f"s_add_u32 s{s_ko}, s{s_ko}, {2*PS}", f"s_cmp_ge_u32 s{s_ko}, {HS}",
                f"s_cselect_b32 s{s_c}, {HS}, 0", f"s_sub_u32 s{s_ko}, s{s_ko}, s{s_c}"]
    def pad_value():
        a(f"v_and_b32 v{S[0]}, 31, v{lane}")
        a(f"v_cmp_eq_u32 vcc, 20, v{S[0]}")
        a(f"v_mov_b32 v{S[0]+1}, 0x3f803f80")
        a(f"v_mov_b64 {v(P[1],2)}, 0")
        a(f"v_cndmask_b32 v{S[0]}, 0, v{S[0]+1}, vcc")
        a(f"v_mov_b32 v{S[0]+1}, v{S[0]}")
    def pad(b):
        for r in range(0, 8, 2): a(f"v_mov_b64 {v(V[b]+r,2)}, {v(S[0],2)}")
    def zero_acc():
        for q in range(4): a(f"v_mfma_f32_32x32x8_bf16 {v(O[q],16)}, {v(P[1],2)}, {v(P[1],2)}, 0")
        for r in range(2, 8, 2): a(f"v_mov_b64 {v(P[1]+r,2)}, 0")
    own, oth, oa1, oa2, pf, tw = 253, 254, 225, 226, 227, 231
    wa4 = [220, 221, 222, 223, 224]; oc = [232, 233, 234, 235, 236]; ob = [216, 217, 218, 219, 228]; rb = [229, 230, 237, 238, 239]
    qa1, qa3 = 247, 248
    def q_prep():
        a(f"s_mul_i32 s{s_b}, s{s_g}, 5120")
        a(f"s_add_u32 s{s_b}, s{s_b}, {QAREA}")
        a(f"v_add_u32 v{qa1}, s{s_b}, v{ka}")
        a(f"v_and_b32 v{qa3}, 31, v{lane}")
        a(f"v_lshl_add_u32 v{qa3}, v{qa3}, 3, s{s_b}")
        for q in range(4):
            a(f"v_mov_b64 {v(Q3[0][q],2)}, 0")
            a(f"v_mov_b64 {v(Q3[1][q],2)}, 0")
    def q_reads(kh):
        qt = [r if kh else r ^ 2 for r in range(4)]
        a(f"ds_read_b128 {v(Q1[0],4)}, v{qa1} offset:{1280*qt[0]}")
        for h in range(2):
            a(f"s_mov_b32 exec_lo, {-1 if h == 0 else 0}")
            a(f"s_mov_b32 exec_hi, {0 if h == 0 else -1}")
            for q in range(4):
                a(f"ds_read_b64 {v(Q3[h][q],2)}, v{qa3} offset:{1280*qt[q]+1024}")
        a("s_mov_b64 exec, -1")
        for q in range(1, 4):
            a(f"ds_read_b128 {v(Q1[q],4)}, v{qa1} offset:{1280*qt[q]}")
    def o_base(dst, rows_sreg, nbytes):
        a(f"s_add_u32 s{dst}, s32, {OBASE}")
        a(f"s_addc_u32 s{dst+1}, s33, 0")
        if G.oin:
            a(f"s_cmp_eq_u32 s{s_loc}, 0")
            a(f"s_cselect_b64 s[{dst}:{dst+1}], s[{dst}:{dst+1}], s[28:29]")
        a(f"s_mul_i32 s{s_a}, s{rows_sreg}, 2560")
        a(f"s_mul_i32 s{s_b}, s{s_blk}, 1280")
        a(f"s_add_u32 s{s_a}, s{s_a}, s{s_b}")
        make_srd(a, dst, dst, f"s{s_a}", nbytes)
    first = [("K1", 0), ("K3", 0), ("V", 0), ("V", 0), ("K1", 1), ("V", 1), ("V", 1), ("K1", 2), ("V", 2), ("V", 2), ("K1", 3), ("K3", 1)]
    if G.v3: first += [("V", 3)] * 2
    def kv_first(with_pad):
        a(ld_k1(0)); a(ld_k3(0))
        if with_pad: pad_value(); pad(0)
        a(ld_v(0)); a(ld_k1(1))
        if with_pad: pad(1)
        a(ld_v(1))
        for x in adv_pair(): a(x)
        a(ld_k1(2))
        if with_pad: pad(2)
        a(ld_v(2)); a(ld_k1(3)); a(ld_k3(1))
        if with_pad: pad(3)
        if G.v3:
            a(ld_v(3))
            a("s_mov_b64 s[22:23], 0")

    XF = 0; ACC2 = 160; W2 = [200, 220]
    gx = [160, 161, 162, 163]; gw = [164, 165, 166, 167, 168]; gq = [251, 252, 253, 254, 245]
    wa2 = [246, 247, 248, 249, 250]; xa2 = [210, 211]
    setT(200)
    if G.fast0: a("s_setprio 3")
    a(f"v_lshrrev_b32 v{T[0]}, 4, v{lane}")
    a(f"v_xor_b32 v{T[0]}, v{T[0]}, v{lane}")
    a(f"v_and_b32 v{T[0]}, 7, v{T[0]}")
    a(f"v_lshrrev_b32 v{T[1]}, 3, v{lane}")
    a(f"v_mul_u32_u24 v{T[1]}, 1280, v{T[1]}")
    a(f"v_lshl_add_u32 v{gx[0]}, v{T[0]}, 4, v{T[1]}")
    a(f"v_xor_b32 v{gx[1]}, 64, v{gx[0]}")
    a(f"v_add_u32 v{gx[1]}, 9216, v{gx[1]}")
    a(f"v_add_u32 v{gx[2]}, 18432, v{gx[0]}")
    a(f"v_add_u32 v{gx[3]}, 18432, v{gx[1]}")
    rows = [212 + 2 * i for i in range(5)]
    def w_setup():
        a(f"s_movk_i32 s{s_c}, 3277")
        a(f"s_movk_i32 s{s_b}, 3520")
        a(f"v_lshlrev_b32 v{T[0]}, 4, v{lane}")
        a(f"v_mul_u32_u24 v{T[1]}, s{s_c}, v{lane}")
        for i in range(5):
            if i: a(f"v_add_u32 v{T[1]}, {64*3277}, v{T[1]}")
            a(f"v_lshrrev_b32 v{T[2]}, 16, v{T[1]}")
            a(f"v_mad_u32_u24 v{gw[i]}, v{T[2]}, s{s_b}, v{T[0]}")
            if i >= 2:
                a(f"v_subrev_u32 v{T[3]}, {2*3277}, v{T[1]}")
                a(f"v_lshrrev_b32 v{T[3]}, 16, v{T[3]}")
                a(f"v_sub_u32 v{T[3]}, v{T[2]}, v{T[3]}")
                a(f"v_mad_u32_u24 v{T[3]}, v{T[3]}, 10, -1")
                if i == 2:
                    a(f"v_lshrrev_b32 v{T[2]}, 3, v{T[2]}")
                    a(f"v_mul_i32_i24 v{T[3]}, v{T[3]}, v{T[2]}")
                a(f"v_lshl_add_u32 v{gw[i]}, v{T[3]}, 5, v{gw[i]}")
        a(f"v_add_u32 v{gw[4]}, 4096, v{gw[4]}")
    if not G.fast0: w_setup()
    a(f"s_lshl_b32 s{s_m0x}, s{s_g}, 12")
    a(f"s_mul_i32 s{s_m0w}, s{s_g}, 5120")
    a(f"s_add_u32 s{s_m0w}, s{s_m0w}, 16384")
    a(f"s_lshl2_add_u32 s{s_a}, s{s_m}, s{s_g}")
    a(f"s_mul_i32 s{s_a}, s{s_a}, {32*1280}")
    a(f"s_mul_i32 s{s_fg}, s{s_n}, 320")
    a(f"s_mul_i32 s{s_b}, s{s_g}, {16*3840}")
    a(f"s_add_u32 s{s_fg}, s{s_fg}, s{s_b}")
    a(f"s_add_u32 s{s_loc}, s{s_fg}, 1280")
    a(f"s_mov_b32 s{s_vo}, s{s_k}")
    if G.kst:
        a("s_getreg_b32 s98, hwreg(HW_REG_SHADER_CYCLES)") if False else None
        a("s_memrealtime s[92:93]")
    common_ptrs()
    if G.kst: a("s_mov_b32 s93, s92")
    make_srd(a, SX, 16, f"s{s_a}", 32 * 1280)
    make_srd(a, SW, 18, None, 640 * 3840)
    lseq = []
    def issue_stage(i):
        sl = (i & 3) * SLOT
        a(f"s_add_u32 m0, s{s_m0x}, {sl}")
        a(f"s_lshl_b32 s{s_xo}, s{s_k}, 7")
        for ii in range(4):
            a(f"buffer_load_dwordx4 v{gx[ii]}, {srd(SX)}, s{s_xo} offen offset:{1024*ii} lds")
        if i == 0 and G.fast0: w_setup()
        a(f"s_mul_i32 s{s_wo}, s{s_k}, {64*3840}")
        a(f"s_add_u32 m0, s{s_m0w}, {sl}")
        a(f"s_add_u32 s{s_wo}, s{s_wo}, s{s_loc}")
        for ii in range(4):
            a(f"buffer_load_dwordx4 v{gw[ii]}, {srd(SW)}, s{s_wo} offen offset:{1024*ii} lds")
        a(f"s_add_u32 m0, s{s_m0w}, {sl+4096}")
        a(f"s_add_u32 s{s_k}, s{s_k}, 1")
        a(f"buffer_load_dwordx4 v{gw[4]}, {srd(SW)}, s{s_wo} offen lds")
        if G.rot:
            a(f"s_cmp_eq_u32 s{s_k}, 10")
            a(f"s_cselect_b32 s{s_k}, 0, s{s_k}")
        lseq.extend([("st", i)] * 9)
    gbase = [2 * SLOT + g * 5120 for g in range(7)] + [SPARE] + [3 * SLOT + g * 5120 for g in range(7)] + [SPARE + 5120] + [g * 5120 for g in range(4)]
    def round_ins(R):
        o = []
        x = f"s_add_u32 s{s_wo}, s{s_st}, {R*4*32*3840}"
        if G.rot:
            x += f"\ns_cmp_ge_u32 s{s_wo}, {640*3840}\ns_cselect_b32 s{s_b}, {640*3840}, 0\ns_sub_u32 s{s_wo}, s{s_wo}, s{s_b}"
        gb = gbase[4 * R:4 * R + 4]
        assert gb[1] == gb[0] + 5120 and gb[2] == gb[0] + 10240
        x += f"\ns_add_u32 s{s_a}, s{s_m0w}, {(gb[0]-16384) & 0xffffffff}"
        if gb[3] != gb[0] + 15360:
            x += f"\ns_cmp_eq_u32 s{s_g}, 3\ns_cselect_b32 s{s_a}, {gb[3]}, s{s_a}"
        x += f"\ns_mov_b32 m0, s{s_a}\ns_add_u32 s{s_a}, s{s_a}, 4096"
        o.append(x)
        for ii in range(4):
            o.append(f"buffer_load_dwordx4 v{gq[ii]}, {srd(SW)}, s{s_wo} offen offset:{1024*ii} lds")
        o.append(f"s_mov_b32 m0, s{s_a}\ns_nop 0\nbuffer_load_dwordx4 v{gq[4]}, {srd(SW)}, s{s_wo} offen lds")
        lseq.extend([("R", R)] * 5)
        return o
    def issue_item(i):
        if i < 10: issue_stage(i)
        elif i < 15:
            for x in round_ins(i - 10): a(x)
    def lwait(key):
        return len(lseq) - 1 - max(i for i, x in enumerate(lseq) if x == key)
    stamp(a, 11)
    issue_stage(0)
    stamp(a, 12)
    epoch_load()
    a(f"s_lshl_b32 s{s_b}, s{s_g}, 12")
    x_addrs(a, xa2, s_b)
    a(f"v_and_b32 v{T[0]}, 15, v{lane}")
    a(f"v_lshlrev_b32 v{T[0]}, 2, v{T[0]}")
    a(f"v_add_u32 v{T[0]}, {RFLAG}, v{T[0]}")
    a(f"v_mov_b32 v{T[1]}, 0")
    a(f"ds_write_b32 v{T[0]}, v{T[1]}")
    for i in range(1, G.pro): issue_stage(i)
    stamp(a, 13)
    if G.fast0: a("s_setprio 0")
    epoch_fin()
    a(f"s_waitcnt vmcnt({lwait(('st',0))})")
    a("s_barrier")
    stamp(a, 1)
    for i in range(G.pro, G.la): issue_stage(i)
    xoff = 0
    for st in range(10):
        sl = (st & 3) * SLOT
        want = 0 if sl < 2 * SLOT else 2 * SLOT
        if want != xoff:
            for r in xa2:
                a(f"v_add_u32 v{r}, {want-xoff}, v{r}" if want > xoff else f"v_subrev_u32 v{r}, {xoff-want}, v{r}")
            xoff = want
        for ks in range(2):
            for ii in range(2):
                a(f"ds_read_b128 {v(XF+16*st+8*ks+4*ii,4)}, v{xa2[ks]} offset:{sl-xoff+2048*ii}")
        if st == 0:
            a(f"s_movk_i32 s{s_c}, 3840")
            for i in range(5):
                if i: a(f"v_add_u32 v{T[0]}, {64*i}, v{lane}")
                img_pos(a, T[0] if i else lane, rows[i], rows[i] + 1)
                grp_src(a, gq[i], rows[i], rows[i] + 1, s_c)
                if i & 3: a(f"v_subrev_u32 v{gq[i]}, {1024*i}, v{gq[i]}")
            a(f"s_lshl1_add_u32 s{s_st}, s{s_vo}, s{s_g}")
            a(f"s_mul_i32 s{s_st}, s{s_st}, {32*3840}")
            a(f"s_mul_i32 s{s_a}, s{s_n}, 160")
            a(f"s_add_u32 s{s_st}, s{s_st}, s{s_a}")
        if st == 1: tr_addrs(a, wa2, True, True, None, 0)
        if st == 2:
            att_addrs()
        if st == 4 and G.warm:
            a("s_mov_b64 exec, 0")
            for c in range(3):
                a(f"s_cmp_eq_u32 s{s_g}, {c}")
                a(f"s_cbranch_scc1 Lpad_{c}_0")
            a("s_branch Lpad_3_0")
            a(".PADRET")
            a("s_mov_b64 exec, -1")
        key = ("st", st + 1) if st < 9 else ("R", 0)
        def sstamp():
            a("s_memrealtime s[96:97]"); a("s_waitcnt lgkmcnt(0)"); a(f"s_mov_b32 s{86+st}, s96")
        if G.sst == 3: sstamp()
        a(f"s_waitcnt vmcnt({lwait(key)}) lgkmcnt(0)")
        if G.sst == 1: sstamp()
        a("s_barrier")
        if G.sst == 2: sstamp()
        if st < 9: issue_item(st + G.la)
    stamp(a, 2)
    pre = {}
    nxt = G.la - 1
    if G.p2prio: a(f"s_setprio {G.p2prio}")
    ins_at = {}
    for R in range(nxt, 5):
        g0 = G.dst * (R - nxt) + G.dsh
        if G.dst >= 3:
            ins_at[g0] = (R, 0, 3); ins_at[g0 + 1] = (R, 3, 5); ins_at[g0 + 2] = (R, 5, 6)
        else:
            ins_at[g0] = (R, 0, 4); ins_at[g0 + 1] = (R, 4, 6)
    cache = {}
    fw, fr, fo, fd = 4, 5, 6, 7
    spins = []
    for g in range(20):
        pre[("x", g)] = []
        R1 = g // 4 + 1
        if g == 1:
            pre[("h", g)] = [f"s_lshl2_add_u32 s{s_c}, s{s_g}, {RFLAG}", f"v_mov_b32 v{fw}, s{s_c}", f"v_and_b32 v{fr}, 3, v{lane}",
                             f"v_lshlrev_b32 v{fr}, 2, v{fr}", f"v_add_u32 v{fr}, {RFLAG}, v{fr}", f"v_mov_b32 v{fo}, 1"]
        if g % 4 == 1 and g < 16:
            assert lseq.count(("R", R1)) == 5
            pre[("x", g)] += [f"s_waitcnt vmcnt({lwait(('R', R1))})\nds_write_b32 v{fw}, v{fo} offset:{16*(R1-1)}"]
        if g % 4 == 2 and g < 16:
            pre[("x", g)] += [f"ds_read_b32 v{fd}, v{fr} offset:{16*(R1-1)}"]
        if g % 4 == 3 and g < 16:
            Ls, Lb = a.label("rs"), a.label("rb")
            spins.append((Ls, Lb, R1))
            pre[("h", g)] = ["s_waitcnt lgkmcnt(8)", f"v_cmp_ne_u32 vcc, 1, v{fd}", f"s_cbranch_vccnz {Ls}", f"{Lb}:"]
        if g in ins_at:
            R, lo, hi = ins_at[g]
            if R not in cache:
                cache[R] = round_ins(R)
                del lseq[-5:]
            pre[("x", g)] += cache[R][lo:hi]
            lseq.extend([("R", R)] * sum(x.count("buffer_load") for x in cache[R][lo:hi]))
    qa, qb, md = 0, 1, 2
    half = [f"v_lshrrev_b32 v{qa}, 4, v{lane}", f"v_mul_u32_u24 v{qa}, 5120, v{qa}", f"s_mul_i32 s{s_b}, s{s_g}, 1280",
            f"s_add_u32 s{s_b}, s{s_b}, {QAREA}", f"v_add_u32 v{qa}, s{s_b}, v{qa}"]
    pre[("x", 16)] = half
    pre[("x", 17)] = [f"v_and_b32 v{md}, 15, v{lane}", f"v_lshl_add_u32 v{qb}, v{md}, 3, v{qa}", f"v_lshl_add_u32 v{qa}, v{md}, 4, v{qa}",
                      f"s_mov_b32 s{s_a}, {QSCALE:#x}\ns_mov_b32 s{s_b}, {QSCALE:#x}"]
    if G.pwb is not None:
        Lwb = a.label("pwb")
        pre[("x", G.pwb)].append(f"s_lshr_b32 s{s_c}, s2, 3\ns_or_b32 s{s_c}, s{s_c}, s{s_g}\ns_cbranch_scc1 {Lwb}\nbuffer_wbl2 sc1\n{Lwb}:")
    small_gemm(a, XF, ACC2, W2, wa2, gbase, pre)
    stamp(a, 3)
    a("s_nop 4")
    assert s_a % 2 == 0 and s_b == s_a + 1
    for ii in range(2):
        r = ACC2 + 20 * ii
        pad_hop(a, 0)
        for e in range(10):
            a(f"v_pk_mul_f32 {v(r+2*e,2)}, {v(r+2*e,2)}, s[{s_a}:{s_b}]")
        for e in range(10):
            a(f"v_cvt_pk_bf16_f32 v{r+e}, v{r+2*e}, v{r+2*e+1}")
        a(f"ds_write_b128 v{qa}, {v(r,4)} offset:{256*ii}")
        a(f"ds_write_b128 v{qa}, {v(r+4,4)} offset:{256*ii+512}")
        a(f"ds_write_b64 v{qb}, {v(r+8,2)} offset:{128*ii+1024}")
    a("s_waitcnt lgkmcnt(0)")
    a(f"v_mov_b32 v{gfd}, {MODE_LDS}")
    a("s_barrier")
    a(f"ds_read_b32 v{gfd}, v{gfd}")
    a("s_setprio 3" if G.ip else "s_setprio 0")
    stamp(a, 4)
    pad_hop(a, 1)
    kv_first(True)
    pad_hop(a, 1)
    q_prep()
    q_reads(1)
    zero_acc()
    wo_scalars()
    make_srd(a, SO, 32, None, 0)
    a("s_waitcnt lgkmcnt(12)")
    a(f"v_readfirstlane_b32 s{s_loc}, v{gfd}")
    a("s_nop 1")
    a(f"s_and_b32 s{s_loc}, s{s_loc}, 1")
    a(f"s_lshl_b32 s{s_st}, s{s_loc}, 2")
    if G.el4:
        a(f"s_lshr_b32 s{s_a}, s2, 3")
        a(f"s_or_b32 s{s_a}, s{s_a}, s{s_g}")
        a(f"s_cselect_b32 s{s_a}, 0, s{s_loc}")
        a(f"s_or_b32 s{s_st}, s{s_st}, s{s_a}")
        a(f"s_and_b32 s{s_vo}, s2, 7")
        a(f"s_lshl_b32 s{s_vo}, s{s_vo}, 7")
        a(f"s_add_u32 s{s_vo}, s{s_vo}, {GFOFF}")

    a(f"{Latt}:")
    setT(247)
    a(f"s_mov_b32 s{s_it}, 0")

    def qk1(sb, q, t): return f"v_mfma_f32_32x32x16_bf16 {v(S[sb],16)}, {v(K1[t],4)}, {v(Q1[q],4)}, 0"
    def qk2(sb, q, t): return f"v_mfma_f32_32x32x8_bf16 {v(S[sb],16)}, {v(K3[t>>1],2)}, {v(Q3[t&1][q],2)}, {v(S[sb],16)}"
    def pv(pb, q, t, h): return f"v_mfma_f32_32x32x16_bf16 {v(O[q],16)}, {v(V[t]+4*h,4)}, {v(P[pb]+4*h,4)}, {v(O[q],16)}"
    def ex(q, r): return f"v_exp_f32 v{S[q]+r}, v{S[q]+r}"
    def cv(q, r): return f"v_cvt_pk_bf16_f32 v{P[q]+r//2}, v{S[q]+r}, v{S[q]+r+1}"
    wo_dma = [f"s_min_u32 s{s_c}, s{s_m0w}, 0x20000", f"s_add_u32 m0, s{s_c}, {WOBASE}", f"s_add_u32 s{s_m0w}, s{s_m0w}, 5120",
              f"buffer_load_dwordx4 v{gwo}, {srd(SW)}, s{s_wo} offen lds", f"s_add_u32 s{s_wo}, s{s_wo}, {32*1280}"]
    plan = {}
    for tt in range(4):
        pb = (tt - 1) % 4
        plan[(tt, 1)] = ([ld_v(pb)], [("V", pb)] * 2)
        if G.v3 and pb == 3: plan[(tt, 1)] = ([ld_v(pb, 22), f"s_mov_b64 s[22:23], s[{s_vm}:{s_vm+1}]"], [("V", pb)] * 2)
        if tt & 1:
            plan[(tt, 3)] = ([ld_k1(tt), ld_k3(tt >> 1)], [("K1", tt), ("K3", tt >> 1)])
        else:
            plan[(tt, 3)] = ([ld_k1(tt)], [("K1", tt)])
            plan[(tt, 2)] = (adv_pair(), [])
        if tt > 0 and not G.nowo:
            plan[(tt, 0)] = (wo_dma, [("WO",)])
    order = [(tt, q) for tt in range(4) for q in range(4)]
    names = []; pos = {}
    for rep in range(2):
        for key in order:
            if rep == 1: pos[key] = len(names)
            names += plan.get(key, ([], []))[1]
    def need(tt):
        nt = (tt + 1) % 4
        return [("K1", nt), ("V", nt), ("K3", nt >> 1)]
    n0 = list(first); waits = {}
    for key in order:
        if key[1] == 3:
            p = pos[key]
            w1 = p - 1 - max(max(i for i in range(p) if names[i] == k) for k in need(key[0]))
            w2 = len(n0) - 1 - max(max(i for i in range(len(n0)) if n0[i] == k) for k in need(key[0]))
            waits[key[0]] = min(w1, w2)
        n0 += plan.get(key, ([], []))[1]
    a(f"s_waitcnt vmcnt({len(first)-4}) lgkmcnt(0)")
    stamp(a, 5)
    a(qk1(0, 0, 0)); a(qk2(0, 0, 0))
    a("s_nop 0" if G.ip else "s_setprio 3")
    a("s_nop 7")
    a("s_nop 3")
    L = a.label("al")
    a(".p2align 6")
    a(f"{L}:")
    hooks = {G.hst: (0, a.label("hA"), a.label("hAb")), G.hchk: (0, a.label("hK"), a.label("hKb")), G.hpub: (0, a.label("hP"), a.label("hPb")),
             G.hsam: (3, a.label("hB"), a.label("hBb")), (0, 2): (4, a.label("hC"), a.label("hCb")),
             G.hl: (None, a.label("hL"), a.label("hLb"))}
    if G.defer:
        assert (2, 1) not in hooks
        hooks[(2, 1)] = (5, a.label("hD"), a.label("hDb"))
    LhW, LhWb = a.label("hW"), a.label("hWb")
    F = [O[2], O[3]]; Rv = [O[0], O[1]]
    cum = [sum(G.lens[:i]) for i in range(4)]
    step = 0
    for tt in range(4):
        for q in range(4):
            c = q & 1; o = 1 - c
            nq, nt = (q + 1, tt) if q < 3 else (0, (tt + 1) % 4)
            pq, pt = (q - 1, tt) if q > 0 else (3, (tt - 1) % 4)
            extra = list(plan.get((tt, q), ([], []))[0])
            if q & 1: pad_hop(a, 1)
            if (tt, q) in hooks:
                bit, lo, lb = hooks[(tt, q)]
                a(f"s_bitcmp1_b32 s{s_st}, {bit}" if bit is not None else f"s_cmp_eq_u32 s{s_it}, {G.iters-1}")
                a(f"s_cbranch_scc1 {lo}")
                a(f"{lb}:")
            if (tt, q) == (3, 3) and G.early:
                a(f"s_cbranch_scc0 {LhW}")
                a(f"{LhWb}:")
            if q == 3: a(f"s_waitcnt vmcnt({waits[tt]})")
            if (tt, q) == (3, 1): extra += [f"s_lshl_b32 s{s_st}, s{s_st}, 1"]
            if (tt, q) == (3, 2): extra += [f"s_add_u32 s{s_it}, s{s_it}, 1", f"s_cmp_lt_u32 s{s_it}, {G.iters}"]
            ms = [qk1(o, nq, nt), qk2(o, nq, nt), pv(o, pq, pt, 0), pv(o, pq, pt, 1)]
            for j in range(4):
                a(ms[j])
                if j: a(cv(c, 4 * j - 2))
                for e in range(3):
                    a(ex(c, 4 * j + e))
                    if extra and (G.xpos == 0 or (G.xpos == 1 and e == 1) or (G.xpos == 2 and e != 0) or (G.xpos in (4, 5) and e == 2) or (j == 3 and G.xpos < 4)): a(extra.pop(0))
                if j < 3:
                    a(cv(c, 4 * j))
                    if extra and G.xpos in (4, 6): a(extra.pop(0))
                    a(ex(c, 4 * j + 3))
                    if extra and G.xpos in (5, 6, 7): a(extra.pop(0))
                    if extra and G.xpos == 7: a(extra.pop(0))
                else:
                    a(ex(c, 15)); a(cv(c, 12))
            assert not extra
            n = (step + 1) % sum(G.lens)
            if n in cum: a(f"s_setprio {3 - cum.index(n)}")
            a(cv(c, 14))
            step += 1
    if G.itst:
        a("s_memtime s[96:97]")
        for r in range(86, 95): a(f"s_mov_b32 s{r}, s{r+1}")
        a("s_waitcnt lgkmcnt(0)")
        a("s_mov_b32 s95, s96")
    a(f"s_cbranch_scc1 {L}")
    a("s_nop 0")
    a(pv(1, 3, 3, 0)); a(pv(1, 3, 3, 1))
    a("s_setprio 0")
    Lslow = a.label("slow"); Lst = a.label("store")
    def send():
        for i in range(2):
            for gq_ in range(3):
                a(f"ds_write_b128 v{own}, {v(O[i]+4*gq_,4)} offset:{(i*3+gq_)*1024}")
    stamp(a, 6)
    if not G.early: send()
    a("s_waitcnt vmcnt(0) lgkmcnt(0)")
    a("s_barrier")
    for i in range(2):
        for gq_ in (2, 0, 1):
            a(f"ds_read_b128 {v(Rv[i]+4*gq_,4)}, v{oth} offset:{(i*3+gq_)*1024}")
    for i in range(2):
        a(f"s_waitcnt lgkmcnt({3-3*i})")
        for r in (8, 10, 0, 2, 4, 6):
            a(f"v_pk_add_f32 {v(F[i]+r,2)}, {v(F[i]+r,2)}, {v(Rv[i]+r,2)}")
    a(f"s_mov_b32 s{s_c}, 0")
    a(f"{Lst}:")
    for i in range(2):
        a(f"v_mov_b32 v{F[i]+12}, v{F[i]+8}")
        a(f"v_mov_b32 v{F[i]+13}, v{F[i]+8}")
    a(f"s_mov_b32 s{s_b}, {32*2560}")
    a(f"s_cmp_eq_u32 s{s_loc}, 0")
    for i in range(2):
        a(f"v_permlane32_swap_b32 v{F[i]+13}, v{F[i]+12}")
    a("s_nop 0")
    a(f"v_rcp_f32 v{F[0]+14}, v{F[0]+12}")
    a(f"v_rcp_f32 v{F[1]+14}, v{F[1]+12}")
    Log = a.label("og"); Loj = a.label("oj"); Lo2 = a.label("o2"); Lo3 = a.label("o3"); Lok = a.label("ok")
    a(f"s_cbranch_scc1 {Log}")
    for fl in (G.olst, "sc1"):
        for q in range(2):
            for r in range(0, 12, 2):
                a(f"v_pk_mul_f32 {v(F[q]+r,2)}, {v(F[q]+r,2)}, {v(F[q]+14,2)} op_sel_hi:[1,0]")
            for e in range(6):
                a(f"v_cvt_pk_bf16_f32 v{Rv[q]+e}, v{F[q]+2*e}, v{F[q]+2*e+1}")
            so = "0" if q == 0 else f"s{s_b}"
            a(f"buffer_store_dwordx4 {v(Rv[q],4)}, v{oa1}, {srd(SO)}, {so} offen {fl}")
            a(f"buffer_store_dwordx2 {v(Rv[q]+4,2)}, v{oa2}, {srd(SO)}, {so} offen {fl}")
        if fl != "sc1":
            a(f"s_branch {Loj}")
            a(f"{Log}:")
    a(f"{Loj}:")
    a(f"s_cmp_lg_u32 s{s_c}, 0")
    a(f"s_cbranch_scc1 {Lok}")
    a(f"s_mov_b32 s{s_a}, 0x2b800000")
    a(f"s_mov_b32 s{s_b}, 0x5d800000")
    for r in range(0, 12, 2):
        for q in range(2):
            if r == 0: a(f"v_pk_mul_f32 {v(F[q]+14,2)}, {v(F[q],2)}, 0 op_sel_hi:[1,0]")
            else: a(f"v_pk_fma_f32 {v(F[q]+14,2)}, {v(F[q]+r,2)}, 0, {v(F[q]+14,2)} op_sel_hi:[1,0,1]")
    a(f"v_min_f32 v{T[0]}, v{F[0]+12}, v{F[1]+12}")
    a(f"v_max_f32 v{T[1]}, v{F[0]+12}, v{F[1]+12}")
    a(f"v_cmp_o_f32 vcc, v{F[0]+14}, v{F[0]+15}")
    a(f"v_cmp_o_f32 s[16:17], v{F[1]+14}, v{F[1]+15}")
    a(f"v_cmp_le_f32 s[18:19], s{s_a}, v{T[0]}")
    a(f"v_cmp_ge_f32 s[22:23], s{s_b}, v{T[1]}")
    a(f"s_and_b64 vcc, vcc, s[16:17]")
    a(f"s_and_b64 s[18:19], s[18:19], s[22:23]")
    a(f"s_and_b64 vcc, vcc, s[18:19]")
    a("s_cmp_eq_u64 vcc, -1")
    a(f"s_cbranch_scc0 {Lslow}")
    a(f"{Lok}:")
    NW4 = 6; NX = 7
    W4 = [56 + 20 * i for i in range(NW4)]; A4 = 176
    Lfin = a.label("fin"); Lsk = a.label("sk")
    cur = [0]
    def rd4(h, j, t):
        o = ""
        if h == 12 and j == 0 and t == 0:
            o = "".join(f"v_add_u32 v{wa4[k]}, {12*5120}, v{wa4[k]}\n" for k in range(5)); cur[0] = 12 * 5120
        return o + f"ds_read_b64_tr_b16 {v(W4[h%NW4]+4*j+2*t,2)}, v{wa4[j]} offset:{5120*h-cur[0]+1280*t}"
    a(f"s_cmp_lg_u32 s{s_kh}, 0")
    a(f"s_cbranch_scc1 {Lsk}")
    for h in range(1, 4):
        for j in range(5):
            a(rd4(h, j, 0)); a(rd4(h, j, 1))
    a(f"{Lsk}:")
    a(f"s_cmp_eq_u32 s{s_loc}, 0")
    a("s_waitcnt vmcnt(0)")
    a(f"s_cbranch_scc1 {Lo2}")
    flag_store(a, s_vo, True)
    a(f"s_branch {Lo3}")
    a(f"{Lo2}:")
    flag_store(a, s_vo, False)
    a(f"{Lo3}:")
    stamp(a, 7); stamp(a, 8); stamp(a, 9)
    a(f"s_cmp_lg_u32 s{s_kh}, 0")
    a(f"s_cbranch_scc1 {Lfin}")
    for h in (0, 4, 5):
        for j in range(5):
            a(rd4(h, j, 0)); a(rd4(h, j, 1))
    a(f"s_lshl2_add_u32 s{s_a}, s{s_m}, s{s_g}")
    a(f"s_mul_i32 s{s_a}, s{s_a}, {32*2560}")
    a(f"s_mul_i32 s{s_b}, s{s_blk}, 1280")
    a(f"s_add_u32 s{s_a}, s{s_a}, s{s_b}")
    a(f"s_mul_i32 s{s_b}, s{s_n}, 160")
    a(f"s_add_u32 s{s_a}, s{s_a}, s{s_b}")
    make_srd(a, SKV, 28, f"s{s_a}", 31 * 2560 + 160)
    poll(a, pf, f"s{s_xo}", T[0])
    stamp(a, 8)
    assert G.oa < NX
    def xf(g, ii): return 8 * (g % NX) + 4 * ii
    def ld_o(g, ii):
        o = f"s_mov_b32 s{s_a}, {10240*(g//5)}\ns_mov_b32 s{s_b}, {10240*(g//5)+16*2560}\n" if (g % 5 == 0 and ii == 0) else ""
        return o + f"buffer_load_dwordx4 {v(xf(g,ii),4)}, v{ob[g%5]}, {srd(SX)}, s{[s_a, s_b][ii]} offen sc1"
    for g in range(G.oa):
        a(ld_o(g, 0)); a(ld_o(g, 1))
    allr = [(h, j, t) for h in range(NW4, 20) for j in range(5) for t in range(2)]
    issued = 0
    for g in range(20):
        lg = 0 if g == 0 else (14 if g < NW4 else issued - 10 * (g - NW4 + 1))
        assert lg >= 0
        vm = 2 * (min(20, g + G.oa) - g - 1)
        if G.oin and g == 18: vm = 0
        if G.oin and g == 19: vm = 63
        a(f"s_waitcnt vmcnt({vm}) lgkmcnt({min(lg, 14)})")
        if G.oin and g == 18:
            a(f"s_lshl2_add_u32 s{s_a}, s{s_n}, s{s_m0x}")
            flag_store(a, s_a, True)
        todo = allr[issued:issued + G.rpg] if g >= 1 else []
        todo = [x for x in todo if x[0] - NW4 < g]
        issued += len(todo)
        ex_ = [rd4(*x) for x in todo]
        if g + G.oa < 20:
            ex_.insert(0, ld_o(g + G.oa, 0)); ex_.insert(min(5, len(ex_)), ld_o(g + G.oa, 1))
        for j in range(5):
            for ii in range(2):
                d = v(A4 + 4 * (5 * ii + j), 4)
                a(f"v_mfma_f32_16x16x32_bf16 {d}, {v(W4[g%NW4]+4*j,4)}, {v(xf(g,ii),4)}, {d if g else 0}")
                if ex_: a(ex_.pop(0))
        for x in ex_: a(x)
    stamp(a, 9)
    if G.oin:
        a(f"v_and_b32 v{pf}, 28, v{T[4]}")
        a(f"buffer_load_dword v{T[0]}, v{pf}, {srd(SF)}, s{s_m0x} offen sc1")
    for j in range(5):
        if j == 4: a("s_nop 1")
        for ii in range(2):
            r = A4 + 4 * (5 * ii + j)
            a(f"v_cvt_pk_bf16_f32 v{r}, v{r}, v{r+1}")
            a(f"v_cvt_pk_bf16_f32 v{r+1}, v{r+2}, v{r+3}")
            a(f"ds_write_b64 v{tw}, {v(r,2)} offset:{8*j+16*176*ii}")
    a("s_waitcnt lgkmcnt(0)")
    for i in range(5): a(f"ds_read_b128 {v(4*i,4)}, v{rb[i]}")
    if G.oin:
        Lgo = a.label("go")
        a(f"s_cmp_eq_u32 s{s_loc}, 0")
        a(f"s_cbranch_scc1 {Lgo}")
        a("s_waitcnt vmcnt(0)")
        a(f"v_cmp_ne_u32 vcc, s{s_tag}, v{T[0]}")
        a(f"s_cbranch_vccz {Lgo}")
        poll(a, pf, f"s{s_m0x}", T[0])
        a(f"{Lgo}:")
    for i in range(5):
        a(f"s_waitcnt lgkmcnt({4-i})")
        a(f"buffer_store_dwordx4 {v(4*i,4)}, v{oc[i]}, {srd(SKV)}, 0 offen {G.ost}")
    a(f"s_or_b32 s{s_a}, s{s_m}, s{s_n}")
    a(f"s_or_b32 s{s_a}, s{s_a}, s{s_wave}")
    a(f"s_cbranch_scc1 {Lfin}")
    a(f"s_lshl_b32 s{s_b}, s{s_blk}, 7")
    a(f"s_add_u32 s{s_b}, s{s_b}, {EOFF}")
    flag_store(a, s_b, False)
    a(f"{Lfin}:")
    dump_stamps(a, 10)
    a(f"{Lend}:")
    a("s_endpgm")

    a(f"{Lcons}:")
    setT(247)
    ACC = 0
    X = [[80 + 16 * b + 4 * i for i in range(4)] for b in range(2)]
    W = [[112 + 20 * b + 4 * j for j in range(5)] for b in range(2)]
    xa = [152, 153]; wa = [154, 155, 156, 157, 158]; xt, xv = 159, 160
    s_wm, s_wn = s_xo, s_wo
    a(f"s_and_b32 s{s_wm}, s{s_wave}, 1")
    a(f"s_lshr_b32 s{s_wn}, s{s_wave}, 1")
    a(f"s_lshl_b32 s{s_b}, s{s_wm}, 13")
    x_addrs(a, xa, s_b)
    for r in range(0, 80, 2): a(f"v_mov_b64 {v(ACC+r,2)}, 0")
    common_ptrs()
    epoch_load()
    att_addrs()
    a(f"s_and_b32 s{s_a}, s{s_n}, 3")
    a(f"s_lshl2_add_u32 s{s_a}, s{s_blk}, s{s_a}")
    a(f"s_lshl1_add_u32 s{s_a}, s{s_a}, s{s_wn}")
    a(f"s_mul_i32 s{s_a}, s{s_a}, {4*HS}")
    a(f"s_lshl1_add_u32 s{s_b}, s{s_m}, s{s_wm}")
    a(f"s_mul_i32 s{s_b}, s{s_b}, {PS}")
    a(f"s_add_u32 s{s_a}, s{s_a}, s{s_b}")
    make_srd(a, SO, 32, f"s{s_a}", 3 * HS + PS)
    a(f"s_lshl3_add_u32 s{s_a}, s{s_blk}, s{s_n}")
    a(f"s_lshl1_add_u32 s{s_a}, s{s_a}, s{s_wn}")
    a(f"s_lshl4_add_u32 s{s_a}, s{s_a}, s{s_m}")
    a(f"s_lshl1_add_u32 s{s_vo}, s{s_a}, s{s_wm}")
    a(f"s_lshr_b32 s{s_k}, s{s_vo}, 3")
    a(f"s_lshl_b32 s{s_k}, s{s_k}, 7")
    a(f"s_and_b32 s{s_a}, s{s_vo}, 7")
    a(f"s_lshl2_add_u32 s{s_k}, s{s_a}, s{s_k}")
    a(f"s_add_u32 s{s_k}, s{s_k}, {FLOFF}")
    a(f"s_and_b32 s{s_vo}, s2, 7")
    a(f"s_lshl_b32 s{s_vo}, s{s_vo}, 7")
    a(f"s_add_u32 s{s_vo}, s{s_vo}, {GFOFF}")
    epoch_fin()
    a(f"s_getreg_b32 s{s_loc}, hwreg(HW_REG_XCC_ID)")
    a(f"s_and_b32 s{s_loc}, s{s_loc}, 7")
    a(f"s_add_u32 s{s_loc}, s{s_loc}, s{s_tag}")
    a(f"s_and_b32 s{s_a}, s2, 7")
    a(f"s_lshl_b32 s{s_m0w}, s{s_a}, 12")
    a(f"s_add_u32 s{s_m0w}, s{s_m0w}, {XOFF}")
    a(f"s_lshr_b32 s{s_a}, s2, 3")
    a(f"s_lshl_b32 s{s_a}, s{s_a}, 7")
    a(f"s_add_u32 s24, s{s_a}, s{s_m0w}")
    a(f"s_cmp_eq_u32 s{s_wave}, 0")
    a(f"s_cselect_b32 s25, 1, 99")
    a(f"v_and_b32 v{xv}, 31, v{lane}")
    a(f"v_lshlrev_b32 v{xv}, 7, v{xv}")
    qv, fv = 161, 246
    a(f"v_min_u32 v{T[0]}, {G.nkv}, v{lane}")
    a(f"s_and_b32 s{s_a}, s{s_m}, 3")
    a(f"s_mul_i32 s{s_a}, s{s_a}, {(G.nkv+1)*128}")
    a(f"v_lshl_add_u32 v{qv}, v{T[0]}, 7, s{s_a}")
    a(f"s_lshl4_add_u32 s{s_st}, s{s_blk}, s{s_n}")
    a(f"s_lshr_b32 s{s_a}, s{s_m}, 2")
    a(f"s_lshl2_add_u32 s{s_st}, s{s_st}, s{s_a}")
    a(f"s_lshl_b32 s{s_st}, s{s_st}, 7")
    a(f"s_add_u32 s{s_st}, s{s_st}, {FLOFF}")
    a(f"v_and_b32 v{T[0]}, 7, v{lane}")
    a(f"v_lshrrev_b32 v{T[1]}, 5, v{lane}")
    a(f"v_lshlrev_b32 v{T[0]}, 2, v{T[0]}")
    a(f"v_lshl_add_u32 v{fv}, v{T[1]}, 12, v{T[0]}")
    if G.tKV == 1: a(f"buffer_load_dword v{xt}, v{qv}, {srd(SKV)}, s{s_ko} offen sc1")
    tr_addrs(a, wa4, True, True, None, WOBASE)
    a(f"v_and_b32 v{T[0]}, 15, v{lane}")
    a(f"v_lshrrev_b32 v{T[1]}, 4, v{lane}")
    a(f"s_movk_i32 s{s_a}, 1280")
    for b in range(5):
        a(f"v_add_u32 v{T[2]}, {4*b}, v{T[1]}")
        a(f"v_mul_u32_u24 v{T[3]}, 205, v{T[2]}")
        a(f"v_lshrrev_b32 v{T[3]}, 10, v{T[3]}")
        a(f"v_lshlrev_b32 v{T[2]}, 8, v{T[2]}")
        a(f"v_mad_u32_u24 v{T[2]}, v{T[3]}, s{s_a}, v{T[2]}")
        a(f"v_lshl_add_u32 v{ob[b]}, v{T[0]}, 4, v{T[2]}")
    a(f"s_xor_b32 s{s_b}, s{s_wave}, 4")
    a(f"s_mul_i32 s{s_b}, s{s_b}, 6144")
    a(f"v_mul_u32_u24 v{T[0]}, 176, v{T[0]}")
    a(f"v_mad_u32_u24 v{T[0]}, v{T[1]}, 40, v{T[0]}")
    a(f"v_add_u32 v{tw}, s{s_b}, v{T[0]}")
    a(f"s_movk_i32 s{s_a}, {2560-160}")
    for i in range(5):
        a(f"v_add_u32 v{T[0]}, {64*i}, v{lane}")
        a(f"v_mul_u32_u24 v{T[1]}, 6554, v{T[0]}")
        a(f"v_lshrrev_b32 v{T[1]}, 16, v{T[1]}")
        a(f"v_lshlrev_b32 v{T[0]}, 4, v{T[0]}")
        a(f"v_mad_u32_u24 v{oc[i]}, v{T[1]}, s{s_a}, v{T[0]}")
        a(f"v_lshl_add_u32 v{T[0]}, v{T[1]}, 4, v{T[0]}")
        a(f"v_add_u32 v{rb[i]}, s{s_b}, v{T[0]}")
    pv1, pv2 = 168, 169
    a(f"v_and_b32 v{T[0]}, 3, v{lane}")
    a(f"s_mov_b32 s{s_a}, {HS}")
    a(f"v_mul_lo_u32 v{pv1}, v{T[0]}, s{s_a}")
    a(f"v_and_b32 v{T[0]}, 7, v{lane}")
    a(f"v_mul_u32_u24 v{pv2}, {HS//8}, v{T[0]}")
    def page_touch():
        a(f"buffer_load_dword v{xt}, v{pv1}, {srd(SO)}, 0 offen sc1")
        a(f"buffer_load_dword v{xt}, v{pv2}, {srd(SKV)}, 0 offen sc1")
    if G.tpg == 1: page_touch()
    if G.tKV == 3: a(f"buffer_load_dword v{xt}, v{fv}, {srd(SF)}, s{s_st} offen sc1")
    a(f"v_mov_b64 v[226:227], 0")
    a(f"v_mov_b32 v{oa1}, 0")
    a(f"s_mov_b32 s{s_it}, 0")
    a(f"s_mov_b32 s{s_m0x}, {(-3*SLOT) & 0xffffffff}")
    a(f"s_cmp_ge_u32 s{s_n}, 4")
    a(f"s_cbranch_scc1 {Lv}")

    def p1_reads(ks, b):
        out = [f"ds_read_b128 {v(X[b][i],4)}, v{xa[ks]} offset:{2048*i}" for i in range(4)]
        for j in range(5):
            for t in range(2):
                out.append(f"ds_read_b64_tr_b16 {v(W[b][j]+2*t,2)}, v{wa[j]} offset:{ks*10240+1280*t}")
        return out
    st_code = {}
    Lcj = a.label("cj")
    def consumer(ktype):
        tr_addrs(a, wa, ktype, False, s_wn, 16384)
        if ktype:
            a(f"v_lshrrev_b32 v{T[0]}, 4, v{lane}")
            a(f"s_mov_b32 s{s_a}, {HS}")
            a(f"v_mul_lo_u32 v{T[0]}, v{T[0]}, s{s_a}")
            a(f"v_and_b32 v{T[1]}, 7, v{lane}")
            a(f"v_and_b32 v{T[2]}, 8, v{lane}")
            a(f"v_lshl_add_u32 v{T[1]}, v{T[2]}, 1, v{T[1]}")
            a(f"v_lshl_add_u32 v{sa[0]}, v{T[1]}, 4, v{T[0]}")
            a(f"v_lshl_add_u32 v{sa[1]}, v{T[1]}, 3, v{T[0]}")
        else:
            a(f"v_lshrrev_b32 v{T[0]}, 4, v{lane}")
            a(f"v_mul_u32_u24 v{T[0]}, 320, v{T[0]}")
            a(f"v_and_b32 v{T[1]}, 15, v{lane}")
            a(f"s_mov_b32 s{s_a}, {HS-320}")
            for j in range(5):
                a(f"v_add_u32 v{T[2]}, {16*j}, v{T[1]}")
                a(f"v_mul_u32_u24 v{T[3]}, 3277, v{T[2]}")
                a(f"v_lshrrev_b32 v{T[3]}, 16, v{T[3]}")
                a(f"v_lshl_add_u32 v{T[2]}, v{T[2]}, 4, v{T[0]}")
                a(f"v_mad_u32_u24 v{sa[j]}, v{T[3]}, s{s_a}, v{T[2]}")
        def mf(b):
            out = []
            for j in range(5):
                for i in range(4):
                    d = v(ACC + 4 * (5 * i + j), 4)
                    A, B = (W[b][j], X[b][i]) if ktype else (X[b][i], W[b][j])
                    out.append(f"v_mfma_f32_16x16x32_bf16 {d}, {v(A,4)}, {v(B,4)}, {d}")
            return out
        Lp = a.label("p1"); Ll = a.label("p1l")
        if G.kst: stamp(a, 14)
        a("s_barrier")
        stamp(a, 1)
        for x in p1_reads(0, 0): a(x)
        a(f"{Lp}:")
        a("s_waitcnt lgkmcnt(8)")
        e = p1_reads(1, 1) + [f"s_add_u32 s{s_it}, s{s_it}, 1", f"s_and_b32 s{s_a}, s{s_it}, 3",
                              f"s_cselect_b32 s{s_a}, {SLOT}, s{s_m0x}", f"s_cmp_eq_u32 s{s_it}, 10"]
        for k, x in enumerate(mf(0)):
            if k == 4: a("s_waitcnt lgkmcnt(4)")
            a(x)
            if e: a(e.pop(0))
        a("s_waitcnt lgkmcnt(8)")
        m1 = mf(1)
        adds = [f"v_add_u32 v{r}, s{s_a}, v{r}" for r in xa + wa]
        for k in range(4):
            a(m1[k])
            for x in adds[2 * k:2 * k + 2]: a(x)
        a("s_waitcnt lgkmcnt(0)")
        a("s_barrier")
        a(f"s_cbranch_scc1 {Ll}")
        e = p1_reads(0, 0)
        for x in m1[4:]:
            a(x)
            if e: a(e.pop(0))
        Lq = a.label("p1q")
        a(f"s_cmp_lg_u32 s{s_it}, s25")
        a(f"s_cbranch_scc1 {Lq}")
        flag_regs(a, s_loc)
        flag_store(a, 24, False)
        a(f"{Lq}:")
        a(f"s_cmp_lg_u32 s{s_it}, {G.xit}")
        a(f"s_cbranch_scc1 {Lp}")
        if G.tpg == 2: page_touch()
        if G.tKV == 2: a(f"buffer_load_dword v{xt}, v{fv}, {srd(SF)}, s{s_st} offen sc1")
        a(f"buffer_load_dword v{xt}, v{xv}, {srd(SF)}, s{s_m0w} offen sc1")
        a(f"s_branch {Lp}")
        a(f"{Ll}:")
        for x in m1[4:]: a(x)
        Lt = a.label("xt"); Ltd = a.label("xtd")
        a(f"s_mov_b32 s{s_c}, {SPIN}")
        a(f"{Lt}:")
        a("s_waitcnt vmcnt(0)")
        a(f"v_subrev_u32 v{T[0]}, s{s_tag}, v{xt}")
        a(f"v_cmp_lt_u32 vcc, 7, v{T[0]}")
        a(f"s_cbranch_vccz {Ltd}")
        a(f"s_sub_u32 s{s_c}, s{s_c}, 1")
        a(f"s_cbranch_scc1 {Ltd}")
        a(f"s_sleep {G.sleep}")
        a(f"buffer_load_dword v{xt}, v{xv}, {srd(SF)}, s{s_m0w} offen sc1")
        a(f"s_branch {Lt}")
        a(f"{Ltd}:")
        a(f"v_cmp_ne_u32 vcc, s{s_loc}, v{xt}")
        a("s_cmp_eq_u64 vcc, 0")
        a(f"s_cselect_b32 s{s_loc}, {1 if G.local else 0}, 0")
        stamp(a, 2)
        def stores(fl, so, cvt):
            if ktype:
                for i in range(4):
                    r = KVD + 10 * i
                    if cvt:
                        for e in range(10): a(f"v_cvt_pk_bf16_f32 v{r+e}, v{ACC+20*i+2*e}, v{ACC+20*i+2*e+1}")
                    o = (i >> 1) * 1024 + (i & 1) * 128
                    a(f"buffer_store_dwordx4 {v(r,4)}, v{sa[0]}, {srd(SO)}, {so} offen offset:{o} {fl}")
                    a(f"buffer_store_dwordx4 {v(r+4,4)}, v{sa[0]}, {srd(SO)}, {so} offen offset:{o+512} {fl}")
                    a(f"buffer_store_dwordx2 {v(r+8,2)}, v{sa[1]}, {srd(SO)}, {so} offen offset:{2048+(i>>1)*256+(i&1)*64} {fl}")
            else:
                for j in range(5):
                    for i2 in range(2):
                        r = KVD + 8 * j + 4 * i2
                        if cvt:
                            r0 = ACC + 4 * (5 * (2 * i2) + j); r1 = ACC + 4 * (5 * (2 * i2 + 1) + j)
                            a(f"v_cvt_pk_bf16_f32 v{r}, v{r0}, v{r0+1}")
                            a(f"v_cvt_pk_bf16_f32 v{r+1}, v{r0+2}, v{r0+3}")
                            a(f"v_cvt_pk_bf16_f32 v{r+2}, v{r1}, v{r1+1}")
                            a(f"v_cvt_pk_bf16_f32 v{r+3}, v{r1+2}, v{r1+3}")
                        a(f"buffer_store_dwordx4 {v(r,4)}, v{sa[j]}, {srd(SO)}, {so} offen offset:{2560+1280*i2} {fl}")
        st_code[ktype] = stores
        Lg = a.label("glob")
        a(f"s_cmp_eq_u32 s{s_loc}, 0")
        a(f"s_cbranch_scc1 {Lg}")
        if not (G.xs & 1): stores(G.lst, "0", True)
        a(f"s_branch {Lcj}")
        a(f"{Lg}:")
        stores("sc1", "0", True)
        if ktype: a(f"s_branch {Lcj}")
    consumer(True)
    a(f"{Lv}:")
    consumer(False)
    a(f"{Lcj}:")
    pad_hop(a, 2)
    a(f"v_mov_b32 v{T[0]}, {MODE_LDS}")
    a(f"v_mov_b32 v{T[1]}, s{s_loc}")
    a(f"ds_write_b32 v{T[0]}, v{T[1]}")
    flag_regs(a)
    def att_init():
        pad_value()
        for b in range(4): pad(b)
        zero_acc()
        wo_scalars()
        a(f"s_lshl2_add_u32 s{s_c}, s{s_m}, s{s_g}")
        a(f"s_lshl_b32 s{s_c}, s{s_c}, 5")
        o_base(SX, s_c, 31 * 2560 + 1280)
    Lg2 = a.label("g2")
    a(f"s_cmp_eq_u32 s{s_loc}, 0")
    a("s_waitcnt lgkmcnt(0)")
    a(f"s_cbranch_scc1 {Lg2}")
    pad_hop(a, 2)
    att_init()
    a("s_waitcnt vmcnt(0)")
    flag_store(a, s_k, True)
    stamp(a, 3)
    poll(a, 246, f"s{s_st}", T[1])
    stamp(a, 4)
    kv_first(False)
    if G.tP:
        a(f"v_min_u32 v{T[0]}, 39, v{lane}")
        a(f"v_lshlrev_b32 v{T[0]}, 7, v{T[0]}")
        a(f"s_sub_u32 s{s_a}, s{s_ko}, {PS}")
        a(f"s_add_u32 s{s_b}, s{s_ko}, {PS}")
        a(f"buffer_load_dword v{gfd}, v{T[0]}, {srd(SKV)}, s{s_a} offen sc1")
        a(f"buffer_load_dword v{gfd}, v{T[0]}, {srd(SKV)}, s{s_b} offen sc1")
    a(f"s_lshr_b32 s{s_a}, s2, 3")
    a(f"s_or_b32 s{s_a}, s{s_a}, s{s_wave}")
    a(f"s_cselect_b32 s{s_st}, 4, {4 if G.el4 else 5}")
    q_prep()
    if G.ip: a("s_setprio 2")
    a("s_barrier")
    q_reads(0)
    a(f"s_branch {Latt}")
    def group_wait(part=None, n=0):
        L = a.label("gp"); Ld = a.label("gpd"); Lc = a.label("gpc")
        if part == 2:
            a(f"s_mov_b32 s{s_c}, {SPIN}")
            a(f"s_waitcnt vmcnt({n})")
            a(f"s_branch {Lc}")
        if part != 2:
            a(f"s_lshl_b32 s{s_b}, s{s_blk}, 6")
            a(f"s_lshr_b32 s{s_a}, s{s_m}, 2")
            a(f"s_add_u32 s{s_b}, s{s_b}, s{s_a}")
            a(f"s_lshl_b32 s{s_b}, s{s_b}, 7")
            a(f"s_add_u32 s{s_b}, s{s_b}, {FLOFF}")
            a(f"v_lshrrev_b32 v{T[0]}, 2, v{lane}")
            a(f"v_and_b32 v{T[1]}, 3, v{lane}")
            a(f"v_lshlrev_b32 v{T[1]}, 3, v{T[1]}")
            a(f"v_lshl_add_u32 v{T[0]}, v{T[0]}, 9, v{T[1]}")
            a(f"s_mov_b32 s{s_c}, {SPIN}")
        a(f"{L}:")
        a(f"buffer_load_dwordx2 {v(T[1],2)}, v{T[0]}, {srd(SF)}, s{s_b} offen sc1")
        if part == 1: return
        a("s_waitcnt vmcnt(0)")
        a(f"{Lc}:")
        a(f"v_cmp_ne_u32 vcc, s{s_tag}, v{T[1]}")
        a(f"v_cmp_ne_u32 s[16:17], s{s_tag}, v{T[2]}")
        a("s_or_b64 vcc, vcc, s[16:17]")
        a(f"s_cbranch_scc0 {Ld}")
        a(f"s_sub_u32 s{s_c}, s{s_c}, 1")
        a(f"s_cbranch_scc1 {Ld}")
        a(f"s_sleep {G.sleep}")
        a(f"s_branch {L}")
        a(f"{Ld}:")
    a(f"{Lg2}:")
    att_init()
    a("s_waitcnt vmcnt(0)")
    a("s_mov_b64 exec, 1")
    a(f"buffer_store_dword v{T[5]}, v{T[4]}, {srd(SF)}, s{s_k} offen sc1")
    a("s_mov_b64 exec, -1")
    stamp(a, 3)
    Lne = a.label("ne")
    a(f"s_lshr_b32 s{s_a}, s2, 3")
    a(f"s_or_b32 s{s_a}, s{s_a}, s{s_wave}")
    a(f"s_cbranch_scc1 {Lne}")
    group_wait()
    flag_store(a, s_vo, False)
    a(f"{Lne}:")
    poll(a, gfv, f"s{s_fg}", T[1])
    stamp(a, 4)
    kv_first(False)
    a(f"s_mov_b32 s{s_st}, 0")
    q_prep()
    if G.ip: a("s_setprio 2")
    a("s_barrier")
    q_reads(0)
    a(f"s_branch {Latt}")

    for Ls, Lb, R1 in spins:
        a(f"{Ls}:")
        a(f"ds_read_b32 v{fd}, v{fr} offset:{16*(R1-1)}")
        a("s_waitcnt lgkmcnt(0)")
        a(f"v_cmp_ne_u32 vcc, 1, v{fd}")
        a(f"s_cbranch_vccnz {Ls}")
        a(f"s_branch {Lb}")
    a(f"{hooks[G.hst][1]}:")
    stamp(a, 11)
    group_wait(1)
    a(f"s_branch {hooks[G.hst][2]}")
    a(f"{hooks[G.hchk][1]}:")
    group_wait(2, pos[G.hchk] - pos[G.hst])
    stamp(a, 12)
    a("buffer_wbl2 sc1")
    a(f"s_branch {hooks[G.hchk][2]}")
    a(f"{hooks[G.hpub][1]}:")
    a("s_waitcnt vmcnt(0)")
    a(f"s_bitset0_b32 s{s_st}, 0")
    flag_regs(a)
    flag_store(a, s_vo, False)
    stamp(a, 13)
    a(f"s_branch {hooks[G.hpub][2]}")
    a(f"{hooks[G.hl][1]}:")
    if G.kill: a(f"s_mov_b32 s{SKV+2}, 0")
    a(f"s_mul_i32 s{s_a}, s{s_wave}, 6144")
    a(f"v_add_u32 v{own}, s{s_a}, v{ka}")
    a(f"s_xor_b32 s{s_a}, s{s_wave}, 4")
    a(f"s_mul_i32 s{s_a}, s{s_a}, 6144")
    a(f"v_add_u32 v{oth}, s{s_a}, v{ka}")
    a(f"s_lshl4_add_u32 s{s_xo}, s{s_blk}, s{s_m}")
    a(f"s_lshl1_add_u32 s{s_c}, s{s_m}, s{s_kh}")
    a(f"s_lshl_b32 s{s_c}, s{s_c}, 6")
    o_base(SO, s_c, 63 * 2560 + 1280)
    a(f"s_lshl2_add_u32 s{s_vo}, s{s_n}, s{s_g}")
    a(f"s_mul_i32 s{s_b}, s{s_vo}, 5")
    a(f"s_add_u32 s{s_b}, s{s_b}, 1")
    a(f"s_lshr_b32 s{s_b}, s{s_b}, 1")
    def funit(dst, u):
        a(f"s_mul_i32 s{dst}, s{u}, 205")
        a(f"s_lshr_b32 s{dst}, s{dst}, 10")
        a(f"s_mul_i32 s{dst}, s{dst}, 5")
        a(f"s_add_u32 s{dst}, s{dst}, s{u}")
        a(f"s_lshl_b32 s{dst}, s{dst}, 8")
    funit(16, s_b)
    a(f"s_add_u32 s{s_a}, s{s_b}, 1")
    funit(17, s_a)
    a(f"s_and_b32 s19, s{s_g}, 1")
    a(f"s_cselect_b32 s{s_a}, -1, 2")
    a(f"s_add_u32 s{s_a}, s{s_a}, s{s_b}")
    funit(18, s_a)
    a(f"s_lshl3_add_u32 s18, s19, s18")
    a(f"s_sub_u32 s17, s17, s16")
    a(f"v_bfe_u32 v{T[2]}, v{lane}, 4, 1")
    a(f"v_mul_u32_u24 v{T[2]}, {16*2560}, v{T[2]}")
    a(f"v_and_b32 v{T[3]}, 15, v{lane}")
    a(f"v_lshl_add_u32 v{T[2]}, v{T[3]}, 4, v{T[2]}")
    a(f"v_lshrrev_b32 v{T[4]}, 5, v{lane}")
    a(f"v_lshl_add_u32 v{T[3]}, v{T[4]}, 20, v{T[2]}")
    a(f"v_mad_u32_u24 v{T[2]}, v{T[4]}, s17, v{T[2]}")
    a(f"v_add_u32 v{oa1}, s16, v{T[2]}")
    a(f"v_add_u32 v{oa2}, s18, v{T[3]}")
    a(f"s_cmp_eq_u32 s{s_loc}, 0")
    a(f"s_cselect_b32 s{s_k}, {FSH}, 2")
    a(f"s_mov_b32 s{s_a}, {F2LOFF}")
    a(f"s_cselect_b32 s{s_a}, {F2OFF}, s{s_a}")
    a(f"s_lshl_b32 s{s_xo}, s{s_xo}, 6")
    a(f"s_lshl_b32 s{s_xo}, s{s_xo}, s{s_k}")
    a(f"s_add_u32 s{s_xo}, s{s_xo}, s{s_a}")
    a(f"s_lshl_b32 s{s_a}, s{s_kh}, 5")
    a(f"s_add_u32 s{s_vo}, s{s_vo}, s{s_a}")
    a(f"s_lshl_b32 s{s_vo}, s{s_vo}, s{s_k}")
    a(f"s_add_u32 s{s_vo}, s{s_vo}, s{s_xo}")
    flag_regs(a)
    if G.tO:
        a(f"s_mov_b32 s{s_b}, {32*2560}")
        for so in ("0", f"s{s_b}"):
            a(f"buffer_load_dword v{gfd}, v{oa1}, {srd(SO)}, {so} offen sc1")
            a(f"buffer_load_dword v{gfd}, v{oa2}, {srd(SO)}, {so} offen sc1")
    a(f"s_lshr_b32 s{s_a}, s{s_g}, 1")
    a(f"s_lshl_b32 s{s_a}, s{s_a}, 5")
    a(f"s_lshl_b32 s{s_a}, s{s_a}, s{s_k}")
    a(f"s_add_u32 s{s_xo}, s{s_xo}, s{s_a}")
    a(f"v_and_b32 v{pf}, 31, v{lane}")
    a(f"v_lshlrev_b32 v{pf}, s{s_k}, v{pf}")
    a(f"buffer_load_dword v{gfd}, v{pf}, {srd(SF)}, s{s_xo} offen sc1")
    a(f"s_lshl4_add_u32 s{s_m0x}, s{s_blk}, s{s_m}")
    a(f"s_lshl2_add_u32 s{s_m0x}, s{s_m0x}, s{s_g}")
    a(f"s_lshl_b32 s{s_m0x}, s{s_m0x}, 5")
    a(f"s_add_u32 s{s_m0x}, s{s_m0x}, {F3OFF}")
    a(f"buffer_load_dword v{gfd}, off, {srd(SF)}, s{s_m0x} sc1")
    a(f"s_branch {hooks[G.hl][2]}")
    if G.early:
        a(f"{LhW}:")
        a("s_nop 3")
        send()
        a(f"s_branch {LhWb}")
    a(f"{hooks[G.hsam][1]}:")
    a(f"buffer_load_dword v{gfd}, v{gfv}, {srd(SF)}, s{s_fg} offen sc1")
    a(f"s_mov_b32 s{s_st}, 16")
    a(f"s_branch {hooks[G.hsam][2]}")
    a(f"{hooks[(0,2)][1]}:")
    nafter = (pos[(0, 2)] - pos[G.hsam]) % (len(names) // 2)
    if not G.rst and not G.kst: stamp(a, 14)
    a(f"s_waitcnt vmcnt({nafter})")
    stamp(a, 15)
    a(f"s_mov_b32 s{s_st}, 0")
    a(f"v_cmp_ne_u32 vcc, s{s_tag}, v{gfd}")
    a(f"s_cbranch_vccz {hooks[(0,2)][2]}")
    if G.defer:
        a(f"s_mov_b32 s{SKV+2}, 0")
        a(f"s_mov_b32 s{s_st}, 32")
        a(f"s_branch {hooks[(0,2)][2]}")
        a(f"{hooks[(2,1)][1]}:")
        poll(a, gfv, f"s{s_fg}", gfd)
        a(f"s_mov_b32 s{SKV+2}, {HS}")
        a(f"s_mov_b32 s{s_st}, 0")
        a(ld_k1(0)); a(ld_k3(0)); a(ld_v(0)); a(ld_k1(1))
        y33 = len(names) - pos[(2, 1)] - len(plan[(3, 3)][1])
        y03 = len(names) - pos[(2, 1)] + pos[(0, 3)] - pos[(0, 0)]
        assert waits[3] <= y33 + 1 and waits[0] <= y03, (waits, y33, y03)
        a(f"s_branch {hooks[(2,1)][2]}")
    else:
        poll(a, gfv, f"s{s_fg}", gfd)
        stamp(a, 15)
        a(f"s_branch {hooks[(0,2)][2]}")

    a(f"{Lslow}:")
    vmx = gfd
    a(f"s_mov_b32 s{SKV+2}, {HS}")
    for q in (2, 3):
        L1 = a.label("s1"); L2 = a.label("s2")
        a(f"v_mov_b32 v{vmx}, 0xff800000")
        a(f"s_mov_b32 s{s_ko}, 0")
        a(f"{L1}:")
        a(ld_k1(0)); a(ld_k1(1)); a(ld_k3(0))
        a("s_waitcnt vmcnt(0)")
        for t in range(2):
            a(qk1(0, q, t)); a(qk2(0, q, t))
            a("s_nop 15")
            for r in range(0, 16, 2):
                a(f"v_max3_f32 v{vmx}, v{S[0]+r}, v{S[0]+r+1}, v{vmx}")
        a(f"s_add_u32 s{s_ko}, s{s_ko}, {PS}")
        a(f"s_cmp_lt_u32 s{s_ko}, {HS}")
        a(f"s_cbranch_scc1 {L1}")
        a(f"v_mov_b32 v{T[0]}, v{vmx}")
        a("s_nop 1")
        a(f"v_permlane32_swap_b32 v{T[0]}, v{vmx}")
        a("s_nop 1")
        a(f"v_max_f32 v{vmx}, v{vmx}, v{T[0]}")
        for r in range(0, 16, 2):
            a(f"v_mov_b64 {v(O[q]+r,2)}, 0")
        a(f"s_mov_b32 s{s_ko}, 0")
        a(f"{L2}:")
        a(ld_k1(0)); a(ld_k1(1)); a(ld_k3(0)); a(ld_v(0)); a(ld_v(1))
        a("s_waitcnt vmcnt(0)")
        for t in range(2):
            a(qk1(0, q, t)); a(qk2(0, q, t))
            a("s_nop 15")
            for r in range(16):
                a(f"v_sub_f32 v{S[0]+r}, v{S[0]+r}, v{vmx}")
            for r in range(16):
                a(ex(0, r))
            a("s_nop 0")
            for r in range(0, 16, 2):
                a(cv(0, r))
            a("s_nop 1")
            a(pv(0, q, t, 0)); a(pv(0, q, t, 1))
        a(f"s_add_u32 s{s_ko}, s{s_ko}, {PS}")
        a(f"s_cmp_lt_u32 s{s_ko}, {HS}")
        a(f"s_cbranch_scc1 {L2}")
    a("s_nop 15")
    a(f"s_mov_b32 s{s_c}, 1")
    a(f"s_branch {Lst}")
    a("Lcode_end:")
    return name

def build():
    a = Asm()
    PADS[:] = [0, 0, 0, 0]
    name = gen(a)
    if G.warm:
        i = a.lines.index(".PADRET")
        a.lines[i:i+1] = [f"Lpad_{c}_{PADS[c]}:" for c in range(4)]
    out = HEADER + "; @launch grid=(256,1,1) block=(512,1,1) lds=163840\n"
    out += '.amdgcn_target "amdgcn-amd-amdhsa--gfx950"\n.text\n' + a.text()
    out += '.section .rodata,"a"\n.p2align 6\n' + kernel_desc(name, 256, 100 if G.diag else 64)
    return out

if __name__ == "__main__":
    path = sys.argv[1] if len(sys.argv) > 1 else f"cdna_kernels/{NAME}.s"
    G.diag = "diag" in sys.argv
    for x in sys.argv[2:]:
        if "=" in x:
            k, val = x.split("=", 1)
            assert hasattr(G, k), k
            setattr(G, k, eval(val))
    open(path, "w").write(build())
    print("wrote", path)
```

```python
import sys
sys.path.insert(0, "gen")
from asmlib import *

NAME = "concat_heads__mha_block__softmax_full_mha__prompt"
HS = 163840
PS = 5120
KVL = 0x1400000
OBASE = 0xA00000
FBASE = 0x1000000
FLOFF = 0x40000
F2LOFF = 0x60000
XOFF = 0x70000
F3OFF = 0x68000
GFOFF = 0x78000
F2OFF = 0x80000
EOFF = 0x180000
DBGBASE = 0x2000000
QSCALE = 0x3ea52b5c
SLOT = 36864
SPARE = 4 * SLOT
QAREA = SLOT
WOBASE = 61440
MODE_LDS = 163836
RFLAG = 163712
SPIN = 400000
FSH = 7

HEADER = """; Kernarg layout for this problem (72 bytes, ptrs only, base s[0:1]):
"""

SX, SW, SKV, SF, SO = 4, 8, 12, 36, 40
(s_blk, s_m, s_n, s_wave, s_tag, s_k, s_a, s_b, s_c, s_it, s_xo, s_wo, s_m0x, s_m0w, s_kh, s_ko, s_vo, s_g) = range(44, 62)
s_vm = 62
s_st, s_loc, s_fg = 3, 34, 35
lane = 255
T = [0] * 6

class G:
    diag = False; dbg = None; amp = None
    lens = [10, 3, 2, 1]
    rot = True
    pro = 2; la = 3; nb1 = 2
    local = True
    sleep = 2
    iters = 8
    hst = (0, 1); hsam = (0, 0)
    oa = 3
    kill = True
    rtab = [[0,0,3,3,5,5,8,8],[3,3,5,5,8,8,0,0],[5,5,8,8,0,0,3,3],[8,8,0,0,3,3,5,5]]
    lastm = 0
    rxa = 1
    defer = True
    el4 = False
    ip = False
    nowo = False
    xpos = 6
    sst = 0
    pwb = None
    nohook = False
    cpf = 1
    fast0 = True
    kst = False
    itst = False
    tP = False
    hchk = (2, 2)
    hpub = (3, 0)
    hl = (2, 0)
    rpg = 8
    early = True
    roll = 3
    xit = 8
    nkv = 39
    tO = True
    tKV = 2
    tpg = 0
    xs = 0
    p2prio = 1
    dsh = 0
    dst = 3
    qpf = 0
    rst = 0
    rmul = 3
    rn = 1
    lwb = False
    ost = ''
    oin = True
    olst = ''
    ewb = None
    warm = False
    lst = ''
    v3 = False
    nowb = False
    wod = 3

PADS = [0, 0, 0, 0]
def pad_hop(a, c):
    if not G.warm: return
    a(f"Lpad_{c}_{PADS[c]}:")
    PADS[c] += 1
    a(f"s_cbranch_execz Lpad_{c}_{PADS[c]}")

def setT(base): T[:] = list(range(base, base + 6))
def srd(d): return f"s[{d}:{d+3}]"

def stamp(a, i):
    if not G.diag: return
    if (G.itst or G.sst) and i >= 11: return
    a("s_memtime s[96:97]")
    a("s_memrealtime s[98:99]")
    a("s_waitcnt lgkmcnt(0)")
    a(f"s_mov_b32 s{64+2*i}, s96")
    a(f"s_mov_b32 s{65+2*i}, s98")

def dump_stamps(a, n):
    if not G.diag: return
    a("s_waitcnt vmcnt(0)")
    stamp(a, n)
    a(f"s_lshl_b32 s{s_a}, s2, 3")
    a(f"s_add_u32 s{s_a}, s{s_a}, s{s_wave}")
    a(f"s_lshl_b32 s{s_a}, s{s_a}, 7")
    a(f"s_add_u32 s{s_a}, s{s_a}, {DBGBASE}")
    make_srd(a, SX, 32, f"s{s_a}", 128)
    a(f"v_mov_b32 v{T[0]}, 0")
    for i in range(32):
        a(f"v_mov_b32 v{T[1]}, s{64+i}")
        a(f"buffer_store_dword v{T[1]}, v{T[0]}, s[{SX}:{SX+3}], 0 offen offset:{4*i}")
    if G.lwb:
        L1 = a.label("lwb"); L2 = a.label("lwb2")
        a(f"s_lshr_b32 s{s_a}, s2, 3")
        a(f"s_or_b32 s{s_a}, s{s_a}, s{s_wave}")
        a(f"s_cbranch_scc1 {L2}")
        a(f"{L1}:")
        a("s_memrealtime s[98:99]")
        a("s_waitcnt lgkmcnt(0)")
        a(f"s_sub_u32 s{s_b}, s98, s{65+2*n}")
        a(f"s_cmp_lt_u32 s{s_b}, 400")
        a(f"s_cbranch_scc1 {L1}")
        a("buffer_wbl2 sc1")
        a("s_waitcnt vmcnt(0)")
        a(f"{L2}:")
    if G.dbg is not None:
        Ls = a.label("nodbg")
        a(f"s_lshl_b32 s{s_a}, s2, 3")
        a(f"s_add_u32 s{s_a}, s{s_a}, s{s_wave}")
        a(f"s_cmp_lg_u32 s{s_a}, {G.dbg}")
        a(f"s_cbranch_scc1 {Ls}")
        make_srd(a, SX, 30, None, 256)
        for i in range(1, 14):
            a(f"s_sub_u32 s{s_a}, s{65+2*i}, s65")
            a(f"v_mov_b32 v{T[1]}, s{s_a}")
            a(f"buffer_store_dword v{T[1]}, v{T[0]}, s[{SX}:{SX+3}], 0 offen offset:{4*i}")
        if G.amp is not None:
            Lw = a.label("amp")
            a(f"s_sub_u32 s{s_a}, s{65+2*G.amp}, s65")
            a(f"s_mul_i32 s{s_a}, s{s_a}, 4")
            a(f"s_add_u32 s{s_a}, s{s_a}, 1000")
            a(f"{Lw}:")
            a("s_memrealtime s[98:99]")
            a("s_waitcnt lgkmcnt(0)")
            a(f"s_sub_u32 s{s_b}, s98, s{65+2*n}")
            a(f"s_cmp_lt_u32 s{s_b}, s{s_a}")
            a(f"s_cbranch_scc1 {Lw}")
        a(f"{Ls}:")

def make_srd(a, d, base, off, nbytes):
    if off is None:
        a(f"s_mov_b64 s[{d}:{d+1}], s[{base}:{base+1}]")
    else:
        a(f"s_add_u32 s{d}, s{base}, {off}")
        a(f"s_addc_u32 s{d+1}, s{base+1}, 0")
    a(f"s_mov_b32 s{d+2}, {nbytes}")
    a(f"s_mov_b32 s{d+3}, 0x00020000")

def img_pos(a, pos, row, c):
    a(f"v_mul_u32_u24 v{row}, 3277, v{pos}")
    a(f"v_lshrrev_b32 v{row}, 16, v{row}")
    a(f"v_mad_i32_i24 v{c}, v{row}, -16, v{pos}")
    a(f"v_mad_i32_i24 v{c}, v{row}, -4, v{c}")
    a(f"v_lshrrev_b32 v{T[5]}, 3, v{row}")
    a(f"v_mad_i32_i24 v{c}, v{T[5]}, -2, v{c}")
    a(f"v_add_u32 v{T[5]}, 20, v{c}")
    a(f"v_min_u32 v{c}, v{c}, v{T[5]}")

def grp_src(a, dst, row, c, ld_sreg):
    a(f"v_cmp_lt_u32 vcc, 9, v{c}")
    a(f"v_add_u32 v{T[5]}, 16, v{row}")
    a(f"v_subrev_u32 v{T[4]}, 10, v{c}")
    a(f"v_cndmask_b32 v{row}, v{row}, v{T[5]}, vcc")
    a(f"v_cndmask_b32 v{c}, v{c}, v{T[4]}, vcc")
    a(f"v_lshlrev_b32 v{c}, 4, v{c}")
    a(f"v_mad_u32_u24 v{dst}, v{row}, s{ld_sreg}, v{c}")

def tr_addrs(a, wa, perm, grp, colhalf_sreg, base):
    a(f"v_bfe_u32 v{T[0]}, v{lane}, 2, 2")
    a(f"v_lshrrev_b32 v{T[1]}, 4, v{lane}")
    a(f"v_and_b32 v{T[2]}, 1, v{T[1]}")
    a(f"v_lshl_add_u32 v{T[0]}, v{T[2] if grp else T[1]}, 3, v{T[0]}")
    a(f"v_mul_u32_u24 v{T[0]}, 320, v{T[0]}")
    if base: a(f"v_add_u32 v{T[0]}, {base}, v{T[0]}")
    a(f"v_lshlrev_b32 v{T[2]}, 5, v{T[2]}")
    if grp:
        a(f"v_lshrrev_b32 v{T[1]}, 1, v{T[1]}")
        a(f"v_mul_u32_u24 v{T[1]}, 160, v{T[1]}")
        a(f"v_add_u32 v{T[2]}, v{T[2]}, v{T[1]}")
    else:
        a(f"s_mul_i32 s{s_a}, s{colhalf_sreg}, 160")
        a(f"v_add_u32 v{T[2]}, s{s_a}, v{T[2]}")
    a(f"v_and_b32 v{T[1]}, 3, v{lane}")
    a(f"v_mad_u32_u24 v{T[2]}, v{T[1]}, {40 if perm else 8}, v{T[2]}")
    for j in range(5):
        a(f"v_add_u32 v{T[1]}, {8*j if perm else 32*j}, v{T[2]}")
        a(f"v_subrev_u32 v{T[3]}, 320, v{T[1]}")
        a(f"v_min_u32 v{T[1]}, v{T[1]}, v{T[3]}")
        a(f"v_add_u32 v{wa[j]}, v{T[1]}, v{T[0]}")

def x_addrs(a, xa, rowbase_sreg):
    a(f"v_and_b32 v{T[0]}, 15, v{lane}")
    a(f"v_lshrrev_b32 v{T[1]}, 1, v{T[0]}")
    a(f"v_lshrrev_b32 v{T[2]}, 4, v{lane}")
    a(f"v_xor_b32 v{T[1]}, v{T[1]}, v{T[2]}")
    a(f"v_lshl_add_u32 v{T[0]}, v{T[0]}, 7, s{rowbase_sreg}")
    a(f"v_lshl_add_u32 v{xa[0]}, v{T[1]}, 4, v{T[0]}")
    a(f"v_xor_b32 v{xa[1]}, 64, v{xa[0]}")

def poll(a, voff, soff, tmp):
    L = a.label("poll"); Ld = a.label("polld")
    a(f"s_mov_b32 s{s_c}, {SPIN}")
    a(f"{L}:")
    a(f"buffer_load_dword v{tmp}, v{voff}, {srd(SF)}, {soff} offen sc1")
    a("s_waitcnt vmcnt(0)")
    a(f"v_cmp_ne_u32 vcc, s{s_tag}, v{tmp}")
    a(f"s_cbranch_vccz {Ld}")
    a(f"s_sub_u32 s{s_c}, s{s_c}, 1")
    a(f"s_cbranch_scc1 {Ld}")
    a(f"s_sleep {G.sleep}")
    a(f"s_branch {L}")
    a(f"{Ld}:")

def flag_regs(a, val=None):
    a(f"v_lshlrev_b32 v{T[4]}, 2, v{lane}")
    a(f"v_mov_b32 v{T[5]}, s{s_tag if val is None else val}")
def flag_store(a, off_sreg, local=False):
    if local:
        a("s_mov_b64 exec, 1")
    else:
        a("s_mov_b32 exec_hi, 0")
    a(f"buffer_store_dword v{T[5]}, v{T[4]}, {srd(SF)}, s{off_sreg} offen {'' if local else 'sc1'}")
    a("s_mov_b64 exec, -1")

def small_gemm(a, BF, ACC, W, wa, gbase, pre, cur0=0, vmw=None, chain=0):
    n = len(gbase)
    cur = [cur0]
    def shift(g):
        out = []
        if not (cur[0] <= gbase[g] and gbase[g] + 1280 - cur[0] <= 65535):
            want = (gbase[g] // 57344) * 57344
            d = want - cur[0]
            out = [(f"v_add_u32 v{wa[j]}, {d}, v{wa[j]}" if d > 0 else f"v_subrev_u32 v{wa[j]}, {-d}, v{wa[j]}") for j in range(5)]
            cur[0] = want
        return out
    def rd(g, j, t): return f"ds_read_b64_tr_b16 {v(W[g&1]+4*j+2*t,2)}, v{wa[j]} offset:{gbase[g]-cur[0]+1280*t}"
    for x in shift(0): a(x)
    for j in range(5):
        a(rd(0, j, 0)); a(rd(0, j, 1))
    for g in range(n):
        last = g == n - 1
        if g % 2 == 0: pad_hop(a, chain)
        for x in pre.get(("h", g), []): a(x)
        if not last:
            for x in shift(g + 1): a(x)
        ex = list(pre.get(("x", g), []))
        for j in range(5):
            if j == 0: a(f"s_waitcnt {('vmcnt(%d) ' % vmw(g)) if vmw else ''}lgkmcnt(6)")
            if G.roll == 2 or last:
                if j == 2: a(f"s_waitcnt lgkmcnt({0 if last else 4})")
            else:
                if j == 2: a("s_waitcnt lgkmcnt(6)")
                if j == 4: a("s_waitcnt lgkmcnt(8)")
            for ii in range(2):
                d = v(ACC + 4 * (5 * ii + j), 4)
                a(f"v_mfma_f32_16x16x32_bf16 {d}, {v(W[g&1]+4*j,4)}, {v(BF+8*g+4*ii,4)}, {d if g else 0}")
                if not last: a(rd(g + 1, j, ii))
            if ex: a(ex.pop(0))
        for x in ex: a(x)

def gen(a):
    name = NAME + "_kernel"
    kernel_header(a, name)
    Lend = a.label("end"); Lcons = a.label("cons"); Lv = a.label("vtype"); Latt = a.label("att")
    stamp(a, 0)
    a("s_load_dwordx16 s[16:31], s[0:1], 0")
    a("s_load_dwordx2 s[32:33], s[0:1], 64")
    a("s_cmp_ge_u32 s2, 256")
    a(f"s_cbranch_scc1 {Lend}")
    a("s_getpc_b64 s[4:5]")
    a(f"Lpc_{name}:")
    a(f"s_mov_b32 s6, Lcode_end-Lpc_{name}")
    a("s_mov_b32 s7, 0x00020000")
    if G.cpf == 0:
        a("v_lshlrev_b32 v1, 7, v0")
        a(f"buffer_load_dword v159, v1, s[4:7], 0 offen")
    else:
        a("v_and_b32 v1, 7, v0")
        a("s_and_b32 s3, s2, 0xf8")
        a("v_or_b32 v1, s3, v1")
        a("v_lshlrev_b32 v1, 7, v1")
        a(f"buffer_load_dword v159, v1, s[4:7], 0 offen")
    a("s_mov_b64 exec, -1")
    a(f"v_lshrrev_b32 v1, 6, v0")
    a(f"v_and_b32 v{lane}, 63, v0")
    a(f"v_readfirstlane_b32 s{s_wave}, v1")
    a(f"s_and_b32 s{s_a}, s2, 7")
    a(f"s_lshr_b32 s{s_b}, s2, 3")
    a(f"s_lshr_b32 s{s_blk}, s{s_a}, 2")
    a(f"s_and_b32 s{s_a}, s{s_a}, 3")
    a(f"s_lshr_b32 s{s_c}, s{s_b}, 3")
    a(f"s_lshl2_add_u32 s{s_m}, s{s_a}, s{s_c}")
    a(f"s_and_b32 s{s_n}, s{s_b}, 7")
    if G.rot:
        if G.rtab:
            wds = [sum(G.rtab[c][n] << (4 * n) for n in range(8)) for c in range(4)]
            a(f"s_mov_b32 s{s_k}, {wds[0]:#x}")
            for c in range(1, 4):
                a(f"s_cmp_eq_u32 s{s_c}, {c}")
                a(f"s_cselect_b32 s{s_k}, {wds[c]:#x}, s{s_k}")
            a(f"s_lshl_b32 s{s_b}, s{s_n}, 2")
            a(f"s_lshr_b32 s{s_k}, s{s_k}, s{s_b}")
            a(f"s_and_b32 s{s_k}, s{s_k}, 15")
            if G.rxa == -1: a(f"s_and_b32 s{s_a}, s{s_a}, 1")
            if G.rxa > 1: a(f"s_mul_i32 s{s_a}, s{s_a}, {G.rxa}")
            if G.rxa: a(f"s_add_u32 s{s_k}, s{s_k}, s{s_a}")
        elif G.rot == 2:
            a(f"s_add_u32 s{s_k}, s{s_c}, s{s_n}")
            a(f"s_and_b32 s{s_k}, s{s_k}, 1")
            a(f"s_mul_i32 s{s_k}, s{s_k}, 5")
        elif G.rot == 5:
            a(f"s_mul_i32 s{s_k}, s{s_c}, 5")
            a(f"s_lshr_b32 s{s_k}, s{s_k}, 1")
            a(f"s_add_u32 s{s_k}, s{s_k}, s{s_a}")
            a(f"s_lshr_b32 s{s_a}, s{s_n}, 2")
            a(f"s_add_u32 s{s_k}, s{s_k}, s{s_a}")
            a(f"s_add_u32 s{s_k}, s{s_k}, s{s_n}")
        elif G.rot == 6:
            a(f"s_mul_i32 s{s_k}, s{s_c}, 5")
            a(f"s_lshr_b32 s{s_k}, s{s_k}, 1")
            a(f"s_lshr_b32 s{s_a}, s{s_n}, 2")
            a(f"s_add_u32 s{s_k}, s{s_k}, s{s_a}")
            a(f"s_add_u32 s{s_k}, s{s_k}, s{s_n}")
        elif G.rot == 4:
            a(f"s_add_u32 s{s_k}, s{s_c}, s{s_n}")
            a(f"s_and_b32 s{s_k}, s{s_k}, 3")
            a(f"s_mul_i32 s{s_k}, s{s_k}, 5")
            a(f"s_lshr_b32 s{s_k}, s{s_k}, 1")
        else:
            a(f"s_mul_i32 s{s_k}, s{s_c}, 3")
            a(f"s_add_u32 s{s_k}, s{s_k}, s{s_n}")
            a(f"s_add_u32 s{s_k}, s{s_k}, s{s_a}")
        a(f"s_cmp_ge_u32 s{s_k}, 10")
        a(f"s_cselect_b32 s{s_a}, 10, 0")
        a(f"s_sub_u32 s{s_k}, s{s_k}, s{s_a}")
    else:
        a(f"s_mov_b32 s{s_k}, 0")
    a(f"s_and_b32 s{s_g}, s{s_wave}, 3")
    a(f"s_lshr_b32 s{s_kh}, s{s_wave}, 2")
    a(f"s_cbranch_scc0 {Lcons}")

    def common_ptrs():
        a("s_waitcnt lgkmcnt(0)")
        a(f"s_cmp_eq_u32 s{s_blk}, 0")
        a("s_cselect_b64 s[16:17], s[16:17], s[22:23]")
        a("s_cselect_b64 s[18:19], s[18:19], s[24:25]")
        a("s_cselect_b64 s[20:21], s[20:21], s[26:27]")
    def epoch_load():
        a(f"s_lshl_b32 s{s_a}, s{s_blk}, 7")
        a(f"s_add_u32 s{s_a}, s{s_a}, {FBASE+EOFF}")
        a(f"s_load_dword s{s_tag}, s[32:33], s{s_a}")
        make_srd(a, SF, 32, FBASE, EOFF + 0x1000)
    def epoch_fin():
        a("s_waitcnt lgkmcnt(0)")
        a(f"s_mul_i32 s{s_tag}, s{s_tag}, 0x9E3779B1")
        a(f"s_add_u32 s{s_tag}, s{s_tag}, 0x7F4A7C15")

    O = [0, 16, 32, 48]; S = [64, 80]; P = [96, 104]
    K1 = [112, 116, 120, 124]; K3 = [128, 130]; V = [132, 140, 148, 156]
    Q1 = [164, 168, 172, 176]; Q3 = [[180, 182, 184, 186], [188, 190, 192, 194]]
    KVD = 80; sa = [163, 164, 165, 166, 167]
    ka, k3a, va, gwo, gfv, gfd = 240, 241, 242, 243, 244, 245

    def att_addrs():
        a(f"s_lshl3_add_u32 s{s_a}, s{s_blk}, s{s_n}")
        a(f"s_lshl2_add_u32 s{s_a}, s{s_a}, s{s_g}")
        a(f"s_mul_i32 s{s_a}, s{s_a}, {HS}")
        make_srd(a, SKV, 32, f"s{s_a}", HS)
        a(f"v_lshlrev_b32 v{ka}, 4, v{lane}")
        a(f"v_lshlrev_b32 v{k3a}, 3, v{lane}")
        a(f"v_and_b32 v{T[0]}, 31, v{lane}")
        a(f"v_lshrrev_b32 v{T[1]}, 1, v{T[0]}")
        a(f"v_xor_b32 v{T[1]}, v{T[1]}, v{T[0]}")
        a(f"v_and_b32 v{T[1]}, 4, v{T[1]}")
        a(f"v_mul_u32_u24 v{T[1]}, 3, v{T[1]}")
        a(f"v_xor_b32 v{T[1]}, v{T[1]}, v{T[0]}")
        a(f"s_and_b32 s{s_a}, s{s_g}, 1")
        a(f"s_lshl_b32 s{s_a}, s{s_a}, 2")
        a(f"v_add_u32 v{T[1]}, s{s_a}, v{T[1]}")
        a(f"v_subrev_u32 v{T[2]}, 20, v{T[1]}")
        a(f"v_min_u32 v{T[1]}, v{T[1]}, v{T[2]}")
        a(f"v_lshrrev_b32 v{T[2]}, 5, v{lane}")
        a(f"v_mul_u32_u24 v{T[3]}, 320, v{T[2]}")
        a(f"v_lshl_add_u32 v{va}, v{T[1]}, 4, v{T[3]}")
        a(f"v_add_u32 v{va}, 2560, v{va}")
        a(f"s_and_b32 s{s_ko}, s{s_m}, 12")
        a(f"s_lshl1_add_u32 s{s_ko}, s{s_ko}, s{s_kh}")
        a(f"s_mul_i32 s{s_ko}, s{s_ko}, {PS}")
        a(f"s_mov_b32 s{s_vm}, 0x000fffff")
        a(f"s_mov_b32 s{s_vm+1}, 0x000fffff")
        a(f"s_lshl_b32 s{s_fg}, s{s_blk}, 9")
        a(f"s_add_u32 s{s_fg}, s{s_fg}, {GFOFF}")
        a(f"v_and_b32 v{gfv}, 3, v{lane}")
        a(f"v_lshlrev_b32 v{gfv}, 7, v{gfv}")
        a(f"s_min_u32 s{s_a}, s{s_wave}, 4")
        a(f"s_lshl_b32 s{s_b}, s{s_a}, 6")
        a(f"v_add_u32 v{T[0]}, s{s_b}, v{lane}")
        img_pos(a, T[0], T[1], T[2])
        a(f"s_movk_i32 s{s_c}, 1280")
        grp_src(a, gwo, T[1], T[2], s_c)
    def wo_scalars():
        make_srd(a, SW, 20, None, 640 * 1280)
        a(f"s_cmp_gt_u32 s{s_wave}, 4")
        a(f"s_cselect_b32 s{s_c}, {24*5120}, 0")
        a(f"s_lshl_b32 s{s_m0w}, s{s_wave}, 10")
        if G.wod: a(f"s_sub_u32 s{s_m0w}, s{s_m0w}, {G.wod*5120}")
        a(f"s_add_u32 s{s_m0w}, s{s_m0w}, s{s_c}")
        a(f"s_mul_i32 s{s_wo}, s{s_n}, 160")
        a(f"s_lshl3_add_u32 s{s_wo}, s{s_c}, s{s_wo}")
        if G.wod: a(f"s_sub_u32 s{s_wo}, s{s_wo}, {G.wod*32*1280}")
    def ld_k1(b): return f"buffer_load_dwordx4 {v(K1[b],4)}, v{ka}, {srd(SKV)}, s{s_ko} offen offset:{1024*(b&1)} sc1"
    def ld_k3(p): return f"buffer_load_dwordx2 {v(K3[p],2)}, v{k3a}, {srd(SKV)}, s{s_ko} offen offset:2048 sc1"
    def ld_v(b, m=s_vm):
        return (f"s_mov_b64 exec, s[{m}:{m+1}]\n"
                f"buffer_load_dwordx4 {v(V[b],4)}, v{va}, {srd(SKV)}, s{s_ko} offen offset:{1280*(b&1)} sc1\n"
                f"buffer_load_dwordx4 {v(V[b]+4,4)}, v{va}, {srd(SKV)}, s{s_ko} offen offset:{1280*(b&1)+640} sc1\n"
                f"s_mov_b64 exec, -1")
    def adv_pair():
        return [f"s_add_u32 s{s_ko}, s{s_ko}, {2*PS}", f"s_cmp_ge_u32 s{s_ko}, {HS}",
                f"s_cselect_b32 s{s_c}, {HS}, 0", f"s_sub_u32 s{s_ko}, s{s_ko}, s{s_c}"]
    def pad_value():
        a(f"v_and_b32 v{S[0]}, 31, v{lane}")
        a(f"v_cmp_eq_u32 vcc, 20, v{S[0]}")
        a(f"v_mov_b32 v{S[0]+1}, 0x3f803f80")
        a(f"v_mov_b64 {v(P[1],2)}, 0")
        a(f"v_cndmask_b32 v{S[0]}, 0, v{S[0]+1}, vcc")
        a(f"v_mov_b32 v{S[0]+1}, v{S[0]}")
    def pad(b):
        for r in range(0, 8, 2): a(f"v_mov_b64 {v(V[b]+r,2)}, {v(S[0],2)}")
    def zero_acc():
        for q in range(4): a(f"v_mfma_f32_32x32x8_bf16 {v(O[q],16)}, {v(P[1],2)}, {v(P[1],2)}, 0")
        for r in range(2, 8, 2): a(f"v_mov_b64 {v(P[1]+r,2)}, 0")
    own, oth, oa1, oa2, pf, tw = 253, 254, 225, 226, 227, 231
    wa4 = [220, 221, 222, 223, 224]; oc = [232, 233, 234, 235, 236]; ob = [216, 217, 218, 219, 228]; rb = [229, 230, 237, 238, 239]
    qa1, qa3 = 247, 248
    def q_prep():
        a(f"s_mul_i32 s{s_b}, s{s_g}, 5120")
        a(f"s_add_u32 s{s_b}, s{s_b}, {QAREA}")
        a(f"v_add_u32 v{qa1}, s{s_b}, v{ka}")
        a(f"v_and_b32 v{qa3}, 31, v{lane}")
        a(f"v_lshl_add_u32 v{qa3}, v{qa3}, 3, s{s_b}")
        for q in range(4):
            a(f"v_mov_b64 {v(Q3[0][q],2)}, 0")
            a(f"v_mov_b64 {v(Q3[1][q],2)}, 0")
    def q_reads(kh):
        qt = [r if kh else r ^ 2 for r in range(4)]
        a(f"ds_read_b128 {v(Q1[0],4)}, v{qa1} offset:{1280*qt[0]}")
        for h in range(2):
            a(f"s_mov_b32 exec_lo, {-1 if h == 0 else 0}")
            a(f"s_mov_b32 exec_hi, {0 if h == 0 else -1}")
            for q in range(4):
                a(f"ds_read_b64 {v(Q3[h][q],2)}, v{qa3} offset:{1280*qt[q]+1024}")
        a("s_mov_b64 exec, -1")
        for q in range(1, 4):
            a(f"ds_read_b128 {v(Q1[q],4)}, v{qa1} offset:{1280*qt[q]}")
    def o_base(dst, rows_sreg, nbytes):
        a(f"s_add_u32 s{dst}, s32, {OBASE}")
        a(f"s_addc_u32 s{dst+1}, s33, 0")
        if G.oin:
            a(f"s_cmp_eq_u32 s{s_loc}, 0")
            a(f"s_cselect_b64 s[{dst}:{dst+1}], s[{dst}:{dst+1}], s[28:29]")
        a(f"s_mul_i32 s{s_a}, s{rows_sreg}, 2560")
        a(f"s_mul_i32 s{s_b}, s{s_blk}, 1280")
        a(f"s_add_u32 s{s_a}, s{s_a}, s{s_b}")
        make_srd(a, dst, dst, f"s{s_a}", nbytes)
    first = [("K1", 0), ("K3", 0), ("V", 0), ("V", 0), ("K1", 1), ("V", 1), ("V", 1), ("K1", 2), ("V", 2), ("V", 2), ("K1", 3), ("K3", 1)]
    if G.v3: first += [("V", 3)] * 2
    def kv_first(with_pad):
        a(ld_k1(0)); a(ld_k3(0))
        if with_pad: pad_value(); pad(0)
        a(ld_v(0)); a(ld_k1(1))
        if with_pad: pad(1)
        a(ld_v(1))
        for x in adv_pair(): a(x)
        a(ld_k1(2))
        if with_pad: pad(2)
        a(ld_v(2)); a(ld_k1(3)); a(ld_k3(1))
        if with_pad: pad(3)
        if G.v3:
            a(ld_v(3))
            a("s_mov_b64 s[22:23], 0")

    XF = 0; ACC2 = 160; W2 = [200, 220]
    gx = [160, 161, 162, 163]; gw = [164, 165, 166, 167, 168]; gq = [251, 252, 253, 254, 245]
    wa2 = [246, 247, 248, 249, 250]; xa2 = [210, 211]
    setT(200)
    if G.fast0: a("s_setprio 3")
    a(f"v_lshrrev_b32 v{T[0]}, 4, v{lane}")
    a(f"v_xor_b32 v{T[0]}, v{T[0]}, v{lane}")
    a(f"v_and_b32 v{T[0]}, 7, v{T[0]}")
    a(f"v_lshrrev_b32 v{T[1]}, 3, v{lane}")
    a(f"v_mul_u32_u24 v{T[1]}, 1280, v{T[1]}")
    a(f"v_lshl_add_u32 v{gx[0]}, v{T[0]}, 4, v{T[1]}")
    a(f"v_xor_b32 v{gx[1]}, 64, v{gx[0]}")
    a(f"v_add_u32 v{gx[1]}, 9216, v{gx[1]}")
    a(f"v_add_u32 v{gx[2]}, 18432, v{gx[0]}")
    a(f"v_add_u32 v{gx[3]}, 18432, v{gx[1]}")
    rows = [212 + 2 * i for i in range(5)]
    def w_setup():
        a(f"s_movk_i32 s{s_c}, 3277")
        a(f"s_movk_i32 s{s_b}, 3520")
        a(f"v_lshlrev_b32 v{T[0]}, 4, v{lane}")
        a(f"v_mul_u32_u24 v{T[1]}, s{s_c}, v{lane}")
        for i in range(5):
            if i: a(f"v_add_u32 v{T[1]}, {64*3277}, v{T[1]}")
            a(f"v_lshrrev_b32 v{T[2]}, 16, v{T[1]}")
            a(f"v_mad_u32_u24 v{gw[i]}, v{T[2]}, s{s_b}, v{T[0]}")
            if i >= 2:
                a(f"v_subrev_u32 v{T[3]}, {2*3277}, v{T[1]}")
                a(f"v_lshrrev_b32 v{T[3]}, 16, v{T[3]}")
                a(f"v_sub_u32 v{T[3]}, v{T[2]}, v{T[3]}")
                a(f"v_mad_u32_u24 v{T[3]}, v{T[3]}, 10, -1")
                if i == 2:
                    a(f"v_lshrrev_b32 v{T[2]}, 3, v{T[2]}")
                    a(f"v_mul_i32_i24 v{T[3]}, v{T[3]}, v{T[2]}")
                a(f"v_lshl_add_u32 v{gw[i]}, v{T[3]}, 5, v{gw[i]}")
        a(f"v_add_u32 v{gw[4]}, 4096, v{gw[4]}")
    if not G.fast0: w_setup()
    a(f"s_lshl_b32 s{s_m0x}, s{s_g}, 12")
    a(f"s_mul_i32 s{s_m0w}, s{s_g}, 5120")
    a(f"s_add_u32 s{s_m0w}, s{s_m0w}, 16384")
    a(f"s_lshl2_add_u32 s{s_a}, s{s_m}, s{s_g}")
    a(f"s_mul_i32 s{s_a}, s{s_a}, {32*1280}")
    a(f"s_mul_i32 s{s_fg}, s{s_n}, 320")
    a(f"s_mul_i32 s{s_b}, s{s_g}, {16*3840}")
    a(f"s_add_u32 s{s_fg}, s{s_fg}, s{s_b}")
    a(f"s_add_u32 s{s_loc}, s{s_fg}, 1280")
    a(f"s_mov_b32 s{s_vo}, s{s_k}")
    if G.kst:
        a("s_getreg_b32 s98, hwreg(HW_REG_SHADER_CYCLES)") if False else None
        a("s_memrealtime s[92:93]")
    common_ptrs()
    if G.kst: a("s_mov_b32 s93, s92")
    make_srd(a, SX, 16, f"s{s_a}", 32 * 1280)
    make_srd(a, SW, 18, None, 640 * 3840)
    lseq = []
    def issue_stage(i):
        sl = (i & 3) * SLOT
        a(f"s_add_u32 m0, s{s_m0x}, {sl}")
        a(f"s_lshl_b32 s{s_xo}, s{s_k}, 7")
        for ii in range(4):
            a(f"buffer_load_dwordx4 v{gx[ii]}, {srd(SX)}, s{s_xo} offen offset:{1024*ii} lds")
        if i == 0 and G.fast0: w_setup()
        a(f"s_mul_i32 s{s_wo}, s{s_k}, {64*3840}")
        a(f"s_add_u32 m0, s{s_m0w}, {sl}")
        a(f"s_add_u32 s{s_wo}, s{s_wo}, s{s_loc}")
        for ii in range(4):
            a(f"buffer_load_dwordx4 v{gw[ii]}, {srd(SW)}, s{s_wo} offen offset:{1024*ii} lds")
        a(f"s_add_u32 m0, s{s_m0w}, {sl+4096}")
        a(f"s_add_u32 s{s_k}, s{s_k}, 1")
        a(f"buffer_load_dwordx4 v{gw[4]}, {srd(SW)}, s{s_wo} offen lds")
        if G.rot:
            a(f"s_cmp_eq_u32 s{s_k}, 10")
            a(f"s_cselect_b32 s{s_k}, 0, s{s_k}")
        lseq.extend([("st", i)] * 9)
    gbase = [2 * SLOT + g * 5120 for g in range(7)] + [SPARE] + [3 * SLOT + g * 5120 for g in range(7)] + [SPARE + 5120] + [g * 5120 for g in range(4)]
    def round_ins(R):
        o = []
        x = f"s_add_u32 s{s_wo}, s{s_st}, {R*4*32*3840}"
        if G.rot:
            x += f"\ns_cmp_ge_u32 s{s_wo}, {640*3840}\ns_cselect_b32 s{s_b}, {640*3840}, 0\ns_sub_u32 s{s_wo}, s{s_wo}, s{s_b}"
        gb = gbase[4 * R:4 * R + 4]
        assert gb[1] == gb[0] + 5120 and gb[2] == gb[0] + 10240
        x += f"\ns_add_u32 s{s_a}, s{s_m0w}, {(gb[0]-16384) & 0xffffffff}"
        if gb[3] != gb[0] + 15360:
            x += f"\ns_cmp_eq_u32 s{s_g}, 3\ns_cselect_b32 s{s_a}, {gb[3]}, s{s_a}"
        x += f"\ns_mov_b32 m0, s{s_a}\ns_add_u32 s{s_a}, s{s_a}, 4096"
        o.append(x)
        for ii in range(4):
            o.append(f"buffer_load_dwordx4 v{gq[ii]}, {srd(SW)}, s{s_wo} offen offset:{1024*ii} lds")
        o.append(f"s_mov_b32 m0, s{s_a}\ns_nop 0\nbuffer_load_dwordx4 v{gq[4]}, {srd(SW)}, s{s_wo} offen lds")
        lseq.extend([("R", R)] * 5)
        return o
    def issue_item(i):
        if i < 10: issue_stage(i)
        elif i < 15:
            for x in round_ins(i - 10): a(x)
    def lwait(key):
        return len(lseq) - 1 - max(i for i, x in enumerate(lseq) if x == key)
    stamp(a, 11)
    issue_stage(0)
    stamp(a, 12)
    epoch_load()
    a(f"s_lshl_b32 s{s_b}, s{s_g}, 12")
    x_addrs(a, xa2, s_b)
    a(f"v_and_b32 v{T[0]}, 15, v{lane}")
    a(f"v_lshlrev_b32 v{T[0]}, 2, v{T[0]}")
    a(f"v_add_u32 v{T[0]}, {RFLAG}, v{T[0]}")
    a(f"v_mov_b32 v{T[1]}, 0")
    a(f"ds_write_b32 v{T[0]}, v{T[1]}")
    for i in range(1, G.pro): issue_stage(i)
    stamp(a, 13)
    if G.fast0: a("s_setprio 0")
    epoch_fin()
    a(f"s_waitcnt vmcnt({lwait(('st',0))})")
    a("s_barrier")
    stamp(a, 1)
    for i in range(G.pro, G.la): issue_stage(i)
    xoff = 0
    for st in range(10):
        sl = (st & 3) * SLOT
        want = 0 if sl < 2 * SLOT else 2 * SLOT
        if want != xoff:
            for r in xa2:
                a(f"v_add_u32 v{r}, {want-xoff}, v{r}" if want > xoff else f"v_subrev_u32 v{r}, {xoff-want}, v{r}")
            xoff = want
        for ks in range(2):
            for ii in range(2):
                a(f"ds_read_b128 {v(XF+16*st+8*ks+4*ii,4)}, v{xa2[ks]} offset:{sl-xoff+2048*ii}")
        if st == 0:
            a(f"s_movk_i32 s{s_c}, 3840")
            for i in range(5):
                if i: a(f"v_add_u32 v{T[0]}, {64*i}, v{lane}")
                img_pos(a, T[0] if i else lane, rows[i], rows[i] + 1)
                grp_src(a, gq[i], rows[i], rows[i] + 1, s_c)
                if i & 3: a(f"v_subrev_u32 v{gq[i]}, {1024*i}, v{gq[i]}")
            a(f"s_lshl1_add_u32 s{s_st}, s{s_vo}, s{s_g}")
            a(f"s_mul_i32 s{s_st}, s{s_st}, {32*3840}")
            a(f"s_mul_i32 s{s_a}, s{s_n}, 160")
            a(f"s_add_u32 s{s_st}, s{s_st}, s{s_a}")
        if st == 1: tr_addrs(a, wa2, True, True, None, 0)
        if st == 2:
            att_addrs()
        if st == 4 and G.warm:
            a("s_mov_b64 exec, 0")
            for c in range(3):
                a(f"s_cmp_eq_u32 s{s_g}, {c}")
                a(f"s_cbranch_scc1 Lpad_{c}_0")
            a("s_branch Lpad_3_0")
            a(".PADRET")
            a("s_mov_b64 exec, -1")
        key = ("st", st + 1) if st < 9 else ("R", 0)
        def sstamp():
            a("s_memrealtime s[96:97]"); a("s_waitcnt lgkmcnt(0)"); a(f"s_mov_b32 s{86+st}, s96")
        if G.sst == 3: sstamp()
        a(f"s_waitcnt vmcnt({lwait(key)}) lgkmcnt(0)")
        if G.sst == 1: sstamp()
        a("s_barrier")
        if G.sst == 2: sstamp()
        if st < 9: issue_item(st + G.la)
    stamp(a, 2)
    pre = {}
    nxt = G.la - 1
    if G.p2prio: a(f"s_setprio {G.p2prio}")
    ins_at = {}
    for R in range(nxt, 5):
        g0 = G.dst * (R - nxt) + G.dsh
        if G.dst >= 3:
            ins_at[g0] = (R, 0, 3); ins_at[g0 + 1] = (R, 3, 5); ins_at[g0 + 2] = (R, 5, 6)
        else:
            ins_at[g0] = (R, 0, 4); ins_at[g0 + 1] = (R, 4, 6)
    cache = {}
    fw, fr, fo, fd = 4, 5, 6, 7
    spins = []
    for g in range(20):
        pre[("x", g)] = []
        R1 = g // 4 + 1
        if g == 1:
            pre[("h", g)] = [f"s_lshl2_add_u32 s{s_c}, s{s_g}, {RFLAG}", f"v_mov_b32 v{fw}, s{s_c}", f"v_and_b32 v{fr}, 3, v{lane}",
                             f"v_lshlrev_b32 v{fr}, 2, v{fr}", f"v_add_u32 v{fr}, {RFLAG}, v{fr}", f"v_mov_b32 v{fo}, 1"]
        if g % 4 == 1 and g < 16:
            assert lseq.count(("R", R1)) == 5
            pre[("x", g)] += [f"s_waitcnt vmcnt({lwait(('R', R1))})\nds_write_b32 v{fw}, v{fo} offset:{16*(R1-1)}"]
        if g % 4 == 2 and g < 16:
            pre[("x", g)] += [f"ds_read_b32 v{fd}, v{fr} offset:{16*(R1-1)}"]
        if g % 4 == 3 and g < 16:
            Ls, Lb = a.label("rs"), a.label("rb")
            spins.append((Ls, Lb, R1))
            pre[("h", g)] = ["s_waitcnt lgkmcnt(8)", f"v_cmp_ne_u32 vcc, 1, v{fd}", f"s_cbranch_vccnz {Ls}", f"{Lb}:"]
        if g in ins_at:
            R, lo, hi = ins_at[g]
            if R not in cache:
                cache[R] = round_ins(R)
                del lseq[-5:]
            pre[("x", g)] += cache[R][lo:hi]
            lseq.extend([("R", R)] * sum(x.count("buffer_load") for x in cache[R][lo:hi]))
    qa, qb, md = 0, 1, 2
    half = [f"v_lshrrev_b32 v{qa}, 4, v{lane}", f"v_mul_u32_u24 v{qa}, 5120, v{qa}", f"s_mul_i32 s{s_b}, s{s_g}, 1280",
            f"s_add_u32 s{s_b}, s{s_b}, {QAREA}", f"v_add_u32 v{qa}, s{s_b}, v{qa}"]
    pre[("x", 16)] = half
    pre[("x", 17)] = [f"v_and_b32 v{md}, 15, v{lane}", f"v_lshl_add_u32 v{qb}, v{md}, 3, v{qa}", f"v_lshl_add_u32 v{qa}, v{md}, 4, v{qa}",
                      f"s_mov_b32 s{s_a}, {QSCALE:#x}\ns_mov_b32 s{s_b}, {QSCALE:#x}"]
    if G.pwb is not None:
        Lwb = a.label("pwb")
        pre[("x", G.pwb)].append(f"s_lshr_b32 s{s_c}, s2, 3\ns_or_b32 s{s_c}, s{s_c}, s{s_g}\ns_cbranch_scc1 {Lwb}\nbuffer_wbl2 sc1\n{Lwb}:")
    small_gemm(a, XF, ACC2, W2, wa2, gbase, pre)
    stamp(a, 3)
    a("s_nop 4")
    assert s_a % 2 == 0 and s_b == s_a + 1
    for ii in range(2):
        r = ACC2 + 20 * ii
        pad_hop(a, 0)
        for e in range(10):
            a(f"v_pk_mul_f32 {v(r+2*e,2)}, {v(r+2*e,2)}, s[{s_a}:{s_b}]")
        for e in range(10):
            a(f"v_cvt_pk_bf16_f32 v{r+e}, v{r+2*e}, v{r+2*e+1}")
        a(f"ds_write_b128 v{qa}, {v(r,4)} offset:{256*ii}")
        a(f"ds_write_b128 v{qa}, {v(r+4,4)} offset:{256*ii+512}")
        a(f"ds_write_b64 v{qb}, {v(r+8,2)} offset:{128*ii+1024}")
    a("s_waitcnt lgkmcnt(0)")
    a(f"v_mov_b32 v{gfd}, {MODE_LDS}")
    a("s_barrier")
    a(f"ds_read_b32 v{gfd}, v{gfd}")
    a("s_setprio 3" if G.ip else "s_setprio 0")
    stamp(a, 4)
    pad_hop(a, 1)
    kv_first(True)
    pad_hop(a, 1)
    q_prep()
    q_reads(1)
    zero_acc()
    wo_scalars()
    make_srd(a, SO, 32, None, 0)
    a("s_waitcnt lgkmcnt(12)")
    a(f"v_readfirstlane_b32 s{s_loc}, v{gfd}")
    a("s_nop 1")
    a(f"s_and_b32 s{s_loc}, s{s_loc}, 1")
    a(f"s_lshl_b32 s{s_st}, s{s_loc}, 2")
    if G.el4:
        a(f"s_lshr_b32 s{s_a}, s2, 3")
        a(f"s_or_b32 s{s_a}, s{s_a}, s{s_g}")
        a(f"s_cselect_b32 s{s_a}, 0, s{s_loc}")
        a(f"s_or_b32 s{s_st}, s{s_st}, s{s_a}")
        a(f"s_and_b32 s{s_vo}, s2, 7")
        a(f"s_lshl_b32 s{s_vo}, s{s_vo}, 7")
        a(f"s_add_u32 s{s_vo}, s{s_vo}, {GFOFF}")

    a(f"{Latt}:")
    setT(247)
    a(f"s_mov_b32 s{s_it}, 0")

    def qk1(sb, q, t): return f"v_mfma_f32_32x32x16_bf16 {v(S[sb],16)}, {v(K1[t],4)}, {v(Q1[q],4)}, 0"
    def qk2(sb, q, t): return f"v_mfma_f32_32x32x8_bf16 {v(S[sb],16)}, {v(K3[t>>1],2)}, {v(Q3[t&1][q],2)}, {v(S[sb],16)}"
    def pv(pb, q, t, h): return f"v_mfma_f32_32x32x16_bf16 {v(O[q],16)}, {v(V[t]+4*h,4)}, {v(P[pb]+4*h,4)}, {v(O[q],16)}"
    def ex(q, r): return f"v_exp_f32 v{S[q]+r}, v{S[q]+r}"
    def cv(q, r): return f"v_cvt_pk_bf16_f32 v{P[q]+r//2}, v{S[q]+r}, v{S[q]+r+1}"
    wo_dma = [f"s_min_u32 s{s_c}, s{s_m0w}, 0x20000", f"s_add_u32 m0, s{s_c}, {WOBASE}", f"s_add_u32 s{s_m0w}, s{s_m0w}, 5120",
              f"buffer_load_dwordx4 v{gwo}, {srd(SW)}, s{s_wo} offen lds", f"s_add_u32 s{s_wo}, s{s_wo}, {32*1280}"]
    plan = {}
    for tt in range(4):
        pb = (tt - 1) % 4
        plan[(tt, 1)] = ([ld_v(pb)], [("V", pb)] * 2)
        if G.v3 and pb == 3: plan[(tt, 1)] = ([ld_v(pb, 22), f"s_mov_b64 s[22:23], s[{s_vm}:{s_vm+1}]"], [("V", pb)] * 2)
        if tt & 1:
            plan[(tt, 3)] = ([ld_k1(tt), ld_k3(tt >> 1)], [("K1", tt), ("K3", tt >> 1)])
        else:
            plan[(tt, 3)] = ([ld_k1(tt)], [("K1", tt)])
            plan[(tt, 2)] = (adv_pair(), [])
        if tt > 0 and not G.nowo:
            plan[(tt, 0)] = (wo_dma, [("WO",)])
    order = [(tt, q) for tt in range(4) for q in range(4)]
    names = []; pos = {}
    for rep in range(2):
        for key in order:
            if rep == 1: pos[key] = len(names)
            names += plan.get(key, ([], []))[1]
    def need(tt):
        nt = (tt + 1) % 4
        return [("K1", nt), ("V", nt), ("K3", nt >> 1)]
    n0 = list(first); waits = {}
    for key in order:
        if key[1] == 3:
            p = pos[key]
            w1 = p - 1 - max(max(i for i in range(p) if names[i] == k) for k in need(key[0]))
            w2 = len(n0) - 1 - max(max(i for i in range(len(n0)) if n0[i] == k) for k in need(key[0]))
            waits[key[0]] = min(w1, w2)
        n0 += plan.get(key, ([], []))[1]
    a(f"s_waitcnt vmcnt({len(first)-4}) lgkmcnt(0)")
    stamp(a, 5)
    a(qk1(0, 0, 0)); a(qk2(0, 0, 0))
    a("s_nop 0" if G.ip else "s_setprio 3")
    a("s_nop 7")
    a("s_nop 3")
    L = a.label("al")
    a(".p2align 6")
    a(f"{L}:")
    hooks = {G.hst: (0, a.label("hA"), a.label("hAb")), G.hchk: (0, a.label("hK"), a.label("hKb")), G.hpub: (0, a.label("hP"), a.label("hPb")),
             G.hsam: (3, a.label("hB"), a.label("hBb")), (0, 2): (4, a.label("hC"), a.label("hCb")),
             G.hl: (None, a.label("hL"), a.label("hLb"))}
    if G.defer:
        assert (2, 1) not in hooks
        hooks[(2, 1)] = (5, a.label("hD"), a.label("hDb"))
    LhW, LhWb = a.label("hW"), a.label("hWb")
    F = [O[2], O[3]]; Rv = [O[0], O[1]]
    cum = [sum(G.lens[:i]) for i in range(4)]
    step = 0
    for tt in range(4):
        for q in range(4):
            c = q & 1; o = 1 - c
            nq, nt = (q + 1, tt) if q < 3 else (0, (tt + 1) % 4)
            pq, pt = (q - 1, tt) if q > 0 else (3, (tt - 1) % 4)
            extra = list(plan.get((tt, q), ([], []))[0])
            if q & 1: pad_hop(a, 1)
            if (tt, q) in hooks:
                bit, lo, lb = hooks[(tt, q)]
                a(f"s_bitcmp1_b32 s{s_st}, {bit}" if bit is not None else f"s_cmp_eq_u32 s{s_it}, {G.iters-1}")
                a(f"s_cbranch_scc1 {lo}")
                a(f"{lb}:")
            if (tt, q) == (3, 3) and G.early:
                a(f"s_cbranch_scc0 {LhW}")
                a(f"{LhWb}:")
            if q == 3: a(f"s_waitcnt vmcnt({waits[tt]})")
            if (tt, q) == (3, 1): extra += [f"s_lshl_b32 s{s_st}, s{s_st}, 1"]
            if (tt, q) == (3, 2): extra += [f"s_add_u32 s{s_it}, s{s_it}, 1", f"s_cmp_lt_u32 s{s_it}, {G.iters}"]
            ms = [qk1(o, nq, nt), qk2(o, nq, nt), pv(o, pq, pt, 0), pv(o, pq, pt, 1)]
            for j in range(4):
                a(ms[j])
                if j: a(cv(c, 4 * j - 2))
                for e in range(3):
                    a(ex(c, 4 * j + e))
                    if extra and (G.xpos == 0 or (G.xpos == 1 and e == 1) or (G.xpos == 2 and e != 0) or (G.xpos in (4, 5) and e == 2) or (j == 3 and G.xpos < 4)): a(extra.pop(0))
                if j < 3:
                    a(cv(c, 4 * j))
                    if extra and G.xpos in (4, 6): a(extra.pop(0))
                    a(ex(c, 4 * j + 3))
                    if extra and G.xpos in (5, 6, 7): a(extra.pop(0))
                    if extra and G.xpos == 7: a(extra.pop(0))
                else:
                    a(ex(c, 15)); a(cv(c, 12))
            assert not extra
            n = (step + 1) % sum(G.lens)
            if n in cum: a(f"s_setprio {3 - cum.index(n)}")
            a(cv(c, 14))
            step += 1
    if G.itst:
        a("s_memtime s[96:97]")
        for r in range(86, 95): a(f"s_mov_b32 s{r}, s{r+1}")
        a("s_waitcnt lgkmcnt(0)")
        a("s_mov_b32 s95, s96")
    a(f"s_cbranch_scc1 {L}")
    a("s_nop 0")
    a(pv(1, 3, 3, 0)); a(pv(1, 3, 3, 1))
    a("s_setprio 0")
    Lslow = a.label("slow"); Lst = a.label("store")
    def send():
        for i in range(2):
            for gq_ in range(3):
                a(f"ds_write_b128 v{own}, {v(O[i]+4*gq_,4)} offset:{(i*3+gq_)*1024}")
    stamp(a, 6)
    if not G.early: send()
    a("s_waitcnt vmcnt(0) lgkmcnt(0)")
    a("s_barrier")
    for i in range(2):
        for gq_ in (2, 0, 1):
            a(f"ds_read_b128 {v(Rv[i]+4*gq_,4)}, v{oth} offset:{(i*3+gq_)*1024}")
    for i in range(2):
        a(f"s_waitcnt lgkmcnt({3-3*i})")
        for r in (8, 10, 0, 2, 4, 6):
            a(f"v_pk_add_f32 {v(F[i]+r,2)}, {v(F[i]+r,2)}, {v(Rv[i]+r,2)}")
    a(f"s_mov_b32 s{s_c}, 0")
    a(f"{Lst}:")
    for i in range(2):
        a(f"v_mov_b32 v{F[i]+12}, v{F[i]+8}")
        a(f"v_mov_b32 v{F[i]+13}, v{F[i]+8}")
    a(f"s_mov_b32 s{s_b}, {32*2560}")
    a(f"s_cmp_eq_u32 s{s_loc}, 0")
    for i in range(2):
        a(f"v_permlane32_swap_b32 v{F[i]+13}, v{F[i]+12}")
    a("s_nop 0")
    a(f"v_rcp_f32 v{F[0]+14}, v{F[0]+12}")
    a(f"v_rcp_f32 v{F[1]+14}, v{F[1]+12}")
    Log = a.label("og"); Loj = a.label("oj"); Lo2 = a.label("o2"); Lo3 = a.label("o3"); Lok = a.label("ok")
    a(f"s_cbranch_scc1 {Log}")
    for fl in (G.olst, "sc1"):
        for q in range(2):
            for r in range(0, 12, 2):
                a(f"v_pk_mul_f32 {v(F[q]+r,2)}, {v(F[q]+r,2)}, {v(F[q]+14,2)} op_sel_hi:[1,0]")
            for e in range(6):
                a(f"v_cvt_pk_bf16_f32 v{Rv[q]+e}, v{F[q]+2*e}, v{F[q]+2*e+1}")
            so = "0" if q == 0 else f"s{s_b}"
            a(f"buffer_store_dwordx4 {v(Rv[q],4)}, v{oa1}, {srd(SO)}, {so} offen {fl}")
            a(f"buffer_store_dwordx2 {v(Rv[q]+4,2)}, v{oa2}, {srd(SO)}, {so} offen {fl}")
        if fl != "sc1":
            a(f"s_branch {Loj}")
            a(f"{Log}:")
    a(f"{Loj}:")
    a(f"s_cmp_lg_u32 s{s_c}, 0")
    a(f"s_cbranch_scc1 {Lok}")
    a(f"s_mov_b32 s{s_a}, 0x2b800000")
    a(f"s_mov_b32 s{s_b}, 0x5d800000")
    for r in range(0, 12, 2):
        for q in range(2):
            if r == 0: a(f"v_pk_mul_f32 {v(F[q]+14,2)}, {v(F[q],2)}, 0 op_sel_hi:[1,0]")
            else: a(f"v_pk_fma_f32 {v(F[q]+14,2)}, {v(F[q]+r,2)}, 0, {v(F[q]+14,2)} op_sel_hi:[1,0,1]")
    a(f"v_min_f32 v{T[0]}, v{F[0]+12}, v{F[1]+12}")
    a(f"v_max_f32 v{T[1]}, v{F[0]+12}, v{F[1]+12}")
    a(f"v_cmp_o_f32 vcc, v{F[0]+14}, v{F[0]+15}")
    a(f"v_cmp_o_f32 s[16:17], v{F[1]+14}, v{F[1]+15}")
    a(f"v_cmp_le_f32 s[18:19], s{s_a}, v{T[0]}")
    a(f"v_cmp_ge_f32 s[22:23], s{s_b}, v{T[1]}")
    a(f"s_and_b64 vcc, vcc, s[16:17]")
    a(f"s_and_b64 s[18:19], s[18:19], s[22:23]")
    a(f"s_and_b64 vcc, vcc, s[18:19]")
    a("s_cmp_eq_u64 vcc, -1")
    a(f"s_cbranch_scc0 {Lslow}")
    a(f"{Lok}:")
    NW4 = 6; NX = 7
    W4 = [56 + 20 * i for i in range(NW4)]; A4 = 176
    Lfin = a.label("fin"); Lsk = a.label("sk")
    cur = [0]
    def rd4(h, j, t):
        o = ""
        if h == 12 and j == 0 and t == 0:
            o = "".join(f"v_add_u32 v{wa4[k]}, {12*5120}, v{wa4[k]}\n" for k in range(5)); cur[0] = 12 * 5120
        return o + f"ds_read_b64_tr_b16 {v(W4[h%NW4]+4*j+2*t,2)}, v{wa4[j]} offset:{5120*h-cur[0]+1280*t}"
    a(f"s_cmp_lg_u32 s{s_kh}, 0")
    a(f"s_cbranch_scc1 {Lsk}")
    for h in range(1, 4):
        for j in range(5):
            a(rd4(h, j, 0)); a(rd4(h, j, 1))
    a(f"{Lsk}:")
    a(f"s_cmp_eq_u32 s{s_loc}, 0")
    a("s_waitcnt vmcnt(0)")
    a(f"s_cbranch_scc1 {Lo2}")
    flag_store(a, s_vo, True)
    a(f"s_branch {Lo3}")
    a(f"{Lo2}:")
    flag_store(a, s_vo, False)
    a(f"{Lo3}:")
    stamp(a, 7); stamp(a, 8); stamp(a, 9)
    a(f"s_cmp_lg_u32 s{s_kh}, 0")
    a(f"s_cbranch_scc1 {Lfin}")
    for h in (0, 4, 5):
        for j in range(5):
            a(rd4(h, j, 0)); a(rd4(h, j, 1))
    a(f"s_lshl2_add_u32 s{s_a}, s{s_m}, s{s_g}")
    a(f"s_mul_i32 s{s_a}, s{s_a}, {32*2560}")
    a(f"s_mul_i32 s{s_b}, s{s_blk}, 1280")
    a(f"s_add_u32 s{s_a}, s{s_a}, s{s_b}")
    a(f"s_mul_i32 s{s_b}, s{s_n}, 160")
    a(f"s_add_u32 s{s_a}, s{s_a}, s{s_b}")
    make_srd(a, SKV, 28, f"s{s_a}", 31 * 2560 + 160)
    poll(a, pf, f"s{s_xo}", T[0])
    stamp(a, 8)
    assert G.oa < NX
    def xf(g, ii): return 8 * (g % NX) + 4 * ii
    def ld_o(g, ii):
        o = f"s_mov_b32 s{s_a}, {10240*(g//5)}\ns_mov_b32 s{s_b}, {10240*(g//5)+16*2560}\n" if (g % 5 == 0 and ii == 0) else ""
        return o + f"buffer_load_dwordx4 {v(xf(g,ii),4)}, v{ob[g%5]}, {srd(SX)}, s{[s_a, s_b][ii]} offen sc1"
    for g in range(G.oa):
        a(ld_o(g, 0)); a(ld_o(g, 1))
    allr = [(h, j, t) for h in range(NW4, 20) for j in range(5) for t in range(2)]
    issued = 0
    NL = G.lastm
    def mf4(g, j, ii):
        d = v(A4 + 4 * (5 * ii + j), 4)
        return f"v_mfma_f32_16x16x32_bf16 {d}, {v(W4[g%NW4]+4*j,4)}, {v(xf(g,ii),4)}, {d if g else 0}"
    def conv(j, ii):
        r = A4 + 4 * (5 * ii + j)
        return [f"v_cvt_pk_bf16_f32 v{r}, v{r}, v{r+1}", f"v_cvt_pk_bf16_f32 v{r+1}, v{r+2}, v{r+3}", f"ds_write_b64 v{tw}, {v(r,2)} offset:{8*j+16*176*ii}"]
    for g in range(20):
        lg = 0 if g == 0 else (14 if g < NW4 else issued - 10 * (g - NW4 + 1))
        assert lg >= 0
        vm = 2 * (min(20, g + G.oa) - g - 1)
        if G.oin and g == 18: vm = 0
        if G.oin and g == 19: vm = 63
        a(f"s_waitcnt vmcnt({vm}) lgkmcnt({min(lg, 14)})")
        if G.oin and g == 18:
            a(f"s_lshl2_add_u32 s{s_a}, s{s_n}, s{s_m0x}")
            flag_store(a, s_a, True)
        todo = allr[issued:issued + G.rpg] if g >= 1 else []
        todo = [x for x in todo if x[0] - NW4 < min(g, 20 - NL)]
        issued += len(todo)
        ex_ = [rd4(*x) for x in todo]
        if g + G.oa < 20:
            ex_.insert(0, ld_o(g + G.oa, 0)); ex_.insert(min(5, len(ex_)), ld_o(g + G.oa, 1))
        for j in range(5):
            for ii in range(2 if g < 20 - NL else 1):
                a(mf4(g, j, ii))
                if ex_: a(ex_.pop(0))
        for x in ex_: a(x)
    assert issued == len(allr)
    if G.oin:
        a(f"v_and_b32 v{pf}, 28, v{T[4]}")
        a(f"buffer_load_dword v{T[0]}, v{pf}, {srd(SF)}, s{s_m0x} offen sc1")
    if NL:
        ms = [mf4(g, j, 1) for g in range(20 - NL, 20) for j in range(5)]
        cs = [x for j in range(5) for x in conv(j, 0)]
        for k, x in enumerate(ms):
            a(x)
            if k >= 3:
                for y in cs[:2]: a(y)
                cs = cs[2:]
        for y in cs: a(y)
        stamp(a, 9)
        a("s_nop 3")
        for j in range(5):
            for y in conv(j, 1): a(y)
    else:
        stamp(a, 9)
        for j in range(5):
            if j == 4: a("s_nop 1")
            for ii in range(2):
                for y in conv(j, ii): a(y)
    a("s_waitcnt lgkmcnt(0)")
    for i in range(5): a(f"ds_read_b128 {v(4*i,4)}, v{rb[i]}")
    if G.oin:
        Lgo = a.label("go")
        a(f"s_cmp_eq_u32 s{s_loc}, 0")
        a(f"s_cbranch_scc1 {Lgo}")
        a("s_waitcnt vmcnt(0)")
        a(f"v_cmp_ne_u32 vcc, s{s_tag}, v{T[0]}")
        a(f"s_cbranch_vccz {Lgo}")
        poll(a, pf, f"s{s_m0x}", T[0])
        a(f"{Lgo}:")
    for i in range(5):
        a(f"s_waitcnt lgkmcnt({4-i})")
        a(f"buffer_store_dwordx4 {v(4*i,4)}, v{oc[i]}, {srd(SKV)}, 0 offen {G.ost}")
    a(f"s_or_b32 s{s_a}, s{s_m}, s{s_n}")
    a(f"s_or_b32 s{s_a}, s{s_a}, s{s_wave}")
    a(f"s_cbranch_scc1 {Lfin}")
    a(f"s_lshl_b32 s{s_b}, s{s_blk}, 7")
    a(f"s_add_u32 s{s_b}, s{s_b}, {EOFF}")
    flag_store(a, s_b, False)
    a(f"{Lfin}:")
    dump_stamps(a, 10)
    a(f"{Lend}:")
    a("s_endpgm")

    a(f"{Lcons}:")
    setT(247)
    ACC = 0
    X = [[80 + 16 * b + 4 * i for i in range(4)] for b in range(2)]
    W = [[112 + 20 * b + 4 * j for j in range(5)] for b in range(2)]
    xa = [152, 153]; wa = [154, 155, 156, 157, 158]; xt, xv = 159, 160
    s_wm, s_wn = s_xo, s_wo
    a(f"s_and_b32 s{s_wm}, s{s_wave}, 1")
    a(f"s_lshr_b32 s{s_wn}, s{s_wave}, 1")
    a(f"s_lshl_b32 s{s_b}, s{s_wm}, 13")
    x_addrs(a, xa, s_b)
    for r in range(0, 80, 2): a(f"v_mov_b64 {v(ACC+r,2)}, 0")
    common_ptrs()
    epoch_load()
    att_addrs()
    a(f"s_and_b32 s{s_a}, s{s_n}, 3")
    a(f"s_lshl2_add_u32 s{s_a}, s{s_blk}, s{s_a}")
    a(f"s_lshl1_add_u32 s{s_a}, s{s_a}, s{s_wn}")
    a(f"s_mul_i32 s{s_a}, s{s_a}, {4*HS}")
    a(f"s_lshl1_add_u32 s{s_b}, s{s_m}, s{s_wm}")
    a(f"s_mul_i32 s{s_b}, s{s_b}, {PS}")
    a(f"s_add_u32 s{s_a}, s{s_a}, s{s_b}")
    make_srd(a, SO, 32, f"s{s_a}", 3 * HS + PS)
    a(f"s_lshl3_add_u32 s{s_a}, s{s_blk}, s{s_n}")
    a(f"s_lshl1_add_u32 s{s_a}, s{s_a}, s{s_wn}")
    a(f"s_lshl4_add_u32 s{s_a}, s{s_a}, s{s_m}")
    a(f"s_lshl1_add_u32 s{s_vo}, s{s_a}, s{s_wm}")
    a(f"s_lshr_b32 s{s_k}, s{s_vo}, 3")
    a(f"s_lshl_b32 s{s_k}, s{s_k}, 7")
    a(f"s_and_b32 s{s_a}, s{s_vo}, 7")
    a(f"s_lshl2_add_u32 s{s_k}, s{s_a}, s{s_k}")
    a(f"s_add_u32 s{s_k}, s{s_k}, {FLOFF}")
    a(f"s_and_b32 s{s_vo}, s2, 7")
    a(f"s_lshl_b32 s{s_vo}, s{s_vo}, 7")
    a(f"s_add_u32 s{s_vo}, s{s_vo}, {GFOFF}")
    epoch_fin()
    a(f"s_getreg_b32 s{s_loc}, hwreg(HW_REG_XCC_ID)")
    a(f"s_and_b32 s{s_loc}, s{s_loc}, 7")
    a(f"s_add_u32 s{s_loc}, s{s_loc}, s{s_tag}")
    a(f"s_and_b32 s{s_a}, s2, 7")
    a(f"s_lshl_b32 s{s_m0w}, s{s_a}, 12")
    a(f"s_add_u32 s{s_m0w}, s{s_m0w}, {XOFF}")
    a(f"s_lshr_b32 s{s_a}, s2, 3")
    a(f"s_lshl_b32 s{s_a}, s{s_a}, 7")
    a(f"s_add_u32 s24, s{s_a}, s{s_m0w}")
    a(f"s_cmp_eq_u32 s{s_wave}, 0")
    a(f"s_cselect_b32 s25, 1, 99")
    a(f"v_and_b32 v{xv}, 31, v{lane}")
    a(f"v_lshlrev_b32 v{xv}, 7, v{xv}")
    qv, fv = 161, 246
    a(f"v_min_u32 v{T[0]}, {G.nkv}, v{lane}")
    a(f"s_and_b32 s{s_a}, s{s_m}, 3")
    a(f"s_mul_i32 s{s_a}, s{s_a}, {(G.nkv+1)*128}")
    a(f"v_lshl_add_u32 v{qv}, v{T[0]}, 7, s{s_a}")
    a(f"s_lshl4_add_u32 s{s_st}, s{s_blk}, s{s_n}")
    a(f"s_lshr_b32 s{s_a}, s{s_m}, 2")
    a(f"s_lshl2_add_u32 s{s_st}, s{s_st}, s{s_a}")
    a(f"s_lshl_b32 s{s_st}, s{s_st}, 7")
    a(f"s_add_u32 s{s_st}, s{s_st}, {FLOFF}")
    a(f"v_and_b32 v{T[0]}, 7, v{lane}")
    a(f"v_lshrrev_b32 v{T[1]}, 5, v{lane}")
    a(f"v_lshlrev_b32 v{T[0]}, 2, v{T[0]}")
    a(f"v_lshl_add_u32 v{fv}, v{T[1]}, 12, v{T[0]}")
    if G.tKV == 1: a(f"buffer_load_dword v{xt}, v{qv}, {srd(SKV)}, s{s_ko} offen sc1")
    tr_addrs(a, wa4, True, True, None, WOBASE)
    a(f"v_and_b32 v{T[0]}, 15, v{lane}")
    a(f"v_lshrrev_b32 v{T[1]}, 4, v{lane}")
    a(f"s_movk_i32 s{s_a}, 1280")
    for b in range(5):
        a(f"v_add_u32 v{T[2]}, {4*b}, v{T[1]}")
        a(f"v_mul_u32_u24 v{T[3]}, 205, v{T[2]}")
        a(f"v_lshrrev_b32 v{T[3]}, 10, v{T[3]}")
        a(f"v_lshlrev_b32 v{T[2]}, 8, v{T[2]}")
        a(f"v_mad_u32_u24 v{T[2]}, v{T[3]}, s{s_a}, v{T[2]}")
        a(f"v_lshl_add_u32 v{ob[b]}, v{T[0]}, 4, v{T[2]}")
    a(f"s_xor_b32 s{s_b}, s{s_wave}, 4")
    a(f"s_mul_i32 s{s_b}, s{s_b}, 6144")
    a(f"v_mul_u32_u24 v{T[0]}, 176, v{T[0]}")
    a(f"v_mad_u32_u24 v{T[0]}, v{T[1]}, 40, v{T[0]}")
    a(f"v_add_u32 v{tw}, s{s_b}, v{T[0]}")
    a(f"s_movk_i32 s{s_a}, {2560-160}")
    for i in range(5):
        a(f"v_add_u32 v{T[0]}, {64*i}, v{lane}")
        a(f"v_mul_u32_u24 v{T[1]}, 6554, v{T[0]}")
        a(f"v_lshrrev_b32 v{T[1]}, 16, v{T[1]}")
        a(f"v_lshlrev_b32 v{T[0]}, 4, v{T[0]}")
        a(f"v_mad_u32_u24 v{oc[i]}, v{T[1]}, s{s_a}, v{T[0]}")
        a(f"v_lshl_add_u32 v{T[0]}, v{T[1]}, 4, v{T[0]}")
        a(f"v_add_u32 v{rb[i]}, s{s_b}, v{T[0]}")
    pv1, pv2 = 168, 169
    a(f"v_and_b32 v{T[0]}, 3, v{lane}")
    a(f"s_mov_b32 s{s_a}, {HS}")
    a(f"v_mul_lo_u32 v{pv1}, v{T[0]}, s{s_a}")
    a(f"v_and_b32 v{T[0]}, 7, v{lane}")
    a(f"v_mul_u32_u24 v{pv2}, {HS//8}, v{T[0]}")
    def page_touch():
        a(f"buffer_load_dword v{xt}, v{pv1}, {srd(SO)}, 0 offen sc1")
        a(f"buffer_load_dword v{xt}, v{pv2}, {srd(SKV)}, 0 offen sc1")
    if G.tpg == 1: page_touch()
    if G.tKV == 3: a(f"buffer_load_dword v{xt}, v{fv}, {srd(SF)}, s{s_st} offen sc1")
    a(f"v_mov_b64 v[226:227], 0")
    a(f"v_mov_b32 v{oa1}, 0")
    a(f"s_mov_b32 s{s_it}, 0")
    a(f"s_mov_b32 s{s_m0x}, {(-3*SLOT) & 0xffffffff}")
    a(f"s_cmp_ge_u32 s{s_n}, 4")
    a(f"s_cbranch_scc1 {Lv}")

    def p1_reads(ks, b):
        out = [f"ds_read_b128 {v(X[b][i],4)}, v{xa[ks]} offset:{2048*i}" for i in range(4)]
        for j in range(5):
            for t in range(2):
                out.append(f"ds_read_b64_tr_b16 {v(W[b][j]+2*t,2)}, v{wa[j]} offset:{ks*10240+1280*t}")
        return out
    st_code = {}
    Lcj = a.label("cj")
    def consumer(ktype):
        tr_addrs(a, wa, ktype, False, s_wn, 16384)
        if ktype:
            a(f"v_lshrrev_b32 v{T[0]}, 4, v{lane}")
            a(f"s_mov_b32 s{s_a}, {HS}")
            a(f"v_mul_lo_u32 v{T[0]}, v{T[0]}, s{s_a}")
            a(f"v_and_b32 v{T[1]}, 7, v{lane}")
            a(f"v_and_b32 v{T[2]}, 8, v{lane}")
            a(f"v_lshl_add_u32 v{T[1]}, v{T[2]}, 1, v{T[1]}")
            a(f"v_lshl_add_u32 v{sa[0]}, v{T[1]}, 4, v{T[0]}")
            a(f"v_lshl_add_u32 v{sa[1]}, v{T[1]}, 3, v{T[0]}")
        else:
            a(f"v_lshrrev_b32 v{T[0]}, 4, v{lane}")
            a(f"v_mul_u32_u24 v{T[0]}, 320, v{T[0]}")
            a(f"v_and_b32 v{T[1]}, 15, v{lane}")
            a(f"s_mov_b32 s{s_a}, {HS-320}")
            for j in range(5):
                a(f"v_add_u32 v{T[2]}, {16*j}, v{T[1]}")
                a(f"v_mul_u32_u24 v{T[3]}, 3277, v{T[2]}")
                a(f"v_lshrrev_b32 v{T[3]}, 16, v{T[3]}")
                a(f"v_lshl_add_u32 v{T[2]}, v{T[2]}, 4, v{T[0]}")
                a(f"v_mad_u32_u24 v{sa[j]}, v{T[3]}, s{s_a}, v{T[2]}")
        def mf(b):
            out = []
            for j in range(5):
                for i in range(4):
                    d = v(ACC + 4 * (5 * i + j), 4)
                    A, B = (W[b][j], X[b][i]) if ktype else (X[b][i], W[b][j])
                    out.append(f"v_mfma_f32_16x16x32_bf16 {d}, {v(A,4)}, {v(B,4)}, {d}")
            return out
        Lp = a.label("p1"); Ll = a.label("p1l")
        if G.kst: stamp(a, 14)
        a("s_barrier")
        stamp(a, 1)
        for x in p1_reads(0, 0): a(x)
        a(f"{Lp}:")
        a("s_waitcnt lgkmcnt(8)")
        e = p1_reads(1, 1) + [f"s_add_u32 s{s_it}, s{s_it}, 1", f"s_and_b32 s{s_a}, s{s_it}, 3",
                              f"s_cselect_b32 s{s_a}, {SLOT}, s{s_m0x}", f"s_cmp_eq_u32 s{s_it}, 10"]
        for k, x in enumerate(mf(0)):
            if k == 4: a("s_waitcnt lgkmcnt(4)")
            a(x)
            if e: a(e.pop(0))
        a("s_waitcnt lgkmcnt(8)")
        m1 = mf(1)
        adds = [f"v_add_u32 v{r}, s{s_a}, v{r}" for r in xa + wa]
        for k in range(4):
            a(m1[k])
            for x in adds[2 * k:2 * k + 2]: a(x)
        a("s_waitcnt lgkmcnt(0)")
        a("s_barrier")
        a(f"s_cbranch_scc1 {Ll}")
        e = p1_reads(0, 0)
        for x in m1[4:]:
            a(x)
            if e: a(e.pop(0))
        Lq = a.label("p1q")
        a(f"s_cmp_lg_u32 s{s_it}, s25")
        a(f"s_cbranch_scc1 {Lq}")
        flag_regs(a, s_loc)
        flag_store(a, 24, False)
        a(f"{Lq}:")
        a(f"s_cmp_lg_u32 s{s_it}, {G.xit}")
        a(f"s_cbranch_scc1 {Lp}")
        if G.tpg == 2: page_touch()
        if G.tKV == 2: a(f"buffer_load_dword v{xt}, v{fv}, {srd(SF)}, s{s_st} offen sc1")
        a(f"buffer_load_dword v{xt}, v{xv}, {srd(SF)}, s{s_m0w} offen sc1")
        a(f"s_branch {Lp}")
        a(f"{Ll}:")
        for x in m1[4:]: a(x)
        Lt = a.label("xt"); Ltd = a.label("xtd")
        a(f"s_mov_b32 s{s_c}, {SPIN}")
        a(f"{Lt}:")
        a("s_waitcnt vmcnt(0)")
        a(f"v_subrev_u32 v{T[0]}, s{s_tag}, v{xt}")
        a(f"v_cmp_lt_u32 vcc, 7, v{T[0]}")
        a(f"s_cbranch_vccz {Ltd}")
        a(f"s_sub_u32 s{s_c}, s{s_c}, 1")
        a(f"s_cbranch_scc1 {Ltd}")
        a(f"s_sleep {G.sleep}")
        a(f"buffer_load_dword v{xt}, v{xv}, {srd(SF)}, s{s_m0w} offen sc1")
        a(f"s_branch {Lt}")
        a(f"{Ltd}:")
        a(f"v_cmp_ne_u32 vcc, s{s_loc}, v{xt}")
        a("s_cmp_eq_u64 vcc, 0")
        a(f"s_cselect_b32 s{s_loc}, {1 if G.local else 0}, 0")
        stamp(a, 2)
        def stores(fl, so, cvt):
            if ktype:
                for i in range(4):
                    r = KVD + 10 * i
                    if cvt:
                        for e in range(10): a(f"v_cvt_pk_bf16_f32 v{r+e}, v{ACC+20*i+2*e}, v{ACC+20*i+2*e+1}")
                    o = (i >> 1) * 1024 + (i & 1) * 128
                    a(f"buffer_store_dwordx4 {v(r,4)}, v{sa[0]}, {srd(SO)}, {so} offen offset:{o} {fl}")
                    a(f"buffer_store_dwordx4 {v(r+4,4)}, v{sa[0]}, {srd(SO)}, {so} offen offset:{o+512} {fl}")
                    a(f"buffer_store_dwordx2 {v(r+8,2)}, v{sa[1]}, {srd(SO)}, {so} offen offset:{2048+(i>>1)*256+(i&1)*64} {fl}")
            else:
                for j in range(5):
                    for i2 in range(2):
                        r = KVD + 8 * j + 4 * i2
                        if cvt:
                            r0 = ACC + 4 * (5 * (2 * i2) + j); r1 = ACC + 4 * (5 * (2 * i2 + 1) + j)
                            a(f"v_cvt_pk_bf16_f32 v{r}, v{r0}, v{r0+1}")
                            a(f"v_cvt_pk_bf16_f32 v{r+1}, v{r0+2}, v{r0+3}")
                            a(f"v_cvt_pk_bf16_f32 v{r+2}, v{r1}, v{r1+1}")
                            a(f"v_cvt_pk_bf16_f32 v{r+3}, v{r1+2}, v{r1+3}")
                        a(f"buffer_store_dwordx4 {v(r,4)}, v{sa[j]}, {srd(SO)}, {so} offen offset:{2560+1280*i2} {fl}")
        st_code[ktype] = stores
        Lg = a.label("glob")
        a(f"s_cmp_eq_u32 s{s_loc}, 0")
        a(f"s_cbranch_scc1 {Lg}")
        if not (G.xs & 1): stores(G.lst, "0", True)
        a(f"s_branch {Lcj}")
        a(f"{Lg}:")
        stores("sc1", "0", True)
        if ktype: a(f"s_branch {Lcj}")
    consumer(True)
    a(f"{Lv}:")
    consumer(False)
    a(f"{Lcj}:")
    pad_hop(a, 2)
    a(f"v_mov_b32 v{T[0]}, {MODE_LDS}")
    a(f"v_mov_b32 v{T[1]}, s{s_loc}")
    a(f"ds_write_b32 v{T[0]}, v{T[1]}")
    flag_regs(a)
    def att_init():
        pad_value()
        for b in range(4): pad(b)
        zero_acc()
        wo_scalars()
        a(f"s_lshl2_add_u32 s{s_c}, s{s_m}, s{s_g}")
        a(f"s_lshl_b32 s{s_c}, s{s_c}, 5")
        o_base(SX, s_c, 31 * 2560 + 1280)
    Lg2 = a.label("g2")
    a(f"s_cmp_eq_u32 s{s_loc}, 0")
    a("s_waitcnt lgkmcnt(0)")
    a(f"s_cbranch_scc1 {Lg2}")
    pad_hop(a, 2)
    att_init()
    a("s_waitcnt vmcnt(0)")
    flag_store(a, s_k, True)
    stamp(a, 3)
    poll(a, 246, f"s{s_st}", T[1])
    stamp(a, 4)
    kv_first(False)
    if G.tP:
        a(f"v_min_u32 v{T[0]}, 39, v{lane}")
        a(f"v_lshlrev_b32 v{T[0]}, 7, v{T[0]}")
        a(f"s_sub_u32 s{s_a}, s{s_ko}, {PS}")
        a(f"s_add_u32 s{s_b}, s{s_ko}, {PS}")
        a(f"buffer_load_dword v{gfd}, v{T[0]}, {srd(SKV)}, s{s_a} offen sc1")
        a(f"buffer_load_dword v{gfd}, v{T[0]}, {srd(SKV)}, s{s_b} offen sc1")
    a(f"s_lshr_b32 s{s_a}, s2, 3")
    a(f"s_or_b32 s{s_a}, s{s_a}, s{s_wave}")
    a(f"s_cselect_b32 s{s_st}, 4, {4 if G.el4 else 5}")
    q_prep()
    if G.ip: a("s_setprio 2")
    a("s_barrier")
    q_reads(0)
    a(f"s_branch {Latt}")
    def group_wait(part=None, n=0):
        L = a.label("gp"); Ld = a.label("gpd"); Lc = a.label("gpc")
        if part == 2:
            a(f"s_mov_b32 s{s_c}, {SPIN}")
            a(f"s_waitcnt vmcnt({n})")
            a(f"s_branch {Lc}")
        if part != 2:
            a(f"s_lshl_b32 s{s_b}, s{s_blk}, 6")
            a(f"s_lshr_b32 s{s_a}, s{s_m}, 2")
            a(f"s_add_u32 s{s_b}, s{s_b}, s{s_a}")
            a(f"s_lshl_b32 s{s_b}, s{s_b}, 7")
            a(f"s_add_u32 s{s_b}, s{s_b}, {FLOFF}")
            a(f"v_lshrrev_b32 v{T[0]}, 2, v{lane}")
            a(f"v_and_b32 v{T[1]}, 3, v{lane}")
            a(f"v_lshlrev_b32 v{T[1]}, 3, v{T[1]}")
            a(f"v_lshl_add_u32 v{T[0]}, v{T[0]}, 9, v{T[1]}")
            a(f"s_mov_b32 s{s_c}, {SPIN}")
        a(f"{L}:")
        a(f"buffer_load_dwordx2 {v(T[1],2)}, v{T[0]}, {srd(SF)}, s{s_b} offen sc1")
        if part == 1: return
        a("s_waitcnt vmcnt(0)")
        a(f"{Lc}:")
        a(f"v_cmp_ne_u32 vcc, s{s_tag}, v{T[1]}")
        a(f"v_cmp_ne_u32 s[16:17], s{s_tag}, v{T[2]}")
        a("s_or_b64 vcc, vcc, s[16:17]")
        a(f"s_cbranch_scc0 {Ld}")
        a(f"s_sub_u32 s{s_c}, s{s_c}, 1")
        a(f"s_cbranch_scc1 {Ld}")
        a(f"s_sleep {G.sleep}")
        a(f"s_branch {L}")
        a(f"{Ld}:")
    a(f"{Lg2}:")
    att_init()
    a("s_waitcnt vmcnt(0)")
    a("s_mov_b64 exec, 1")
    a(f"buffer_store_dword v{T[5]}, v{T[4]}, {srd(SF)}, s{s_k} offen sc1")
    a("s_mov_b64 exec, -1")
    stamp(a, 3)
    Lne = a.label("ne")
    a(f"s_lshr_b32 s{s_a}, s2, 3")
    a(f"s_or_b32 s{s_a}, s{s_a}, s{s_wave}")
    a(f"s_cbranch_scc1 {Lne}")
    group_wait()
    flag_store(a, s_vo, False)
    a(f"{Lne}:")
    poll(a, gfv, f"s{s_fg}", T[1])
    stamp(a, 4)
    kv_first(False)
    a(f"s_mov_b32 s{s_st}, 0")
    q_prep()
    if G.ip: a("s_setprio 2")
    a("s_barrier")
    q_reads(0)
    a(f"s_branch {Latt}")

    for Ls, Lb, R1 in spins:
        a(f"{Ls}:")
        a(f"ds_read_b32 v{fd}, v{fr} offset:{16*(R1-1)}")
        a("s_waitcnt lgkmcnt(0)")
        a(f"v_cmp_ne_u32 vcc, 1, v{fd}")
        a(f"s_cbranch_vccnz {Ls}")
        a(f"s_branch {Lb}")
    a(f"{hooks[G.hst][1]}:")
    stamp(a, 11)
    group_wait(1)
    a(f"s_branch {hooks[G.hst][2]}")
    a(f"{hooks[G.hchk][1]}:")
    group_wait(2, pos[G.hchk] - pos[G.hst])
    stamp(a, 12)
    a("buffer_wbl2 sc1")
    a(f"s_branch {hooks[G.hchk][2]}")
    a(f"{hooks[G.hpub][1]}:")
    a("s_waitcnt vmcnt(0)")
    a(f"s_bitset0_b32 s{s_st}, 0")
    flag_regs(a)
    flag_store(a, s_vo, False)
    stamp(a, 13)
    a(f"s_branch {hooks[G.hpub][2]}")
    a(f"{hooks[G.hl][1]}:")
    if G.kill: a(f"s_mov_b32 s{SKV+2}, 0")
    a(f"s_mul_i32 s{s_a}, s{s_wave}, 6144")
    a(f"v_add_u32 v{own}, s{s_a}, v{ka}")
    a(f"s_xor_b32 s{s_a}, s{s_wave}, 4")
    a(f"s_mul_i32 s{s_a}, s{s_a}, 6144")
    a(f"v_add_u32 v{oth}, s{s_a}, v{ka}")
    a(f"s_lshl4_add_u32 s{s_xo}, s{s_blk}, s{s_m}")
    a(f"s_lshl1_add_u32 s{s_c}, s{s_m}, s{s_kh}")
    a(f"s_lshl_b32 s{s_c}, s{s_c}, 6")
    o_base(SO, s_c, 63 * 2560 + 1280)
    a(f"s_lshl2_add_u32 s{s_vo}, s{s_n}, s{s_g}")
    a(f"s_mul_i32 s{s_b}, s{s_vo}, 5")
    a(f"s_add_u32 s{s_b}, s{s_b}, 1")
    a(f"s_lshr_b32 s{s_b}, s{s_b}, 1")
    def funit(dst, u):
        a(f"s_mul_i32 s{dst}, s{u}, 205")
        a(f"s_lshr_b32 s{dst}, s{dst}, 10")
        a(f"s_mul_i32 s{dst}, s{dst}, 5")
        a(f"s_add_u32 s{dst}, s{dst}, s{u}")
        a(f"s_lshl_b32 s{dst}, s{dst}, 8")
    funit(16, s_b)
    a(f"s_add_u32 s{s_a}, s{s_b}, 1")
    funit(17, s_a)
    a(f"s_and_b32 s19, s{s_g}, 1")
    a(f"s_cselect_b32 s{s_a}, -1, 2")
    a(f"s_add_u32 s{s_a}, s{s_a}, s{s_b}")
    funit(18, s_a)
    a(f"s_lshl3_add_u32 s18, s19, s18")
    a(f"s_sub_u32 s17, s17, s16")
    a(f"v_bfe_u32 v{T[2]}, v{lane}, 4, 1")
    a(f"v_mul_u32_u24 v{T[2]}, {16*2560}, v{T[2]}")
    a(f"v_and_b32 v{T[3]}, 15, v{lane}")
    a(f"v_lshl_add_u32 v{T[2]}, v{T[3]}, 4, v{T[2]}")
    a(f"v_lshrrev_b32 v{T[4]}, 5, v{lane}")
    a(f"v_lshl_add_u32 v{T[3]}, v{T[4]}, 20, v{T[2]}")
    a(f"v_mad_u32_u24 v{T[2]}, v{T[4]}, s17, v{T[2]}")
    a(f"v_add_u32 v{oa1}, s16, v{T[2]}")
    a(f"v_add_u32 v{oa2}, s18, v{T[3]}")
    a(f"s_cmp_eq_u32 s{s_loc}, 0")
    a(f"s_cselect_b32 s{s_k}, {FSH}, 2")
    a(f"s_mov_b32 s{s_a}, {F2LOFF}")
    a(f"s_cselect_b32 s{s_a}, {F2OFF}, s{s_a}")
    a(f"s_lshl_b32 s{s_xo}, s{s_xo}, 6")
    a(f"s_lshl_b32 s{s_xo}, s{s_xo}, s{s_k}")
    a(f"s_add_u32 s{s_xo}, s{s_xo}, s{s_a}")
    a(f"s_lshl_b32 s{s_a}, s{s_kh}, 5")
    a(f"s_add_u32 s{s_vo}, s{s_vo}, s{s_a}")
    a(f"s_lshl_b32 s{s_vo}, s{s_vo}, s{s_k}")
    a(f"s_add_u32 s{s_vo}, s{s_vo}, s{s_xo}")
    flag_regs(a)
    if G.tO:
        a(f"s_mov_b32 s{s_b}, {32*2560}")
        for so in ("0", f"s{s_b}"):
            a(f"buffer_load_dword v{gfd}, v{oa1}, {srd(SO)}, {so} offen sc1")
            a(f"buffer_load_dword v{gfd}, v{oa2}, {srd(SO)}, {so} offen sc1")
    a(f"s_lshr_b32 s{s_a}, s{s_g}, 1")
    a(f"s_lshl_b32 s{s_a}, s{s_a}, 5")
    a(f"s_lshl_b32 s{s_a}, s{s_a}, s{s_k}")
    a(f"s_add_u32 s{s_xo}, s{s_xo}, s{s_a}")
    a(f"v_and_b32 v{pf}, 31, v{lane}")
    a(f"v_lshlrev_b32 v{pf}, s{s_k}, v{pf}")
    a(f"buffer_load_dword v{gfd}, v{pf}, {srd(SF)}, s{s_xo} offen sc1")
    a(f"s_lshl4_add_u32 s{s_m0x}, s{s_blk}, s{s_m}")
    a(f"s_lshl2_add_u32 s{s_m0x}, s{s_m0x}, s{s_g}")
    a(f"s_lshl_b32 s{s_m0x}, s{s_m0x}, 5")
    a(f"s_add_u32 s{s_m0x}, s{s_m0x}, {F3OFF}")
    a(f"buffer_load_dword v{gfd}, off, {srd(SF)}, s{s_m0x} sc1")
    a(f"s_branch {hooks[G.hl][2]}")
    if G.early:
        a(f"{LhW}:")
        a("s_nop 3")
        send()
        a(f"s_branch {LhWb}")
    a(f"{hooks[G.hsam][1]}:")
    a(f"buffer_load_dword v{gfd}, v{gfv}, {srd(SF)}, s{s_fg} offen sc1")
    a(f"s_mov_b32 s{s_st}, 16")
    a(f"s_branch {hooks[G.hsam][2]}")
    a(f"{hooks[(0,2)][1]}:")
    nafter = (pos[(0, 2)] - pos[G.hsam]) % (len(names) // 2)
    if not G.rst and not G.kst: stamp(a, 14)
    a(f"s_waitcnt vmcnt({nafter})")
    stamp(a, 15)
    a(f"s_mov_b32 s{s_st}, 0")
    a(f"v_cmp_ne_u32 vcc, s{s_tag}, v{gfd}")
    a(f"s_cbranch_vccz {hooks[(0,2)][2]}")
    if G.defer:
        a(f"s_mov_b32 s{SKV+2}, 0")
        a(f"s_mov_b32 s{s_st}, 32")
        a(f"s_branch {hooks[(0,2)][2]}")
        a(f"{hooks[(2,1)][1]}:")
        poll(a, gfv, f"s{s_fg}", gfd)
        a(f"s_mov_b32 s{SKV+2}, {HS}")
        a(f"s_mov_b32 s{s_st}, 0")
        a(ld_k1(0)); a(ld_k3(0)); a(ld_v(0)); a(ld_k1(1))
        y33 = len(names) - pos[(2, 1)] - len(plan[(3, 3)][1])
        y03 = len(names) - pos[(2, 1)] + pos[(0, 3)] - pos[(0, 0)]
        assert waits[3] <= y33 + 1 and waits[0] <= y03, (waits, y33, y03)
        a(f"s_branch {hooks[(2,1)][2]}")
    else:
        poll(a, gfv, f"s{s_fg}", gfd)
        stamp(a, 15)
        a(f"s_branch {hooks[(0,2)][2]}")

    a(f"{Lslow}:")
    vmx = gfd
    a(f"s_mov_b32 s{SKV+2}, {HS}")
    for q in (2, 3):
        L1 = a.label("s1"); L2 = a.label("s2")
        a(f"v_mov_b32 v{vmx}, 0xff800000")
        a(f"s_mov_b32 s{s_ko}, 0")
        a(f"{L1}:")
        a(ld_k1(0)); a(ld_k1(1)); a(ld_k3(0))
        a("s_waitcnt vmcnt(0)")
        for t in range(2):
            a(qk1(0, q, t)); a(qk2(0, q, t))
            a("s_nop 15")
            for r in range(0, 16, 2):
                a(f"v_max3_f32 v{vmx}, v{S[0]+r}, v{S[0]+r+1}, v{vmx}")
        a(f"s_add_u32 s{s_ko}, s{s_ko}, {PS}")
        a(f"s_cmp_lt_u32 s{s_ko}, {HS}")
        a(f"s_cbranch_scc1 {L1}")
        a(f"v_mov_b32 v{T[0]}, v{vmx}")
        a("s_nop 1")
        a(f"v_permlane32_swap_b32 v{T[0]}, v{vmx}")
        a("s_nop 1")
        a(f"v_max_f32 v{vmx}, v{vmx}, v{T[0]}")
        for r in range(0, 16, 2):
            a(f"v_mov_b64 {v(O[q]+r,2)}, 0")
        a(f"s_mov_b32 s{s_ko}, 0")
        a(f"{L2}:")
        a(ld_k1(0)); a(ld_k1(1)); a(ld_k3(0)); a(ld_v(0)); a(ld_v(1))
        a("s_waitcnt vmcnt(0)")
        for t in range(2):
            a(qk1(0, q, t)); a(qk2(0, q, t))
            a("s_nop 15")
            for r in range(16):
                a(f"v_sub_f32 v{S[0]+r}, v{S[0]+r}, v{vmx}")
            for r in range(16):
                a(ex(0, r))
            a("s_nop 0")
            for r in range(0, 16, 2):
                a(cv(0, r))
            a("s_nop 1")
            a(pv(0, q, t, 0)); a(pv(0, q, t, 1))
        a(f"s_add_u32 s{s_ko}, s{s_ko}, {PS}")
        a(f"s_cmp_lt_u32 s{s_ko}, {HS}")
        a(f"s_cbranch_scc1 {L2}")
    a("s_nop 15")
    a(f"s_mov_b32 s{s_c}, 1")
    a(f"s_branch {Lst}")
    a("Lcode_end:")
    return name

def build():
    a = Asm()
    PADS[:] = [0, 0, 0, 0]
    name = gen(a)
    if G.warm:
        i = a.lines.index(".PADRET")
        a.lines[i:i+1] = [f"Lpad_{c}_{PADS[c]}:" for c in range(4)]
    out = HEADER + "; @launch grid=(256,1,1) block=(512,1,1) lds=163840\n"
    out += '.amdgcn_target "amdgcn-amd-amdhsa--gfx950"\n.text\n' + a.text()
    out += '.section .rodata,"a"\n.p2align 6\n' + kernel_desc(name, 256, 100 if G.diag else 64)
    return out

if __name__ == "__main__":
    path = sys.argv[1] if len(sys.argv) > 1 else f"cdna_kernels/{NAME}.s"
    G.diag = "diag" in sys.argv
    for x in sys.argv[2:]:
        if "=" in x:
            k, val = x.split("=", 1)
            assert hasattr(G, k), k
            setattr(G, k, eval(val))
    open(path, "w").write(build())
    print("wrote", path)
```
